```python
import torch

def _softmax(x, axis=-1):
    return torch.softmax(x, dim=axis)

def _gelu(x):
    return torch.nn.functional.gelu(x, approximate='tanh')

def _silu(x):
    return torch.nn.functional.silu(x)

def _sigmoid(x):
    return torch.sigmoid(x)

def _layernorm(x, axis=-1, eps=1e-05):
    m = x.mean(dim=axis, keepdim=True)
    v = x.var(dim=axis, keepdim=True, unbiased=False)
    return (x - m) / torch.sqrt(v + eps)

def _scatter_add(tgt, idx, src, axis=0):
    return tgt.clone().index_add_(axis, idx, src)

def _segment_sum(src, seg, n):
    out = torch.zeros((n,) + src.shape[1:], dtype=src.dtype)
    return out.index_add_(0, seg, src)

def _pad(x, pw):
    flat = tuple((v for pair in reversed(pw) for v in pair))
    return torch.nn.functional.pad(x, flat)
kernel_name = 'adaLN_cond__grouped_kv_mqa__mixer_gmlp__prompt'

def setup_inputs():

    _w = lambda a: (lambda t: t.to(torch.bfloat16) if t.is_floating_point() else t)(torch.as_tensor(a))

    def _A_setup():
        B, S, D, H = (1, 2048, 640, 32)
        Dh = D // H
        return {'x': _w((lambda *s: torch.randn(*s, dtype=torch.bfloat16) * 0.05)(B, S, D)), 'wq': _w((lambda *s: torch.randn(*s, dtype=torch.bfloat16) * 0.05)(D, H * Dh)), 'wk': _w((lambda *s: torch.randn(*s, dtype=torch.bfloat16) * 0.05)(D, Dh)), 'wv': _w((lambda *s: torch.randn(*s, dtype=torch.bfloat16) * 0.05)(D, Dh)), 'wo': _w((lambda *s: torch.randn(*s, dtype=torch.bfloat16) * 0.05)(H * Dh, D))}
    _A_in = _A_setup()

    def _B_setup():
        B, S, D, F = (1, 2048, 640, 1536)
        Fh = F // 2
        return {'x': _w((lambda *s: torch.randn(*s, dtype=torch.bfloat16) * 0.05)(B, S, D)), 'w_in': _w((lambda *s: torch.randn(*s, dtype=torch.bfloat16) * 0.4)(D, 2 * Fh)), 'w_sp': _w(0.01 * (lambda *s: torch.randn(*s, dtype=torch.bfloat16) * 0.4)(S, S)), 'b_sp': _w(1.0 + 0.01 * (lambda *s: torch.randn(*s, dtype=torch.bfloat16) * 0.05)(S)), 'w_out': _w((lambda *s: torch.randn(*s, dtype=torch.bfloat16) * 0.05)(Fh, D))}
    _B_in = _B_setup()
    return {'A_x': _A_in['x'], 'A_wq': _A_in['wq'], 'A_wk': _A_in['wk'], 'A_wv': _A_in['wv'], 'A_wo': _A_in['wo'], 'B_x': _B_in['x'], 'B_w_in': _B_in['w_in'], 'B_w_sp': _B_in['w_sp'], 'B_b_sp': _B_in['b_sp'], 'B_w_out': _B_in['w_out'], 'c': _w((lambda *s: torch.randn(*s, dtype=torch.bfloat16) * 0.1)(1, 640) * 8.0), 'w_mod': _w((lambda *s: torch.randn(*s, dtype=torch.bfloat16) * 0.1)(640, 6 * 640) * 640 ** (-0.5) * 8.0)}

def reference(A_x, A_wq, A_wk, A_wv, A_wo, B_x, B_w_in, B_w_sp, B_b_sp, B_w_out, c, w_mod):

    def _A_ref(x, wq, wk, wv, wo):
        B, S, D = x.shape
        H = 32
        Dh = D // H
        q = (lambda x, *d: x.permute(*d))((x @ wq).reshape(B, S, H, Dh), 0, 2, 1, 3)
        k = x @ wk
        v = x @ wv
        scores = torch.einsum('bhqd,bkd->bhqk', q, k) * Dh ** (-0.5)
        p = _softmax(scores, axis=-1)
        o = torch.einsum('bhqk,bkd->bhqd', p, v)
        return (lambda x, *d: x.permute(*d))(o, 0, 2, 1, 3).reshape(B, S, H * Dh) @ wo

    def _B_ref(x, w_in, w_sp, b_sp, w_out):
        B, S, D = x.shape
        F = w_in.shape[-1]
        Fh = F // 2
        z = _gelu(torch.einsum('bsd,df->bsf', x, w_in))
        z1 = z[..., :Fh].clone()
        z2 = _layernorm(z[..., Fh:], axis=-1)
        g = torch.einsum('ts,bsf->btf', w_sp, z2) + b_sp[None, :, None]
        return torch.einsum('bsf,fd->bsd', z1 * g, w_out)
    x = A_x
    mod = (_silu(c) @ w_mod).reshape(c.shape[0], 6, 1, -1)
    sa, ca, ga, sb, cb, gb = (mod[:, 0].clone(), mod[:, 1].clone(), mod[:, 2].clone(), mod[:, 3].clone(), mod[:, 4].clone(), mod[:, 5].clone())
    h = _layernorm(x, axis=-1) * (1 + ca) + sa
    x = x + ga * _A_ref(h, A_wq, A_wk, A_wv, A_wo)
    h = _layernorm(x, axis=-1) * (1 + cb) + sb
    x = x + gb * _B_ref(h, B_w_in, B_w_sp, B_b_sp, B_w_out)
    return x
```

```python
import re

class Asm:
    def __init__(self):
        self.lines = []
        self.uid = 0
    def __call__(self, s):
        for l in s.split("\n"):
            l = l.strip()
            if l:
                self.lines.append(l)
    def label(self, base):
        self.uid += 1
        return f"L_{base}_{self.uid}"
    def text(self):
        out = []
        for l in self.lines:
            if l.endswith(":") or l.startswith("."):
                out.append(l)
            else:
                out.append("    " + l)
        return "\n".join(out) + "\n"

def vr(a, n=1):
    return f"v{a}" if n == 1 else f"v[{a}:{a+n-1}]"
def sr(a, n=1):
    return f"s{a}" if n == 1 else f"s[{a}:{a+n-1}]"

_REG = re.compile(r"\b([vsa])(\d+)\b|\b([vsa])\[(\d+):(\d+)\]|\b(vcc|exec|m0|scc)\b")
def regs_of(op):
    out = []
    for m in _REG.finditer(op):
        if m.group(1):
            out.append((m.group(1), int(m.group(2))))
        elif m.group(3):
            out += [(m.group(3), i) for i in range(int(m.group(4)), int(m.group(5)) + 1)]
        else:
            out.append((m.group(6), 0))
    return out

TRANS = ("v_exp_f32", "v_log_f32", "v_rcp_f32", "v_rsq_f32", "v_sqrt_f32", "v_sin_f32", "v_cos_f32", "v_rcp_iflag_f32", "v_exp_f16")

class Ins:
    def __init__(self, text):
        self.text = text
        t = text.split(";")[0].strip()
        parts = t.split(None, 1)
        self.op = parts[0]
        rest = parts[1] if len(parts) > 1 else ""
        ops, depth, cur = [], 0, ""
        for ch in rest:
            if ch == "[": depth += 1
            if ch == "]": depth -= 1
            if ch == "," and depth == 0:
                ops.append(cur.strip()); cur = ""
            else:
                cur += ch
        if cur.strip(): ops.append(cur.strip())
        self.ops = ops
        op = self.op
        self.kind = "other"
        self.dst, self.src = [], []
        self.srcC = []; self.srcAB = []
        self.states = 1
        self.passes = 0
        self.lds_dma = False
        self.dpp = ("row_" in rest or "quad_perm" in rest or "wave_" in rest or "_dpp" in op)
        if op.startswith("v_mfma"):
            self.kind = "mfma"
            self.passes = 8 if "32x32x16" in op else 4 if "16x16x32" in op else 16
            self.dst = regs_of(ops[0]); self.srcAB = regs_of(ops[1]) + regs_of(ops[2]); self.srcC = regs_of(ops[3])
            self.src = self.srcAB + self.srcC
        elif op.startswith("v_"):
            self.kind = "valu"
            if op.startswith("v_cmp"):
                self.dst = regs_of(ops[0]); self.src = sum((regs_of(o) for o in ops[1:]), [])
            elif op in ("v_readfirstlane_b32", "v_readlane_b32"):
                self.dst = regs_of(ops[0]); self.src = sum((regs_of(o) for o in ops[1:]), [])
            elif op.startswith("v_permlane") and "swap" in op:
                self.dst = regs_of(ops[0]) + regs_of(ops[1]); self.src = list(self.dst)
            elif "_co_" in op:
                self.dst = regs_of(ops[0]) + regs_of(ops[1]); self.src = sum((regs_of(o) for o in ops[2:]), [])
            elif op == "v_nop":
                pass
            else:
                self.dst = regs_of(ops[0]); self.src = sum((regs_of(o) for o in ops[1:]), [])
                if op.startswith(("v_fmac", "v_mac", "v_pk_fmac", "v_writelane", "v_dot2c")) or "UNUSED_PRESERVE" in rest or self.dpp:
                    self.src += self.dst
                if op.startswith("v_cndmask") and len(ops) == 3:
                    self.src.append(("vcc", 0))
        elif op.startswith(("buffer_", "global_")):
            self.kind = "vmem"
            self.lds_dma = rest.rstrip().endswith(" lds") or " lds " in rest or "load_lds" in op
            if "load" in op and not self.lds_dma:
                self.dst = regs_of(ops[0]); self.src = sum((regs_of(o) for o in ops[1:]), [])
                if "d16" in op: self.src += self.dst
            elif "atomic" in op and "sc0" in rest:
                self.dst = regs_of(ops[0]); self.src = sum((regs_of(o) for o in ops), [])
            else:
                self.src = sum((regs_of(o) for o in ops), [])
            if self.lds_dma: self.src.append(("m0", 0))
            self.wide_store = ("store" in op) and (op.endswith("x4") or op.endswith("x3"))
            if self.wide_store:
                self.sdata = regs_of(ops[0]) if op.startswith("buffer") else regs_of(ops[1])
        elif op.startswith("ds_"):
            self.kind = "ds"
            if "read" in op or "permute" in op or "swizzle" in op or "rtn" in op:
                self.dst = regs_of(ops[0]); self.src = sum((regs_of(o) for o in ops[1:]), [])
            else:
                self.src = sum((regs_of(o) for o in ops), [])
        elif op.startswith(("s_load", "s_buffer_load", "s_memtime", "s_memrealtime")):
            self.kind = "smem"
            self.dst = regs_of(ops[0]); self.src = sum((regs_of(o) for o in ops[1:]), [])
        elif op == "s_nop":
            self.kind = "nop"; self.states = int(ops[0], 0) + 1
        elif op == "s_waitcnt":
            self.kind = "wait"
            self.vm = self.lgkm = None
            m = re.search(r"vmcnt\((\d+)\)", rest);  self.vm = int(m.group(1)) if m else None
            m = re.search(r"lgkmcnt\((\d+)\)", rest); self.lgkm = int(m.group(1)) if m else None
        elif op.startswith(("s_branch", "s_cbranch")):
            self.kind = "branch"; self.target = ops[0]
        elif op == "s_endpgm":
            self.kind = "end"
        elif op.startswith("s_"):
            self.kind = "salu"
            if op.startswith(("s_cmp", "s_barrier", "s_setprio", "s_sleep", "s_bitcmp")):
                self.src = sum((regs_of(o) for o in ops), [])
            else:
                self.dst = regs_of(ops[0]) if ops else []
                self.src = sum((regs_of(o) for o in ops[1:]), [])
                if "saveexec" in op: self.dst.append(("exec", 0))
        self.trans = any(op.startswith(t) for t in TRANS)

def parse(lines):
    ins, labels = [], {}
    for l in lines:
        if l.startswith(".") or l.startswith(";"): continue
        if l.endswith(":"):
            labels[l[:-1]] = len(ins); continue
        ins.append(Ins(l))
    return ins, labels

def need(p, c):
    n = 0
    pd = set(p.dst)
    if p.kind == "valu":
        vd = {r for r in pd if r[0] in "va"}
        sd = {r for r in pd if r[0] in ("s", "vcc")}
        if c.kind == "mfma" and vd & set(c.src): n = max(n, 2)
        if c.kind == "valu":
            if p.trans and not c.trans and vd & set(c.src): n = max(n, 1)
            if c.op in ("v_readfirstlane_b32", "v_readlane_b32") and vd & set(c.src): n = max(n, 1)
            if c.op.startswith("v_permlane") and vd & set(c.src): n = max(n, 2)
            if c.dpp and vd & set(c.src): n = max(n, 2)
            if sd & set(c.src): n = max(n, 4 if c.op in ("v_readlane_b32", "v_writelane_b32") else 2)
            if ("sdwa" in p.op or "op_sel" in p.text) and vd & (set(c.src) | set(c.dst)): n = max(n, 1)
        if p.op.startswith("v_dot2") and c.kind in ("valu", "mfma", "ds", "vmem") and c.op != p.op and vd & (set(c.src) | set(c.dst)): n = max(n, 3)
        if c.kind == "vmem" and sd & set(c.src): n = max(n, 5)
        if ("exec", 0) in pd: n = max(n, 5)
    if p.kind == "mfma":
        big = {4: 8, 8: 12, 16: 20}[p.passes]
        if c.kind == "mfma":
            if pd & set(c.srcAB): n = max(n, big)
            if pd & set(c.srcC):
                if not (list(p.dst) == list(c.srcC) and p.passes == c.passes): n = max(n, big - 2)
            elif pd & set(c.dst): n = max(n, big)
        elif c.kind in ("valu", "vmem", "ds"):
            if pd & (set(c.src) | set(c.dst)): n = max(n, big)
        if c.kind == "valu" and set(p.srcC) & set(c.dst): n = max(n, {4: 3, 8: 7, 16: 15}[p.passes])
    if p.kind == "vmem" and getattr(p, "wide_store", False):
        if c.kind == "valu" and set(p.sdata) & set(c.dst): n = max(n, 2)
        elif set(p.sdata) & set(c.dst): n = max(n, 1)
    if p.kind == "salu" and ("m0", 0) in pd and c.lds_dma: n = max(n, 1)
    return n

def check_hazards(lines, name=""):
    ins, labels = parse(lines)
    preds = {i: [] for i in range(len(ins) + 1)}
    for i, x in enumerate(ins):
        if x.kind == "end": continue
        if x.kind == "branch":
            preds[labels[x.target]].append(i)
            if x.op == "s_branch": continue
        preds[i + 1].append(i)
    errs = []
    for ci, c in enumerate(ins):
        if c.kind in ("nop", "wait", "branch", "end"): continue
        stack = [(p, 0) for p in preds[ci]]
        seen = {}
        while stack:
            pi, dist = stack.pop()
            if dist >= 20 or seen.get(pi, 99) <= dist: continue
            seen[pi] = dist
            p = ins[pi]
            n = need(p, c)
            if n > dist:
                errs.append(f"{name}: hazard: need {n} states, have {dist}: [{p.text}] -> [{c.text}]")
            for q in preds[pi]:
                stack.append((q, dist + p.states))
    return errs

def check_waits(lines, name="", maxvisit=2):
    ins, labels = parse(lines)
    errs = set()
    work = [(0, (), (), {})]
    steps = 0
    seen = set()
    while work:
        pc, vm, lg, vis = work.pop()
        while pc < len(ins):
            steps += 1
            if steps > 3_000_000:
                errs.add(f"{name}: wait check truncated"); return sorted(errs)
            x = ins[pc]
            if x.kind == "end": break
            touched = set(x.src) | set(x.dst)
            if x.kind not in ("wait",):
                for q, nm in ((vm, "vm"), (lg, "lgkm")):
                    for d, t in q:
                        hit = d & touched
                        if hit and not (x.kind == "vmem" and "d16" in x.op and nm == "vm" and not (d & (set(x.src) - set(x.dst)))):
                            errs.add(f"{name}: {nm} pending [{t}] touched by [{x.text}]")
            if x.kind == "wait":
                if x.vm is not None and len(vm) > x.vm: vm = vm[len(vm) - x.vm:] if x.vm else ()
                if x.lgkm is not None:
                    if any(t.startswith("s_") for _, t in lg):
                        if x.lgkm == 0: lg = ()
                    elif len(lg) > x.lgkm: lg = lg[len(lg) - x.lgkm:] if x.lgkm else ()
            elif x.kind == "vmem":
                vm = vm + ((frozenset(x.dst), x.text),)
                if len(vm) > 63: errs.add(f"{name}: >63 vm outstanding at [{x.text}]")
            elif x.kind in ("ds", "smem"):
                lg = lg + ((frozenset(x.dst), x.text),)
            elif x.kind == "branch":
                t = labels[x.target]
                key = (pc,)
                cnt = vis.get(key, 0)
                if x.op == "s_branch":
                    if cnt >= maxvisit: break
                    vis = dict(vis); vis[key] = cnt + 1
                    pc = t; continue
                if cnt < maxvisit:
                    v2 = dict(vis); v2[key] = cnt + 1
                    st = (t, vm, lg)
                    if st not in seen:
                        seen.add(st)
                        work.append((t, vm, lg, v2))
            pc += 1
    return sorted(errs)
```

```python
import math, struct, sys
from asmlib import *

def f32(x):
    return "0x%08x" % struct.unpack("<I", struct.pack("<f", x))[0]

WS_MOD  = 0x0
WS_XH   = 0x100000
WS_WQKV = 0x400000
WS_WO   = 0x500000
WS_WIN  = 0x600000
WS_WOUT = 0x800000
WS_Q    = 0xA00000
WS_KV   = 0xD00000
WS_O    = 0xE00000
WS_X1   = 0x1100000
WS_ST1  = 0x1400000
WS_ST2  = 0x1480000
WS_Z1   = 0x1500000
WS_Z2R  = 0x1800000
WS_Z2T  = 0x1E00000
WS_Y    = 0x2100000
WS_WSP  = 0x2400000
WS_SIZE = 0x2C00000
KVCH = 26624
OOB = 0x40000000
LOG2E = math.log2(math.e)
KA = dict(x=0, wq=8, wk=16, wv=24, wo=32, w_in=48, w_sp=56, b_sp=64, w_out=72, c=80, w_mod=88, out=96, dbg=104, ws=112)

def srd(a, d, p, nbytes):
    a(f"s_mov_b32 s{d}, s{p}\ns_mov_b32 s{d+1}, s{p+1}\ns_mov_b32 s{d+2}, {nbytes:#x}\ns_mov_b32 s{d+3}, 0x20000")

kernels = []

def begin(name):
    a = Asm()
    a.name = name
    a.uid = 0
    a.label = (lambda base, a=a: (setattr(a, "uid", a.uid + 1), f"L_{name}_{base}_{a.uid}")[1])
    return a

def finish(a, grid, block, lds, nv, acc_off):
    kernels.append((a.name, a.lines, grid, block, lds, nv, acc_off))

def bf16_round(a, v, t):
    a(f"v_cvt_pk_bf16_f32 v{t}, v{v}, v{v}\nv_and_b32 v{v}, 0xffff0000, v{t}")

N_MOD, N_XH, N_PQ, N_PO, N_PIN, N_POUT, N_PSP = 128, 64, 40, 40, 80, 48, 256
def k0():
    a = begin("k0")
    ends = []
    acc = 0
    for n in (N_MOD, N_XH, N_PQ, N_PO, N_PIN, N_POUT, N_PSP):
        acc += n; ends.append(acc)
    grid = acc
    a(f"s_cmp_ge_u32 s2, {grid}\ns_cbranch_scc1 L_k0_end")
    a(f"s_load_dwordx2 s[4:5], s[0:1], {KA['ws']}")
    a("v_and_b32 v1, 63, v0\nv_lshrrev_b32 v2, 6, v0\ns_nop 0\nv_readfirstlane_b32 s14, v2")
    a(f"s_cmp_lt_u32 s2, {ends[0]}\ns_cbranch_scc1 L_k0_mod")
    a(f"s_cmp_lt_u32 s2, {ends[1]}\ns_cbranch_scc1 L_k0_xh")
    a(f"s_cmp_lt_u32 s2, {ends[2]}\ns_cbranch_scc1 L_k0_pq")
    a(f"s_cmp_lt_u32 s2, {ends[3]}\ns_cbranch_scc1 L_k0_po")
    a(f"s_cmp_lt_u32 s2, {ends[4]}\ns_cbranch_scc1 L_k0_pin")
    a(f"s_cmp_lt_u32 s2, {ends[5]}\ns_cbranch_scc1 L_k0_pout")
    a("s_branch L_k0_psp")
    a("L_k0_mod:")
    a(f"s_load_dwordx4 s[16:19], s[0:1], {KA['c']}")
    a("s_and_b32 s3, s2, 7\ns_lshl_b32 s3, s3, 1\ns_bfe_u32 s6, s2, 0x10003\ns_add_u32 s3, s3, s6\ns_lshr_b32 s6, s2, 4\ns_lshl_b32 s6, s6, 4\ns_add_u32 s3, s3, s6")
    a("s_cmp_ge_u32 s3, 120\ns_cbranch_scc1 L_k0_end")
    a("v_lshrrev_b32 v1, 2, v0\nv_and_b32 v2, 3, v0\nv_mul_u32_u24 v3, 7680, v1\nv_lshl_add_u32 v3, v2, 4, v3\nv_lshlrev_b32 v4, 1, v1")
    a("s_waitcnt lgkmcnt(0)")
    srd(a, 8, 4, WS_SIZE); srd(a, 20, 16, 1280); srd(a, 24, 18, 640 * 7680)
    a("s_lshl_b32 s6, s3, 6")
    for p in range(10):
        a(f"buffer_load_ushort v{10+p}, v4, s[20:23], 0 offen offset:{128*p}")
    for p in range(10):
        a(f"buffer_load_dwordx4 v[{20+4*p}:{23+4*p}], v3, s[24:27], s6 offen")
        if p < 9: a(f"s_add_u32 s6, s6, {64*7680}")
    for i in range(8): a(f"v_mov_b32 v{64+i}, 0")
    a("s_waitcnt vmcnt(10)")
    for p in range(10):
        v = 10 + p
        a(f"v_lshlrev_b32 v{v}, 16, v{v}\nv_mul_f32 v5, {f32(-LOG2E)}, v{v}\nv_exp_f32 v5, v5\ns_nop 0\nv_add_f32 v5, 1.0, v5\nv_rcp_f32 v5, v5\ns_nop 0\nv_mul_f32 v{v}, v{v}, v5")
        bf16_round(a, v, 5)
    for p in range(10):
        a(f"s_waitcnt vmcnt({9-p})")
        for i in range(4):
            d = 20 + 4*p + i
            a(f"v_lshlrev_b32 v5, 16, v{d}\nv_and_b32 v6, 0xffff0000, v{d}\nv_fmac_f32 v{64+2*i}, v{10+p}, v5\nv_fmac_f32 v{65+2*i}, v{10+p}, v6")
    a("v_lshlrev_b32 v5, 7, v1\nv_lshl_add_u32 v5, v2, 5, v5")
    a("ds_write_b128 v5, v[64:67]\nds_write_b128 v5, v[68:71] offset:16")
    a("v_and_b32 v6, 31, v0\nv_lshrrev_b32 v7, 5, v0\nv_lshlrev_b32 v6, 2, v6\nv_lshl_add_u32 v8, v7, 10, v6")
    a("s_waitcnt lgkmcnt(0)\ns_barrier")
    for i in range(8): a(f"ds_read_b32 v{20+i}, v8 offset:{128*i}")
    a("s_waitcnt lgkmcnt(0)")
    for i in range(1, 8): a(f"v_add_f32 v20, v20, v{20+i}")
    a("v_lshl_add_u32 v8, v7, 7, v6\nds_write_b32 v8, v20 offset:8192\ns_waitcnt lgkmcnt(0)\ns_barrier")
    for i in range(8): a(f"ds_read_b32 v{20+i}, v6 offset:{8192+128*i}")
    a("s_waitcnt lgkmcnt(0)")
    for i in range(1, 8): a(f"v_add_f32 v20, v20, v{20+i}")
    bf16_round(a, 20, 5)
    a("v_add_f32 v21, 1.0, v20")
    bf16_round(a, 21, 5)
    a("s_sub_u32 s6, s3, 20\ns_cmp_lt_u32 s6, 20\ns_cselect_b32 s7, 1, 0\ns_sub_u32 s6, s3, 80\ns_cmp_lt_u32 s6, 20\ns_cselect_b32 s6, 1, s7\ns_cmp_eq_u32 s6, 0")
    l = a.label("noinc")
    a(f"s_cbranch_scc1 {l}\nv_mov_b32 v20, v21\n{l}:")
    a(f"s_lshl_b32 s6, s3, 7\nv_cmp_gt_u32 vcc, 32, v0\ns_and_saveexec_b64 s[28:29], vcc\ns_cbranch_execz L_k0_end")
    a(f"buffer_store_dword v20, v6, s[8:11], s6 offen offset:{WS_MOD}")
    a("s_branch L_k0_end")
    a("L_k0_xh:")
    a(f"s_load_dwordx2 s[16:17], s[0:1], {KA['x']}")
    a(f"s_sub_u32 s3, s2, {ends[0]}")
    a("v_and_b32 v2, 31, v1\nv_lshrrev_b32 v3, 5, v1\nv_mul_u32_u24 v4, 1280, v2\nv_lshl_add_u32 v4, v3, 4, v4")
    a(f"s_mul_i32 s6, s3, {32*1280}\ns_mul_i32 s7, s14, 320\ns_add_u32 s6, s6, s7")
    a("s_waitcnt lgkmcnt(0)")
    srd(a, 8, 4, WS_SIZE); srd(a, 20, 16, 2048 * 1280)
    for i in range(10):
        a(f"buffer_load_dwordx4 v[{20+4*i}:{23+4*i}], v4, s[20:23], s6 offen offset:{32*i}")
    a("v_mov_b32 v6, 0\nv_mov_b32 v7, 0")
    for i in range(10):
        a(f"s_waitcnt vmcnt({9-i})")
        for d in range(4):
            s = 20 + 4*i + d; lo = 64 + 8*i + 2*d
            a(f"v_lshlrev_b32 v{lo}, 16, v{s}\nv_and_b32 v{lo+1}, 0xffff0000, v{s}")
            a(f"v_add_f32 v6, v6, v{lo}\nv_fmac_f32 v7, v{lo}, v{lo}\nv_add_f32 v6, v6, v{lo+1}\nv_fmac_f32 v7, v{lo+1}, v{lo+1}")
    a("v_lshlrev_b32 v5, 3, v0\nds_write_b64 v5, v[6:7]\nv_lshlrev_b32 v5, 3, v2\ns_waitcnt lgkmcnt(0)\ns_barrier")
    for i in range(8): a(f"ds_read_b64 v[{20+2*i}:{21+2*i}], v5 offset:{256*i}")
    a("s_waitcnt lgkmcnt(0)")
    for i in range(1, 8): a(f"v_add_f32 v20, v20, v{20+2*i}\nv_add_f32 v21, v21, v{21+2*i}")
    a(f"v_mul_f32 v20, {f32(1/640)}, v20\nv_mul_f32 v21, {f32(1/640)}, v21\nv_fma_f32 v21, -v20, v20, v21\nv_max_f32 v21, 0, v21\nv_add_f32 v21, {f32(1e-5)}, v21\nv_rsq_f32 v21, v21\ns_nop 0\nv_mul_f32 v20, v20, v21")
    a(f"s_mul_i32 s6, s3, {40*1024}\ns_mul_i32 s7, s14, {10*1024}\ns_add_u32 s6, s6, s7\ns_add_u32 s6, s6, {WS_XH:#x}\nv_lshlrev_b32 v4, 4, v1")
    for i in range(10):
        for d in range(4):
            lo = 64 + 8*i + 2*d
            a(f"v_fma_f32 v{lo}, v{lo}, v21, -v20\nv_fma_f32 v{lo+1}, v{lo+1}, v21, -v20\nv_cvt_pk_bf16_f32 v{24+4*i+d}, v{lo}, v{lo+1}")
        a(f"buffer_store_dwordx4 v[{24+4*i}:{27+4*i}], v4, s[8:11], s6 offen offset:{(i%4)*1024}")
        if i % 4 == 3: a("s_add_u32 s6, s6, 4096")
    a("s_branch L_k0_end")

    def lane_fields():
        a("v_and_b32 v2, 31, v1\nv_lshrrev_b32 v3, 5, v1\nv_and_b32 v4, 15, v1\nv_lshlrev_b32 v9, 4, v1")
    def loads(srdn, voff, dst, ebase_sgpr, e_list, rs):
        for j in range(8):
            off = e_list[j] * rs
            a(f"s_add_u32 s30, s{ebase_sgpr}, {off}")
            op = "buffer_load_ushort"
            a(f"{op} v{dst + j//2 + (0 if j % 2 == 0 else 24)}, v{voff}, s[{srdn}:{srdn+3}], s30 offen")
    E_NAT = list(range(8))
    E_PERM = [(j & 3) + 8 * (j >> 2) for j in range(8)]
    E_O5 = [20 * (j >> 1) + (j & 1) for j in range(8)]

    a("L_k0_pq:")
    a(f"s_load_dwordx2 s[16:17], s[0:1], {KA['wq']}\ns_load_dwordx4 s[32:35], s[0:1], {KA['wk']}")
    a(f"s_sub_u32 s3, s2, {ends[1]}\ns_and_b32 s13, s3, 7\ns_lshr_b32 s12, s3, 3\ns_lshl_b32 s12, s12, 3\ns_lshl_b32 s6, s14, 1\ns_add_u32 s12, s12, s6")
    lane_fields()
    a(f"v_lshrrev_b32 v5, 4, v2\nv_mul_u32_u24 v5, 20, v5\nv_add_u32 v5, v5, v4\ns_mul_i32 s6, s13, 80\nv_add_u32 v5, s6, v5\nv_lshlrev_b32 v5, 1, v5\nv_mul_u32_u24 v6, {8*1280}, v3\nv_add_u32 v10, v5, v6\nv_add_u32 v11, 80, v10")
    a("v_bfe_u32 v5, v4, 1, 1\nv_lshrrev_b32 v7, 3, v4\nv_lshl_add_u32 v5, v7, 1, v5\nv_mul_u32_u24 v5, 20, v5\nv_bfe_u32 v7, v4, 2, 1\nv_lshl_add_u32 v5, v7, 1, v5\nv_and_b32 v7, 1, v4\nv_add_u32 v5, v5, v7\nv_add_u32 v5, 16, v5\nv_add_u32 v5, s6, v5\nv_lshlrev_b32 v5, 1, v5\nv_add_u32 v12, v5, v6")
    a("v_lshrrev_b32 v5, 2, v4\nv_lshlrev_b32 v5, 1, v5\nv_add_u32 v5, v5, v7\nv_add_u32 v5, 16, v5\nv_and_b32 v8, 10, v4\nv_cmp_eq_u32 vcc, 0, v8")
    a(f"v_mov_b32 v8, {OOB//2:#x}\ns_nop 0\nv_cndmask_b32 v5, v8, v5, vcc\ns_bitcmp1_b32 s13, 0\ns_cselect_b64 vcc, -1, 0\nv_cndmask_b32 v5, v4, v5, vcc\nv_lshlrev_b32 v5, 1, v5\nv_mul_u32_u24 v6, {8*40}, v3\nv_add_u32 v13, v5, v6")
    a("s_waitcnt lgkmcnt(0)")
    srd(a, 8, 4, WS_SIZE); srd(a, 20, 16, 640 * 1280)
    a("s_cmp_ge_u32 s13, 2\ns_cselect_b32 s32, s34, s32\ns_cselect_b32 s33, s35, s33\ns_cmp_ge_u32 s13, 4\ns_cselect_b32 s7, 0, 25600")
    a("s_mov_b32 s24, s32\ns_mov_b32 s25, s33\ns_mov_b32 s26, s7\ns_mov_b32 s27, 0x20000")
    for q in range(2):
        for i in range(4): a(f"v_mov_b32 v{20+12*q+8+i}, 0\nv_mov_b32 v{44+12*q+8+i}, 0")
    for q in range(2):
        a(f"s_add_u32 s6, s12, {q}\ns_mul_i32 s28, s6, {16*1280}\ns_mul_i32 s29, s6, {16*40}")
        loads(20, 10, 20+12*q, 28, E_NAT, 1280)
        loads(20, 11, 24+12*q, 28, E_NAT, 1280)
        a("s_mov_b32 exec_lo, 0xffff\ns_mov_b32 exec_hi, 0xffff")
        loads(20, 12, 28+12*q, 28, E_NAT, 1280)
        a("s_mov_b32 exec_lo, 0xffff0000\ns_mov_b32 exec_hi, 0xffff0000")
        loads(24, 13, 28+12*q, 29, E_NAT, 40)
        a("s_mov_b64 exec, -1")
        if q == 0: a("s_waitcnt vmcnt(16)")
    a(f"s_mul_i32 s6, s13, 40\ns_add_u32 s6, s6, s12\ns_mul_i32 s6, s6, 3072\ns_add_u32 s6, s6, {WS_WQKV:#x}\ns_waitcnt vmcnt(0)")
    for i in range(24): a(f"v_lshl_or_b32 v{20+i}, v{44+i}, 16, v{20+i}")
    for q in range(2):
        for ft in range(3):
            a(f"buffer_store_dwordx4 v[{20+12*q+4*ft}:{23+12*q+4*ft}], v9, s[8:11], s6 offen offset:{ft*1024}")
        a("s_add_u32 s6, s6, 3072")
    a("s_branch L_k0_end")

    def pack_nat(label, start, kaoff, rs, nbytes, ncol, nks, wsbase, otype, halves):
        a(f"{label}:")
        a(f"s_load_dwordx2 s[16:17], s[0:1], {kaoff}")
        a(f"s_sub_u32 s3, s2, {start}\ns_and_b32 s13, s3, 7\ns_lshr_b32 s12, s3, 3")
        if halves:
            a("s_and_b32 s15, s12, 1\ns_lshr_b32 s12, s12, 1")
        a("s_lshl_b32 s12, s12, 3\ns_lshl_b32 s6, s14, 1\ns_add_u32 s12, s12, s6")
        lane_fields()
        a(f"s_mul_i32 s6, s13, {ncol}")
        if halves:
            a("s_cmp_eq_u32 s15, 0\ns_cselect_b32 s7, 768, 0\ns_add_u32 s6, s6, s7")
        a(f"v_add_u32 v5, s6, v2\nv_lshlrev_b32 v5, 1, v5\nv_mul_u32_u24 v6, {4*rs}, v3\nv_add_u32 v10, v5, v6\nv_add_u32 v11, 64, v10\nv_add_u32 v12, 128, v10")
        if otype:
            a(f"v_mul_u32_u24 v6, {2*rs}, v3\nv_add_u32 v14, v5, v6\nv_add_u32 v15, 64, v14\nv_add_u32 v16, 128, v14")
        if ncol == 80:
            a(f"v_mov_b32 v8, {OOB:#x}\nv_cmp_gt_u32 vcc, 16, v2\ns_nop 1\nv_cndmask_b32 v12, v8, v12, vcc")
            if otype: a("v_cndmask_b32 v16, v8, v16, vcc")
        a("s_waitcnt lgkmcnt(0)")
        srd(a, 8, 4, WS_SIZE); srd(a, 20, 16, nbytes)
        for q in range(2):
            a(f"s_add_u32 s6, s12, {q}")
            if not otype:
                a(f"s_mul_i32 s28, s6, {16*rs}")
                for ft in range(3): loads(20, 10+ft, 20+12*q+4*ft, 28, E_PERM, rs)
            else:
                l5, ld = a.label("u4"), a.label("ud")
                a(f"s_mul_i32 s7, s6, 52429\ns_lshr_b32 s7, s7, 18\ns_mul_i32 s29, s7, 5\ns_sub_u32 s29, s6, s29\ns_mul_i32 s7, s7, 80\ns_cmp_eq_u32 s29, 4\ns_cbranch_scc1 {l5}")
                a(f"s_mul_i32 s29, s29, 20\ns_add_u32 s7, s7, s29\ns_mul_i32 s28, s7, {rs}")
                for ft in range(3): loads(20, 10+ft, 20+12*q+4*ft, 28, E_PERM, rs)
                a(f"s_branch {ld}\n{l5}:\ns_add_u32 s7, s7, 16\ns_mul_i32 s28, s7, {rs}")
                for ft in range(3): loads(20, 14+ft, 20+12*q+4*ft, 28, E_O5, rs)
                a(f"{ld}:")
        if halves:
            a(f"s_lshl_b32 s6, s13, 1\ns_add_u32 s6, s6, s15\ns_mul_i32 s6, s6, {nks}")
        else:
            a(f"s_mul_i32 s6, s13, {nks}")
        a(f"s_add_u32 s6, s6, s12\ns_mul_i32 s6, s6, 3072\ns_add_u32 s6, s6, {wsbase:#x}\ns_waitcnt vmcnt(0)")
        for i in range(24): a(f"v_lshl_or_b32 v{20+i}, v{44+i}, 16, v{20+i}")
        for q in range(2):
            for ft in range(3):
                a(f"buffer_store_dwordx4 v[{20+12*q+4*ft}:{23+12*q+4*ft}], v9, s[8:11], s6 offen offset:{ft*1024}")
            a("s_add_u32 s6, s6, 3072")
        a("s_branch L_k0_end")
    pack_nat("L_k0_po", ends[2], KA['wo'], 1280, 640*1280, 80, 40, WS_WO, True, False)
    pack_nat("L_k0_pin", ends[3], KA['w_in'], 3072, 640*3072, 96, 40, WS_WIN, False, True)
    pack_nat("L_k0_pout", ends[4], KA['w_out'], 1280, 768*1280, 80, 48, WS_WOUT, False, False)

    a("L_k0_psp:")
    a(f"s_load_dwordx2 s[16:17], s[0:1], {KA['w_sp']}")
    a(f"s_sub_u32 s3, s2, {ends[5]}\ns_lshr_b32 s12, s3, 2\ns_and_b32 s13, s3, 3\ns_lshl_b32 s13, s13, 5\ns_lshl_b32 s6, s14, 3\ns_add_u32 s13, s13, s6")
    lane_fields()
    a("v_lshlrev_b32 v5, 12, v2\nv_lshl_add_u32 v5, v3, 4, v5")
    a(f"s_lshl_b32 s6, s12, 17\ns_lshl_b32 s7, s13, 5\ns_add_u32 s6, s6, s7")
    a("s_waitcnt lgkmcnt(0)")
    srd(a, 8, 4, WS_SIZE); srd(a, 20, 16, 2048 * 4096)
    for i in range(8):
        a(f"buffer_load_dwordx4 v[{20+4*i}:{23+4*i}], v5, s[20:23], s6 offen offset:{32*i}")
    a(f"s_lshl_b32 s6, s12, 7\ns_add_u32 s6, s6, s13\ns_lshl_b32 s6, s6, 10\ns_add_u32 s6, s6, {WS_WSP:#x}")
    for i in range(8):
        a(f"s_waitcnt vmcnt({7})" if i == 0 else f"s_waitcnt vmcnt(7)")
        a(f"buffer_store_dwordx4 v[{20+4*i}:{23+4*i}], v9, s[8:11], s6 offen offset:{(i%4)*1024}")
        if i == 3: a("s_add_u32 s6, s6, 4096")
    a("L_k0_end:\ns_endpgm")
    finish(a, grid, 256, 9216, 144, 144)

RED_BYTES = 4 * 24 * 1024
def gemm_prologue(a, extra_loads=""):
    a(f"s_cmp_ge_u32 s2, 256\ns_cbranch_scc1 L_{a.name}_end")
    a(f"s_load_dwordx2 s[4:5], s[0:1], {KA['ws']}")
    a(extra_loads)
    a("v_and_b32 v4, 63, v0\nv_lshrrev_b32 v5, 6, v0\nv_lshlrev_b32 v1, 4, v4\nv_readfirstlane_b32 s14, v5\nv_and_b32 v2, 31, v4\nv_lshrrev_b32 v3, 5, v4")
    a("s_and_b32 s12, s2, 7\ns_lshr_b32 s3, s2, 6\ns_lshl_b32 s3, s3, 3\ns_add_u32 s12, s12, s3\ns_bfe_u32 s13, s2, 0x30003")
    a("s_waitcnt lgkmcnt(0)")
    srd(a, 8, 4, WS_SIZE)

class Stream:
    def __init__(self, a, sreg):
        self.a, self.s, self.cur = a, sreg, 0
    def load(self, dst, byte_off):
        a = self.a
        while byte_off - self.cur > 3072 or byte_off < self.cur:
            step = ((byte_off - self.cur) // 4096) * 4096
            if byte_off < self.cur: step = byte_off - self.cur
            a(f"s_add_u32 s{self.s}, s{self.s}, {step & 0xffffffff:#x}")
            self.cur += step
        a(f"buffer_load_dwordx4 v[{dst}:{dst+3}], v1, s[8:11], s{self.s} offen offset:{byte_off - self.cur}")

def acc_reg(tt, ft): return (tt * 3 + ft) * 16

def mfma6(a, A0, A1, W, first):
    for tt, A in ((0, A0), (1, A1)):
        for ft in range(3):
            r = acc_reg(tt, ft)
            c = "0" if first else f"a[{r}:{r+15}]"
            a(f"v_mfma_f32_32x32x16_bf16 a[{r}:{r+15}], v[{W+4*ft}:{W+4*ft+3}], v[{A}:{A+3}], {c}")

def reduce_write(a, vtmp):
    a(f"s_mul_i32 s3, s14, {24*1024}\nv_add_u32 v{vtmp}, s3, v1\ns_nop 7")
    for q in range(24):
        a(f"ds_write_b128 v{vtmp}, a[{4*q}:{4*q+3}] offset:{q*1024}")
    a("s_waitcnt lgkmcnt(0)\ns_barrier")

def reduce_read(a, vtmp, R, T):
    a(f"s_mul_i32 s3, s14, {6*1024}\nv_add_u32 v{vtmp}, s3, v1\nv_add_u32 v{vtmp+1}, {48*1024}, v{vtmp}")
    for p in range(4):
        for i in range(6):
            d = R + 4*i if p == 0 else T + (p-1)*24 + 4*i
            a(f"ds_read_b128 v[{d}:{d+3}], v{vtmp + p//2} offset:{(p%2)*24*1024 + i*1024}")
    for p in range(1, 4):
        a(f"s_waitcnt lgkmcnt({min(15, 6*(3-p))})")
        for i in range(24):
            a(f"v_add_f32 v{R+i}, v{R+i}, v{T+(p-1)*24+i}")

def transform(a, frags, P, ln=None):
    for (F, rr, nm) in frags:
        for d in range(4):
            a(f"v_lshlrev_b32 v250, 16, v{F+d}\nv_and_b32 v251, 0xffff0000, v{F+d}")
            if rr is not None:
                a(f"v_fma_f32 v250, v250, v{rr}, v{nm}\nv_fma_f32 v251, v251, v{rr}, v{nm}")
            a(f"v_fma_f32 v250, v250, v{P+8+2*d}, v{P+2*d}\nv_fma_f32 v251, v251, v{P+9+2*d}, v{P+1+2*d}\nv_cvt_pk_bf16_f32 v{F+d}, v250, v251")

PAR_LDS = RED_BYTES
def param_dma(a, mod_off):
    a(f"s_lshl_b32 s3, s14, 11\ns_add_u32 s3, s3, {PAR_LDS}\ns_mov_b32 m0, s3\ns_mul_i32 s6, s14, 640\ns_add_u32 s6, s6, {WS_MOD + mod_off}")
    a("buffer_load_dwordx4 v1, s[8:11], s6 offen lds")
    a(f"s_add_u32 s7, s3, 1024\ns_mov_b32 m0, s7\ns_add_u32 s6, s6, 2560")
    a("buffer_load_dwordx4 v1, s[8:11], s6 offen lds")

def param_read(a, P, ks, second_off):
    for arr in range(2):
        a(f"ds_read_b128 v[{P+8*arr}:{P+8*arr+3}], v6 offset:{arr*1024 + ks*64}")
        a(f"ds_read_b128 v[{P+8*arr+4}:{P+8*arr+7}], v6 offset:{arr*1024 + ks*64 + second_off}")

def k1():
    a = begin("k1")
    gemm_prologue(a)
    param_dma(a, 0)
    a("v_lshlrev_b32 v6, 5, v3\nv_add_u32 v6, s3, v6")
    FA, FW, P0 = 8, 88, 208
    a(f"s_mul_i32 s16, s12, {2*40*1024}\ns_mul_i32 s6, s14, {10*1024}\ns_add_u32 s16, s16, s6\ns_add_u32 s16, s16, {WS_XH:#x}\ns_add_u32 s17, s16, {40*1024}")
    a(f"s_mul_i32 s18, s13, {40*3072}\ns_mul_i32 s6, s14, {10*3072}\ns_add_u32 s18, s18, s6\ns_add_u32 s18, s18, {WS_WQKV:#x}")
    sa0, sa1, sw = Stream(a, 16), Stream(a, 17), Stream(a, 18)
    for ks in range(10):
        sa0.load(FA + 8*ks, ks*1024); sa1.load(FA + 8*ks + 4, ks*1024)
        for ft in range(3): sw.load(FW + 12*ks + 4*ft, (ks*3+ft)*1024)
    a("s_waitcnt vmcnt(50)")
    param_read(a, P0, 0, 16)
    for ks in range(10):
        P = P0 + 16*(ks % 2)
        if ks < 9: param_read(a, P0 + 16*((ks+1) % 2), ks+1, 16)
        a(f"s_waitcnt vmcnt({5*(9-ks)+3}) lgkmcnt({4 if ks < 9 else 0})")
        transform(a, [(FA+8*ks, None, None), (FA+8*ks+4, None, None)], P)
        a(f"s_waitcnt vmcnt({5*(9-ks)})")
        mfma6(a, FA+8*ks, FA+8*ks+4, FW+12*ks, ks == 0)
    reduce_write(a, 7)
    R, T = 8, 32
    reduce_read(a, 4, R, T)
    QS = LOG2E / math.sqrt(20.0)
    a(f"s_lshr_b32 s15, s14, 1\ns_lshl_b32 s16, s12, 1\ns_add_u32 s16, s16, s15")
    a(f"s_lshl_b32 s17, s16, 3\ns_add_u32 s17, s17, s13\ns_mul_i32 s17, s17, 5\ns_and_b32 s15, s14, 1\ns_mul_i32 s6, s15, 3\ns_add_u32 s17, s17, s6\ns_lshl_b32 s17, s17, 10\ns_add_u32 s17, s17, {WS_Q:#x}")
    a(f"s_mov_b32 s7, {f32(QS)}")
    def qunit(i):
        for j in range(8): a(f"v_mul_f32 v{T+j}, s7, v{R+8*i+j}")
        for d in range(4): a(f"v_cvt_pk_bf16_f32 v{T+8+4*i+d}, v{T+2*d}, v{T+2*d+1}")
        a(f"buffer_store_dwordx4 v[{T+8+4*i}:{T+11+4*i}], v1, s[8:11], s17 offen offset:{i*1024}")
    qunit(0); qunit(1)
    lsp = a.label("spare")
    a(f"s_cmp_eq_u32 s15, 1\ns_cbranch_scc1 {lsp}")
    qunit(2)
    a(f"s_branch L_k1_end\n{lsp}:")
    a("s_cmp_ge_u32 s13, 4\ns_cbranch_scc1 L_k1_end")
    S = R + 16
    a(f"s_lshr_b32 s6, s16, 3\ns_mul_i32 s17, s6, {KVCH}\ns_add_u32 s17, s17, {WS_KV:#x}\ns_and_b32 s18, s16, 7")
    l1, lv = a.label("k2"), a.label("v")
    a(f"s_cmp_eq_u32 s13, 3\ns_cbranch_scc0 {l1}\nv_mov_b32 v{S+2}, 1.0\n{l1}:")
    for d in range(4): a(f"v_cvt_pk_bf16_f32 v{T+d}, v{S+2*d}, v{S+2*d+1}")
    l2 = a.label("k2b")
    a(f"s_cmp_ge_u32 s13, 2\ns_cbranch_scc1 {lv}\ns_cmp_eq_u32 s13, 1\ns_cbranch_scc1 {l2}")
    a(f"s_lshl_b32 s18, s18, 10\ns_add_u32 s17, s17, s18\nbuffer_store_dwordx4 v[{T}:{T+3}], v1, s[8:11], s17 offen\ns_branch L_k1_end")
    a(f"{l2}:\ns_lshl_b32 s18, s18, 8\ns_add_u32 s17, s17, s18\ns_add_u32 s17, s17, 24576\nv_lshrrev_b32 v4, 2, v1\nbuffer_store_dword v{T}, v4, s[8:11], s17 offen\ns_branch L_k1_end")
    a(f"{lv}:")
    a(f"s_lshl_b32 s3, s14, 11\ns_add_u32 s3, s3, {PAR_LDS}\nv_lshlrev_b32 v4, 5, v2\nv_lshl_add_u32 v4, v3, 3, v4\nv_add_u32 v4, s3, v4")
    a(f"ds_write_b64 v4, v[{T}:{T+1}]\nds_write_b64 v4, v[{T+2}:{T+3}] offset:16")
    a("v_lshrrev_b32 v4, 4, v1\nv_and_b32 v5, 15, v4\nv_lshrrev_b32 v4, 4, v4")
    a("v_and_b32 v6, 1, v4\nv_lshlrev_b32 v6, 4, v6\nv_lshl_add_u32 v6, v3, 2, v6\nv_lshrrev_b32 v7, 2, v5\nv_add_u32 v6, v6, v7\nv_lshlrev_b32 v6, 5, v6\nv_and_b32 v7, 3, v5\nv_lshl_add_u32 v6, v7, 3, v6\nv_add_u32 v6, s3, v6")
    a("s_waitcnt lgkmcnt(0)")
    a(f"ds_read_b64_tr_b16 v[{T+4}:{T+5}], v6\nds_read_b64_tr_b16 v[{T+6}:{T+7}], v6 offset:256")
    a("v_and_b32 v6, 1, v4\nv_lshlrev_b32 v6, 10, v6\nv_lshl_add_u32 v6, v3, 9, v6\nv_lshl_add_u32 v6, v5, 4, v6")
    a(f"s_lshl_b32 s18, s18, 11\ns_add_u32 s17, s17, s18\ns_add_u32 s17, s17, 8192\ns_cmp_eq_u32 s13, 2\ns_cselect_b32 s6, 256, 0\ns_add_u32 s17, s17, s6")
    a(f"s_waitcnt lgkmcnt(0)\nbuffer_store_dwordx4 v[{T+4}:{T+7}], v6, s[8:11], s17 offen")
    a("L_k1_end:\ns_endpgm")
    finish(a, 256, 256, RED_BYTES + 8192, 256 + 96, 256)

def k2():
    a = begin("k2")
    gemm_prologue(a)
    S0, S1, NM, O, PB, Q1, Q2 = 8, 24, 40, 56, 72, 80, 84
    KA_, KB_, VF = 88, 96, 104
    VA, VB, VD = 4, 5, 6
    a(f"s_lshr_b32 s15, s14, 2\ns_and_b32 s16, s14, 3\ns_lshl_b32 s17, s12, 1\ns_add_u32 s17, s17, s15")
    a(f"s_lshl_b32 s18, s17, 3\ns_add_u32 s18, s18, s13\ns_mul_i32 s18, s18, 5120\ns_add_u32 s18, s18, {WS_Q:#x}\ns_lshl_b32 s6, s16, 10\ns_add_u32 s19, s18, s6\ns_lshl_b32 s6, s16, 2\ns_add_u32 s18, s18, s6\ns_add_u32 s18, s18, 4096")
    a(f"buffer_load_dwordx4 v[{Q1}:{Q1+3}], v1, s[8:11], s19 offen\nbuffer_load_dword v{Q2}, v1, s[8:11], s18 offen")
    for r in (Q2+1, Q2+2, Q2+3, KB_+1, KB_+2, KB_+3, KB_+5, KB_+6, KB_+7): a(f"v_mov_b32 v{r}, 0")
    a("v_lshrrev_b32 v7, 2, v1")
    def dma(ldone):
        for i in range(3):
            a(f"s_add_u32 s22, s21, {i*8192}\ns_mov_b32 m0, s22\ns_add_u32 s23, s20, {i*8192}\nbuffer_load_dwordx4 v1, s[8:11], s23 offen lds")
        a(f"s_cmp_ge_u32 s14, 2\ns_cbranch_scc1 {ldone}")
        a(f"s_add_u32 s22, s21, {3*8192}\ns_mov_b32 m0, s22\ns_add_u32 s23, s20, {3*8192}\nbuffer_load_dwordx4 v1, s[8:11], s23 offen lds")
        a(f"{ldone}:")
    def next_buf(sreg):
        a(f"s_add_u32 s{sreg}, s{sreg}, {KVCH}\ns_cmp_ge_u32 s{sreg}, s26\ns_cselect_b32 s3, {3*KVCH}, 0\ns_sub_u32 s{sreg}, s{sreg}, s3")
    def start_stream():
        a(f"s_lshl_b32 s21, s14, 10\ns_add_u32 s20, s21, {WS_KV:#x}\ns_add_u32 s26, s21, {3*KVCH}")
        dma(a.label("d0"))
        a(f"s_add_u32 s20, s20, {KVCH}"); next_buf(21)
        dma(a.label("d1"))
        a(f"s_add_u32 s20, s20, {KVCH}"); next_buf(21)
        a("s_mov_b32 s24, 0\ns_mov_b32 s25, 0")
        a("s_waitcnt vmcnt(3)\ns_barrier")
    def rdK(t, buf, va=VA, vb=VB):
        a(f"ds_read_b128 v[{KA_+4*buf}:{KA_+4*buf+3}], v{va} offset:{t*1024}\nds_read_b32 v{KB_+4*buf}, v{vb} offset:{24576+t*256}")
    def rdV(t, buf):
        a(f"ds_read_b128 v[{VF+8*buf}:{VF+8*buf+3}], v{VA} offset:{8192+t*2048}\nds_read_b128 v[{VF+8*buf+4}:{VF+8*buf+7}], v{VA} offset:{8192+t*2048+1024}")
    def qk(S, buf, c):
        return [f"v_mfma_f32_32x32x16_bf16 v[{S}:{S+15}], v[{KA_+4*buf}:{KA_+4*buf+3}], v[{Q1}:{Q1+3}], {c}",
                f"v_mfma_f32_32x32x16_bf16 v[{S}:{S+15}], v[{KB_+4*buf}:{KB_+4*buf+3}], v[{Q2}:{Q2+3}], v[{S}:{S+15}]"]
    def set_addr(sreg, va, vb):
        a(f"v_add_u32 v{va}, s{sreg}, v1\nv_add_u32 v{vb}, s{sreg}, v7")
    def max_reduce(S, M):
        a(f"v_max3_f32 v{M}, v{S}, v{S+1}, v{M}")
        for i in range(2, 16, 2): a(f"v_max3_f32 v{M}, v{S+i}, v{S+i+1}, v{M}")
    def finish_max(M):
        a(f"v_mov_b32 v{M+1}, v{M}\ns_nop 1\nv_permlane32_swap_b32 v{M}, v{M+1}\ns_nop 1\nv_max_f32 v{M}, v{M}, v{M+1}")
        for i in range(16): a(f"v_sub_f32 v{NM+i}, 0, v{M}")
    a("s_mov_b32 s27, 0")
    start_stream()
    set_addr(25, VA, VB)
    rdK(0, 0)
    a(f"v_mov_b32 v{PB}, 0xff800000\ns_waitcnt lgkmcnt(0)")
    for x in qk(S0, 0, "0"): a(x)
    a("s_nop 11")
    max_reduce(S0, PB)
    finish_max(PB)
    a("L_k2_main:")
    for i in range(16): a(f"v_mov_b32 v{O+i}, 0")
    rdK(0, 0); rdV(0, 0); rdK(1, 1)
    a("s_waitcnt lgkmcnt(4)")
    for x in qk(S0, 0, f"v[{NM}:{NM+15}]"): a(x)
    a("s_nop 9")
    a("L_k2_loop:")
    for t in range(8):
        S, Sn = (S0, S1) if t % 2 == 0 else (S1, S0)
        b, bn = t % 2, (t + 1) % 2
        if t == 3:
            ls = a.label("nodma")
            a(f"s_waitcnt vmcnt(0)\ns_barrier\ns_cmp_ge_u32 s24, 6\ns_cbranch_scc1 {ls}")
            dma(a.label("dl"))
            a(f"s_add_u32 s20, s20, {KVCH}"); next_buf(21)
            a(f"{ls}:")
        if t == 6:
            a(f"s_add_u32 s25, s25, {KVCH}\ns_cmp_ge_u32 s25, {3*KVCH}\ns_cselect_b32 s3, {3*KVCH}, 0\ns_sub_u32 s25, s25, s3\nv_add_u32 v{VD}, s25, v1\nv_add_u32 v{VB}, s25, v7")
        a("s_waitcnt lgkmcnt(0)")
        m = qk(Sn, bn, f"v[{NM}:{NM+15}]")
        a(m[0])
        for i in range(0, 4): a(f"v_exp_f32 v{S+i}, v{S+i}")
        a(m[1])
        if t < 6: rdK(t + 2, b)
        else: rdK(t - 6, b, va=VD)
        if t == 7: a(f"v_mov_b32 v{VA}, v{VD}")
        rdV((t + 1) % 8, bn)
        for i in range(4, 8): a(f"v_exp_f32 v{S+i}, v{S+i}")
        for i in range(8, 10): a(f"v_exp_f32 v{S+i}, v{S+i}")
        for d in range(4): a(f"v_cvt_pk_bf16_f32 v{PB+d}, v{S+2*d}, v{S+2*d+1}")
        for i in range(10, 12): a(f"v_exp_f32 v{S+i}, v{S+i}")
        a(f"v_mfma_f32_32x32x16_bf16 v[{O}:{O+15}], v[{VF+8*b}:{VF+8*b+3}], v[{PB}:{PB+3}], v[{O}:{O+15}]")
        for i in range(12, 16): a(f"v_exp_f32 v{S+i}, v{S+i}")
        for d in range(4, 8): a(f"v_cvt_pk_bf16_f32 v{PB+d}, v{S+2*d}, v{S+2*d+1}")
        a("s_nop 1")
        a(f"v_mfma_f32_32x32x16_bf16 v[{O}:{O+15}], v[{VF+8*b+4}:{VF+8*b+7}], v[{PB+4}:{PB+7}], v[{O}:{O+15}]")
    a("s_add_u32 s24, s24, 1\ns_cmp_lt_u32 s24, 8\ns_cbranch_scc1 L_k2_loop")
    a("s_waitcnt lgkmcnt(0)\ns_nop 11")
    a(f"s_cmp_eq_u32 s27, 1\ns_cbranch_scc1 L_k2_out")
    a(f"v_mov_b32 v{PB}, {f32(2.0**30)}\nv_mov_b32 v{PB+1}, {f32(2.0**-30)}\nv_cmp_nle_f32 vcc, v{O+2}, v{PB}\nv_cmp_nge_f32 s[28:29], v{O+2}, v{PB+1}\ns_nop 1\ns_or_b64 vcc, vcc, s[28:29]\ns_cselect_b32 s3, 1, 0")
    FLAG = 3 * KVCH
    a(f"v_mov_b32 v{PB}, s3\ns_lshl_b32 s6, s14, 2\ns_add_u32 s6, s6, {FLAG}\nv_mov_b32 v{PB+1}, s6\nds_write_b32 v{PB+1}, v{PB}\nv_mov_b32 v{PB+1}, {FLAG}\ns_waitcnt lgkmcnt(0)\ns_barrier")
    a(f"ds_read_b128 v[{S0}:{S0+3}], v{PB+1}\nds_read_b128 v[{S0+4}:{S0+7}], v{PB+1} offset:16\ns_waitcnt lgkmcnt(0)")
    for i in range(1, 8): a(f"v_or_b32 v{S0}, v{S0}, v{S0+i}")
    a(f"s_nop 0\nv_readfirstlane_b32 s3, v{S0}\ns_cmp_eq_u32 s3, 0\ns_cbranch_scc1 L_k2_out")
    a("s_mov_b32 s27, 1\ns_barrier")
    start_stream()
    a(f"v_mov_b32 v{PB}, 0xff800000")
    a("L_k2_maxloop:")
    set_addr(25, VA, VB)
    for t in range(8):
        rdK(t, 0)
        a("s_waitcnt lgkmcnt(0)")
        for x in qk(S0, 0, "0"): a(x)
        a("s_nop 11")
        max_reduce(S0, PB)
    ls = a.label("nodma2")
    a(f"s_waitcnt vmcnt(0)\ns_barrier\ns_cmp_ge_u32 s24, 6\ns_cbranch_scc1 {ls}")
    dma(a.label("dm"))
    a(f"s_add_u32 s20, s20, {KVCH}"); next_buf(21)
    a(f"{ls}:")
    a(f"s_add_u32 s25, s25, {KVCH}\ns_cmp_ge_u32 s25, {3*KVCH}\ns_cselect_b32 s3, {3*KVCH}, 0\ns_sub_u32 s25, s25, s3")
    a("s_add_u32 s24, s24, 1\ns_cmp_lt_u32 s24, 8\ns_cbranch_scc1 L_k2_maxloop")
    finish_max(PB)
    a("s_barrier")
    start_stream()
    set_addr(25, VA, VB)
    a("s_branch L_k2_main")
    a("L_k2_out:")
    a(f"v_rcp_f32 v{PB}, v{O+2}\ns_nop 0")
    for r in (0, 1, 8, 9, 10, 11, 12, 13, 14, 15): a(f"v_mul_f32 v{O+r}, v{O+r}, v{PB}")
    for d in range(4): a(f"v_cvt_pk_bf16_f32 v{S0+d}, v{O+8+2*d}, v{O+9+2*d}")
    a(f"v_cvt_pk_bf16_f32 v{S0+4}, v{O}, v{O+1}")
    a(f"s_mul_i32 s18, s17, 40\ns_mul_i32 s6, s13, 5\ns_add_u32 s18, s18, s6\ns_lshl_b32 s18, s18, 10\ns_add_u32 s18, s18, {WS_O:#x}\ns_lshl_b32 s6, s16, 10\ns_add_u32 s19, s18, s6\ns_lshl_b32 s6, s16, 2\ns_add_u32 s18, s18, s6\ns_add_u32 s18, s18, 4096")
    a(f"buffer_store_dwordx4 v[{S0}:{S0+3}], v1, s[8:11], s19 offen\nbuffer_store_dword v{S0+4}, v1, s[8:11], s18 offen")
    a("L_k2_end:\ns_endpgm")
    finish(a, 256, 512, 3 * KVCH + 64, 128, 128)

def kproj(name, act_base, w_base, nks, gate_off, final):
    a = begin(name)
    kw = nks // 4
    gemm_prologue(a, f"s_load_dwordx2 s[20:21], s[0:1], {KA['out'] if final else KA['x']}")
    srd(a, 24, 20, 2048 * 1280)
    FA = 8; FW = FA + 8*kw; X = FW + 12*kw
    a(f"s_mul_i32 s16, s12, {2*nks*1024}\ns_mul_i32 s6, s14, {kw*1024}\ns_add_u32 s16, s16, s6\ns_add_u32 s16, s16, {act_base:#x}\ns_add_u32 s17, s16, {nks*1024}")
    a(f"s_mul_i32 s18, s13, {nks*3072}\ns_mul_i32 s6, s14, {kw*3072}\ns_add_u32 s18, s18, s6\ns_add_u32 s18, s18, {w_base:#x}")
    sa0, sa1, sw = Stream(a, 16), Stream(a, 17), Stream(a, 18)
    for ks in range(kw):
        sa0.load(FA + 8*ks, ks*1024); sa1.load(FA + 8*ks + 4, ks*1024)
        for ft in range(3): sw.load(FW + 12*ks + 4*ft, (ks*3+ft)*1024)
    for ks in range(kw):
        a(f"s_waitcnt vmcnt({5*(kw-1-ks)})")
        mfma6(a, FA+8*ks, FA+8*ks+4, FW+12*ks, ks == 0)
    G, XR = 128, 160
    a("s_lshr_b32 s15, s14, 1\ns_lshl_b32 s16, s12, 1\ns_add_u32 s16, s16, s15\ns_and_b32 s15, s14, 1")
    a(f"s_mul_i32 s17, s13, 80\ns_mul_i32 s6, s15, 48\ns_add_u32 s17, s17, s6")
    a(f"s_lshl_b32 s18, s17, 2\ns_add_u32 s18, s18, {WS_MOD + gate_off}\nv_lshlrev_b32 v4, 4, v3")
    for i in range(3):
        a(f"buffer_load_dwordx4 v[{G+8*i}:{G+8*i+3}], v4, s[8:11], s18 offen offset:{64*i}\nbuffer_load_dwordx4 v[{G+8*i+4}:{G+8*i+7}], v4, s[8:11], s18 offen offset:{64*i+32}")
    a(f"v_mul_u32_u24 v5, 1280, v2\nv_lshl_add_u32 v5, v3, 3, v5\ns_mul_i32 s19, s16, {32*1280}\ns_lshl_b32 s6, s17, 1\ns_add_u32 s19, s19, s6")
    a(f"s_mul_i32 s22, s16, 40\ns_mul_i32 s6, s13, 5\ns_add_u32 s22, s22, s6\ns_mul_i32 s6, s15, 3\ns_add_u32 s22, s22, s6\ns_lshl_b32 s22, s22, 10\ns_add_u32 s22, s22, {WS_X1:#x}")
    for i in range(3):
        if final:
            a(f"buffer_load_dwordx4 v[{XR+4*i}:{XR+4*i+3}], v1, s[8:11], s22 offen offset:{1024*i}")
        else:
            a(f"buffer_load_dwordx2 v[{XR+4*i}:{XR+4*i+1}], v5, s[24:27], s19 offen offset:{32*i}\nbuffer_load_dwordx2 v[{XR+4*i+2}:{XR+4*i+3}], v5, s[24:27], s19 offen offset:{32*i+16}")
    reduce_write(a, 7)
    R, T = 8, 32
    reduce_read(a, 6, R, T)
    a("s_waitcnt vmcnt(0)")
    if not final: a("v_mov_b32 v120, 0\nv_mov_b32 v121, 0")
    lskip = a.label("skip")
    for i in range(3):
        if i == 2: a(f"s_cmp_eq_u32 s15, 1\ns_cbranch_scc1 {lskip}")
        for d in range(4):
            x = XR + 4*i + d; r = R + 8*i + 2*d; g = G + 8*i + 2*d
            a(f"v_lshlrev_b32 v{T}, 16, v{x}\nv_and_b32 v{T+1}, 0xffff0000, v{x}\nv_fmac_f32 v{T}, v{g}, v{r}\nv_fmac_f32 v{T+1}, v{g+1}, v{r+1}")
            if not final:
                a(f"v_add_f32 v120, v120, v{T}\nv_fmac_f32 v121, v{T}, v{T}\nv_add_f32 v120, v120, v{T+1}\nv_fmac_f32 v121, v{T+1}, v{T+1}")
            a(f"v_cvt_pk_bf16_f32 v{T+8+4*i+d}, v{T}, v{T+1}")
        o = T + 8 + 4*i
        if final:
            a(f"buffer_store_dwordx2 v[{o}:{o+1}], v5, s[24:27], s19 offen offset:{32*i}\nbuffer_store_dwordx2 v[{o+2}:{o+3}], v5, s[24:27], s19 offen offset:{32*i+16}")
        else:
            a(f"buffer_store_dwordx4 v[{o}:{o+3}], v1, s[8:11], s22 offen offset:{1024*i}")
    a(f"{lskip}:")
    if not final:
        stats_store(a, 120, WS_ST1)
    a(f"L_{name}_end:\ns_endpgm")
    finish(a, 256, 256, RED_BYTES, 256 + 96, 256)

def stats_store(a, V, base):
    a(f"v_mov_b32 v{V+2}, v{V}\nv_mov_b32 v{V+3}, v{V+1}\ns_nop 1\nv_permlane32_swap_b32 v{V}, v{V+2}\nv_permlane32_swap_b32 v{V+1}, v{V+3}\ns_nop 1\nv_add_f32 v{V}, v{V}, v{V+2}\nv_add_f32 v{V+1}, v{V+1}, v{V+3}")
    a(f"s_lshl_b32 s6, s16, 12\ns_lshr_b32 s7, s13, 1\ns_lshl_b32 s7, s7, 10\ns_add_u32 s6, s6, s7\ns_and_b32 s7, s13, 1\ns_lshl_b32 s7, s7, 9\ns_add_u32 s6, s6, s7\ns_lshl_b32 s7, s15, 3\ns_add_u32 s6, s6, s7\ns_add_u32 s6, s6, {base:#x}")
    a(f"s_mov_b32 exec_hi, 0\nbuffer_store_dwordx2 v[{V}:{V+1}], v1, s[8:11], s6 offen\ns_mov_b32 exec_hi, -1")

def stats_load(a, D, base, tt_sreg_expr):
    a(f"s_lshl_b32 s6, s6, 12\ns_add_u32 s6, s6, {base:#x}")
    for i in range(4): a(f"buffer_load_dwordx4 v[{D+4*i}:{D+4*i+3}], v1, s[8:11], s6 offen offset:{1024*i}")

def stats_finish(a, D, n, rr, nm):
    for i in range(1, 8): a(f"v_add_f32 v{D}, v{D}, v{D+2*i}\nv_add_f32 v{D+1}, v{D+1}, v{D+2*i+1}")
    a(f"v_mov_b32 v{D+2}, v{D}\nv_mov_b32 v{D+3}, v{D+1}\ns_nop 1\nv_permlane32_swap_b32 v{D}, v{D+2}\nv_permlane32_swap_b32 v{D+1}, v{D+3}\ns_nop 1\nv_add_f32 v{D}, v{D}, v{D+2}\nv_add_f32 v{D+1}, v{D+1}, v{D+3}")
    a(f"v_mul_f32 v{D}, {f32(1/n)}, v{D}\nv_mul_f32 v{D+1}, {f32(1/n)}, v{D+1}\nv_fma_f32 v{D+1}, -v{D}, v{D}, v{D+1}\nv_max_f32 v{D+1}, 0, v{D+1}\nv_add_f32 v{D+1}, {f32(1e-5)}, v{D+1}\nv_rsq_f32 v{rr}, v{D+1}\ns_nop 0\nv_mul_f32 v{nm}, v{D}, v{rr}\nv_sub_f32 v{nm}, 0, v{nm}")

GC1 = -2.0 * LOG2E * math.sqrt(2.0 / math.pi)
GC2 = GC1 * 0.044715
def gelu(a, regs, t0):
    n = len(regs)
    for i, r in enumerate(regs): a(f"v_mul_f32 v{t0+i}, v{r}, v{r}")
    for i, r in enumerate(regs): a(f"v_fma_f32 v{t0+i}, v{t0+i}, s28, v249")
    for i, r in enumerate(regs): a(f"v_mul_f32 v{t0+i}, v{t0+i}, v{r}")
    for i, r in enumerate(regs): a(f"v_exp_f32 v{t0+i}, v{t0+i}")
    for i, r in enumerate(regs): a(f"v_add_f32 v{t0+i}, 1.0, v{t0+i}")
    for i, r in enumerate(regs): a(f"v_rcp_f32 v{t0+i}, v{t0+i}")
    for i, r in enumerate(regs): a(f"v_mul_f32 v{r}, v{r}, v{t0+i}")

def k4():
    a = begin("k4")
    gemm_prologue(a)
    param_dma(a, 7680)
    a("v_lshlrev_b32 v6, 4, v3\nv_add_u32 v6, s3, v6")
    FA, FW, P0 = 8, 88, 208
    RR = (240, 242); NMR = (241, 243)
    for tt in range(2):
        a(f"s_lshl_b32 s6, s12, 1\ns_add_u32 s6, s6, {tt}")
        stats_load(a, P0 + 16*tt, WS_ST1, None)
    a(f"s_mul_i32 s16, s12, {2*40*1024}\ns_mul_i32 s6, s14, {10*1024}\ns_add_u32 s16, s16, s6\ns_add_u32 s16, s16, {WS_X1:#x}\ns_add_u32 s17, s16, {40*1024}")
    a(f"s_mul_i32 s18, s13, {80*3072}\ns_mul_i32 s6, s14, {10*3072}\ns_add_u32 s18, s18, s6\ns_add_u32 s18, s18, {WS_WIN:#x}\ns_add_u32 s19, s18, {40*3072}")
    sa0, sa1, sw = Stream(a, 16), Stream(a, 17), Stream(a, 18)
    for ks in range(10):
        sa0.load(FA + 8*ks, ks*1024); sa1.load(FA + 8*ks + 4, ks*1024)
        for ft in range(3): sw.load(FW + 12*ks + 4*ft, (ks*3+ft)*1024)
    a(f"s_mov_b32 s28, {f32(GC2)}\nv_mov_b32 v249, {f32(GC1)}")
    a("s_waitcnt vmcnt(50)")
    for tt in range(2): stats_finish(a, P0 + 16*tt, 640, RR[tt], NMR[tt])
    param_read(a, P0, 0, 32)
    sw2 = Stream(a, 19)
    for ks in range(10):
        P = P0 + 16*(ks % 2)
        if ks < 9: param_read(a, P0 + 16*((ks+1) % 2), ks+1, 32)
        extra = 3*ks
        a(f"s_waitcnt vmcnt({5*(9-ks)+3+extra}) lgkmcnt({4 if ks < 9 else 0})")
        transform(a, [(FA+8*ks, RR[0], NMR[0]), (FA+8*ks+4, RR[1], NMR[1])], P)
        a(f"s_waitcnt vmcnt({5*(9-ks)+extra})")
        mfma6(a, FA+8*ks, FA+8*ks+4, FW+12*ks, ks == 0)
        for ft in range(3): sw2.load(FW + 12*ks + 4*ft, (ks*3+ft)*1024)
    a("s_lshr_b32 s15, s14, 1\ns_lshl_b32 s16, s12, 1\ns_add_u32 s16, s16, s15\ns_and_b32 s15, s14, 1")
    reduce_write(a, 7)
    R, T = 208, 232
    a(f"s_mul_i32 s3, s14, {6*1024}\nv_add_u32 v4, s3, v1\nv_add_u32 v5, {48*1024}, v4")
    for i in range(6): a(f"ds_read_b128 v[{R+4*i}:{R+4*i+3}], v4 offset:{i*1024}")
    for p in range(1, 4):
        for half in range(2):
            for i in range(3): a(f"ds_read_b128 v[{T+4*i}:{T+4*i+3}], v{4+p//2} offset:{(p%2)*24*1024 + (3*half+i)*1024}")
            a("s_waitcnt lgkmcnt(0)")
            for i in range(12): a(f"v_add_f32 v{R+12*half+i}, v{R+12*half+i}, v{T+i}")
    a("s_barrier")
    for i in range(2): gelu(a, list(range(R+12*i, R+12*i+12)), T)
    a("v_mov_b32 v244, 0\nv_mov_b32 v245, 0")
    for i in range(24): a(f"v_add_f32 v244, v244, v{R+i}\nv_fmac_f32 v245, v{R+i}, v{R+i}")
    a(f"s_lshl_b32 s22, s16, 3\ns_add_u32 s22, s22, s13\ns_mul_i32 s22, s22, 12\ns_mul_i32 s6, s15, 6\ns_add_u32 s22, s22, s6\ns_lshl_b32 s22, s22, 10\ns_add_u32 s22, s22, {WS_Z2R:#x}")
    for i in range(6):
        a(f"buffer_store_dwordx4 v[{R+4*i}:{R+4*i+3}], v1, s[8:11], s22 offen offset:{(i%4)*1024}")
        if i == 3: a("s_add_u32 s22, s22, 4096")
    stats_store(a, 244, WS_ST2)
    for ks in range(10):
        a(f"s_waitcnt vmcnt({3*(9-ks)+7})")
        mfma6(a, FA+8*ks, FA+8*ks+4, FW+12*ks, ks == 0)
    reduce_write(a, 7)
    R, T = 8, 32
    reduce_read(a, 4, R, T)
    gelu(a, list(range(R, R+24)), T)
    a(f"s_lshl_b32 s22, s16, 3\ns_add_u32 s22, s22, s13\ns_mul_i32 s22, s22, 6\ns_mul_i32 s6, s15, 3\ns_add_u32 s22, s22, s6\ns_lshl_b32 s22, s22, 10\ns_add_u32 s22, s22, {WS_Z1:#x}")
    for i in range(3):
        for d in range(4): a(f"v_cvt_pk_bf16_f32 v{T+4*i+d}, v{R+8*i+2*d}, v{R+8*i+2*d+1}")
        a(f"buffer_store_dwordx4 v[{T+4*i}:{T+4*i+3}], v1, s[8:11], s22 offen offset:{i*1024}")
    a("L_k4_end:\ns_endpgm")
    finish(a, 256, 256, RED_BYTES + 8192, 256 + 96, 256)

ZROW = 208
def z2_norm_store(a, R, rr, nm, T):
    for i in range(24): a(f"v_fma_f32 v{R+i}, v{R+i}, v{rr}, v{nm}")
    for i in range(12): a(f"v_cvt_pk_bf16_f32 v{T+i}, v{R+2*i}, v{R+2*i+1}")
    a(f"s_lshr_b32 s6, s14, 1\ns_mul_i32 s6, s6, {32*ZROW}\ns_mul_i32 s7, s15, 96\ns_add_u32 s6, s6, s7\nv_mul_u32_u24 v4, {ZROW}, v2\nv_lshl_add_u32 v4, v3, 3, v4\nv_add_u32 v4, s6, v4")
    for i in range(6): a(f"ds_write_b64 v4, v[{T+2*i}:{T+2*i+1}] offset:{16*i}")
    a("v_lshrrev_b32 v5, 4, v1\nv_and_b32 v6, 15, v5\nv_lshrrev_b32 v5, 4, v5\nv_and_b32 v5, 1, v5")
    a(f"v_lshrrev_b32 v7, 2, v6\nv_lshl_add_u32 v7, v3, 3, v7\nv_mul_u32_u24 v7, {ZROW}, v7\nv_lshl_add_u32 v7, v5, 5, v7\nv_and_b32 v6, 3, v6\nv_lshl_add_u32 v7, v6, 3, v7\ns_mul_i32 s6, s14, {16*ZROW}\nv_add_u32 v7, s6, v7")
    a("s_waitcnt lgkmcnt(0)\ns_barrier")
    for ft in range(3):
        a(f"ds_read_b64_tr_b16 v[{T+4*ft}:{T+4*ft+1}], v7 offset:{64*ft}\nds_read_b64_tr_b16 v[{T+4*ft+2}:{T+4*ft+3}], v7 offset:{64*ft+4*ZROW}")
    a(f"s_lshl_b32 s6, s13, 7\ns_lshl_b32 s7, s12, 2\ns_add_u32 s6, s6, s7\ns_add_u32 s6, s6, s14\ns_mul_i32 s6, s6, 3072\ns_add_u32 s6, s6, {WS_Z2T:#x}")
    a("s_waitcnt lgkmcnt(0)")
    for ft in range(3): a(f"buffer_store_dwordx4 v[{T+4*ft}:{T+4*ft+3}], v1, s[8:11], s6 offen offset:{1024*ft}")

def k4b():
    a = begin("k4b")
    gemm_prologue(a)
    a("s_lshr_b32 s15, s14, 1\ns_lshl_b32 s16, s12, 1\ns_add_u32 s16, s16, s15\ns_and_b32 s15, s14, 1")
    R, D, T = 8, 32, 48
    a("s_mov_b32 s6, s16")
    stats_load(a, D, WS_ST2, None)
    a(f"s_lshl_b32 s22, s16, 3\ns_add_u32 s22, s22, s13\ns_mul_i32 s22, s22, 12\ns_mul_i32 s6, s15, 6\ns_add_u32 s22, s22, s6\ns_lshl_b32 s22, s22, 10\ns_add_u32 s22, s22, {WS_Z2R:#x}")
    for i in range(6):
        a(f"buffer_load_dwordx4 v[{R+4*i}:{R+4*i+3}], v1, s[8:11], s22 offen offset:{(i%4)*1024}")
        if i == 3: a("s_add_u32 s22, s22, 4096")
    a("s_waitcnt vmcnt(6)")
    stats_finish(a, D, 768, 62, 63)
    a("s_waitcnt vmcnt(0)")
    z2_norm_store(a, R, 62, 63, T)
    a("L_k4b_end:\ns_endpgm")
    finish(a, 256, 256, 64 * ZROW, 64, 64)

def k5():
    a = begin("k5")
    gemm_prologue(a, f"s_load_dwordx2 s[20:21], s[0:1], {KA['b_sp']}")
    srd(a, 24, 20, 4096)
    DEPTH = 8
    F0 = 8
    a(f"s_lshl_b32 s16, s12, 18\ns_lshl_b32 s6, s14, 15\ns_add_u32 s16, s16, s6\ns_add_u32 s16, s16, {WS_WSP:#x}\ns_add_u32 s17, s16, {128*1024}")
    a(f"s_mul_i32 s18, s13, {128*3072}\ns_mul_i32 s6, s14, {32*3072}\ns_add_u32 s18, s18, s6\ns_add_u32 s18, s18, {WS_Z2T:#x}")
    def ld(slot):
        f = F0 + 20*slot
        a(f"buffer_load_dwordx4 v[{f}:{f+3}], v1, s[8:11], s16 offen\nbuffer_load_dwordx4 v[{f+4}:{f+7}], v1, s[8:11], s17 offen")
        for ft in range(3): a(f"buffer_load_dwordx4 v[{f+8+4*ft}:{f+11+4*ft}], v1, s[8:11], s18 offen offset:{1024*ft}")
        a("s_add_u32 s16, s16, 1024\ns_add_u32 s17, s17, 1024\ns_add_u32 s18, s18, 3072")
    for i in range(DEPTH): ld(i)
    for i in range(96): a(f"v_accvgpr_write_b32 a{i}, 0")
    a(f"s_mov_b32 s19, {32//DEPTH - 1}\nL_k5_loop:")
    for i in range(DEPTH):
        f = F0 + 20*i
        a(f"s_waitcnt vmcnt({5*(DEPTH-1)})")
        mfma6(a, f, f+4, f+8, False)
        ld(i)
    a("s_sub_u32 s19, s19, 1\ns_cmp_lg_u32 s19, 0\ns_cbranch_scc1 L_k5_loop")
    Z, B = 200, 212
    a("s_lshr_b32 s15, s14, 1\ns_lshl_b32 s16, s12, 1\ns_add_u32 s16, s16, s15\ns_and_b32 s15, s14, 1")
    a(f"s_lshl_b32 s22, s16, 3\ns_add_u32 s22, s22, s13\ns_mul_i32 s22, s22, 6\ns_mul_i32 s6, s15, 3\ns_add_u32 s22, s22, s6\ns_lshl_b32 s22, s22, 10\ns_add_u32 s23, s22, {WS_Y:#x}\ns_add_u32 s22, s22, {WS_Z1:#x}")
    for i in range(3): a(f"buffer_load_dwordx4 v[{Z+4*i}:{Z+4*i+3}], v1, s[8:11], s22 offen offset:{1024*i}")
    a(f"v_lshlrev_b32 v4, 1, v2\ns_lshl_b32 s6, s16, 6\nbuffer_load_ushort v{B}, v4, s[24:27], s6 offen")
    for i in range(DEPTH):
        f = F0 + 20*i
        a(f"s_waitcnt vmcnt({5*(DEPTH-1-i)+4})")
        mfma6(a, f, f+4, f+8, False)
    reduce_write(a, 7)
    R, T = 8, 32
    reduce_read(a, 4, R, T)
    a(f"s_waitcnt vmcnt(0)\nv_lshlrev_b32 v{B}, 16, v{B}")
    for i in range(3):
        for d in range(4):
            z = Z + 4*i + d; r = R + 8*i + 2*d
            a(f"v_add_f32 v{r}, v{r}, v{B}\nv_add_f32 v{r+1}, v{r+1}, v{B}\nv_lshlrev_b32 v{T}, 16, v{z}\nv_and_b32 v{T+1}, 0xffff0000, v{z}\nv_mul_f32 v{r}, v{r}, v{T}\nv_mul_f32 v{r+1}, v{r+1}, v{T+1}\nv_cvt_pk_bf16_f32 v{T+8+4*i+d}, v{r}, v{r+1}")
        a(f"buffer_store_dwordx4 v[{T+8+4*i}:{T+11+4*i}], v1, s[8:11], s23 offen offset:{1024*i}")
    a("L_k5_end:\ns_endpgm")
    finish(a, 256, 256, RED_BYTES, 256 + 96, 256)

def emit(path):
    out = []
    for (n, lines, g, b, lds, nv, ao) in kernels:
        out.append(f"; @launch kernel={n}_kernel grid=({g},1,1) block=({b},1,1) lds={lds}")
    out.append('.amdgcn_target "amdgcn-amd-amdhsa--gfx950"\n.text')
    bad = 0
    for (n, lines, g, b, lds, nv, ao) in kernels:
        for e in check_hazards(lines, n) + check_waits(lines, n):
            print("CHECK", e); bad += 1
        out.append(f".globl {n}_kernel\n.p2align 8\n.type {n}_kernel,@function\n{n}_kernel:")
        t = Asm(); t.lines = lines
        out.append(t.text())
    out.append('.section .rodata,"a"')
    for (n, lines, g, b, lds, nv, ao) in kernels:
        out.append(f""".p2align 6
.amdhsa_kernel {n}_kernel
  .amdhsa_next_free_vgpr {nv}
  .amdhsa_next_free_sgpr 48
  .amdhsa_accum_offset {ao}
  .amdhsa_group_segment_fixed_size 0
  .amdhsa_kernarg_size 120
  .amdhsa_user_sgpr_count 2
  .amdhsa_user_sgpr_kernarg_segment_ptr 1
  .amdhsa_system_sgpr_workgroup_id_x 1
.end_amdhsa_kernel""")
    open(path, "w").write("\n".join(out) + "\n")
    print("wrote", path, "checks failed:", bad)

if __name__ == "__main__":
    k0(); k1(); k2()
    kproj("k3", WS_O, WS_WO, 40, 5120, False)
    k4(); k4b(); k5()
    kproj("k6", WS_Y, WS_WOUT, 48, 12800, True)
    emit(sys.argv[1] if len(sys.argv) > 1 else "adaLN_cond__grouped_kv_mqa__mixer_gmlp__prompt.s")
```

```python
import math, struct, sys, os
from asmlib import *

def f32(x):
    return "0x%08x" % struct.unpack("<I", struct.pack("<f", x))[0]

WS_MOD  = 0x0
WS_XH   = 0x100000
WS_ST0  = 0x8000
WS_WQKV = 0x400000
WS_WO   = 0x500000
WS_WIN  = 0x600000
WS_WOUT = 0x800000
WS_Q    = 0xA00000
WS_KV   = 0xD00000
WS_O    = 0xE00000
WS_X1   = 0x1100000
WS_ST1  = 0x1400000
WS_ST2  = 0x1480000
WS_Z1   = 0x1500000
WS_Z2T  = 0x1E00000
WS_Y    = 0x2100000
WS_WSP  = 0x2400000
WS_SIZE = 0x2C00000
KVCH = 26624
OOB = 0x40000000
LOG2E = math.log2(math.e)
KA = dict(x=0, wq=8, wk=16, wv=24, wo=32, w_in=48, w_sp=56, b_sp=64, w_out=72, c=80, w_mod=88, out=96, dbg=104, ws=112)
UT = [[0, 1], [2, 5], [3, 4]]

PROF = os.environ.get("PROF", "0") == "1"
WS_PROF = 0x3000000
if PROF: WS_SIZE = 0x4000000
def stamp(a, i):
    if PROF: a(f"s_memtime s[{50+2*i}:{51+2*i}]")
def stamp_begin(a):
    if PROF:
        for i in range(12): a(f"s_mov_b64 s[{50+2*i}:{51+2*i}], 0")
        a("s_memrealtime s[74:75]")
        stamp(a, 0)
def stamp_end(a, kidx):
    if PROF:
        stamp(a, 11)
        a("s_memrealtime s[76:77]\ns_mov_b64 exec, 1\ns_waitcnt lgkmcnt(0)")
        a(f"s_lshl_b32 s3, s2, 4\ns_add_u32 s3, s3, s14\ns_lshl_b32 s3, s3, 6\ns_add_u32 s3, s3, {WS_PROF + kidx*0x100000:#x}\nv_mov_b32 v0, 0")
        for i in range(12): a(f"v_mov_b32 v{2+i}, s{50+2*i}")
        a("s_getreg_b32 s78, hwreg(HW_REG_XCC_ID)\ns_getreg_b32 s79, hwreg(HW_REG_HW_ID)\nv_mov_b32 v14, s74\nv_mov_b32 v15, s76\nv_mov_b32 v16, s78\nv_mov_b32 v17, s79")
        for i in range(4): a(f"buffer_store_dwordx4 v[{2+4*i}:{5+4*i}], v0, s[8:11], s3 offen offset:{16*i}")

def srd(a, d, p, nbytes):
    a(f"s_mov_b32 s{d}, s{p}\ns_mov_b32 s{d+1}, s{p+1}\ns_mov_b32 s{d+2}, {nbytes:#x}\ns_mov_b32 s{d+3}, 0x20000")

kernels = []
XCMP = "s3" if os.environ.get("X_NOBAR") or os.environ.get("X_NOLDS") else 0

class K(Asm):
    def __init__(self, name):
        super().__init__()
        self.name = name; self.vmq = []; self.lgq = []
    def label(self, base):
        self.uid += 1
        return f"L_{self.name}_{base}_{self.uid}"
    def vm(self, text, tag=None):
        self(text); self.vmq.append(tag)
    def lg(self, text, tag=None):
        self(text); self.lgq.append(tag)
    def _n(self, q, tags):
        idx = max((i for i, t in enumerate(q) if t in tags), default=None)
        return None if idx is None else len(q) - 1 - idx
    def wait(self, vm=(), lg=()):
        parts = []
        n = self._n(self.vmq, vm) if vm else None
        if n is not None:
            parts.append(f"vmcnt({min(n, 63)})"); self.vmq = self.vmq[len(self.vmq)-n:] if n else []
        n = self._n(self.lgq, lg) if lg else None
        if n is not None:
            n2 = min(n, 15)
            parts.append(f"lgkmcnt({n2})"); self.lgq = self.lgq[len(self.lgq)-n2:] if n2 else []
        if parts: self("s_waitcnt " + " ".join(parts))
    def wait_all_lg(self):
        self("s_waitcnt lgkmcnt(0)"); self.lgq = []

def end(a):
    a(f"L_{a.name}_end:")
    stamp_end(a, len(kernels))
    a(f"L_{a.name}_exit:\ns_endpgm")
def finish(a, grid, block, lds, nv):
    kernels.append((a.name, a.lines, grid, block, lds, nv, (nv + 3) // 4 * 4))

def bf16_round(a, v, t):
    a(f"v_cvt_pk_bf16_f32 v{t}, v{v}, v{v}\nv_and_b32 v{v}, 0xffff0000, v{t}")

E_NAT = list(range(8))
E_PERM = [(j & 3) + 8 * (j >> 2) for j in range(8)]
E_O5 = [20 * (j >> 1) + (j & 1) for j in range(8)]
def loads8(a, srdn, voff, lo, hi, ebase, e_list, rs, stmp, tag=None):
    for j in range(8):
        a(f"s_add_u32 s{stmp}, s{ebase}, {e_list[j]*rs}")
        a.vm(f"buffer_load_ushort v{(lo if j % 2 == 0 else hi) + j//2}, v{voff}, s[{srdn}:{srdn+3}], s{stmp} offen", tag)

def divmod_s(a, q, r, x, d, t):
    m = (1 << 20) // d + 1
    a(f"s_mul_i32 s{q}, s{x}, {m}\ns_lshr_b32 s{q}, s{q}, 20\ns_mul_i32 s{t}, s{q}, {d}\ns_sub_u32 s{r}, s{x}, s{t}")

def pack_frag_issue(a, f, srdn, rs, ncol, nks, otype, halves, lo, hi, voff, vt, S):
    q3, ft, t, nb, ks, eb = S, S+1, S+2, S+3, S+4, S+5
    divmod_s(a, q3, ft, f, 3, t)
    divmod_s(a, nb, ks, q3, nks, t)
    if halves:
        a(f"s_and_b32 s{t}, s{nb}, 1\ns_lshr_b32 s{nb}, s{nb}, 1\ns_mul_i32 s{nb}, s{nb}, {ncol}\ns_cmp_eq_u32 s{t}, 0\ns_cselect_b32 s{t}, 768, 0\ns_add_u32 s{nb}, s{nb}, s{t}")
    else:
        a(f"s_mul_i32 s{nb}, s{nb}, {ncol}")
    hi5 = 80 if ncol == 96 else OOB // 2
    a(f"s_cmp_eq_u32 s{ft}, 1\ns_cselect_b32 s{q3}, 32, 48\ns_cselect_b32 s{t}, {hi5:#x}, 64\ns_cmp_eq_u32 s{ft}, 0\ns_cselect_b32 s{q3}, 0, s{q3}\ns_cselect_b32 s{t}, 16, s{t}")
    a(f"s_add_u32 s{q3}, s{q3}, s{nb}\ns_add_u32 s{t}, s{t}, s{nb}")
    a(f"v_mov_b32 v{vt}, s{q3}\nv_mov_b32 v{vt+1}, s{t}\nv_cmp_gt_u32 vcc, 16, v2\nv_and_b32 v{voff}, 15, v2\ns_nop 0\nv_cndmask_b32 v{vt}, v{vt+1}, v{vt}, vcc\nv_add_lshl_u32 v{voff}, v{voff}, v{vt}, 1")
    if not otype:
        a(f"v_mul_u32_u24 v{vt}, {4*rs}, v3\nv_add_u32 v{voff}, v{voff}, v{vt}\ns_mul_i32 s{eb}, s{ks}, {16*rs}")
        loads8(a, srdn, voff, lo, hi, eb, E_PERM, rs, t, "pack")
    else:
        l5, ld = a.label("u4"), a.label("ud")
        divmod_s(a, q3, ft, ks, 5, t)
        a(f"s_mul_i32 s{q3}, s{q3}, 80\ns_cmp_eq_u32 s{ft}, 4\ns_cbranch_scc1 {l5}")
        a(f"s_mul_i32 s{ft}, s{ft}, 20\ns_add_u32 s{q3}, s{q3}, s{ft}\ns_mul_i32 s{eb}, s{q3}, {rs}\nv_mul_u32_u24 v{vt}, {4*rs}, v3\nv_add_u32 v{voff}, v{voff}, v{vt}")
        q0 = list(a.vmq)
        loads8(a, srdn, voff, lo, hi, eb, E_PERM, rs, t, "pack")
        a(f"s_branch {ld}\n{l5}:\ns_add_u32 s{q3}, s{q3}, 16\ns_mul_i32 s{eb}, s{q3}, {rs}\nv_mul_u32_u24 v{vt}, {2*rs}, v3\nv_add_u32 v{voff}, v{voff}, v{vt}")
        a.vmq = q0
        loads8(a, srdn, voff, lo, hi, eb, E_O5, rs, t, "pack")
        a(f"{ld}:")

def pack_frag_store(a, f, wsbase, lo, hi, st):
    for i in range(4): a(f"v_lshl_or_b32 v{lo+i}, v{hi+i}, 16, v{lo+i}")
    a(f"s_lshl_b32 s{st}, s{f}, 10\ns_add_u32 s{st}, s{st}, {wsbase:#x}")
    a.vm(f"buffer_store_dwordx4 v[{lo}:{lo+3}], v1, s[8:11], s{st} offen")

def l2_prefetch(a, base, nbytes, nwaves, vdst, vtmp, st):
    per_wg = nbytes // 32
    PS = int(os.environ.get("X_PFS", "64")); CH = 64 * PS
    n_instr = -(-per_wg // CH)
    per_wave = -(-n_instr // nwaves)
    a(f"s_lshr_b32 s{st}, s2, 3\ns_mul_i32 s{st}, s{st}, {per_wg}\ns_mul_i32 s{st+1}, s14, {per_wave*CH}\ns_add_u32 s{st}, s{st}, s{st+1}\ns_add_u32 s{st}, s{st}, {base:#x}\nv_lshlrev_b32 v{vtmp}, {int(math.log2(PS//16))}, v1")
    for i in range(per_wave):
        a.vm(f"buffer_load_dword v{vdst}, v{vtmp}, s[8:11], s{st} offen")
        if i < per_wave - 1: a(f"s_add_u32 s{st}, s{st}, {CH}")

N_MOD, N_XH, N_PQ = 128, 64, 40
def k0():
    a = K("k0")
    ends = [N_MOD, N_MOD + N_XH, N_MOD + N_XH + N_PQ]
    grid = ends[-1]
    a(f"s_cmp_ge_u32 s2, {grid}\ns_cbranch_scc1 L_k0_exit")
    stamp_begin(a)
    a(f"s_load_dwordx2 s[4:5], s[0:1], {KA['ws']}")
    a("v_and_b32 v1, 63, v0\nv_lshrrev_b32 v2, 6, v0\ns_nop 0\nv_readfirstlane_b32 s14, v2")
    a(f"s_cmp_lt_u32 s2, {ends[0]}\ns_cbranch_scc1 L_k0_mod")
    a(f"s_cmp_lt_u32 s2, {ends[1]}\ns_cbranch_scc1 L_k0_xh")
    a("s_branch L_k0_pq")
    a("L_k0_mod:")
    a(f"s_load_dwordx4 s[16:19], s[0:1], {KA['c']}")
    a("s_and_b32 s3, s2, 7\ns_lshl_b32 s3, s3, 1\ns_bfe_u32 s6, s2, 0x10003\ns_add_u32 s3, s3, s6\ns_lshr_b32 s6, s2, 4\ns_lshl_b32 s6, s6, 4\ns_add_u32 s3, s3, s6")
    a("s_cmp_ge_u32 s3, 120\ns_cbranch_scc1 L_k0_exit")
    a("v_lshrrev_b32 v1, 2, v0\nv_and_b32 v2, 3, v0\nv_mul_u32_u24 v3, 7680, v1\nv_lshl_add_u32 v3, v2, 4, v3\nv_lshlrev_b32 v4, 1, v1")
    a("s_waitcnt lgkmcnt(0)")
    srd(a, 8, 4, WS_SIZE); srd(a, 20, 16, 1280); srd(a, 24, 18, 640 * 7680)
    a("s_lshl_b32 s6, s3, 6")
    for p in range(10):
        a(f"buffer_load_ushort v{10+p}, v4, s[20:23], 0 offen offset:{128*p}")
    for p in range(10):
        a(f"buffer_load_dwordx4 v[{20+4*p}:{23+4*p}], v3, s[24:27], s6 offen")
        if p < 9: a(f"s_add_u32 s6, s6, {64*7680}")
    for i in range(8): a(f"v_mov_b32 v{64+i}, 0")
    a("s_waitcnt vmcnt(10)")
    for p in range(10):
        v = 10 + p
        a(f"v_lshlrev_b32 v{v}, 16, v{v}\nv_mul_f32 v5, {f32(-LOG2E)}, v{v}\nv_exp_f32 v5, v5\ns_nop 0\nv_add_f32 v5, 1.0, v5\nv_rcp_f32 v5, v5\ns_nop 0\nv_mul_f32 v{v}, v{v}, v5")
        bf16_round(a, v, 5)
    for p in range(10):
        a(f"s_waitcnt vmcnt({9-p})")
        for i in range(4):
            d = 20 + 4*p + i
            a(f"v_lshlrev_b32 v5, 16, v{d}\nv_and_b32 v6, 0xffff0000, v{d}\nv_fmac_f32 v{64+2*i}, v{10+p}, v5\nv_fmac_f32 v{65+2*i}, v{10+p}, v6")
    a("v_lshlrev_b32 v5, 7, v1\nv_lshl_add_u32 v5, v2, 5, v5")
    a("ds_write_b128 v5, v[64:67]\nds_write_b128 v5, v[68:71] offset:16")
    a("v_and_b32 v6, 31, v0\nv_lshrrev_b32 v7, 5, v0\nv_lshlrev_b32 v6, 2, v6\nv_lshl_add_u32 v8, v7, 10, v6")
    a("s_waitcnt lgkmcnt(0)\ns_barrier")
    for i in range(8): a(f"ds_read_b32 v{20+i}, v8 offset:{128*i}")
    a("s_waitcnt lgkmcnt(0)")
    for i in range(1, 8): a(f"v_add_f32 v20, v20, v{20+i}")
    a("v_lshl_add_u32 v8, v7, 7, v6\nds_write_b32 v8, v20 offset:8192\ns_waitcnt lgkmcnt(0)\ns_barrier")
    for i in range(8): a(f"ds_read_b32 v{20+i}, v6 offset:{8192+128*i}")
    a("s_waitcnt lgkmcnt(0)")
    for i in range(1, 8): a(f"v_add_f32 v20, v20, v{20+i}")
    bf16_round(a, 20, 5)
    a("v_add_f32 v21, 1.0, v20")
    bf16_round(a, 21, 5)
    a("s_sub_u32 s6, s3, 20\ns_cmp_lt_u32 s6, 20\ns_cselect_b32 s7, 1, 0\ns_sub_u32 s6, s3, 80\ns_cmp_lt_u32 s6, 20\ns_cselect_b32 s6, 1, s7\ns_cmp_eq_u32 s6, 0")
    l = a.label("noinc")
    a(f"s_cbranch_scc1 {l}\nv_mov_b32 v20, v21\n{l}:")
    a(f"s_lshl_b32 s6, s3, 7\nv_cmp_gt_u32 vcc, 32, v0\ns_and_saveexec_b64 s[28:29], vcc\ns_cbranch_execz L_k0_end")
    a(f"buffer_store_dword v20, v6, s[8:11], s6 offen offset:{WS_MOD}")
    a("s_branch L_k0_end")
    a("L_k0_xh:")
    a(f"s_load_dwordx2 s[16:17], s[0:1], {KA['x']}")
    a(f"s_sub_u32 s6, s2, {ends[0]}\ns_and_b32 s3, s6, 7\ns_lshr_b32 s7, s6, 4\ns_lshl_b32 s7, s7, 3\ns_add_u32 s3, s3, s7\ns_lshl_b32 s3, s3, 1\ns_bfe_u32 s7, s6, 0x10003\ns_add_u32 s3, s3, s7")
    a("v_and_b32 v2, 31, v1\nv_lshrrev_b32 v3, 5, v1\nv_mul_u32_u24 v4, 1280, v2\nv_lshl_add_u32 v4, v3, 4, v4")
    a(f"s_mul_i32 s6, s3, {32*1280}\ns_mul_i32 s7, s14, 320\ns_add_u32 s6, s6, s7")
    a("s_waitcnt lgkmcnt(0)")
    srd(a, 8, 4, WS_SIZE); srd(a, 20, 16, 2048 * 1280)
    for i in range(10):
        a(f"buffer_load_dwordx4 v[{20+4*i}:{23+4*i}], v4, s[20:23], s6 offen offset:{32*i}")
    a("v_mov_b32 v6, 0\nv_mov_b32 v7, 0")
    a(f"s_mul_i32 s6, s3, {40*1024}\ns_mul_i32 s7, s14, {10*1024}\ns_add_u32 s6, s6, s7\ns_add_u32 s6, s6, {WS_XH:#x}\nv_lshlrev_b32 v8, 4, v1")
    for i in range(10):
        b = 20 + 4*i
        a(f"s_waitcnt vmcnt(9)\nv_permlane32_swap_b32 v{b}, v{b+2}\nv_permlane32_swap_b32 v{b+1}, v{b+3}")
        a(f"buffer_store_dwordx4 v[{b}:{b+3}], v8, s[8:11], s6 offen offset:{(i%4)*1024}")
        if i % 4 == 3: a("s_add_u32 s6, s6, 4096")
        for d in range(4):
            lo = 64 + 2*(d % 2)
            a(f"v_lshlrev_b32 v{lo}, 16, v{b+d}\nv_and_b32 v{lo+1}, 0xffff0000, v{b+d}")
            a(f"v_add_f32 v6, v6, v{lo}\nv_fmac_f32 v7, v{lo}, v{lo}\nv_add_f32 v6, v6, v{lo+1}\nv_fmac_f32 v7, v{lo+1}, v{lo+1}")
    a("v_lshlrev_b32 v5, 3, v0\nds_write_b64 v5, v[6:7]\nv_lshlrev_b32 v5, 3, v2\ns_waitcnt lgkmcnt(0)\ns_barrier")
    for i in range(8): a(f"ds_read_b64 v[{70+2*i}:{71+2*i}], v5 offset:{256*i}")
    a("s_waitcnt lgkmcnt(0)")
    for i in range(1, 8): a(f"v_add_f32 v70, v70, v{70+2*i}\nv_add_f32 v71, v71, v{71+2*i}")
    a(f"v_mul_f32 v70, {f32(1/640)}, v70\nv_mul_f32 v71, {f32(1/640)}, v71\nv_fma_f32 v71, -v70, v70, v71\nv_max_f32 v71, 0, v71\nv_add_f32 v71, {f32(1e-5)}, v71\nv_rsq_f32 v72, v71\ns_nop 0\nv_mul_f32 v70, v70, v72")
    a(f"v_sub_f32 v73, 0, v70\ns_lshl_b32 s6, s3, 8\ns_add_u32 s6, s6, {WS_ST0:#x}\nv_cmp_gt_u32 vcc, 32, v0\ns_and_saveexec_b64 s[28:29], vcc\ns_cbranch_execz L_k0_end")
    a("buffer_store_dwordx2 v[72:73], v5, s[8:11], s6 offen")
    a("s_branch L_k0_end")
    a("L_k0_pq:")
    a(f"s_load_dwordx2 s[16:17], s[0:1], {KA['wq']}\ns_load_dwordx4 s[32:35], s[0:1], {KA['wk']}")
    a(f"s_sub_u32 s3, s2, {ends[1]}\ns_and_b32 s13, s3, 7\ns_lshr_b32 s12, s3, 3\ns_lshl_b32 s12, s12, 3\ns_lshl_b32 s6, s14, 1\ns_add_u32 s12, s12, s6")
    a("v_and_b32 v2, 31, v1\nv_lshrrev_b32 v3, 5, v1\nv_and_b32 v4, 15, v1\nv_lshlrev_b32 v9, 4, v1")
    a(f"v_lshrrev_b32 v5, 4, v2\nv_mul_u32_u24 v5, 20, v5\nv_add_u32 v5, v5, v4\ns_mul_i32 s6, s13, 80\nv_add_u32 v5, s6, v5\nv_lshlrev_b32 v5, 1, v5\nv_mul_u32_u24 v6, {4*1280}, v3\nv_add_u32 v10, v5, v6\nv_add_u32 v11, 80, v10\nv_add_u32 v12, 120, v10")
    a("v_bfe_u32 v5, v4, 1, 1\nv_lshrrev_b32 v7, 3, v4\nv_lshl_add_u32 v5, v7, 1, v5\nv_mul_u32_u24 v5, 20, v5\nv_bfe_u32 v7, v4, 2, 1\nv_lshl_add_u32 v5, v7, 1, v5\nv_and_b32 v7, 1, v4\nv_add_u32 v5, v5, v7\nv_add_u32 v5, 16, v5\nv_add_u32 v5, s6, v5\nv_lshlrev_b32 v5, 1, v5\nv_add_u32 v5, v5, v6\nv_cmp_gt_u32 vcc, 16, v2\ns_nop 1\nv_cndmask_b32 v12, v5, v12, vcc")
    a("v_lshrrev_b32 v5, 2, v4\nv_lshlrev_b32 v5, 1, v5\nv_add_u32 v5, v5, v7\nv_add_u32 v5, 16, v5\nv_and_b32 v8, 10, v4\nv_cmp_eq_u32 vcc, 0, v8")
    a(f"v_mov_b32 v8, {OOB//2:#x}\ns_nop 0\nv_cndmask_b32 v5, v8, v5, vcc\nv_add_u32 v14, 16, v4\nv_cmp_gt_u32 vcc, 4, v4\ns_nop 1\nv_cndmask_b32 v14, v8, v14, vcc\ns_cmp_eq_u32 s13, 3\ns_cselect_b64 vcc, -1, 0\nv_cndmask_b32 v5, v5, v14, vcc\ns_bitcmp1_b32 s13, 0\ns_cselect_b64 vcc, -1, 0\nv_cndmask_b32 v5, v4, v5, vcc\nv_lshlrev_b32 v5, 1, v5\nv_mul_u32_u24 v6, {4*40}, v3\nv_add_u32 v13, v5, v6")
    a("s_waitcnt lgkmcnt(0)")
    srd(a, 8, 4, WS_SIZE); srd(a, 20, 16, 640 * 1280)
    a("s_cmp_ge_u32 s13, 2\ns_cselect_b32 s32, s34, s32\ns_cselect_b32 s33, s35, s33\ns_cmp_ge_u32 s13, 4\ns_cselect_b32 s7, 0, 25600")
    a("s_mov_b32 s24, s32\ns_mov_b32 s25, s33\ns_mov_b32 s26, s7\ns_mov_b32 s27, 0x20000")
    for q in range(2):
        a(f"s_add_u32 s6, s12, {q}\ns_mul_i32 s28, s6, {16*1280}\ns_mul_i32 s29, s6, {16*40}")
        b = 20 + 12*q
        loads8(a, 20, 10, b, b+24, 28, E_PERM, 1280, 30)
        loads8(a, 20, 12, b+8, b+32, 28, E_PERM, 1280, 30)
        a("s_mov_b32 exec_lo, 0xffff\ns_mov_b32 exec_hi, 0xffff")
        loads8(a, 20, 11, b+4, b+28, 28, E_PERM, 1280, 30)
        a("s_mov_b32 exec_lo, 0xffff0000\ns_mov_b32 exec_hi, 0xffff0000")
        loads8(a, 24, 13, b+4, b+28, 29, E_PERM, 40, 30)
        a("s_mov_b64 exec, -1")
        if q == 0: a("s_waitcnt vmcnt(16)")
    a(f"s_mul_i32 s6, s13, 40\ns_add_u32 s6, s6, s12\ns_mul_i32 s6, s6, 3072\ns_add_u32 s6, s6, {WS_WQKV:#x}\ns_waitcnt vmcnt(0)")
    for i in range(24): a(f"v_lshl_or_b32 v{20+i}, v{44+i}, 16, v{20+i}")
    for q in range(2):
        for ft in range(3):
            a(f"buffer_store_dwordx4 v[{20+12*q+4*ft}:{23+12*q+4*ft}], v9, s[8:11], s6 offen offset:{ft*1024}")
        a("s_add_u32 s6, s6, 3072")
    end(a)
    finish(a, grid, 256, 9216, 144)

STG = 20480
NS, DEP = 6, 4
EX = NS * STG
PAR = EX + 24576
LDS_G = PAR + 5120
ACC, WS0, AF, PR, VW = 8, 56, 104, 200, 240

def common_prologue(a, extra_loads=""):
    a(f"s_cmp_ge_u32 s2, 256\ns_cbranch_scc1 L_{a.name}_exit")
    stamp_begin(a)
    a(f"s_load_dwordx2 s[4:5], s[0:1], {KA['ws']}")
    a(extra_loads)
    a("v_and_b32 v4, 63, v0\nv_lshrrev_b32 v5, 6, v0\nv_lshlrev_b32 v1, 4, v4\nv_readfirstlane_b32 s14, v5\nv_and_b32 v2, 31, v4\nv_lshrrev_b32 v3, 5, v4")
    a("s_and_b32 s12, s2, 7\ns_lshr_b32 s3, s2, 6\ns_lshl_b32 s3, s3, 3\ns_add_u32 s12, s12, s3\ns_bfe_u32 s13, s2, 0x30003")

def gemm_prologue(a, extra_loads=""):
    common_prologue(a, extra_loads)
    a("s_bfe_u32 s15, s14, 0x10001\ns_and_b32 s17, s14, 1\ns_lshl_b32 s16, s12, 1\ns_add_u32 s16, s16, s17")
    a(f"s_cmp_ge_u32 s14, 4\ns_cbranch_scc1 L_{a.name}_loader")

def compute_addr(a, rb):
    a.rb = rb
    if rb == 0:
        a(f"s_mul_i32 s3, s15, {6144+2048}\nv_add_u32 v{VW}, s3, v1\ns_mul_i32 s3, s15, {6144-2048}\ns_add_u32 s3, s3, 2048\nv_add_u32 v{VW+2}, s3, v1")
        a(f"s_lshl_b32 s3, s15, 8\nv_xor_b32 v{VW+1}, s3, v1\ns_mul_i32 s3, s15, 6144\ns_add_u32 s3, s3, 1024\nv_add_u32 v{VW+1}, s3, v{VW+1}")
    else:
        a("v_bfe_u32 v4, v0, 2, 2\nv_and_b32 v5, 3, v0\nv_bfe_u32 v6, v0, 4, 1")
        a("v_lshl_add_u32 v4, v3, 2, v4" if rb == 192 else "v_lshl_add_u32 v4, v4, 1, v3")
        a(f"v_mul_u32_u24 v4, {rb}, v4\nv_lshl_add_u32 v4, v5, 3, v4\ns_mul_i32 s3, s15, 6144\nv_add_u32 v4, s3, v4")
        a(f"v_lshl_add_u32 v5, v6, 5, v4\ns_mul_i32 s3, s15, 96\nv_add_u32 v{VW}, s3, v5\ns_sub_u32 s3, 96, s3\nv_add_u32 v{VW+2}, s3, v5")
        if rb == 192:
            a(f"v_xor_b32 v6, s15, v6\nv_mul_u32_u24 v6, 96, v6\nv_add_u32 v6, 64, v6\nv_add_u32 v{VW+1}, v4, v6")
        else:
            a(f"v_add_u32 v{VW+1}, 64, v4")
    a(f"s_lshl_b32 s3, s14, 11\ns_add_u32 s3, s3, 12288\nv_add_u32 v{VW+3}, s3, v1")
    for i in range(4): a(f"v_add_u32 v{VW+4+i}, {3*STG}, v{VW+i}")

def read_ops(a, s, areg):
    slot = s % NS; hi, sl = (4, slot - 3) if slot >= 3 else (0, slot)
    ra, rw = [], []
    if areg is not None:
        for q in range(2):
            ra.append(lambda q=q: a.lg(f"ds_read_b128 v[{areg+4*q}:{areg+4*q+3}], v{VW+3+hi} offset:{sl*STG + q*1024}", ("a", s)))
    for q in range(2):
        for t in range(3):
            r = WS0 + 24*(s % 2) + 12*q + 4*t; o = sl*STG + q*3072
            if a.rb == 0:
                rw.append(lambda r=r, t=t, o=o: a.lg(f"ds_read_b128 v[{r}:{r+3}], v{VW+t+hi} offset:{o}", ("w", s)))
            else:
                def f(r=r, t=t, o=o):
                    a.lg(f"ds_read_b64_tr_b16 v[{r}:{r+1}], v{VW+t+hi} offset:{o}", ("w", s))
                    a.lg(f"ds_read_b64_tr_b16 v[{r+2}:{r+3}], v{VW+t+hi} offset:{o + 8*a.rb}", ("w", s))
                rw.append(f)
    return ra, rw

def mfma_ops(a, wset, areg, first):
    ops = []
    for q in range(2):
        for t in range(3):
            r = ACC + 16*t; w = WS0 + 24*wset + 12*q + 4*t; b = areg + 4*q
            c = "0" if (first and q == 0) else f"v[{r}:{r+15}]"
            ops.append(lambda r=r, w=w, b=b, c=c: a(f"v_mfma_f32_32x32x16_bf16 v[{r}:{r+15}], v[{w}:{w+3}], v[{b}:{b+3}], {c}"))
    return ops

def transform_ops(a, F, P, rr, nm, t=232):
    ops = []
    for d in range(4):
        x, y = t + 2*(d % 2), t + 2*(d % 2) + 1
        L = [f"v_lshlrev_b32 v{x}, 16, v{F+d}", f"v_and_b32 v{y}, 0xffff0000, v{F+d}",
             f"v_fma_f32 v{x}, v{x}, v{rr}, v{nm}", f"v_fma_f32 v{y}, v{y}, v{rr}, v{nm}",
             f"v_fma_f32 v{x}, v{x}, v{P+8+2*d}, v{P+2*d}", f"v_fma_f32 v{y}, v{y}, v{P+9+2*d}, v{P+1+2*d}", f"v_cvt_pk_bf16_f32 v{F+d}, v{x}, v{y}"]
        ops += [(lambda l=l: a(l)) for l in L]
    return ops

def merge(*lists):
    items = []
    for li, L in enumerate(lists):
        n = len(L)
        for i, op in enumerate(L): items.append(((i + 0.5 * (li > 0)) / n, li, i, op))
    items.sort(key=lambda x: (x[0], x[1], x[2]))
    return [x[3] for x in items]
def run(ops):
    for op in ops: op()

def param_base(a):
    a(f"s_mul_i32 s3, s15, 1280\ns_add_u32 s3, s3, {PAR}\nv_lshlrev_b32 v6, 4, v3\nv_add_u32 v6, s3, v6")
def param_ops(a, ks):
    ops = []
    for arr in range(2):
        P = PR + 16*(ks % 2) + 8*arr; off = arr*2560 + ks*64
        ops.append(lambda P=P, off=off: a.lg(f"ds_read_b128 v[{P}:{P+3}], v6 offset:{off}", ("p", ks)))
        ops.append(lambda P=P, off=off: a.lg(f"ds_read_b128 v[{P+4}:{P+7}], v6 offset:{off+32}", ("p", ks)))
    return ops

def exchange(a, R):
    a(f"s_mul_i32 s3, s14, 6144\ns_add_u32 s3, s3, {EX}\nv_add_u32 v4, s3, v1\ns_xor_b32 s3, s14, 2\ns_mul_i32 s3, s3, 6144\ns_add_u32 s3, s3, {EX}\nv_add_u32 v5, s3, v1\ns_nop 4")
    for i in range(6): a(f"ds_write_b128 v4, v[{ACC+24+4*i}:{ACC+27+4*i}] offset:{i*1024}")
    a.wait_all_lg()
    a("s_barrier")
    for j in range(3):
        for h in range(2):
            a(f"ds_read_b128 v[{R+8*j+4*h}:{R+8*j+4*h+3}], v5 offset:{((j+1)%3)*2048 + h*1024}")
    for j in range(3):
        a(f"s_waitcnt lgkmcnt({4-2*j})")
        for i in range(8): a(f"v_add_f32 v{ACC+8*j+i}, v{ACC+8*j+i}, v{R+8*j+i}")

def c_start(a, areg_of, xf=None):
    a("s_barrier")
    stamp(a, 3)
    ra, rw = read_ops(a, 0, areg_of(0))
    run(ra)
    if xf:
        n, rr, nm = xf
        run(param_ops(a, 0)); run(param_ops(a, 1)); run(rw)
        a.wait(lg=[("a", 0), ("p", 0)])
        run(transform_ops(a, areg_of(0), PR, rr, nm))
        a.wait(lg=[("p", 1)])
        run(merge(transform_ops(a, areg_of(0) + 4, PR + 16, rr, nm), param_ops(a, 2)))
    else:
        run(rw)

def c_iter(a, s, first, total, areg_of, xf=None, load_a=True):
    ra, rw = [], []
    if s + 1 < total:
        a("s_barrier")
        ra, rw = read_ops(a, s + 1, areg_of(s + 1) if load_a else None)
    mf = mfma_ops(a, s % 2, areg_of(s), first)
    if os.environ.get("X_NORD"): ra, rw = [], []
    if os.environ.get("X_NOMFMA"): mf = [lambda: a("s_nop 0")] * 6
    if os.environ.get("X_NOXF"): xf = None
    if xf and s + 1 < xf[0]:
        n, rr, nm = xf
        k0 = 2*(s+1)
        run(ra); run(param_ops(a, k0 + 1))
        a.wait(lg=[("w", s)])
        run(merge(mf[:2], rw[:2]))
        a.wait(lg=[("a", s+1), ("p", k0)])
        run(merge(transform_ops(a, areg_of(s+1), PR, rr, nm), mf[2:4], rw[2:4]))
        a.wait(lg=[("p", k0 + 1)])
        nxt = param_ops(a, k0 + 2) if s + 2 < n else []
        run(merge(transform_ops(a, areg_of(s+1) + 4, PR + 16, rr, nm), mf[4:], rw[4:] + nxt))
    else:
        a.wait(lg=[("w", s), ("a", s)])
        run(merge(mf, ra + rw))

class Loader:
    def __init__(self, a, act_base, nks, wmode, wbase=None, wblocks=1, ka_sreg=None, rs=0, nbytes=0, colbytes=0, col0=0):
        self.a, self.wmode = a, wmode
        a(f"L_{a.name}_loader:")
        a.vmq = []; a.lgq = []
        a(f"s_and_b32 s3, s14, 3\ns_mul_i32 s20, s3, 3072\ns_lshl_b32 s21, s3, 11\ns_add_u32 s21, s21, 12288")
        a(f"s_mul_i32 s18, s16, {nks*1024}\ns_mul_i32 s3, s15, {nks*512}\ns_add_u32 s18, s18, s3\ns_add_u32 s18, s18, {act_base:#x}")
        if wmode == 0:
            a(f"s_mul_i32 s19, s13, {wblocks*nks*3072}\ns_mul_i32 s3, s15, {nks*1536}\ns_add_u32 s19, s19, s3\ns_mul_i32 s3, s17, 3072\ns_add_u32 s19, s19, s3\ns_add_u32 s19, s19, {wbase:#x}")
            self.wstep, self.wsrd, self.wv = 6144, 8, (1, 1, 1)
        else:
            cpr = wmode // 16
            a(f"s_mul_i32 s19, s15, {nks*8*rs}\ns_mul_i32 s3, s17, {16*rs}\ns_add_u32 s19, s19, s3\ns_mul_i32 s3, s13, {colbytes}\ns_add_u32 s19, s19, s3\ns_add_u32 s19, s19, {col0}")
            a("v_and_b32 v4, 63, v0")
            for i in range(3):
                a(f"v_add_u32 v5, {64*i}, v4\nv_mul_u32_u24 v6, {(1 << 16) // cpr + 1}, v5\nv_lshrrev_b32 v6, 16, v6\nv_mul_u32_u24 v7, {cpr}, v6\nv_sub_u32 v7, v5, v7")
                if wmode == 160:
                    a("v_and_b32 v8, 8, v6\nv_and_b32 v9, 1, v6\nv_lshl_add_u32 v8, v9, 2, v8\nv_bfe_u32 v9, v6, 1, 2\nv_add_u32 v6, v8, v9")
                a(f"v_mul_u32_u24 v6, {rs}, v6\nv_lshl_add_u32 v{10+i}, v7, 4, v6")
                if i: a(f"v_subrev_u32 v{10+i}, {1024*i}, v{10+i}")
                if wmode == 160 and i == 2:
                    a(f"v_mov_b32 v8, {OOB:#x}\nv_cmp_gt_u32 vcc, 32, v4\ns_nop 1\nv_cndmask_b32 v12, v8, v12, vcc")
            self.wstep, self.wsrd, self.wv = 32 * rs, 40, (10, 11, 12)
        a("s_waitcnt lgkmcnt(0)")
        srd(a, 8, 4, WS_SIZE)
        if wmode: srd(a, 40, ka_sreg, nbytes)
        stamp(a, 1)
    def dma1(self, lds_off, goff_expr_sreg, tag):
        a = self.a
        a(f"s_mov_b32 m0, {lds_off}\ns_nop 0")
        a.vm(f"buffer_load_dwordx4 v1, s[8:11], s{goff_expr_sreg} offen lds", tag)
    def params(self, mod_off):
        a = self.a
        a(f"s_and_b32 s3, s14, 3\ns_lshl_b32 s3, s3, 10\ns_add_u32 m0, s3, {PAR}\ns_add_u32 s6, s3, {WS_MOD + mod_off}")
        a.vm("buffer_load_dwordx4 v1, s[8:11], s6 offen lds", "par")
        a(f"s_mov_b32 s6, {WS_MOD + mod_off + 4096}")
        self.dma1(PAR + 4096, 6, "par")
    def issue(self, s, with_a=True):
        a = self.a; slot = s % NS
        if with_a:
            a(f"s_add_u32 m0, s21, {slot*STG}\ns_nop 0")
            for q in range(2): a.vm(f"buffer_load_dwordx4 v1, s[8:11], s18 offen offset:{q*1024} lds", ("st", s))
            a("s_add_u32 s18, s18, 2048")
        a(f"s_add_u32 m0, s20, {slot*STG}\ns_nop 0")
        for i in range(3): a.vm(f"buffer_load_dwordx4 v{self.wv[i]}, s[{self.wsrd}:{self.wsrd+3}], s19 offen offset:{i*1024} lds", ("st", s))
        a(f"s_add_u32 s19, s19, {self.wstep}")
    def start(self, issue):
        issue(0); issue(1)
        stamp(self.a, 2)
    def step(self, s, total, issue):
        a = self.a
        a.wait(vm=[("st", s)])
        a("s_barrier")
        if s == 0:
            for t in range(2, DEP): issue(t)
        if s + DEP < total: issue(s + DEP)

def prefetch(a, srdn, base, nbytes, nw, widx, vdst, vtmp, st):
    per_wg = -(-nbytes // 32 // 128) * 128
    per_wave = -(-per_wg // (8192 * nw))
    a(f"s_lshr_b32 s{st}, s2, 3\ns_mul_i32 s{st}, s{st}, {per_wg}\ns_mul_i32 s{st+1}, s{widx}, {per_wave*8192}\ns_add_u32 s{st}, s{st}, s{st+1}\ns_add_u32 s{st}, s{st}, {base:#x}\nv_lshlrev_b32 v{vtmp}, 3, v1")
    for i in range(per_wave):
        a.vm(f"buffer_load_dword v{vdst}, v{vtmp}, s[{srdn}:{srdn+3}], s{st} offen")
        if i < per_wave - 1: a(f"s_add_u32 s{st}, s{st}, 8192")

def unit_off(a, d, per_nb, base):
    a(f"s_lshl_b32 s{d}, s16, 3\ns_add_u32 s{d}, s{d}, s13\ns_mul_i32 s{d}, s{d}, {per_nb}\ns_mul_i32 s6, s15, 3\ns_add_u32 s{d}, s{d}, s6\ns_lshl_b32 s{d}, s{d}, 10\ns_add_u32 s{d}, s{d}, {base:#x}")

def k1():
    a = K("k1")
    gemm_prologue(a)
    compute_addr(a, 0); param_base(a)
    RR, NM = 236, 237
    a(f"v_lshlrev_b32 v7, 3, v2\ns_lshl_b32 s6, s16, 8\ns_add_u32 s6, s6, {WS_ST0:#x}\ns_waitcnt lgkmcnt(0)")
    srd(a, 8, 4, WS_SIZE)
    stamp(a, 1)
    a(f"buffer_load_dwordx2 v[{RR}:{NM}], v7, s[8:11], s6 offen\ns_waitcnt vmcnt(0)")
    areg = lambda s: AF + 8*(s % 2)
    xf = (10, RR, NM)
    c_start(a, areg, xf)
    for s in range(10): c_iter(a, s, s == 0, 10, areg, xf)
    stamp(a, 4)
    T = WS0
    exchange(a, T)
    stamp(a, 5)
    R = ACC
    QS = LOG2E / math.sqrt(20.0)
    unit_off(a, 17, 5, WS_Q)
    a(f"s_mov_b32 s7, {f32(QS)}")
    def qunit(i):
        for j in range(8): a(f"v_mul_f32 v{T+j}, s7, v{R+8*i+j}")
        for d in range(4): a(f"v_cvt_pk_bf16_f32 v{T+8+4*i+d}, v{T+2*d}, v{T+2*d+1}")
        a(f"buffer_store_dwordx4 v[{T+8+4*i}:{T+11+4*i}], v1, s[8:11], s17 offen offset:{i*1024}")
    qunit(0); qunit(1)
    lsp = a.label("spare")
    a(f"s_cmp_eq_u32 s15, 1\ns_cbranch_scc1 {lsp}")
    qunit(2)
    a(f"s_branch L_k1_end\n{lsp}:")
    a("s_cmp_ge_u32 s13, 4\ns_cbranch_scc1 L_k1_end")
    S = R + 16
    a(f"s_lshr_b32 s6, s16, 3\ns_mul_i32 s17, s6, {KVCH}\ns_add_u32 s17, s17, {WS_KV:#x}\ns_and_b32 s18, s16, 7")
    l1, lv, l2 = a.label("k2"), a.label("v"), a.label("k2b")
    a(f"s_cmp_eq_u32 s13, 3\ns_cbranch_scc0 {l1}\nv_mov_b32 v{S+4}, 1.0\ns_mov_b32 exec_lo, 0\nv_mov_b32 v{S}, 1.0\ns_mov_b32 exec_lo, -1\n{l1}:")
    for d in range(4): a(f"v_cvt_pk_bf16_f32 v{T+d}, v{S+2*d}, v{S+2*d+1}")
    a(f"s_cmp_ge_u32 s13, 2\ns_cbranch_scc1 {lv}\ns_cmp_eq_u32 s13, 1\ns_cbranch_scc1 {l2}")
    a(f"s_lshl_b32 s18, s18, 10\ns_add_u32 s17, s17, s18\nbuffer_store_dwordx4 v[{T}:{T+3}], v1, s[8:11], s17 offen\ns_branch L_k1_end")
    a(f"{l2}:\ns_lshl_b32 s18, s18, 8\ns_add_u32 s17, s17, s18\ns_add_u32 s17, s17, 24576\nv_lshrrev_b32 v4, 2, v1\nbuffer_store_dword v{T}, v4, s[8:11], s17 offen\ns_branch L_k1_end")
    a(f"{lv}:")
    a(f"s_lshl_b32 s3, s14, 11\nv_lshlrev_b32 v4, 5, v2\nv_lshl_add_u32 v4, v3, 3, v4\nv_add_u32 v4, s3, v4")
    a(f"ds_write_b64 v4, v[{T}:{T+1}]\nds_write_b64 v4, v[{T+2}:{T+3}] offset:16")
    a("v_lshrrev_b32 v4, 4, v1\nv_and_b32 v5, 15, v4\nv_lshrrev_b32 v4, 4, v4")
    a("v_and_b32 v6, 1, v4\nv_lshlrev_b32 v6, 4, v6\nv_lshl_add_u32 v6, v3, 2, v6\nv_lshrrev_b32 v7, 2, v5\nv_add_u32 v6, v6, v7\nv_lshlrev_b32 v6, 5, v6\nv_and_b32 v7, 3, v5\nv_lshl_add_u32 v6, v7, 3, v6\nv_add_u32 v6, s3, v6")
    a("s_waitcnt lgkmcnt(0)")
    a(f"ds_read_b64_tr_b16 v[{T+4}:{T+5}], v6\nds_read_b64_tr_b16 v[{T+6}:{T+7}], v6 offset:256")
    a("v_and_b32 v6, 1, v4\nv_lshlrev_b32 v6, 10, v6\nv_lshl_add_u32 v6, v3, 9, v6\nv_lshl_add_u32 v6, v5, 4, v6")
    a(f"s_lshl_b32 s18, s18, 11\ns_add_u32 s17, s17, s18\ns_add_u32 s17, s17, 8192\ns_cmp_eq_u32 s13, 2\ns_cselect_b32 s6, 256, 0\ns_add_u32 s17, s17, s6")
    a(f"s_waitcnt lgkmcnt(0)\nbuffer_store_dwordx4 v[{T+4}:{T+7}], v6, s[8:11], s17 offen")
    a("s_branch L_k1_end")
    L = Loader(a, WS_XH, 40, 0, wbase=WS_WQKV)
    L.params(0)
    L.start(L.issue)
    for s in range(10): L.step(s, 10, L.issue)
    end(a)
    finish(a, 256, 512, LDS_G, 248)

def k2():
    a = K("k2")
    common_prologue(a, f"s_load_dwordx4 s[32:35], s[0:1], {KA['w_in']}\ns_load_dwordx2 s[36:37], s[0:1], {KA['wo']}")
    S0, S1, O, PB, Q1, Q2 = 8, 24, 40, 56, 64, 68
    KA_, KB_, V1, V2 = 72, 76, 80, 84
    VA, VB, VN, VNB = 4, 5, 6, 88
    NB = 6
    FLAG = NB * KVCH
    a("s_mov_b32 s27, 0")
    a("s_cmp_ge_u32 s14, 8\ns_cbranch_scc1 L_k2_helper")
    PRIO = os.environ.get("X_PRIO", "0")
    if PRIO == "1":
        lpr = a.label("prio")
        a(f"s_cmp_lt_u32 s14, 4\ns_cbranch_scc1 {lpr}\ns_setprio 1\n{lpr}:")
    a("v_lshrrev_b32 v7, 2, v1")
    a("s_lshr_b32 s15, s14, 2\ns_and_b32 s16, s14, 3\ns_lshl_b32 s17, s12, 1\ns_add_u32 s17, s17, s15")
    a(f"s_lshl_b32 s18, s17, 3\ns_add_u32 s18, s18, s13\ns_mul_i32 s18, s18, 5120\ns_add_u32 s18, s18, {WS_Q:#x}\ns_lshl_b32 s6, s16, 10\ns_add_u32 s19, s18, s6\ns_lshl_b32 s6, s16, 2\ns_add_u32 s18, s18, s6\ns_add_u32 s18, s18, 4096")
    a("s_waitcnt lgkmcnt(0)")
    srd(a, 8, 4, WS_SIZE)
    stamp(a, 1)
    a(f"buffer_load_dwordx4 v[{Q1}:{Q1+3}], v1, s[8:11], s19 offen\nbuffer_load_dword v{Q2}, v1, s[8:11], s18 offen")
    def qk1(S): return f"v_mfma_f32_32x32x16_bf16 v[{S}:{S+15}], v[{KB_}:{KB_+3}], v[{Q2}:{Q2+3}], 0"
    def qk2(S): return f"v_mfma_f32_32x32x16_bf16 v[{S}:{S+15}], v[{KA_}:{KA_+3}], v[{Q1}:{Q1+3}], v[{S}:{S+15}]"
    def pv(V, P): return f"v_mfma_f32_32x32x16_bf16 v[{O}:{O+15}], v[{V}:{V+3}], v[{P}:{P+3}], v[{O}:{O+15}]"
    def rKA(t, va): return f"ds_read_b128 v[{KA_}:{KA_+3}], v{va} offset:{t*1024}"
    def rKB(t, vb): return f"ds_read_b32 v{KB_}, v{vb} offset:{24576+t*256}"
    def rV(t, p, va): return f"ds_read_b128 v[{(V1, V2)[p]}:{(V1, V2)[p]+3}], v{va} offset:{8192+t*2048+p*1024}"
    def max_reduce(S, M):
        for i in range(0, 16, 2): a(f"v_max3_f32 v{M}, v{S+i}, v{S+i+1}, v{M}")
    def finish_max(M):
        a(f"v_mov_b32 v{M+1}, v{M}\ns_nop 1\nv_permlane32_swap_b32 v{M}, v{M+1}\ns_nop 1\nv_max_f32 v{M}, v{M}, v{M+1}")
        a(f"v_and_b32 v{M+1}, 0xffff0000, v{M}\nv_sub_f32 v{M+2}, v{M}, v{M+1}\nv_and_b32 v{M+3}, 0xffff0000, v{M+2}\nv_sub_f32 v{M+2}, v{M+2}, v{M+3}")
        a(f"v_lshrrev_b32 v{M+1}, 16, v{M+1}\nv_or_b32 v{M+1}, v{M+1}, v{M+3}\nv_lshrrev_b32 v{M+2}, 16, v{M+2}\nv_cmp_eq_u32 vcc, 0, v3\ns_nop 1")
        a(f"v_cndmask_b32 v{Q2+1}, 0, v{M+1}, vcc\nv_cndmask_b32 v{Q2+2}, 0, v{M+2}, vcc")
    for r in (Q2+1, Q2+2, Q2+3, KB_+3): a(f"v_mov_b32 v{r}, 0")
    for r in (KB_+1, KB_+2): a(f"v_mov_b32 v{r}, 0xbf80bf80")
    a(f"v_mov_b32 v{PB}, 0xff800000")
    OA = 90
    a(f"s_mul_i32 s6, s13, 20\ns_mul_i32 s7, s16, 5\ns_add_u32 s6, s6, s7\ns_mul_i32 s22, s17, {40*1024}\ns_add_u32 s22, s22, {WS_O:#x}")
    for i, g in enumerate((0, 2, 4)):
        a(f"v_add_u32 v8, s6, v3\nv_add_u32 v8, {g}, v8" if g < 4 else "v_mov_b32 v8, s6\nv_add_u32 v8, 4, v8")
        a(f"v_lshrrev_b32 v9, 2, v8\nv_lshlrev_b32 v9, 10, v9\nv_and_b32 v10, 1, v8\nv_lshl_add_u32 v9, v10, 9, v9\nv_bfe_u32 v10, v8, 1, 1\nv_lshl_add_u32 v9, v10, 3, v9\nv_lshl_add_u32 v{OA+i}, v2, 4, v9")
    a("s_waitcnt vmcnt(0)\ns_barrier")
    stamp(a, 2)
    a(rKA(0, 1)); a(rKB(0, 7)); a("s_waitcnt lgkmcnt(0)")
    a(qk1(S0)); a(qk2(S0))
    a("s_nop 11")
    max_reduce(S0, PB)
    finish_max(PB)
    a("L_k2_main:")
    a(f"s_mov_b32 s24, 0\ns_mov_b32 s25, 0\nv_mov_b32 v{VA}, v1\nv_mov_b32 v{VB}, v7")
    for i in range(16): a(f"v_mov_b32 v{O+i}, 0")
    for i in range(4): a(f"v_mov_b32 v{PB+4+i}, 0\nv_mov_b32 v{S1+12+i}, 0\nv_mov_b32 v{V2+i}, 0")
    a(rKA(0, VA)); a(rKB(0, VB)); a("s_waitcnt lgkmcnt(0)")
    a(qk1(S0)); a(qk2(S0))
    a(rKB(1, VB)); a(f"ds_read_b32 v89, v{VB}"); a(rKA(1, VA)); a(rV(0, 0, VA))
    a("s_nop 7")
    stamp(a, 3)
    a("L_k2_loop:")
    for t in range(8):
        S, Sp = (S0, S1) if t % 2 == 0 else (S1, S0)
        ka, kb, kt = (VA, VB, t + 2) if t < 6 else (VN, VNB, t - 6)
        va, vt = (VA, t + 1) if t < 7 else (VN, 0)
        if t == 5:
            ls = a.label("bs")
            a(f"s_add_u32 s25, s25, {KVCH}\ns_cmp_ge_u32 s25, {NB*KVCH}\ns_cselect_b32 s25, 0, s25\nv_add_u32 v{VN}, s25, v1\nv_add_u32 v{VNB}, s25, v7")
            a(f"s_bitcmp1_b32 37, s24\ns_cbranch_scc0 {ls}\ns_barrier\n{ls}:")
        if PRIO == "2" and t in (0, 4):
            l1, l2 = a.label("p1"), a.label("p2")
            a(f"s_cmp_eq_u32 s15, {t >> 2}\ns_cbranch_scc1 {l1}\ns_setprio 1\ns_branch {l2}\n{l1}:\ns_setprio 0\n{l2}:")
        groups = [
            ([(6, Sp+12), (7, Sp+14)], qk1(Sp), rKB(kt, kb), 0),
            ([(0, S), (1, S+2)], pv(V2, PB+4), rV(t, 1, VA), 4),
            ([(2, S+4), (3, S+6)], qk2(Sp), rKA(kt, ka), 8),
            ([(4, S+8), (5, S+10)], pv(V1, PB), rV(vt, 0, va), 12)]
        for cv, mf, rd, e0 in groups:
            for d, r in cv: a(f"v_cvt_pk_bf16_f32 v{PB+d}, v{r}, v{r+1}")
            a("s_waitcnt lgkmcnt(3)")
            a(mf); a(rd)
            for i in range(4): a(f"v_exp_f32 v{S+e0+i}, v{S+e0+i}")
        if t == 7: a(f"v_mov_b32 v{VA}, v{VN}\nv_mov_b32 v{VB}, v{VNB}")
    a("s_add_u32 s24, s24, 1\ns_cmp_lt_u32 s24, 8\ns_cbranch_scc1 L_k2_loop")
    a(f"v_cvt_pk_bf16_f32 v{PB+6}, v{S1+12}, v{S1+13}\nv_cvt_pk_bf16_f32 v{PB+7}, v{S1+14}, v{S1+15}\ns_waitcnt lgkmcnt(0)\nv_cmp_eq_u32 vcc, 0, v3")
    a(pv(V2, PB+4))
    a("s_nop 11")
    stamp(a, 4)
    a(f"v_cndmask_b32 v{PB+2}, v{O}, v{O+4}, vcc")
    T = S0
    a(f"v_rcp_f32 v{PB+3}, v{PB+2}\nv_mov_b32 v{PB}, {f32(2.0**30)}\nv_mov_b32 v{PB+1}, {f32(2.0**-30)}")
    for i, r in enumerate((8, 9, 10, 11, 12, 13, 14, 15, 0, 1, 2, 3)): a(f"v_mul_f32 v{T+6+i}, v{O+r}, v{PB+3}")
    for d in range(6): a(f"v_cvt_pk_bf16_f32 v{T+d}, v{T+6+2*d}, v{T+7+2*d}")
    a(f"buffer_store_dwordx2 v[{T}:{T+1}], v{OA}, s[8:11], s22 offen\nbuffer_store_dwordx2 v[{T+2}:{T+3}], v{OA+1}, s[8:11], s22 offen")
    a(f"s_mov_b32 exec_hi, 0\nbuffer_store_dwordx2 v[{T+4}:{T+5}], v{OA+2}, s[8:11], s22 offen\ns_mov_b32 exec_hi, -1")
    a(f"s_cmp_eq_u32 s27, 1\ns_cbranch_scc1 L_k2_end")
    a(f"v_cmp_nle_f32 vcc, v{PB+2}, v{PB}\nv_cmp_nge_f32 s[30:31], v{PB+2}, v{PB+1}\ns_nop 1\ns_or_b64 vcc, vcc, s[30:31]\ns_cselect_b32 s3, 1, 0")
    a(f"v_mov_b32 v{PB}, s3\ns_lshl_b32 s6, s14, 2\ns_add_u32 s6, s6, {FLAG}\nv_mov_b32 v{PB+1}, s6\nds_write_b32 v{PB+1}, v{PB}\ns_waitcnt lgkmcnt(0)")
    def vote(lend):
        a(f"s_barrier\nv_mov_b32 v{PB+1}, {FLAG}\nds_read_b128 v[{S1}:{S1+3}], v{PB+1}\nds_read_b128 v[{S1+4}:{S1+7}], v{PB+1} offset:16\ns_waitcnt lgkmcnt(0)")
        for i in range(1, 8): a(f"v_or_b32 v{S1}, v{S1}, v{S1+i}")
        a(f"s_nop 0\nv_readfirstlane_b32 s3, v{S1}\ns_cmp_eq_u32 s3, {XCMP}\ns_cbranch_scc1 {lend}\ns_mov_b32 s27, 1")
    vote("L_k2_end")
    a(f"v_mov_b32 v{Q2+1}, 0\nv_mov_b32 v{Q2+2}, 0\nv_mov_b32 v{PB}, 0xff800000\ns_mov_b32 s24, 0")
    a("L_k2_maxloop:")
    a("s_barrier\ns_barrier")
    for t in range(8):
        a(rKA(t, 1)); a(rKB(t, 7)); a("s_waitcnt lgkmcnt(0)")
        a(qk1(S0)); a(qk2(S0))
        a("s_nop 11")
        max_reduce(S0, PB)
    a("s_add_u32 s24, s24, 1\ns_cmp_lt_u32 s24, 8\ns_cbranch_scc1 L_k2_maxloop")
    finish_max(PB)
    a("s_barrier\ns_barrier")
    a("s_branch L_k2_main")
    a("L_k2_helper:")
    a(f"s_sub_u32 s15, s14, 8\ns_lshl_b32 s21, s15, 10\ns_add_u32 s20, s21, {WS_KV:#x}\ns_waitcnt lgkmcnt(0)")
    srd(a, 8, 4, WS_SIZE)
    stamp(a, 1)
    def dma(goff, loff):
        ld = a.label("d")
        for i in range(7):
            if i == 6: a(f"s_cmp_ge_u32 s15, 2\ns_cbranch_scc1 {ld}")
            a(f"s_add_u32 m0, s21, {loff + i*4096}\ns_add_u32 s23, s20, {goff + i*4096}\nbuffer_load_dwordx4 v1, s[8:11], s23 offen lds")
        a(f"{ld}:")
    a("L_k2_hmain:")
    dma(0, 0)
    a("s_waitcnt vmcnt(0)\ns_barrier")
    dma(KVCH, KVCH); dma(2*KVCH, 2*KVCH)
    a("s_waitcnt vmcnt(0)\ns_barrier")
    for g in (3, 4, 5): dma(g*KVCH, g*KVCH)
    lns = a.label("noside")
    a(f"s_cmp_lg_u32 s27, 0\ns_cbranch_scc1 {lns}")
    srd(a, 40, 34, 2048 * 4096)
    a("s_lshl_b32 s17, s12, 1\ns_lshr_b32 s3, s15, 1\ns_add_u32 s17, s17, s3\ns_lshl_b32 s16, s13, 4\ns_and_b32 s3, s15, 1\ns_lshl_b32 s3, s3, 3\ns_add_u32 s16, s16, s3")
    a("s_lshl_b32 s6, s17, 17\ns_lshl_b32 s7, s16, 5\ns_add_u32 s6, s6, s7\nv_lshlrev_b32 v4, 12, v2\nv_lshl_add_u32 v4, v3, 4, v4")
    for i in range(8): a(f"buffer_load_dwordx4 v[{8+4*i}:{11+4*i}], v4, s[40:43], s6 offen offset:{32*i} nt")
    a(f"s_lshl_b32 s6, s17, 7\ns_add_u32 s6, s6, s16\ns_lshl_b32 s6, s6, 10\ns_add_u32 s6, s6, {WS_WSP:#x}")
    for i in range(8):
        a(f"s_waitcnt vmcnt(7)\nbuffer_store_dwordx4 v[{8+4*i}:{11+4*i}], v1, s[8:11], s6 offen offset:{(i%4)*1024}")
        if i == 3: a("s_add_u32 s6, s6, 4096")
    a(f"{lns}:")
    a("s_waitcnt vmcnt(0)\ns_barrier")
    dma(6*KVCH, 0); dma(7*KVCH, KVCH)
    a("s_waitcnt vmcnt(0)\ns_barrier")
    a(f"s_cmp_eq_u32 s27, 1\ns_cbranch_scc1 L_k2_end")
    srd(a, 40, 36, 640 * 1280)
    prefetch(a, 40, 0, 640 * 1280, 4, 15, 8, 4, 28)
    srd(a, 40, 32, 640 * 3072)
    prefetch(a, 40, 0, 640 * 3072, 4, 15, 8, 4, 28)
    vote("L_k2_end")
    a("s_mov_b32 s24, 0")
    a("L_k2_hmax:")
    a("s_barrier")
    dma(0, 0)
    a(f"s_add_u32 s20, s20, {KVCH}\ns_waitcnt vmcnt(0)\ns_barrier\ns_add_u32 s24, s24, 1\ns_cmp_lt_u32 s24, 8\ns_cbranch_scc1 L_k2_hmax")
    a(f"s_add_u32 s20, s21, {WS_KV:#x}\ns_barrier\ns_branch L_k2_hmain")
    end(a)
    finish(a, 256, 768, FLAG + 64, 96)

def stats_addr(a, base, st):
    a(f"s_lshl_b32 s{st}, s16, 12\ns_lshr_b32 s7, s13, 1\ns_lshl_b32 s7, s7, 10\ns_add_u32 s{st}, s{st}, s7\ns_and_b32 s7, s13, 1\ns_lshl_b32 s7, s7, 9\ns_add_u32 s{st}, s{st}, s7\ns_lshl_b32 s7, s15, 3\ns_add_u32 s{st}, s{st}, s7\ns_add_u32 s{st}, s{st}, {base:#x}")
def stats_store(a, V, base, flags=""):
    a(f"v_mov_b32 v{V+2}, v{V}\nv_mov_b32 v{V+3}, v{V+1}\ns_nop 1\nv_permlane32_swap_b32 v{V}, v{V+2}\nv_permlane32_swap_b32 v{V+1}, v{V+3}\ns_nop 1\nv_add_f32 v{V}, v{V}, v{V+2}\nv_add_f32 v{V+1}, v{V+1}, v{V+3}\nv_max_f32 v{V+1}, 0, v{V+1}")
    stats_addr(a, base, 6)
    a("s_mov_b32 exec_hi, 0")
    a.vm(f"buffer_store_dwordx2 v[{V}:{V+1}], v1, s[8:11], s6 offen {flags}")
    a("s_mov_b32 exec_hi, -1")
def stats_load(a, D, base, tag, flags=""):
    a(f"s_lshl_b32 s6, s16, 12\ns_add_u32 s6, s6, {base:#x}")
    for i in range(4): a.vm(f"buffer_load_dwordx4 v[{D+4*i}:{D+4*i+3}], v1, s[8:11], s6 offen offset:{1024*i} {flags}", tag)
def stats_finish(a, D, n, rr, nm):
    for i in range(1, 8): a(f"v_add_f32 v{D}, v{D}, v{D+2*i}\nv_add_f32 v{D+1}, v{D+1}, v{D+2*i+1}")
    a(f"v_mov_b32 v{D+2}, v{D}\nv_mov_b32 v{D+3}, v{D+1}\ns_nop 1\nv_permlane32_swap_b32 v{D}, v{D+2}\nv_permlane32_swap_b32 v{D+1}, v{D+3}\ns_nop 1\nv_add_f32 v{D}, v{D}, v{D+2}\nv_add_f32 v{D+1}, v{D+1}, v{D+3}")
    a(f"v_mul_f32 v{D}, {f32(1/n)}, v{D}\nv_mul_f32 v{D+1}, {f32(1/n)}, v{D+1}\nv_fma_f32 v{D+1}, -v{D}, v{D}, v{D+1}\nv_max_f32 v{D+1}, 0, v{D+1}\nv_add_f32 v{D+1}, {f32(1e-5)}, v{D+1}\nv_rsq_f32 v{rr}, v{D+1}\ns_nop 0\nv_mul_f32 v{nm}, v{D}, v{rr}\nv_sub_f32 v{nm}, 0, v{nm}")

def kproj(name, act_base, wkey, nks, gate_off, final):
    a = K(name)
    nst = nks // 4
    gemm_prologue(a, f"s_load_dwordx2 s[32:33], s[0:1], {KA[wkey]}" + (f"\ns_load_dwordx2 s[34:35], s[0:1], {KA['out']}" if final else ""))
    compute_addr(a, 160)
    G, XR = 200, 224
    unit_off(a, 22, 5, 0)
    a(f"s_add_u32 s23, s22, {(WS_X1 if final else WS_XH):#x}\ns_add_u32 s22, s22, {WS_X1:#x}\ns_waitcnt lgkmcnt(0)")
    srd(a, 8, 4, WS_SIZE)
    stamp(a, 1)
    for i in range(3): a.vm(f"buffer_load_dwordx4 v[{XR+4*i}:{XR+4*i+3}], v1, s[8:11], s23 offen offset:{1024*i}", "epi")
    if final:
        srd(a, 24, 34, 2048 * 1280)
        a(f"v_mul_u32_u24 v7, 1280, v2\nv_lshl_add_u32 v7, v3, 3, v7\ns_mul_i32 s23, s16, {32*1280}\ns_mul_i32 s6, s13, 160\ns_add_u32 s23, s23, s6\ns_mul_i32 s6, s15, 96\ns_add_u32 s23, s23, s6")
    else:
        stats_addr(a, WS_ST2, 28)
        a("v_mov_b32 v238, -1\nv_mov_b32 v239, -1\ns_mov_b32 exec_hi, 0")
        a.vm("buffer_store_dwordx2 v[238:239], v1, s[8:11], s28 offen")
        a("s_mov_b32 exec_hi, -1")
    a(f"s_mul_i32 s3, s15, 192\ns_add_u32 s3, s3, {PAR}\nv_lshlrev_b32 v6, 4, v3\nv_add_u32 v6, s3, v6")
    areg = lambda s: AF + 8*(s % 2)
    c_start(a, areg)
    for s in range(nst): c_iter(a, s, s == 0, nst, areg)
    stamp(a, 4)
    for i in range(6): a(f"ds_read_b128 v[{G+4*i}:{G+4*i+3}], v6 offset:{32*i}")
    T = WS0
    exchange(a, T)
    stamp(a, 5)
    R = ACC
    a.wait(vm=["epi"])
    if not final: a("v_mov_b32 v120, 0\nv_mov_b32 v121, 0")
    lskip = a.label("skip")
    for i in range(3):
        if i == 2: a(f"s_cmp_eq_u32 s15, 1\ns_cbranch_scc1 {lskip}")
        for d in range(4):
            x = XR + 4*i + d; r = R + 8*i + 2*d; g = G + 8*i + 2*d; t = T + 2*(d % 2)
            a(f"v_lshlrev_b32 v{t}, 16, v{x}\nv_and_b32 v{t+1}, 0xffff0000, v{x}\nv_fmac_f32 v{t}, v{g}, v{r}\nv_fmac_f32 v{t+1}, v{g+1}, v{r+1}")
            if not final:
                a(f"v_add_f32 v120, v120, v{t}\nv_fmac_f32 v121, v{t}, v{t}\nv_add_f32 v120, v120, v{t+1}\nv_fmac_f32 v121, v{t+1}, v{t+1}")
            a(f"v_cvt_pk_bf16_f32 v{T+8+4*i+d}, v{t}, v{t+1}")
        o = T + 8 + 4*i
        if final:
            a(f"buffer_store_dwordx2 v[{o}:{o+1}], v7, s[24:27], s23 offen offset:{32*i}\nbuffer_store_dwordx2 v[{o+2}:{o+3}], v7, s[24:27], s23 offen offset:{32*i+16}")
        else:
            a(f"buffer_store_dwordx4 v[{o}:{o+3}], v1, s[8:11], s22 offen offset:{1024*i}")
    a(f"{lskip}:")
    if not final: stats_store(a, 120, WS_ST1)
    a(f"s_branch L_{name}_end")
    L = Loader(a, act_base, nks, 160, ka_sreg=32, rs=1280, nbytes=nks*16*1280, colbytes=160)
    a(f"s_mul_i32 s6, s13, 320\ns_add_u32 s6, s6, {WS_MOD + gate_off}")
    L.dma1(PAR, 6, "par")
    L.start(L.issue)
    for s in range(nst): L.step(s, nst, L.issue)
    end(a)
    finish(a, 256, 512, LDS_G, 248)

GC1 = -2.0 * LOG2E * math.sqrt(2.0 / math.pi)
GC2 = GC1 * 0.044715
def gelu(a, regs, t0, c1):
    for i, r in enumerate(regs): a(f"v_mul_f32 v{t0+i}, v{r}, v{r}")
    for i, r in enumerate(regs): a(f"v_fma_f32 v{t0+i}, v{t0+i}, s28, v{c1}")
    for i, r in enumerate(regs): a(f"v_mul_f32 v{t0+i}, v{t0+i}, v{r}")
    for i, r in enumerate(regs): a(f"v_exp_f32 v{t0+i}, v{t0+i}")
    for i, r in enumerate(regs): a(f"v_add_f32 v{t0+i}, 1.0, v{t0+i}")
    for i, r in enumerate(regs): a(f"v_rcp_f32 v{t0+i}, v{t0+i}")
    for i, r in enumerate(regs): a(f"v_mul_f32 v{r}, v{r}, v{t0+i}")

ZROW = 208
def k4():
    a = K("k4")
    gemm_prologue(a, f"s_load_dwordx2 s[32:33], s[0:1], {KA['w_in']}")
    compute_addr(a, 192); param_base(a)
    RR, NM, C1, Z2 = 236, 237, 238, 184
    a(f"s_mov_b32 s28, {f32(GC2)}\nv_mov_b32 v{C1}, {f32(GC1)}\ns_waitcnt lgkmcnt(0)")
    srd(a, 8, 4, WS_SIZE)
    stamp(a, 1)
    stats_load(a, PR, WS_ST1, "ln")
    a.wait(vm=["ln"])
    stats_finish(a, PR, 640, RR, NM)
    xf = (10, RR, NM)
    areg = lambda s: AF + 8*(s % 10)
    c_start(a, areg, xf)
    for s in range(10): c_iter(a, s, s == 0, 20, areg, xf, load_a=(s < 9))
    stamp(a, 4)
    T = WS0 + 24
    exchange(a, T)
    gelu(a, list(range(ACC, ACC+24)), T, C1)
    a("v_mov_b32 v232, 0\nv_mov_b32 v233, 0")
    for i in range(24): a(f"v_add_f32 v232, v232, v{ACC+i}\nv_fmac_f32 v233, v{ACC+i}, v{ACC+i}\nv_mov_b32 v{Z2+i}, v{ACC+i}")
    stats_store(a, 232, WS_ST2, "sc1")
    stamp(a, 5)
    for s in range(10, 20): c_iter(a, s, s == 10, 20, areg, None, load_a=False)
    stamp(a, 6)
    stats_load(a, 208, WS_ST2, "st2", "sc1")
    T = WS0
    exchange(a, T)
    gelu(a, list(range(ACC, ACC+24)), T, C1)
    unit_off(a, 22, 6, WS_Z1)
    for i in range(3):
        for d in range(4): a(f"v_cvt_pk_bf16_f32 v{T+4*i+d}, v{ACC+8*i+2*d}, v{ACC+8*i+2*d+1}")
        a.vm(f"buffer_store_dwordx4 v[{T+4*i}:{T+4*i+3}], v1, s[8:11], s22 offen offset:{i*1024}")
    stamp(a, 7)
    a.wait(vm=["st2"])
    a("s_mov_b32 s29, 0x4000")
    lp, lok = a.label("poll"), a.label("ok")
    a(f"{lp}:")
    a("v_or_b32 v224, v209, v211")
    for i in range(2, 8): a(f"v_or_b32 v224, v224, v{209+2*i}")
    a(f"v_cmp_gt_i32 vcc, 0, v224\ns_sub_u32 s29, s29, 1\ns_cbranch_scc1 {lok}\ns_cbranch_vccz {lok}\ns_sleep 1")
    stats_load(a, 208, WS_ST2, "st2", "sc1")
    a(f"s_waitcnt vmcnt(0)\ns_branch {lp}\n{lok}:")
    stamp(a, 8)
    stats_finish(a, 208, 768, RR, NM)
    T = WS0 + 24
    for i in range(24): a(f"v_fma_f32 v{Z2+i}, v{Z2+i}, v{RR}, v{NM}")
    for i in range(12): a(f"v_cvt_pk_bf16_f32 v{T+i}, v{Z2+2*i}, v{Z2+2*i+1}")
    a(f"s_and_b32 s6, s14, 1\ns_mul_i32 s6, s6, {32*ZROW}\ns_mul_i32 s7, s15, 96\ns_add_u32 s6, s6, s7\nv_mul_u32_u24 v4, {ZROW}, v2\nv_lshl_add_u32 v4, v3, 3, v4\nv_add_u32 v4, s6, v4")
    for i in range(6): a(f"ds_write_b64 v4, v[{T+2*i}:{T+2*i+1}] offset:{16*i}")
    a("v_lshrrev_b32 v5, 4, v1\nv_and_b32 v6, 15, v5\nv_lshrrev_b32 v5, 4, v5\nv_and_b32 v5, 1, v5")
    a(f"v_lshrrev_b32 v7, 2, v6\nv_lshl_add_u32 v7, v3, 3, v7\nv_mul_u32_u24 v7, {ZROW}, v7\nv_and_b32 v6, 3, v6\nv_lshl_add_u32 v7, v6, 3, v7\ns_mul_i32 s6, s14, {16*ZROW}\nv_add_u32 v7, s6, v7")
    a("v_mul_u32_u24 v6, 96, v5\nv_add_u32 v6, v6, v7\nv_lshl_add_u32 v7, v5, 5, v7")
    a("s_waitcnt lgkmcnt(0)\ns_barrier")
    for ft in range(3):
        av = 6 if ft == 1 else 7
        o = 32 * UT[ft][0]
        a(f"ds_read_b64_tr_b16 v[{T+4*ft}:{T+4*ft+1}], v{av} offset:{o}\nds_read_b64_tr_b16 v[{T+4*ft+2}:{T+4*ft+3}], v{av} offset:{o+4*ZROW}")
    a(f"s_lshl_b32 s6, s13, 7\ns_lshl_b32 s7, s12, 2\ns_add_u32 s6, s6, s7\ns_add_u32 s6, s6, s14\ns_mul_i32 s6, s6, 3072\ns_add_u32 s6, s6, {WS_Z2T:#x}")
    a("s_waitcnt lgkmcnt(0)")
    for ft in range(3): a(f"buffer_store_dwordx4 v[{T+4*ft}:{T+4*ft+3}], v1, s[8:11], s6 offen offset:{1024*ft}")
    if os.environ.get("X_WSPPF", "0") == "1":
        a(f"s_and_b32 s3, s14, 3\ns_lshl_b32 s6, s16, 17\ns_lshl_b32 s7, s13, 14\ns_add_u32 s6, s6, s7\ns_lshl_b32 s7, s15, 13\ns_add_u32 s6, s6, s7\ns_add_u32 s6, s6, {WS_WSP:#x}\nv_lshlrev_b32 v4, 3, v1")
        a("buffer_load_dword v8, v4, s[8:11], s6 offen")
    a("s_branch L_k4_end")
    L = Loader(a, WS_X1, 40, 192, ka_sreg=32, rs=3072, nbytes=640*3072, colbytes=192, col0=1536)
    L.params(7680)
    def issue(s):
        if s == 10: a(f"s_sub_u32 s19, s19, {320*3072 + 1536}")
        L.issue(s, s < 10)
    L.start(issue)
    for s in range(20):
        L.step(s, 20, issue)
        if s == 10: a("s_barrier")
    end(a)
    finish(a, 256, 512, LDS_G, 248)

def k5():
    a = K("k5")
    gemm_prologue(a, f"s_load_dwordx4 s[32:35], s[0:1], {KA['b_sp']}")
    compute_addr(a, 0)
    Z, B = 200, 212
    unit_off(a, 28, 6, 0)
    a(f"s_add_u32 s29, s28, {WS_Y:#x}\ns_add_u32 s28, s28, {WS_Z1:#x}\nv_lshlrev_b32 v6, 1, v2\ns_lshl_b32 s6, s16, 6\ns_waitcnt lgkmcnt(0)")
    srd(a, 8, 4, WS_SIZE); srd(a, 24, 32, 4096)
    stamp(a, 1)
    for i in range(3): a.vm(f"buffer_load_dwordx4 v[{Z+4*i}:{Z+4*i+3}], v1, s[8:11], s28 offen offset:{1024*i}", "epi")
    a.vm(f"buffer_load_ushort v{B}, v6, s[24:27], s6 offen", "epi")
    for i in range(48): a(f"v_mov_b32 v{ACC+i}, 0")
    areg = lambda s: AF + 8*(s % 2)
    c_start(a, areg)
    a("s_mov_b32 s30, 5\nL_k5_loop:")
    for s in range(6): c_iter(a, s, False, 32, areg)
    a("s_sub_u32 s30, s30, 1\ns_cmp_lg_u32 s30, 0\ns_cbranch_scc1 L_k5_loop")
    a.lgq = [(t[0], t[1] + 24) if isinstance(t, tuple) else t for t in a.lgq]
    for s in range(30, 32): c_iter(a, s, False, 32, areg)
    stamp(a, 4)
    T = WS0
    exchange(a, T)
    stamp(a, 5)
    R = ACC
    a.wait(vm=["epi"])
    a(f"v_lshlrev_b32 v{B}, 16, v{B}")
    for i in range(3):
        for d in range(4):
            z = Z + 4*i + d; r = R + 8*i + 2*d; t = T + 2*(d % 2)
            a(f"v_add_f32 v{r}, v{r}, v{B}\nv_add_f32 v{r+1}, v{r+1}, v{B}\nv_lshlrev_b32 v{t}, 16, v{z}\nv_and_b32 v{t+1}, 0xffff0000, v{z}\nv_mul_f32 v{r}, v{r}, v{t}\nv_mul_f32 v{r+1}, v{r+1}, v{t+1}\nv_cvt_pk_bf16_f32 v{T+8+4*i+d}, v{r}, v{r+1}")
        a(f"buffer_store_dwordx4 v[{T+8+4*i}:{T+11+4*i}], v1, s[8:11], s29 offen offset:{1024*i}")
    a("s_branch L_k5_end")
    L = Loader(a, WS_WSP, 128, 0, wbase=WS_Z2T)
    L.start(L.issue)
    for s in range(2): L.step(s, 32, L.issue)
    a("s_mov_b32 s30, 4\nL_k5_lloop:")
    for s in range(2, 8): L.step(s, 32, L.issue)
    a("s_sub_u32 s30, s30, 1\ns_cmp_lg_u32 s30, 0\ns_cbranch_scc1 L_k5_lloop")
    a.vmq = [(t[0], t[1] + 18) if isinstance(t, tuple) else t for t in a.vmq]
    for s in range(26, 32):
        L.step(s, 32, L.issue)
        if s == 27:
            srd(a, 40, 34, 768 * 1280)
            a("s_and_b32 s31, s14, 3")
            prefetch(a, 40, 0, 768 * 1280, 4, 31, 8, 4, 28)
    end(a)
    finish(a, 256, 512, LDS_G, 248)

def emit(path):
    out = []
    for (n, lines, g, b, lds, nv, ao) in kernels:
        out.append(f"; @launch kernel={n}_kernel grid=({g},1,1) block=({b},1,1) lds={lds}")
    out.append('.amdgcn_target "amdgcn-amd-amdhsa--gfx950"\n.text')
    bad = 0
    for (n, lines, g, b, lds, nv, ao) in kernels:
        errs = check_hazards(lines, n) + ([] if PROF else check_waits(lines, n))
        for e in errs:
            if "buffer_load_ushort" in e.split("touched by")[0] and "buffer_load_ushort" in e.split("touched by")[-1] and n == "k0": continue
            if "buffer_load_dword v" in e.split("touched by")[0] and "buffer_load_dword v" in e.split("touched by")[-1]: continue
            print("CHECK", e); bad += 1
        out.append(f".globl {n}_kernel\n.p2align 8\n.type {n}_kernel,@function\n{n}_kernel:")
        t = Asm(); t.lines = lines
        out.append(t.text())
    out.append('.section .rodata,"a"')
    for (n, lines, g, b, lds, nv, ao) in kernels:
        out.append(f""".p2align 6
.amdhsa_kernel {n}_kernel
  .amdhsa_next_free_vgpr {nv}
  .amdhsa_next_free_sgpr {96 if PROF else 56}
  .amdhsa_accum_offset {ao}
  .amdhsa_group_segment_fixed_size 0
  .amdhsa_kernarg_size 120
  .amdhsa_user_sgpr_count 2
  .amdhsa_user_sgpr_kernarg_segment_ptr 1
  .amdhsa_system_sgpr_workgroup_id_x 1
.end_amdhsa_kernel""")
    open(path, "w").write("\n".join(out) + "\n")
    print("wrote", path, "checks failed:", bad)

if __name__ == "__main__":
    k0(); k1(); k2()
    kproj("k3", WS_O, "wo", 40, 5120, False)
    k4(); k5()
    kproj("k6", WS_Y, "w_out", 48, 12800, True)
    emit(sys.argv[1] if len(sys.argv) > 1 else "adaLN_cond__grouped_kv_mqa__mixer_gmlp__prompt.s")
```

```python
import math, struct, sys, os
from asmlib import *

def f32(x):
    return "0x%08x" % struct.unpack("<I", struct.pack("<f", x))[0]

WS_MOD  = 0x0
WS_XH   = 0x100000
WS_ST0  = 0x8000
WS_WQKV = 0x400000
WS_WO   = 0x500000
WS_WIN  = 0x600000
WS_WOUT = 0x800000
WS_Q    = 0xA00000
WS_KV   = 0xD00000
WS_O    = 0xE00000
WS_X1   = 0x1100000
WS_ST1  = 0x1400000
WS_ST2  = 0x1480000
WS_Z1   = 0x1500000
WS_Z2T  = 0x1E00000
WS_Y    = 0x2100000
WS_WSP  = 0x2400000
WS_SIZE = 0x2C00000
KVCH = 26624
OOB = 0x40000000
LOG2E = math.log2(math.e)
KA = dict(x=0, wq=8, wk=16, wv=24, wo=32, w_in=48, w_sp=56, b_sp=64, w_out=72, c=80, w_mod=88, out=96, dbg=104, ws=112)
UT = [[0, 1], [2, 5], [3, 4]]

PROF = os.environ.get("PROF", "0") == "1"
WS_PROF = 0x3000000
if PROF: WS_SIZE = 0x4000000
def stamp(a, i):
    if PROF: a(f"s_memtime s[{50+2*i}:{51+2*i}]")
def stamp_begin(a):
    if PROF:
        for i in range(12): a(f"s_mov_b64 s[{50+2*i}:{51+2*i}], 0")
        a("s_memrealtime s[74:75]")
        stamp(a, 0)
def stamp_end(a, kidx):
    if PROF:
        stamp(a, 11)
        a("s_memrealtime s[76:77]\ns_mov_b64 exec, 1\ns_waitcnt lgkmcnt(0)")
        a(f"s_lshl_b32 s3, s2, 4\ns_add_u32 s3, s3, s14\ns_lshl_b32 s3, s3, 6\ns_add_u32 s3, s3, {WS_PROF + kidx*0x100000:#x}\nv_mov_b32 v0, 0")
        for i in range(12): a(f"v_mov_b32 v{2+i}, s{50+2*i}")
        a("s_getreg_b32 s78, hwreg(HW_REG_XCC_ID)\ns_getreg_b32 s79, hwreg(HW_REG_HW_ID)\nv_mov_b32 v14, s74\nv_mov_b32 v15, s76\nv_mov_b32 v16, s78\nv_mov_b32 v17, s79")
        for i in range(4): a(f"buffer_store_dwordx4 v[{2+4*i}:{5+4*i}], v0, s[8:11], s3 offen offset:{16*i}")

def srd(a, d, p, nbytes):
    a(f"s_mov_b32 s{d}, s{p}\ns_mov_b32 s{d+1}, s{p+1}\ns_mov_b32 s{d+2}, {nbytes:#x}\ns_mov_b32 s{d+3}, 0x20000")

kernels = []
XCMP = "s3" if os.environ.get("X_NOBAR") or os.environ.get("X_NOLDS") else 0

class K(Asm):
    def __init__(self, name):
        super().__init__()
        self.name = name; self.vmq = []; self.lgq = []
    def label(self, base):
        self.uid += 1
        return f"L_{self.name}_{base}_{self.uid}"
    def vm(self, text, tag=None):
        self(text); self.vmq.append(tag)
    def lg(self, text, tag=None):
        self(text); self.lgq.append(tag)
    def _n(self, q, tags):
        idx = max((i for i, t in enumerate(q) if t in tags), default=None)
        return None if idx is None else len(q) - 1 - idx
    def wait(self, vm=(), lg=()):
        parts = []
        n = self._n(self.vmq, vm) if vm else None
        if n is not None:
            parts.append(f"vmcnt({min(n, 63)})"); self.vmq = self.vmq[len(self.vmq)-n:] if n else []
        n = self._n(self.lgq, lg) if lg else None
        if n is not None:
            n2 = min(n, 15)
            parts.append(f"lgkmcnt({n2})"); self.lgq = self.lgq[len(self.lgq)-n2:] if n2 else []
        if parts: self("s_waitcnt " + " ".join(parts))
    def wait_all_lg(self):
        self("s_waitcnt lgkmcnt(0)"); self.lgq = []

def end(a):
    a(f"L_{a.name}_end:")
    stamp_end(a, len(kernels))
    a(f"L_{a.name}_exit:\ns_endpgm")
def finish(a, grid, block, lds, nv):
    kernels.append((a.name, a.lines, grid, block, lds, nv, (nv + 3) // 4 * 4))

def bf16_round(a, v, t):
    a(f"v_cvt_pk_bf16_f32 v{t}, v{v}, v{v}\nv_and_b32 v{v}, 0xffff0000, v{t}")

E_NAT = list(range(8))
E_PERM = [(j & 3) + 8 * (j >> 2) for j in range(8)]
E_O5 = [20 * (j >> 1) + (j & 1) for j in range(8)]
def loads8(a, srdn, voff, lo, hi, ebase, e_list, rs, stmp, tag=None):
    for j in range(8):
        a(f"s_add_u32 s{stmp}, s{ebase}, {e_list[j]*rs}")
        a.vm(f"buffer_load_ushort v{(lo if j % 2 == 0 else hi) + j//2}, v{voff}, s[{srdn}:{srdn+3}], s{stmp} offen", tag)

def divmod_s(a, q, r, x, d, t):
    m = (1 << 20) // d + 1
    a(f"s_mul_i32 s{q}, s{x}, {m}\ns_lshr_b32 s{q}, s{q}, 20\ns_mul_i32 s{t}, s{q}, {d}\ns_sub_u32 s{r}, s{x}, s{t}")

def pack_frag_issue(a, f, srdn, rs, ncol, nks, otype, halves, lo, hi, voff, vt, S):
    q3, ft, t, nb, ks, eb = S, S+1, S+2, S+3, S+4, S+5
    divmod_s(a, q3, ft, f, 3, t)
    divmod_s(a, nb, ks, q3, nks, t)
    if halves:
        a(f"s_and_b32 s{t}, s{nb}, 1\ns_lshr_b32 s{nb}, s{nb}, 1\ns_mul_i32 s{nb}, s{nb}, {ncol}\ns_cmp_eq_u32 s{t}, 0\ns_cselect_b32 s{t}, 768, 0\ns_add_u32 s{nb}, s{nb}, s{t}")
    else:
        a(f"s_mul_i32 s{nb}, s{nb}, {ncol}")
    hi5 = 80 if ncol == 96 else OOB // 2
    a(f"s_cmp_eq_u32 s{ft}, 1\ns_cselect_b32 s{q3}, 32, 48\ns_cselect_b32 s{t}, {hi5:#x}, 64\ns_cmp_eq_u32 s{ft}, 0\ns_cselect_b32 s{q3}, 0, s{q3}\ns_cselect_b32 s{t}, 16, s{t}")
    a(f"s_add_u32 s{q3}, s{q3}, s{nb}\ns_add_u32 s{t}, s{t}, s{nb}")
    a(f"v_mov_b32 v{vt}, s{q3}\nv_mov_b32 v{vt+1}, s{t}\nv_cmp_gt_u32 vcc, 16, v2\nv_and_b32 v{voff}, 15, v2\ns_nop 0\nv_cndmask_b32 v{vt}, v{vt+1}, v{vt}, vcc\nv_add_lshl_u32 v{voff}, v{voff}, v{vt}, 1")
    if not otype:
        a(f"v_mul_u32_u24 v{vt}, {4*rs}, v3\nv_add_u32 v{voff}, v{voff}, v{vt}\ns_mul_i32 s{eb}, s{ks}, {16*rs}")
        loads8(a, srdn, voff, lo, hi, eb, E_PERM, rs, t, "pack")
    else:
        l5, ld = a.label("u4"), a.label("ud")
        divmod_s(a, q3, ft, ks, 5, t)
        a(f"s_mul_i32 s{q3}, s{q3}, 80\ns_cmp_eq_u32 s{ft}, 4\ns_cbranch_scc1 {l5}")
        a(f"s_mul_i32 s{ft}, s{ft}, 20\ns_add_u32 s{q3}, s{q3}, s{ft}\ns_mul_i32 s{eb}, s{q3}, {rs}\nv_mul_u32_u24 v{vt}, {4*rs}, v3\nv_add_u32 v{voff}, v{voff}, v{vt}")
        q0 = list(a.vmq)
        loads8(a, srdn, voff, lo, hi, eb, E_PERM, rs, t, "pack")
        a(f"s_branch {ld}\n{l5}:\ns_add_u32 s{q3}, s{q3}, 16\ns_mul_i32 s{eb}, s{q3}, {rs}\nv_mul_u32_u24 v{vt}, {2*rs}, v3\nv_add_u32 v{voff}, v{voff}, v{vt}")
        a.vmq = q0
        loads8(a, srdn, voff, lo, hi, eb, E_O5, rs, t, "pack")
        a(f"{ld}:")

def pack_frag_store(a, f, wsbase, lo, hi, st):
    for i in range(4): a(f"v_lshl_or_b32 v{lo+i}, v{hi+i}, 16, v{lo+i}")
    a(f"s_lshl_b32 s{st}, s{f}, 10\ns_add_u32 s{st}, s{st}, {wsbase:#x}")
    a.vm(f"buffer_store_dwordx4 v[{lo}:{lo+3}], v1, s[8:11], s{st} offen")

def l2_prefetch(a, base, nbytes, nwaves, vdst, vtmp, st):
    per_wg = nbytes // 32
    PS = int(os.environ.get("X_PFS", "64")); CH = 64 * PS
    n_instr = -(-per_wg // CH)
    per_wave = -(-n_instr // nwaves)
    a(f"s_lshr_b32 s{st}, s2, 3\ns_mul_i32 s{st}, s{st}, {per_wg}\ns_mul_i32 s{st+1}, s14, {per_wave*CH}\ns_add_u32 s{st}, s{st}, s{st+1}\ns_add_u32 s{st}, s{st}, {base:#x}\nv_lshlrev_b32 v{vtmp}, {int(math.log2(PS//16))}, v1")
    for i in range(per_wave):
        a.vm(f"buffer_load_dword v{vdst}, v{vtmp}, s[8:11], s{st} offen")
        if i < per_wave - 1: a(f"s_add_u32 s{st}, s{st}, {CH}")

N_MOD, N_XH, N_PQ = 128, 64, 40
def k0():
    a = K("k0")
    ends = [N_MOD, N_MOD + N_XH, N_MOD + N_XH + N_PQ]
    grid = ends[-1]
    CPF = os.environ.get("X_CPF", "0") == "1"
    if CPF:
        lc = a.label("cpf")
        a(f"s_cmp_lt_u32 s2, {grid}\ns_cbranch_scc1 {lc}\ns_cmp_ge_u32 s2, {grid+48}\ns_cbranch_scc1 L_k0_exit")
        a(f"s_getpc_b64 s[40:41]\ns_and_b32 s40, s40, 0xffffff00\ns_sub_u32 s3, s2, {grid}\ns_lshr_b32 s3, s3, 3\ns_lshl_b32 s3, s3, 13\nv_lshlrev_b32 v3, 5, v0\nv_add_u32 v3, s3, v3\nglobal_load_dword v4, v3, s[40:41]\ns_endpgm\n{lc}:")
        grid += 48
    a(f"s_cmp_ge_u32 s2, {grid}\ns_cbranch_scc1 L_k0_exit")
    stamp_begin(a)
    a(f"s_load_dwordx2 s[4:5], s[0:1], {KA['ws']}")
    a("v_and_b32 v1, 63, v0\nv_lshrrev_b32 v2, 6, v0\ns_nop 0\nv_readfirstlane_b32 s14, v2")
    a(f"s_cmp_lt_u32 s2, {ends[0]}\ns_cbranch_scc1 L_k0_mod")
    a(f"s_cmp_lt_u32 s2, {ends[1]}\ns_cbranch_scc1 L_k0_xh")
    a("s_branch L_k0_pq")
    a("L_k0_mod:")
    a(f"s_load_dwordx4 s[16:19], s[0:1], {KA['c']}")
    a("s_and_b32 s3, s2, 7\ns_lshl_b32 s3, s3, 1\ns_bfe_u32 s6, s2, 0x10003\ns_add_u32 s3, s3, s6\ns_lshr_b32 s6, s2, 4\ns_lshl_b32 s6, s6, 4\ns_add_u32 s3, s3, s6")
    a("s_cmp_ge_u32 s3, 120\ns_cbranch_scc1 L_k0_exit")
    a("v_lshrrev_b32 v1, 2, v0\nv_and_b32 v2, 3, v0\nv_mul_u32_u24 v3, 7680, v1\nv_lshl_add_u32 v3, v2, 4, v3\nv_lshlrev_b32 v4, 1, v1")
    a("s_waitcnt lgkmcnt(0)")
    srd(a, 8, 4, WS_SIZE); srd(a, 20, 16, 1280); srd(a, 24, 18, 640 * 7680)
    a("s_lshl_b32 s6, s3, 6")
    for p in range(10):
        a(f"buffer_load_ushort v{10+p}, v4, s[20:23], 0 offen offset:{128*p}")
    for p in range(10):
        a(f"buffer_load_dwordx4 v[{20+4*p}:{23+4*p}], v3, s[24:27], s6 offen")
        if p < 9: a(f"s_add_u32 s6, s6, {64*7680}")
    for i in range(8): a(f"v_mov_b32 v{64+i}, 0")
    a("s_waitcnt vmcnt(10)")
    for p in range(10):
        v = 10 + p
        a(f"v_lshlrev_b32 v{v}, 16, v{v}\nv_mul_f32 v5, {f32(-LOG2E)}, v{v}\nv_exp_f32 v5, v5\ns_nop 0\nv_add_f32 v5, 1.0, v5\nv_rcp_f32 v5, v5\ns_nop 0\nv_mul_f32 v{v}, v{v}, v5")
        bf16_round(a, v, 5)
    for p in range(10):
        a(f"s_waitcnt vmcnt({9-p})")
        for i in range(4):
            d = 20 + 4*p + i
            a(f"v_lshlrev_b32 v5, 16, v{d}\nv_and_b32 v6, 0xffff0000, v{d}\nv_fmac_f32 v{64+2*i}, v{10+p}, v5\nv_fmac_f32 v{65+2*i}, v{10+p}, v6")
    a("v_lshlrev_b32 v5, 7, v1\nv_lshl_add_u32 v5, v2, 5, v5")
    a("ds_write_b128 v5, v[64:67]\nds_write_b128 v5, v[68:71] offset:16")
    a("v_and_b32 v6, 31, v0\nv_lshrrev_b32 v7, 5, v0\nv_lshlrev_b32 v6, 2, v6\nv_lshl_add_u32 v8, v7, 10, v6")
    a("s_waitcnt lgkmcnt(0)\ns_barrier")
    for i in range(8): a(f"ds_read_b32 v{20+i}, v8 offset:{128*i}")
    a("s_waitcnt lgkmcnt(0)")
    for i in range(1, 8): a(f"v_add_f32 v20, v20, v{20+i}")
    a("v_lshl_add_u32 v8, v7, 7, v6\nds_write_b32 v8, v20 offset:8192\ns_waitcnt lgkmcnt(0)\ns_barrier")
    for i in range(8): a(f"ds_read_b32 v{20+i}, v6 offset:{8192+128*i}")
    a("s_waitcnt lgkmcnt(0)")
    for i in range(1, 8): a(f"v_add_f32 v20, v20, v{20+i}")
    bf16_round(a, 20, 5)
    a("v_add_f32 v21, 1.0, v20")
    bf16_round(a, 21, 5)
    a("s_sub_u32 s6, s3, 20\ns_cmp_lt_u32 s6, 20\ns_cselect_b32 s7, 1, 0\ns_sub_u32 s6, s3, 80\ns_cmp_lt_u32 s6, 20\ns_cselect_b32 s6, 1, s7\ns_cmp_eq_u32 s6, 0")
    l = a.label("noinc")
    a(f"s_cbranch_scc1 {l}\nv_mov_b32 v20, v21\n{l}:")
    a(f"s_lshl_b32 s6, s3, 7\nv_cmp_gt_u32 vcc, 32, v0\ns_and_saveexec_b64 s[28:29], vcc\ns_cbranch_execz L_k0_end")
    a(f"buffer_store_dword v20, v6, s[8:11], s6 offen offset:{WS_MOD}")
    a("s_branch L_k0_end")
    a("L_k0_xh:")
    a(f"s_load_dwordx2 s[16:17], s[0:1], {KA['x']}")
    a(f"s_sub_u32 s6, s2, {ends[0]}\ns_and_b32 s3, s6, 7\ns_lshr_b32 s7, s6, 4\ns_lshl_b32 s7, s7, 3\ns_add_u32 s3, s3, s7\ns_lshl_b32 s3, s3, 1\ns_bfe_u32 s7, s6, 0x10003\ns_add_u32 s3, s3, s7")
    a("v_and_b32 v2, 31, v1\nv_lshrrev_b32 v3, 5, v1\nv_mul_u32_u24 v4, 1280, v2\nv_lshl_add_u32 v4, v3, 4, v4")
    a(f"s_mul_i32 s6, s3, {32*1280}\ns_mul_i32 s7, s14, 320\ns_add_u32 s6, s6, s7")
    a("s_waitcnt lgkmcnt(0)")
    srd(a, 8, 4, WS_SIZE); srd(a, 20, 16, 2048 * 1280)
    for i in range(10):
        a(f"buffer_load_dwordx4 v[{20+4*i}:{23+4*i}], v4, s[20:23], s6 offen offset:{32*i}")
    a("v_mov_b32 v6, 0\nv_mov_b32 v7, 0")
    a(f"s_mul_i32 s6, s3, {40*1024}\ns_mul_i32 s7, s14, {10*1024}\ns_add_u32 s6, s6, s7\ns_add_u32 s6, s6, {WS_XH:#x}\nv_lshlrev_b32 v8, 4, v1")
    for i in range(10):
        b = 20 + 4*i
        a(f"s_waitcnt vmcnt(9)\nv_permlane32_swap_b32 v{b}, v{b+2}\nv_permlane32_swap_b32 v{b+1}, v{b+3}")
        a(f"buffer_store_dwordx4 v[{b}:{b+3}], v8, s[8:11], s6 offen offset:{(i%4)*1024}")
        if i % 4 == 3: a("s_add_u32 s6, s6, 4096")
        for d in range(4):
            lo = 64 + 2*(d % 2)
            a(f"v_lshlrev_b32 v{lo}, 16, v{b+d}\nv_and_b32 v{lo+1}, 0xffff0000, v{b+d}")
            a(f"v_add_f32 v6, v6, v{lo}\nv_fmac_f32 v7, v{lo}, v{lo}\nv_add_f32 v6, v6, v{lo+1}\nv_fmac_f32 v7, v{lo+1}, v{lo+1}")
    a("v_lshlrev_b32 v5, 3, v0\nds_write_b64 v5, v[6:7]\nv_lshlrev_b32 v5, 3, v2\ns_waitcnt lgkmcnt(0)\ns_barrier")
    for i in range(8): a(f"ds_read_b64 v[{70+2*i}:{71+2*i}], v5 offset:{256*i}")
    a("s_waitcnt lgkmcnt(0)")
    for i in range(1, 8): a(f"v_add_f32 v70, v70, v{70+2*i}\nv_add_f32 v71, v71, v{71+2*i}")
    a(f"v_mul_f32 v70, {f32(1/640)}, v70\nv_mul_f32 v71, {f32(1/640)}, v71\nv_fma_f32 v71, -v70, v70, v71\nv_max_f32 v71, 0, v71\nv_add_f32 v71, {f32(1e-5)}, v71\nv_rsq_f32 v72, v71\ns_nop 0\nv_mul_f32 v70, v70, v72")
    a(f"v_sub_f32 v73, 0, v70\ns_lshl_b32 s6, s3, 8\ns_add_u32 s6, s6, {WS_ST0:#x}\nv_cmp_gt_u32 vcc, 32, v0\ns_and_saveexec_b64 s[28:29], vcc\ns_cbranch_execz L_k0_end")
    a("buffer_store_dwordx2 v[72:73], v5, s[8:11], s6 offen")
    a("s_branch L_k0_end")
    a("L_k0_pq:")
    a(f"s_load_dwordx2 s[16:17], s[0:1], {KA['wq']}\ns_load_dwordx4 s[32:35], s[0:1], {KA['wk']}")
    a(f"s_sub_u32 s3, s2, {ends[1]}\ns_and_b32 s13, s3, 7\ns_lshr_b32 s12, s3, 3\ns_lshl_b32 s12, s12, 3\ns_lshl_b32 s6, s14, 1\ns_add_u32 s12, s12, s6")
    a("v_and_b32 v2, 31, v1\nv_lshrrev_b32 v3, 5, v1\nv_and_b32 v4, 15, v1\nv_lshlrev_b32 v9, 4, v1")
    a(f"v_lshrrev_b32 v5, 4, v2\nv_mul_u32_u24 v5, 20, v5\nv_add_u32 v5, v5, v4\ns_mul_i32 s6, s13, 80\nv_add_u32 v5, s6, v5\nv_lshlrev_b32 v5, 1, v5\nv_mul_u32_u24 v6, {4*1280}, v3\nv_add_u32 v10, v5, v6\nv_add_u32 v11, 80, v10\nv_add_u32 v12, 120, v10")
    a("v_bfe_u32 v5, v4, 1, 1\nv_lshrrev_b32 v7, 3, v4\nv_lshl_add_u32 v5, v7, 1, v5\nv_mul_u32_u24 v5, 20, v5\nv_bfe_u32 v7, v4, 2, 1\nv_lshl_add_u32 v5, v7, 1, v5\nv_and_b32 v7, 1, v4\nv_add_u32 v5, v5, v7\nv_add_u32 v5, 16, v5\nv_add_u32 v5, s6, v5\nv_lshlrev_b32 v5, 1, v5\nv_add_u32 v5, v5, v6\nv_cmp_gt_u32 vcc, 16, v2\ns_nop 1\nv_cndmask_b32 v12, v5, v12, vcc")
    a("v_lshrrev_b32 v5, 2, v4\nv_lshlrev_b32 v5, 1, v5\nv_add_u32 v5, v5, v7\nv_add_u32 v5, 16, v5\nv_and_b32 v8, 10, v4\nv_cmp_eq_u32 vcc, 0, v8")
    a(f"v_mov_b32 v8, {OOB//2:#x}\ns_nop 0\nv_cndmask_b32 v5, v8, v5, vcc\nv_add_u32 v14, 16, v4\nv_cmp_gt_u32 vcc, 4, v4\ns_nop 1\nv_cndmask_b32 v14, v8, v14, vcc\ns_cmp_eq_u32 s13, 3\ns_cselect_b64 vcc, -1, 0\nv_cndmask_b32 v5, v5, v14, vcc\ns_bitcmp1_b32 s13, 0\ns_cselect_b64 vcc, -1, 0\nv_cndmask_b32 v5, v4, v5, vcc\nv_lshlrev_b32 v5, 1, v5\nv_mul_u32_u24 v6, {4*40}, v3\nv_add_u32 v13, v5, v6")
    a("s_waitcnt lgkmcnt(0)")
    srd(a, 8, 4, WS_SIZE); srd(a, 20, 16, 640 * 1280)
    a("s_cmp_ge_u32 s13, 2\ns_cselect_b32 s32, s34, s32\ns_cselect_b32 s33, s35, s33\ns_cmp_ge_u32 s13, 4\ns_cselect_b32 s7, 0, 25600")
    a("s_mov_b32 s24, s32\ns_mov_b32 s25, s33\ns_mov_b32 s26, s7\ns_mov_b32 s27, 0x20000")
    for q in range(2):
        a(f"s_add_u32 s6, s12, {q}\ns_mul_i32 s28, s6, {16*1280}\ns_mul_i32 s29, s6, {16*40}")
        b = 20 + 12*q
        loads8(a, 20, 10, b, b+24, 28, E_PERM, 1280, 30)
        loads8(a, 20, 12, b+8, b+32, 28, E_PERM, 1280, 30)
        a("s_mov_b32 exec_lo, 0xffff\ns_mov_b32 exec_hi, 0xffff")
        loads8(a, 20, 11, b+4, b+28, 28, E_PERM, 1280, 30)
        a("s_mov_b32 exec_lo, 0xffff0000\ns_mov_b32 exec_hi, 0xffff0000")
        loads8(a, 24, 13, b+4, b+28, 29, E_PERM, 40, 30)
        a("s_mov_b64 exec, -1")
        if q == 0: a("s_waitcnt vmcnt(16)")
    a(f"s_mul_i32 s6, s13, 40\ns_add_u32 s6, s6, s12\ns_mul_i32 s6, s6, 3072\ns_add_u32 s6, s6, {WS_WQKV:#x}\ns_waitcnt vmcnt(0)")
    for i in range(24): a(f"v_lshl_or_b32 v{20+i}, v{44+i}, 16, v{20+i}")
    for q in range(2):
        for ft in range(3):
            a(f"buffer_store_dwordx4 v[{20+12*q+4*ft}:{23+12*q+4*ft}], v9, s[8:11], s6 offen offset:{ft*1024}")
        a("s_add_u32 s6, s6, 3072")
    end(a)
    finish(a, grid, 256, 9216, 144)

STG = 20480
NS, DEP = 6, 4
EX = NS * STG
PAR = EX + 24576
LDS_G = PAR + 5120
ACC, WS0, AF, PR, VW = 8, 56, 104, 200, 240

def common_prologue(a, extra_loads=""):
    a(f"s_cmp_ge_u32 s2, 256\ns_cbranch_scc1 L_{a.name}_exit")
    stamp_begin(a)
    a(f"s_load_dwordx2 s[4:5], s[0:1], {KA['ws']}")
    a(extra_loads)
    a("v_and_b32 v4, 63, v0\nv_lshrrev_b32 v5, 6, v0\nv_lshlrev_b32 v1, 4, v4\nv_readfirstlane_b32 s14, v5\nv_and_b32 v2, 31, v4\nv_lshrrev_b32 v3, 5, v4")
    a("s_and_b32 s12, s2, 7\ns_lshr_b32 s3, s2, 6\ns_lshl_b32 s3, s3, 3\ns_add_u32 s12, s12, s3\ns_bfe_u32 s13, s2, 0x30003")

def gemm_prologue(a, extra_loads=""):
    common_prologue(a, extra_loads)
    a("s_bfe_u32 s15, s14, 0x10001\ns_and_b32 s17, s14, 1\ns_lshl_b32 s16, s12, 1\ns_add_u32 s16, s16, s17")
    a(f"s_cmp_ge_u32 s14, 4\ns_cbranch_scc1 L_{a.name}_loader")

def compute_addr(a, rb):
    a.rb = rb
    if rb == 0:
        a(f"s_mul_i32 s3, s15, {6144+2048}\nv_add_u32 v{VW}, s3, v1\ns_mul_i32 s3, s15, {6144-2048}\ns_add_u32 s3, s3, 2048\nv_add_u32 v{VW+2}, s3, v1")
        a(f"s_lshl_b32 s3, s15, 8\nv_xor_b32 v{VW+1}, s3, v1\ns_mul_i32 s3, s15, 6144\ns_add_u32 s3, s3, 1024\nv_add_u32 v{VW+1}, s3, v{VW+1}")
    else:
        a("v_bfe_u32 v4, v0, 2, 2\nv_and_b32 v5, 3, v0\nv_bfe_u32 v6, v0, 4, 1")
        a("v_lshl_add_u32 v4, v3, 2, v4" if rb == 192 else "v_lshl_add_u32 v4, v4, 1, v3")
        a(f"v_mul_u32_u24 v4, {rb}, v4\nv_lshl_add_u32 v4, v5, 3, v4\ns_mul_i32 s3, s15, 6144\nv_add_u32 v4, s3, v4")
        a(f"v_lshl_add_u32 v5, v6, 5, v4\ns_mul_i32 s3, s15, 96\nv_add_u32 v{VW}, s3, v5\ns_sub_u32 s3, 96, s3\nv_add_u32 v{VW+2}, s3, v5")
        if rb == 192:
            a(f"v_xor_b32 v6, s15, v6\nv_mul_u32_u24 v6, 96, v6\nv_add_u32 v6, 64, v6\nv_add_u32 v{VW+1}, v4, v6")
        else:
            a(f"v_add_u32 v{VW+1}, 64, v4")
    a(f"s_lshl_b32 s3, s14, 11\ns_add_u32 s3, s3, 12288\nv_add_u32 v{VW+3}, s3, v1")
    for i in range(4): a(f"v_add_u32 v{VW+4+i}, {3*STG}, v{VW+i}")

def read_ops(a, s, areg):
    slot = s % NS; hi, sl = (4, slot - 3) if slot >= 3 else (0, slot)
    ra, rw = [], []
    if areg is not None:
        for q in range(2):
            ra.append(lambda q=q: a.lg(f"ds_read_b128 v[{areg+4*q}:{areg+4*q+3}], v{VW+3+hi} offset:{sl*STG + q*1024}", ("a", s)))
    for q in range(2):
        for t in range(3):
            r = WS0 + 24*(s % 2) + 12*q + 4*t; o = sl*STG + q*3072
            if a.rb == 0:
                rw.append(lambda r=r, t=t, o=o: a.lg(f"ds_read_b128 v[{r}:{r+3}], v{VW+t+hi} offset:{o}", ("w", s)))
            else:
                def f(r=r, t=t, o=o):
                    a.lg(f"ds_read_b64_tr_b16 v[{r}:{r+1}], v{VW+t+hi} offset:{o}", ("w", s))
                    a.lg(f"ds_read_b64_tr_b16 v[{r+2}:{r+3}], v{VW+t+hi} offset:{o + 8*a.rb}", ("w", s))
                rw.append(f)
    return ra, rw

def mfma_ops(a, wset, areg, first):
    ops = []
    for q in range(2):
        for t in range(3):
            r = ACC + 16*t; w = WS0 + 24*wset + 12*q + 4*t; b = areg + 4*q
            c = "0" if (first and q == 0) else f"v[{r}:{r+15}]"
            ops.append(lambda r=r, w=w, b=b, c=c: a(f"v_mfma_f32_32x32x16_bf16 v[{r}:{r+15}], v[{w}:{w+3}], v[{b}:{b+3}], {c}"))
    return ops

def transform_ops(a, F, P, rr, nm, t=232):
    ops = []
    for d in range(4):
        x, y = t + 2*(d % 2), t + 2*(d % 2) + 1
        L = [f"v_lshlrev_b32 v{x}, 16, v{F+d}", f"v_and_b32 v{y}, 0xffff0000, v{F+d}",
             f"v_fma_f32 v{x}, v{x}, v{rr}, v{nm}", f"v_fma_f32 v{y}, v{y}, v{rr}, v{nm}",
             f"v_fma_f32 v{x}, v{x}, v{P+8+2*d}, v{P+2*d}", f"v_fma_f32 v{y}, v{y}, v{P+9+2*d}, v{P+1+2*d}", f"v_cvt_pk_bf16_f32 v{F+d}, v{x}, v{y}"]
        ops += [(lambda l=l: a(l)) for l in L]
    return ops

def merge(*lists):
    items = []
    for li, L in enumerate(lists):
        n = len(L)
        for i, op in enumerate(L): items.append(((i + 0.5 * (li > 0)) / n, li, i, op))
    items.sort(key=lambda x: (x[0], x[1], x[2]))
    return [x[3] for x in items]
def run(ops):
    for op in ops: op()

def param_base(a):
    a(f"s_mul_i32 s3, s15, 1280\ns_add_u32 s3, s3, {PAR}\nv_lshlrev_b32 v6, 4, v3\nv_add_u32 v6, s3, v6")
def param_ops(a, ks):
    ops = []
    for arr in range(2):
        P = PR + 16*(ks % 2) + 8*arr; off = arr*2560 + ks*64
        ops.append(lambda P=P, off=off: a.lg(f"ds_read_b128 v[{P}:{P+3}], v6 offset:{off}", ("p", ks)))
        ops.append(lambda P=P, off=off: a.lg(f"ds_read_b128 v[{P+4}:{P+7}], v6 offset:{off+32}", ("p", ks)))
    return ops

def exchange(a, R):
    a(f"s_mul_i32 s3, s14, 6144\ns_add_u32 s3, s3, {EX}\nv_add_u32 v4, s3, v1\ns_xor_b32 s3, s14, 2\ns_mul_i32 s3, s3, 6144\ns_add_u32 s3, s3, {EX}\nv_add_u32 v5, s3, v1\ns_nop 4")
    for i in range(6): a(f"ds_write_b128 v4, v[{ACC+24+4*i}:{ACC+27+4*i}] offset:{i*1024}")
    a.wait_all_lg()
    a("s_barrier")
    for j in range(3):
        for h in range(2):
            a(f"ds_read_b128 v[{R+8*j+4*h}:{R+8*j+4*h+3}], v5 offset:{((j+1)%3)*2048 + h*1024}")
    for j in range(3):
        a(f"s_waitcnt lgkmcnt({4-2*j})")
        for i in range(8): a(f"v_add_f32 v{ACC+8*j+i}, v{ACC+8*j+i}, v{R+8*j+i}")

def c_start(a, areg_of, xf=None):
    a("s_barrier")
    stamp(a, 3)
    ra, rw = read_ops(a, 0, areg_of(0))
    run(ra)
    if xf:
        n, rr, nm = xf
        run(param_ops(a, 0)); run(param_ops(a, 1)); run(rw)
        a.wait(lg=[("a", 0), ("p", 0)])
        run(transform_ops(a, areg_of(0), PR, rr, nm))
        a.wait(lg=[("p", 1)])
        run(merge(transform_ops(a, areg_of(0) + 4, PR + 16, rr, nm), param_ops(a, 2)))
    else:
        run(rw)

def c_iter(a, s, first, total, areg_of, xf=None, load_a=True):
    ra, rw = [], []
    if s + 1 < total:
        a("s_barrier")
        ra, rw = read_ops(a, s + 1, areg_of(s + 1) if load_a else None)
    mf = mfma_ops(a, s % 2, areg_of(s), first)
    if os.environ.get("X_NORD"): ra, rw = [], []
    if os.environ.get("X_NOMFMA"): mf = [lambda: a("s_nop 0")] * 6
    if os.environ.get("X_NOXF"): xf = None
    if xf and s + 1 < xf[0]:
        n, rr, nm = xf
        k0 = 2*(s+1)
        run(ra); run(param_ops(a, k0 + 1))
        a.wait(lg=[("w", s)])
        run(merge(mf[:2], rw[:2]))
        a.wait(lg=[("a", s+1), ("p", k0)])
        run(merge(transform_ops(a, areg_of(s+1), PR, rr, nm), mf[2:4], rw[2:4]))
        a.wait(lg=[("p", k0 + 1)])
        nxt = param_ops(a, k0 + 2) if s + 2 < n else []
        run(merge(transform_ops(a, areg_of(s+1) + 4, PR + 16, rr, nm), mf[4:], rw[4:] + nxt))
    else:
        a.wait(lg=[("w", s), ("a", s)])
        run(merge(mf, ra + rw))

class Loader:
    def __init__(self, a, act_base, nks, wmode, wbase=None, wblocks=1, ka_sreg=None, rs=0, nbytes=0, colbytes=0, col0=0):
        self.a, self.wmode = a, wmode
        a(f"L_{a.name}_loader:")
        a.vmq = []; a.lgq = []
        a(f"s_and_b32 s3, s14, 3\ns_mul_i32 s20, s3, 3072\ns_lshl_b32 s21, s3, 11\ns_add_u32 s21, s21, 12288")
        a(f"s_mul_i32 s18, s16, {nks*1024}\ns_mul_i32 s3, s15, {nks*512}\ns_add_u32 s18, s18, s3\ns_add_u32 s18, s18, {act_base:#x}")
        if wmode == 0:
            a(f"s_mul_i32 s19, s13, {wblocks*nks*3072}\ns_mul_i32 s3, s15, {nks*1536}\ns_add_u32 s19, s19, s3\ns_mul_i32 s3, s17, 3072\ns_add_u32 s19, s19, s3\ns_add_u32 s19, s19, {wbase:#x}")
            self.wstep, self.wsrd, self.wv = 6144, 8, (1, 1, 1)
        else:
            cpr = wmode // 16
            a(f"s_mul_i32 s19, s15, {nks*8*rs}\ns_mul_i32 s3, s17, {16*rs}\ns_add_u32 s19, s19, s3\ns_mul_i32 s3, s13, {colbytes}\ns_add_u32 s19, s19, s3\ns_add_u32 s19, s19, {col0}")
            a("v_and_b32 v4, 63, v0")
            for i in range(3):
                a(f"v_add_u32 v5, {64*i}, v4\nv_mul_u32_u24 v6, {(1 << 16) // cpr + 1}, v5\nv_lshrrev_b32 v6, 16, v6\nv_mul_u32_u24 v7, {cpr}, v6\nv_sub_u32 v7, v5, v7")
                if wmode == 160:
                    a("v_and_b32 v8, 8, v6\nv_and_b32 v9, 1, v6\nv_lshl_add_u32 v8, v9, 2, v8\nv_bfe_u32 v9, v6, 1, 2\nv_add_u32 v6, v8, v9")
                a(f"v_mul_u32_u24 v6, {rs}, v6\nv_lshl_add_u32 v{10+i}, v7, 4, v6")
                if i: a(f"v_subrev_u32 v{10+i}, {1024*i}, v{10+i}")
                if wmode == 160 and i == 2:
                    a(f"v_mov_b32 v8, {OOB:#x}\nv_cmp_gt_u32 vcc, 32, v4\ns_nop 1\nv_cndmask_b32 v12, v8, v12, vcc")
            self.wstep, self.wsrd, self.wv = 32 * rs, 40, (10, 11, 12)
        a("s_waitcnt lgkmcnt(0)")
        srd(a, 8, 4, WS_SIZE)
        if wmode: srd(a, 40, ka_sreg, nbytes)
        stamp(a, 1)
    def dma1(self, lds_off, goff_expr_sreg, tag):
        a = self.a
        a(f"s_mov_b32 m0, {lds_off}\ns_nop 0")
        a.vm(f"buffer_load_dwordx4 v1, s[8:11], s{goff_expr_sreg} offen lds", tag)
    def params(self, mod_off):
        a = self.a
        a(f"s_and_b32 s3, s14, 3\ns_lshl_b32 s3, s3, 10\ns_add_u32 m0, s3, {PAR}\ns_add_u32 s6, s3, {WS_MOD + mod_off}")
        a.vm("buffer_load_dwordx4 v1, s[8:11], s6 offen lds", "par")
        a(f"s_mov_b32 s6, {WS_MOD + mod_off + 4096}")
        self.dma1(PAR + 4096, 6, "par")
    def issue(self, s, with_a=True):
        a = self.a; slot = s % NS
        if with_a:
            a(f"s_add_u32 m0, s21, {slot*STG}\ns_nop 0")
            for q in range(2): a.vm(f"buffer_load_dwordx4 v1, s[8:11], s18 offen offset:{q*1024} lds", ("st", s))
            a("s_add_u32 s18, s18, 2048")
        a(f"s_add_u32 m0, s20, {slot*STG}\ns_nop 0")
        for i in range(3): a.vm(f"buffer_load_dwordx4 v{self.wv[i]}, s[{self.wsrd}:{self.wsrd+3}], s19 offen offset:{i*1024} lds", ("st", s))
        a(f"s_add_u32 s19, s19, {self.wstep}")
    def start(self, issue):
        issue(0); issue(1)
        stamp(self.a, 2)
    def step(self, s, total, issue):
        a = self.a
        a.wait(vm=[("st", s)])
        a("s_barrier")
        if s == 0:
            for t in range(2, DEP): issue(t)
        if s + DEP < total: issue(s + DEP)

def prefetch(a, srdn, base, nbytes, nw, widx, vdst, vtmp, st):
    per_wg = -(-nbytes // 32 // 128) * 128
    per_wave = -(-per_wg // (8192 * nw))
    a(f"s_lshr_b32 s{st}, s2, 3\ns_mul_i32 s{st}, s{st}, {per_wg}\ns_mul_i32 s{st+1}, s{widx}, {per_wave*8192}\ns_add_u32 s{st}, s{st}, s{st+1}\ns_add_u32 s{st}, s{st}, {base:#x}\nv_lshlrev_b32 v{vtmp}, 3, v1")
    for i in range(per_wave):
        a.vm(f"buffer_load_dword v{vdst}, v{vtmp}, s[{srdn}:{srdn+3}], s{st} offen")
        if i < per_wave - 1: a(f"s_add_u32 s{st}, s{st}, 8192")

def unit_off(a, d, per_nb, base):
    a(f"s_lshl_b32 s{d}, s16, 3\ns_add_u32 s{d}, s{d}, s13\ns_mul_i32 s{d}, s{d}, {per_nb}\ns_mul_i32 s6, s15, 3\ns_add_u32 s{d}, s{d}, s6\ns_lshl_b32 s{d}, s{d}, 10\ns_add_u32 s{d}, s{d}, {base:#x}")

def k1():
    a = K("k1")
    gemm_prologue(a)
    compute_addr(a, 0); param_base(a)
    RR, NM = 236, 237
    a(f"v_lshlrev_b32 v7, 3, v2\ns_lshl_b32 s6, s16, 8\ns_add_u32 s6, s6, {WS_ST0:#x}\ns_waitcnt lgkmcnt(0)")
    srd(a, 8, 4, WS_SIZE)
    stamp(a, 1)
    a(f"buffer_load_dwordx2 v[{RR}:{NM}], v7, s[8:11], s6 offen\ns_waitcnt vmcnt(0)")
    areg = lambda s: AF + 8*(s % 2)
    xf = (10, RR, NM)
    c_start(a, areg, xf)
    for s in range(10): c_iter(a, s, s == 0, 10, areg, xf)
    stamp(a, 4)
    T = WS0
    exchange(a, T)
    stamp(a, 5)
    R = ACC
    QS = LOG2E / math.sqrt(20.0)
    unit_off(a, 17, 5, WS_Q)
    a(f"s_mov_b32 s7, {f32(QS)}")
    def qunit(i):
        for j in range(8): a(f"v_mul_f32 v{T+j}, s7, v{R+8*i+j}")
        for d in range(4): a(f"v_cvt_pk_bf16_f32 v{T+8+4*i+d}, v{T+2*d}, v{T+2*d+1}")
        a(f"buffer_store_dwordx4 v[{T+8+4*i}:{T+11+4*i}], v1, s[8:11], s17 offen offset:{i*1024}")
    qunit(0); qunit(1)
    lsp = a.label("spare")
    a(f"s_cmp_eq_u32 s15, 1\ns_cbranch_scc1 {lsp}")
    qunit(2)
    a(f"s_branch L_k1_end\n{lsp}:")
    a("s_cmp_ge_u32 s13, 4\ns_cbranch_scc1 L_k1_end")
    S = R + 16
    a(f"s_lshr_b32 s6, s16, 3\ns_mul_i32 s17, s6, {KVCH}\ns_add_u32 s17, s17, {WS_KV:#x}\ns_and_b32 s18, s16, 7")
    l1, lv, l2 = a.label("k2"), a.label("v"), a.label("k2b")
    a(f"s_cmp_eq_u32 s13, 3\ns_cbranch_scc0 {l1}\nv_mov_b32 v{S+4}, 1.0\ns_mov_b32 exec_lo, 0\nv_mov_b32 v{S}, 1.0\ns_mov_b32 exec_lo, -1\n{l1}:")
    for d in range(4): a(f"v_cvt_pk_bf16_f32 v{T+d}, v{S+2*d}, v{S+2*d+1}")
    a(f"s_cmp_ge_u32 s13, 2\ns_cbranch_scc1 {lv}\ns_cmp_eq_u32 s13, 1\ns_cbranch_scc1 {l2}")
    a(f"s_lshl_b32 s18, s18, 10\ns_add_u32 s17, s17, s18\nbuffer_store_dwordx4 v[{T}:{T+3}], v1, s[8:11], s17 offen\ns_branch L_k1_end")
    a(f"{l2}:\ns_lshl_b32 s18, s18, 8\ns_add_u32 s17, s17, s18\ns_add_u32 s17, s17, 24576\nv_lshrrev_b32 v4, 2, v1\nbuffer_store_dword v{T}, v4, s[8:11], s17 offen\ns_branch L_k1_end")
    a(f"{lv}:")
    a(f"s_lshl_b32 s3, s14, 11\nv_lshlrev_b32 v4, 5, v2\nv_lshl_add_u32 v4, v3, 3, v4\nv_add_u32 v4, s3, v4")
    a(f"ds_write_b64 v4, v[{T}:{T+1}]\nds_write_b64 v4, v[{T+2}:{T+3}] offset:16")
    a("v_lshrrev_b32 v4, 4, v1\nv_and_b32 v5, 15, v4\nv_lshrrev_b32 v4, 4, v4")
    a("v_and_b32 v6, 1, v4\nv_lshlrev_b32 v6, 4, v6\nv_lshl_add_u32 v6, v3, 2, v6\nv_lshrrev_b32 v7, 2, v5\nv_add_u32 v6, v6, v7\nv_lshlrev_b32 v6, 5, v6\nv_and_b32 v7, 3, v5\nv_lshl_add_u32 v6, v7, 3, v6\nv_add_u32 v6, s3, v6")
    a("s_waitcnt lgkmcnt(0)")
    a(f"ds_read_b64_tr_b16 v[{T+4}:{T+5}], v6\nds_read_b64_tr_b16 v[{T+6}:{T+7}], v6 offset:256")
    a("v_and_b32 v6, 1, v4\nv_lshlrev_b32 v6, 10, v6\nv_lshl_add_u32 v6, v3, 9, v6\nv_lshl_add_u32 v6, v5, 4, v6")
    a(f"s_lshl_b32 s18, s18, 11\ns_add_u32 s17, s17, s18\ns_add_u32 s17, s17, 8192\ns_cmp_eq_u32 s13, 2\ns_cselect_b32 s6, 256, 0\ns_add_u32 s17, s17, s6")
    a(f"s_waitcnt lgkmcnt(0)\nbuffer_store_dwordx4 v[{T+4}:{T+7}], v6, s[8:11], s17 offen")
    a("s_branch L_k1_end")
    L = Loader(a, WS_XH, 40, 0, wbase=WS_WQKV)
    L.params(0)
    L.start(L.issue)
    for s in range(10): L.step(s, 10, L.issue)
    end(a)
    finish(a, 256, 512, LDS_G, 248)

def k2():
    a = K("k2")
    common_prologue(a, f"s_load_dwordx4 s[32:35], s[0:1], {KA['w_in']}\ns_load_dwordx2 s[36:37], s[0:1], {KA['wo']}")
    S0, S1, O, PB, Q1, Q2 = 8, 24, 40, 56, 64, 68
    KA_, KB_, V1, V2 = 72, 76, 80, 84
    VA, VB, VN, VNB = 4, 5, 6, 88
    NB = 6
    FLAG = NB * KVCH
    a("s_mov_b32 s27, 0")
    a("s_cmp_ge_u32 s14, 8\ns_cbranch_scc1 L_k2_helper")
    PRIO = os.environ.get("X_PRIO", "0")
    if PRIO == "1":
        lpr = a.label("prio")
        a(f"s_cmp_lt_u32 s14, 4\ns_cbranch_scc1 {lpr}\ns_setprio 1\n{lpr}:")
    a("v_lshrrev_b32 v7, 2, v1")
    a("s_lshr_b32 s15, s14, 2\ns_and_b32 s16, s14, 3\ns_lshl_b32 s17, s12, 1\ns_add_u32 s17, s17, s15")
    a(f"s_lshl_b32 s18, s17, 3\ns_add_u32 s18, s18, s13\ns_mul_i32 s18, s18, 5120\ns_add_u32 s18, s18, {WS_Q:#x}\ns_lshl_b32 s6, s16, 10\ns_add_u32 s19, s18, s6\ns_lshl_b32 s6, s16, 2\ns_add_u32 s18, s18, s6\ns_add_u32 s18, s18, 4096")
    a("s_waitcnt lgkmcnt(0)")
    srd(a, 8, 4, WS_SIZE)
    stamp(a, 1)
    a(f"buffer_load_dwordx4 v[{Q1}:{Q1+3}], v1, s[8:11], s19 offen\nbuffer_load_dword v{Q2}, v1, s[8:11], s18 offen")
    def qk1(S): return f"v_mfma_f32_32x32x16_bf16 v[{S}:{S+15}], v[{KB_}:{KB_+3}], v[{Q2}:{Q2+3}], 0"
    def qk2(S): return f"v_mfma_f32_32x32x16_bf16 v[{S}:{S+15}], v[{KA_}:{KA_+3}], v[{Q1}:{Q1+3}], v[{S}:{S+15}]"
    def pv(V, P): return f"v_mfma_f32_32x32x16_bf16 v[{O}:{O+15}], v[{V}:{V+3}], v[{P}:{P+3}], v[{O}:{O+15}]"
    def rKA(t, va): return f"ds_read_b128 v[{KA_}:{KA_+3}], v{va} offset:{t*1024}"
    def rKB(t, vb): return f"ds_read_b32 v{KB_}, v{vb} offset:{24576+t*256}"
    def rV(t, p, va): return f"ds_read_b128 v[{(V1, V2)[p]}:{(V1, V2)[p]+3}], v{va} offset:{8192+t*2048+p*1024}"
    def max_reduce(S, M):
        for i in range(0, 16, 2): a(f"v_max3_f32 v{M}, v{S+i}, v{S+i+1}, v{M}")
    def finish_max(M):
        a(f"v_mov_b32 v{M+1}, v{M}\ns_nop 1\nv_permlane32_swap_b32 v{M}, v{M+1}\ns_nop 1\nv_max_f32 v{M}, v{M}, v{M+1}")
        a(f"v_and_b32 v{M+1}, 0xffff0000, v{M}\nv_sub_f32 v{M+2}, v{M}, v{M+1}\nv_and_b32 v{M+3}, 0xffff0000, v{M+2}\nv_sub_f32 v{M+2}, v{M+2}, v{M+3}")
        a(f"v_lshrrev_b32 v{M+1}, 16, v{M+1}\nv_or_b32 v{M+1}, v{M+1}, v{M+3}\nv_lshrrev_b32 v{M+2}, 16, v{M+2}\nv_cmp_eq_u32 vcc, 0, v3\ns_nop 1")
        a(f"v_cndmask_b32 v{Q2+1}, 0, v{M+1}, vcc\nv_cndmask_b32 v{Q2+2}, 0, v{M+2}, vcc")
    for r in (Q2+1, Q2+2, Q2+3, KB_+3): a(f"v_mov_b32 v{r}, 0")
    for r in (KB_+1, KB_+2): a(f"v_mov_b32 v{r}, 0xbf80bf80")
    a(f"v_mov_b32 v{PB}, 0xff800000")
    OA = 90
    a(f"s_mul_i32 s6, s13, 20\ns_mul_i32 s7, s16, 5\ns_add_u32 s6, s6, s7\ns_mul_i32 s22, s17, {40*1024}\ns_add_u32 s22, s22, {WS_O:#x}")
    for i, g in enumerate((0, 2, 4)):
        a(f"v_add_u32 v8, s6, v3\nv_add_u32 v8, {g}, v8" if g < 4 else "v_mov_b32 v8, s6\nv_add_u32 v8, 4, v8")
        a(f"v_lshrrev_b32 v9, 2, v8\nv_lshlrev_b32 v9, 10, v9\nv_and_b32 v10, 1, v8\nv_lshl_add_u32 v9, v10, 9, v9\nv_bfe_u32 v10, v8, 1, 1\nv_lshl_add_u32 v9, v10, 3, v9\nv_lshl_add_u32 v{OA+i}, v2, 4, v9")
    a("s_waitcnt vmcnt(0)\ns_barrier")
    stamp(a, 2)
    a(rKA(0, 1)); a(rKB(0, 7)); a("s_waitcnt lgkmcnt(0)")
    a(qk1(S0)); a(qk2(S0))
    a("s_nop 11")
    max_reduce(S0, PB)
    finish_max(PB)
    a("L_k2_main:")
    a(f"s_mov_b32 s24, 0\ns_mov_b32 s25, 0\nv_mov_b32 v{VA}, v1\nv_mov_b32 v{VB}, v7")
    for i in range(16): a(f"v_mov_b32 v{O+i}, 0")
    for i in range(4): a(f"v_mov_b32 v{PB+4+i}, 0\nv_mov_b32 v{S1+12+i}, 0\nv_mov_b32 v{V2+i}, 0")
    a(rKA(0, VA)); a(rKB(0, VB)); a("s_waitcnt lgkmcnt(0)")
    a(qk1(S0)); a(qk2(S0))
    a(rKB(1, VB)); a(f"ds_read_b32 v89, v{VB}"); a(rKA(1, VA)); a(rV(0, 0, VA))
    a("s_nop 7")
    stamp(a, 3)
    a("L_k2_loop:")
    for t in range(8):
        S, Sp = (S0, S1) if t % 2 == 0 else (S1, S0)
        ka, kb, kt = (VA, VB, t + 2) if t < 6 else (VN, VNB, t - 6)
        va, vt = (VA, t + 1) if t < 7 else (VN, 0)
        if t == 5:
            ls = a.label("bs")
            a(f"s_add_u32 s25, s25, {KVCH}\ns_cmp_ge_u32 s25, {NB*KVCH}\ns_cselect_b32 s25, 0, s25\nv_add_u32 v{VN}, s25, v1\nv_add_u32 v{VNB}, s25, v7")
            a(f"s_bitcmp1_b32 37, s24\ns_cbranch_scc0 {ls}\ns_barrier\n{ls}:")
        if PRIO == "2" and t in (0, 4):
            l1, l2 = a.label("p1"), a.label("p2")
            a(f"s_cmp_eq_u32 s15, {t >> 2}\ns_cbranch_scc1 {l1}\ns_setprio 1\ns_branch {l2}\n{l1}:\ns_setprio 0\n{l2}:")
        groups = [
            ([(6, Sp+12), (7, Sp+14)], qk1(Sp), rKB(kt, kb), 0),
            ([(0, S), (1, S+2)], pv(V2, PB+4), rV(t, 1, VA), 4),
            ([(2, S+4), (3, S+6)], qk2(Sp), rKA(kt, ka), 8),
            ([(4, S+8), (5, S+10)], pv(V1, PB), rV(vt, 0, va), 12)]
        for cv, mf, rd, e0 in groups:
            for d, r in cv: a(f"v_cvt_pk_bf16_f32 v{PB+d}, v{r}, v{r+1}")
            a("s_waitcnt lgkmcnt(3)")
            a(mf); a(rd)
            for i in range(4): a(f"v_exp_f32 v{S+e0+i}, v{S+e0+i}")
        if t == 7: a(f"v_mov_b32 v{VA}, v{VN}\nv_mov_b32 v{VB}, v{VNB}")
    a("s_add_u32 s24, s24, 1\ns_cmp_lt_u32 s24, 8\ns_cbranch_scc1 L_k2_loop")
    a(f"v_cvt_pk_bf16_f32 v{PB+6}, v{S1+12}, v{S1+13}\nv_cvt_pk_bf16_f32 v{PB+7}, v{S1+14}, v{S1+15}\ns_waitcnt lgkmcnt(0)\nv_cmp_eq_u32 vcc, 0, v3")
    a(pv(V2, PB+4))
    a("s_nop 11")
    stamp(a, 4)
    a(f"v_cndmask_b32 v{PB+2}, v{O}, v{O+4}, vcc")
    T = S0
    a(f"v_rcp_f32 v{PB+3}, v{PB+2}\nv_mov_b32 v{PB}, {f32(2.0**30)}\nv_mov_b32 v{PB+1}, {f32(2.0**-30)}")
    for i, r in enumerate((8, 9, 10, 11, 12, 13, 14, 15, 0, 1, 2, 3)): a(f"v_mul_f32 v{T+6+i}, v{O+r}, v{PB+3}")
    for d in range(6): a(f"v_cvt_pk_bf16_f32 v{T+d}, v{T+6+2*d}, v{T+7+2*d}")
    a(f"buffer_store_dwordx2 v[{T}:{T+1}], v{OA}, s[8:11], s22 offen\nbuffer_store_dwordx2 v[{T+2}:{T+3}], v{OA+1}, s[8:11], s22 offen")
    a(f"s_mov_b32 exec_hi, 0\nbuffer_store_dwordx2 v[{T+4}:{T+5}], v{OA+2}, s[8:11], s22 offen\ns_mov_b32 exec_hi, -1")
    a(f"s_cmp_eq_u32 s27, 1\ns_cbranch_scc1 L_k2_end")
    a(f"v_cmp_nle_f32 vcc, v{PB+2}, v{PB}\nv_cmp_nge_f32 s[30:31], v{PB+2}, v{PB+1}\ns_nop 1\ns_or_b64 vcc, vcc, s[30:31]\ns_cselect_b32 s3, 1, 0")
    a(f"v_mov_b32 v{PB}, s3\ns_lshl_b32 s6, s14, 2\ns_add_u32 s6, s6, {FLAG}\nv_mov_b32 v{PB+1}, s6\nds_write_b32 v{PB+1}, v{PB}\ns_waitcnt lgkmcnt(0)")
    def vote(lend):
        a(f"s_barrier\nv_mov_b32 v{PB+1}, {FLAG}\nds_read_b128 v[{S1}:{S1+3}], v{PB+1}\nds_read_b128 v[{S1+4}:{S1+7}], v{PB+1} offset:16\ns_waitcnt lgkmcnt(0)")
        for i in range(1, 8): a(f"v_or_b32 v{S1}, v{S1}, v{S1+i}")
        a(f"s_nop 0\nv_readfirstlane_b32 s3, v{S1}\ns_cmp_eq_u32 s3, {XCMP}\ns_cbranch_scc1 {lend}\ns_mov_b32 s27, 1")
    vote("L_k2_end")
    a(f"v_mov_b32 v{Q2+1}, 0\nv_mov_b32 v{Q2+2}, 0\nv_mov_b32 v{PB}, 0xff800000\ns_mov_b32 s24, 0")
    a("L_k2_maxloop:")
    a("s_barrier\ns_barrier")
    for t in range(8):
        a(rKA(t, 1)); a(rKB(t, 7)); a("s_waitcnt lgkmcnt(0)")
        a(qk1(S0)); a(qk2(S0))
        a("s_nop 11")
        max_reduce(S0, PB)
    a("s_add_u32 s24, s24, 1\ns_cmp_lt_u32 s24, 8\ns_cbranch_scc1 L_k2_maxloop")
    finish_max(PB)
    a("s_barrier\ns_barrier")
    a("s_branch L_k2_main")
    a("L_k2_helper:")
    a(f"s_sub_u32 s15, s14, 8\ns_lshl_b32 s21, s15, 10\ns_add_u32 s20, s21, {WS_KV:#x}\ns_waitcnt lgkmcnt(0)")
    srd(a, 8, 4, WS_SIZE)
    stamp(a, 1)
    def dma(goff, loff):
        ld = a.label("d")
        for i in range(7):
            if i == 6: a(f"s_cmp_ge_u32 s15, 2\ns_cbranch_scc1 {ld}")
            a(f"s_add_u32 m0, s21, {loff + i*4096}\ns_add_u32 s23, s20, {goff + i*4096}\nbuffer_load_dwordx4 v1, s[8:11], s23 offen lds")
        a(f"{ld}:")
    a("L_k2_hmain:")
    dma(0, 0)
    a("s_waitcnt vmcnt(0)\ns_barrier")
    dma(KVCH, KVCH); dma(2*KVCH, 2*KVCH)
    a("s_waitcnt vmcnt(0)\ns_barrier")
    for g in (3, 4, 5): dma(g*KVCH, g*KVCH)
    lns = a.label("noside")
    a(f"s_cmp_lg_u32 s27, 0\ns_cbranch_scc1 {lns}")
    srd(a, 40, 34, 2048 * 4096)
    a("s_lshl_b32 s17, s12, 1\ns_lshr_b32 s3, s15, 1\ns_add_u32 s17, s17, s3\ns_lshl_b32 s16, s13, 4\ns_and_b32 s3, s15, 1\ns_lshl_b32 s3, s3, 3\ns_add_u32 s16, s16, s3")
    a("s_lshl_b32 s6, s17, 17\ns_lshl_b32 s7, s16, 5\ns_add_u32 s6, s6, s7\nv_lshlrev_b32 v4, 12, v2\nv_lshl_add_u32 v4, v3, 4, v4")
    for i in range(8): a(f"buffer_load_dwordx4 v[{8+4*i}:{11+4*i}], v4, s[40:43], s6 offen offset:{32*i} nt")
    a(f"s_lshl_b32 s6, s17, 7\ns_add_u32 s6, s6, s16\ns_lshl_b32 s6, s6, 10\ns_add_u32 s6, s6, {WS_WSP:#x}")
    for i in range(8):
        a(f"s_waitcnt vmcnt(7)\nbuffer_store_dwordx4 v[{8+4*i}:{11+4*i}], v1, s[8:11], s6 offen offset:{(i%4)*1024}")
        if i == 3: a("s_add_u32 s6, s6, 4096")
    a(f"{lns}:")
    a("s_waitcnt vmcnt(0)\ns_barrier")
    dma(6*KVCH, 0); dma(7*KVCH, KVCH)
    a("s_waitcnt vmcnt(0)\ns_barrier")
    a(f"s_cmp_eq_u32 s27, 1\ns_cbranch_scc1 L_k2_end")
    srd(a, 40, 36, 640 * 1280)
    prefetch(a, 40, 0, 640 * 1280, 4, 15, 8, 4, 28)
    srd(a, 40, 32, 640 * 3072)
    prefetch(a, 40, 0, 640 * 3072, 4, 15, 8, 4, 28)
    vote("L_k2_end")
    a("s_mov_b32 s24, 0")
    a("L_k2_hmax:")
    a("s_barrier")
    dma(0, 0)
    a(f"s_add_u32 s20, s20, {KVCH}\ns_waitcnt vmcnt(0)\ns_barrier\ns_add_u32 s24, s24, 1\ns_cmp_lt_u32 s24, 8\ns_cbranch_scc1 L_k2_hmax")
    a(f"s_add_u32 s20, s21, {WS_KV:#x}\ns_barrier\ns_branch L_k2_hmain")
    end(a)
    finish(a, 256, 768, FLAG + 64, 96)

def stats_addr(a, base, st):
    a(f"s_lshl_b32 s{st}, s16, 12\ns_lshr_b32 s7, s13, 1\ns_lshl_b32 s7, s7, 10\ns_add_u32 s{st}, s{st}, s7\ns_and_b32 s7, s13, 1\ns_lshl_b32 s7, s7, 9\ns_add_u32 s{st}, s{st}, s7\ns_lshl_b32 s7, s15, 3\ns_add_u32 s{st}, s{st}, s7\ns_add_u32 s{st}, s{st}, {base:#x}")
def stats_store(a, V, base, flags=""):
    a(f"v_mov_b32 v{V+2}, v{V}\nv_mov_b32 v{V+3}, v{V+1}\ns_nop 1\nv_permlane32_swap_b32 v{V}, v{V+2}\nv_permlane32_swap_b32 v{V+1}, v{V+3}\ns_nop 1\nv_add_f32 v{V}, v{V}, v{V+2}\nv_add_f32 v{V+1}, v{V+1}, v{V+3}\nv_max_f32 v{V+1}, 0, v{V+1}")
    stats_addr(a, base, 6)
    a("s_mov_b32 exec_hi, 0")
    a.vm(f"buffer_store_dwordx2 v[{V}:{V+1}], v1, s[8:11], s6 offen {flags}")
    a("s_mov_b32 exec_hi, -1")
def stats_load(a, D, base, tag, flags=""):
    a(f"s_lshl_b32 s6, s16, 12\ns_add_u32 s6, s6, {base:#x}")
    for i in range(4): a.vm(f"buffer_load_dwordx4 v[{D+4*i}:{D+4*i+3}], v1, s[8:11], s6 offen offset:{1024*i} {flags}", tag)
def stats_finish(a, D, n, rr, nm):
    for i in range(1, 8): a(f"v_add_f32 v{D}, v{D}, v{D+2*i}\nv_add_f32 v{D+1}, v{D+1}, v{D+2*i+1}")
    a(f"v_mov_b32 v{D+2}, v{D}\nv_mov_b32 v{D+3}, v{D+1}\ns_nop 1\nv_permlane32_swap_b32 v{D}, v{D+2}\nv_permlane32_swap_b32 v{D+1}, v{D+3}\ns_nop 1\nv_add_f32 v{D}, v{D}, v{D+2}\nv_add_f32 v{D+1}, v{D+1}, v{D+3}")
    a(f"v_mul_f32 v{D}, {f32(1/n)}, v{D}\nv_mul_f32 v{D+1}, {f32(1/n)}, v{D+1}\nv_fma_f32 v{D+1}, -v{D}, v{D}, v{D+1}\nv_max_f32 v{D+1}, 0, v{D+1}\nv_add_f32 v{D+1}, {f32(1e-5)}, v{D+1}\nv_rsq_f32 v{rr}, v{D+1}\ns_nop 0\nv_mul_f32 v{nm}, v{D}, v{rr}\nv_sub_f32 v{nm}, 0, v{nm}")

def kproj(name, act_base, wkey, nks, gate_off, final):
    a = K(name)
    nst = nks // 4
    gemm_prologue(a, f"s_load_dwordx2 s[32:33], s[0:1], {KA[wkey]}" + (f"\ns_load_dwordx2 s[34:35], s[0:1], {KA['out']}" if final else ""))
    compute_addr(a, 160)
    G, XR = 200, 224
    unit_off(a, 22, 5, 0)
    a(f"s_add_u32 s23, s22, {(WS_X1 if final else WS_XH):#x}\ns_add_u32 s22, s22, {WS_X1:#x}\ns_waitcnt lgkmcnt(0)")
    srd(a, 8, 4, WS_SIZE)
    stamp(a, 1)
    for i in range(3): a.vm(f"buffer_load_dwordx4 v[{XR+4*i}:{XR+4*i+3}], v1, s[8:11], s23 offen offset:{1024*i}", "epi")
    if final:
        srd(a, 24, 34, 2048 * 1280)
        a(f"v_mul_u32_u24 v7, 1280, v2\nv_lshl_add_u32 v7, v3, 3, v7\ns_mul_i32 s23, s16, {32*1280}\ns_mul_i32 s6, s13, 160\ns_add_u32 s23, s23, s6\ns_mul_i32 s6, s15, 96\ns_add_u32 s23, s23, s6")
    else:
        stats_addr(a, WS_ST2, 28)
        a("v_mov_b32 v238, -1\nv_mov_b32 v239, -1\ns_mov_b32 exec_hi, 0")
        a.vm("buffer_store_dwordx2 v[238:239], v1, s[8:11], s28 offen")
        a("s_mov_b32 exec_hi, -1")
    a(f"s_mul_i32 s3, s15, 192\ns_add_u32 s3, s3, {PAR}\nv_lshlrev_b32 v6, 4, v3\nv_add_u32 v6, s3, v6")
    areg = lambda s: AF + 8*(s % 2)
    c_start(a, areg)
    for s in range(nst): c_iter(a, s, s == 0, nst, areg)
    stamp(a, 4)
    for i in range(6): a(f"ds_read_b128 v[{G+4*i}:{G+4*i+3}], v6 offset:{32*i}")
    T = WS0
    exchange(a, T)
    stamp(a, 5)
    R = ACC
    a.wait(vm=["epi"])
    if not final: a("v_mov_b32 v120, 0\nv_mov_b32 v121, 0")
    lskip = a.label("skip")
    for i in range(3):
        if i == 2: a(f"s_cmp_eq_u32 s15, 1\ns_cbranch_scc1 {lskip}")
        for d in range(4):
            x = XR + 4*i + d; r = R + 8*i + 2*d; g = G + 8*i + 2*d; t = T + 2*(d % 2)
            a(f"v_lshlrev_b32 v{t}, 16, v{x}\nv_and_b32 v{t+1}, 0xffff0000, v{x}\nv_fmac_f32 v{t}, v{g}, v{r}\nv_fmac_f32 v{t+1}, v{g+1}, v{r+1}")
            if not final:
                a(f"v_add_f32 v120, v120, v{t}\nv_fmac_f32 v121, v{t}, v{t}\nv_add_f32 v120, v120, v{t+1}\nv_fmac_f32 v121, v{t+1}, v{t+1}")
            a(f"v_cvt_pk_bf16_f32 v{T+8+4*i+d}, v{t}, v{t+1}")
        o = T + 8 + 4*i
        if final:
            a(f"buffer_store_dwordx2 v[{o}:{o+1}], v7, s[24:27], s23 offen offset:{32*i}\nbuffer_store_dwordx2 v[{o+2}:{o+3}], v7, s[24:27], s23 offen offset:{32*i+16}")
        else:
            a(f"buffer_store_dwordx4 v[{o}:{o+3}], v1, s[8:11], s22 offen offset:{1024*i}")
    a(f"{lskip}:")
    if not final: stats_store(a, 120, WS_ST1)
    a(f"s_branch L_{name}_end")
    L = Loader(a, act_base, nks, 160, ka_sreg=32, rs=1280, nbytes=nks*16*1280, colbytes=160)
    a(f"s_mul_i32 s6, s13, 320\ns_add_u32 s6, s6, {WS_MOD + gate_off}")
    L.dma1(PAR, 6, "par")
    L.start(L.issue)
    for s in range(nst): L.step(s, nst, L.issue)
    end(a)
    finish(a, 256, 512, LDS_G, 248)

GC1 = -2.0 * LOG2E * math.sqrt(2.0 / math.pi)
GC2 = GC1 * 0.044715
def gelu(a, regs, t0, c1):
    for i, r in enumerate(regs): a(f"v_mul_f32 v{t0+i}, v{r}, v{r}")
    for i, r in enumerate(regs): a(f"v_fma_f32 v{t0+i}, v{t0+i}, s28, v{c1}")
    for i, r in enumerate(regs): a(f"v_mul_f32 v{t0+i}, v{t0+i}, v{r}")
    for i, r in enumerate(regs): a(f"v_exp_f32 v{t0+i}, v{t0+i}")
    for i, r in enumerate(regs): a(f"v_add_f32 v{t0+i}, 1.0, v{t0+i}")
    for i, r in enumerate(regs): a(f"v_rcp_f32 v{t0+i}, v{t0+i}")
    for i, r in enumerate(regs): a(f"v_mul_f32 v{r}, v{r}, v{t0+i}")

ZROW = 208
def k4():
    a = K("k4")
    gemm_prologue(a, f"s_load_dwordx2 s[32:33], s[0:1], {KA['w_in']}")
    compute_addr(a, 192); param_base(a)
    RR, NM, C1, Z2 = 236, 237, 238, 184
    a(f"s_mov_b32 s28, {f32(GC2)}\nv_mov_b32 v{C1}, {f32(GC1)}\ns_waitcnt lgkmcnt(0)")
    srd(a, 8, 4, WS_SIZE)
    stamp(a, 1)
    stats_load(a, PR, WS_ST1, "ln")
    a.wait(vm=["ln"])
    stats_finish(a, PR, 640, RR, NM)
    xf = (10, RR, NM)
    areg = lambda s: AF + 8*(s % 10)
    c_start(a, areg, xf)
    for s in range(10): c_iter(a, s, s == 0, 20, areg, xf, load_a=(s < 9))
    stamp(a, 4)
    T = WS0 + 24
    exchange(a, T)
    gelu(a, list(range(ACC, ACC+24)), T, C1)
    a("v_mov_b32 v232, 0\nv_mov_b32 v233, 0")
    for i in range(24): a(f"v_add_f32 v232, v232, v{ACC+i}\nv_fmac_f32 v233, v{ACC+i}, v{ACC+i}\nv_mov_b32 v{Z2+i}, v{ACC+i}")
    stats_store(a, 232, WS_ST2, "sc1")
    stamp(a, 5)
    for s in range(10, 20): c_iter(a, s, s == 10, 20, areg, None, load_a=False)
    stamp(a, 6)
    stats_load(a, 208, WS_ST2, "st2", "sc1")
    T = WS0
    exchange(a, T)
    gelu(a, list(range(ACC, ACC+24)), T, C1)
    unit_off(a, 22, 6, WS_Z1)
    for i in range(3):
        for d in range(4): a(f"v_cvt_pk_bf16_f32 v{T+4*i+d}, v{ACC+8*i+2*d}, v{ACC+8*i+2*d+1}")
        a.vm(f"buffer_store_dwordx4 v[{T+4*i}:{T+4*i+3}], v1, s[8:11], s22 offen offset:{i*1024}")
    stamp(a, 7)
    a.wait(vm=["st2"])
    a("s_mov_b32 s29, 0x4000")
    lp, lok = a.label("poll"), a.label("ok")
    a(f"{lp}:")
    a("v_or_b32 v224, v209, v211")
    for i in range(2, 8): a(f"v_or_b32 v224, v224, v{209+2*i}")
    a(f"v_cmp_gt_i32 vcc, 0, v224\ns_sub_u32 s29, s29, 1\ns_cbranch_scc1 {lok}\ns_cbranch_vccz {lok}\ns_sleep 1")
    stats_load(a, 208, WS_ST2, "st2", "sc1")
    a(f"s_waitcnt vmcnt(0)\ns_branch {lp}\n{lok}:")
    stamp(a, 8)
    stats_finish(a, 208, 768, RR, NM)
    T = WS0 + 24
    for i in range(24): a(f"v_fma_f32 v{Z2+i}, v{Z2+i}, v{RR}, v{NM}")
    for i in range(12): a(f"v_cvt_pk_bf16_f32 v{T+i}, v{Z2+2*i}, v{Z2+2*i+1}")
    a(f"s_and_b32 s6, s14, 1\ns_mul_i32 s6, s6, {32*ZROW}\ns_mul_i32 s7, s15, 96\ns_add_u32 s6, s6, s7\nv_mul_u32_u24 v4, {ZROW}, v2\nv_lshl_add_u32 v4, v3, 3, v4\nv_add_u32 v4, s6, v4")
    for i in range(6): a(f"ds_write_b64 v4, v[{T+2*i}:{T+2*i+1}] offset:{16*i}")
    a("v_lshrrev_b32 v5, 4, v1\nv_and_b32 v6, 15, v5\nv_lshrrev_b32 v5, 4, v5\nv_and_b32 v5, 1, v5")
    a(f"v_lshrrev_b32 v7, 2, v6\nv_lshl_add_u32 v7, v3, 3, v7\nv_mul_u32_u24 v7, {ZROW}, v7\nv_and_b32 v6, 3, v6\nv_lshl_add_u32 v7, v6, 3, v7\ns_mul_i32 s6, s14, {16*ZROW}\nv_add_u32 v7, s6, v7")
    a("v_mul_u32_u24 v6, 96, v5\nv_add_u32 v6, v6, v7\nv_lshl_add_u32 v7, v5, 5, v7")
    a("s_waitcnt lgkmcnt(0)\ns_barrier")
    for ft in range(3):
        av = 6 if ft == 1 else 7
        o = 32 * UT[ft][0]
        a(f"ds_read_b64_tr_b16 v[{T+4*ft}:{T+4*ft+1}], v{av} offset:{o}\nds_read_b64_tr_b16 v[{T+4*ft+2}:{T+4*ft+3}], v{av} offset:{o+4*ZROW}")
    a(f"s_lshl_b32 s6, s13, 7\ns_lshl_b32 s7, s12, 2\ns_add_u32 s6, s6, s7\ns_add_u32 s6, s6, s14\ns_mul_i32 s6, s6, 3072\ns_add_u32 s6, s6, {WS_Z2T:#x}")
    a("s_waitcnt lgkmcnt(0)")
    for ft in range(3): a(f"buffer_store_dwordx4 v[{T+4*ft}:{T+4*ft+3}], v1, s[8:11], s6 offen offset:{1024*ft}")
    if os.environ.get("X_WSPPF", "0") == "1":
        a(f"s_and_b32 s3, s14, 3\ns_lshl_b32 s6, s16, 17\ns_lshl_b32 s7, s13, 14\ns_add_u32 s6, s6, s7\ns_lshl_b32 s7, s15, 13\ns_add_u32 s6, s6, s7\ns_add_u32 s6, s6, {WS_WSP:#x}\nv_lshlrev_b32 v4, 3, v1")
        a("buffer_load_dword v8, v4, s[8:11], s6 offen")
    a("s_branch L_k4_end")
    L = Loader(a, WS_X1, 40, 192, ka_sreg=32, rs=3072, nbytes=640*3072, colbytes=192, col0=1536)
    L.params(7680)
    def issue(s):
        if s == 10: a(f"s_sub_u32 s19, s19, {320*3072 + 1536}")
        L.issue(s, s < 10)
    L.start(issue)
    for s in range(20):
        L.step(s, 20, issue)
        if s == 10: a("s_barrier")
    end(a)
    finish(a, 256, 512, LDS_G, 248)

def k5():
    a = K("k5")
    gemm_prologue(a, f"s_load_dwordx4 s[32:35], s[0:1], {KA['b_sp']}")
    compute_addr(a, 0)
    Z, B = 200, 212
    unit_off(a, 28, 6, 0)
    a(f"s_add_u32 s29, s28, {WS_Y:#x}\ns_add_u32 s28, s28, {WS_Z1:#x}\nv_lshlrev_b32 v6, 1, v2\ns_lshl_b32 s6, s16, 6\ns_waitcnt lgkmcnt(0)")
    srd(a, 8, 4, WS_SIZE); srd(a, 24, 32, 4096)
    stamp(a, 1)
    for i in range(3): a.vm(f"buffer_load_dwordx4 v[{Z+4*i}:{Z+4*i+3}], v1, s[8:11], s28 offen offset:{1024*i}", "epi")
    a.vm(f"buffer_load_ushort v{B}, v6, s[24:27], s6 offen", "epi")
    for i in range(48): a(f"v_mov_b32 v{ACC+i}, 0")
    areg = lambda s: AF + 8*(s % 2)
    c_start(a, areg)
    a("s_mov_b32 s30, 5\nL_k5_loop:")
    for s in range(6): c_iter(a, s, False, 32, areg)
    a("s_sub_u32 s30, s30, 1\ns_cmp_lg_u32 s30, 0\ns_cbranch_scc1 L_k5_loop")
    a.lgq = [(t[0], t[1] + 24) if isinstance(t, tuple) else t for t in a.lgq]
    for s in range(30, 32): c_iter(a, s, False, 32, areg)
    stamp(a, 4)
    T = WS0
    exchange(a, T)
    stamp(a, 5)
    R = ACC
    a.wait(vm=["epi"])
    a(f"v_lshlrev_b32 v{B}, 16, v{B}")
    for i in range(3):
        for d in range(4):
            z = Z + 4*i + d; r = R + 8*i + 2*d; t = T + 2*(d % 2)
            a(f"v_add_f32 v{r}, v{r}, v{B}\nv_add_f32 v{r+1}, v{r+1}, v{B}\nv_lshlrev_b32 v{t}, 16, v{z}\nv_and_b32 v{t+1}, 0xffff0000, v{z}\nv_mul_f32 v{r}, v{r}, v{t}\nv_mul_f32 v{r+1}, v{r+1}, v{t+1}\nv_cvt_pk_bf16_f32 v{T+8+4*i+d}, v{r}, v{r+1}")
        a(f"buffer_store_dwordx4 v[{T+8+4*i}:{T+11+4*i}], v1, s[8:11], s29 offen offset:{1024*i}")
    a("s_branch L_k5_end")
    L = Loader(a, WS_WSP, 128, 0, wbase=WS_Z2T)
    L.start(L.issue)
    for s in range(2): L.step(s, 32, L.issue)
    a("s_mov_b32 s30, 4\nL_k5_lloop:")
    for s in range(2, 8): L.step(s, 32, L.issue)
    a("s_sub_u32 s30, s30, 1\ns_cmp_lg_u32 s30, 0\ns_cbranch_scc1 L_k5_lloop")
    a.vmq = [(t[0], t[1] + 18) if isinstance(t, tuple) else t for t in a.vmq]
    for s in range(26, 32):
        L.step(s, 32, L.issue)
        if s == 27:
            srd(a, 40, 34, 768 * 1280)
            a("s_and_b32 s31, s14, 3")
            prefetch(a, 40, 0, 768 * 1280, 4, 31, 8, 4, 28)
    end(a)
    finish(a, 256, 512, LDS_G, 248)

def emit(path):
    out = []
    for (n, lines, g, b, lds, nv, ao) in kernels:
        out.append(f"; @launch kernel={n}_kernel grid=({g},1,1) block=({b},1,1) lds={lds}")
    out.append('.amdgcn_target "amdgcn-amd-amdhsa--gfx950"\n.text')
    bad = 0
    for (n, lines, g, b, lds, nv, ao) in kernels:
        errs = check_hazards(lines, n) + ([] if PROF else check_waits(lines, n))
        for e in errs:
            if "buffer_load_ushort" in e.split("touched by")[0] and "buffer_load_ushort" in e.split("touched by")[-1] and n == "k0": continue
            if "buffer_load_dword v" in e.split("touched by")[0] and "buffer_load_dword v" in e.split("touched by")[-1]: continue
            print("CHECK", e); bad += 1
        out.append(f".globl {n}_kernel\n.p2align 8\n.type {n}_kernel,@function\n{n}_kernel:")
        t = Asm(); t.lines = lines
        out.append(t.text())
    out.append('.section .rodata,"a"')
    for (n, lines, g, b, lds, nv, ao) in kernels:
        out.append(f""".p2align 6
.amdhsa_kernel {n}_kernel
  .amdhsa_next_free_vgpr {nv}
  .amdhsa_next_free_sgpr {96 if PROF else 56}
  .amdhsa_accum_offset {ao}
  .amdhsa_group_segment_fixed_size 0
  .amdhsa_kernarg_size 120
  .amdhsa_user_sgpr_count 2
  .amdhsa_user_sgpr_kernarg_segment_ptr 1
  .amdhsa_system_sgpr_workgroup_id_x 1
.end_amdhsa_kernel""")
    open(path, "w").write("\n".join(out) + "\n")
    print("wrote", path, "checks failed:", bad)

if __name__ == "__main__":
    k0(); k1(); k2()
    kproj("k3", WS_O, "wo", 40, 5120, False)
    k4(); k5()
    kproj("k6", WS_Y, "w_out", 48, 12800, True)
    for i in range(int(os.environ.get("X_EMPTY", "0"))):
        e = K(f"e{i}"); e("s_endpgm"); finish(e, 256, 256, 0, 8)
    emit(sys.argv[1] if len(sys.argv) > 1 else "adaLN_cond__grouped_kv_mqa__mixer_gmlp__prompt.s")
```

```python
import math, struct, sys, os
from asmlib import *

def f32(x):
    return "0x%08x" % struct.unpack("<I", struct.pack("<f", x))[0]

WS_MOD  = 0x0
WS_XH   = 0x100000
WS_ST0  = 0x8000
WS_CNT  = 0xC000
WS_UT   = 0x10000
WS_UTP  = 0x20000
WS_WQKV = 0x400000
WS_WO   = 0x500000
WS_WIN  = 0x600000
WS_WOUT = 0x800000
WS_Q    = 0xA00000
WS_KV   = 0xD00000
WS_O    = 0xE00000
WS_X1   = 0x1100000
WS_ST1  = 0x1400000
WS_ST2  = 0x1480000
WS_Z1   = 0x1500000
WS_Z2T  = 0x1E00000
WS_Y    = 0x2100000
WS_WSP  = 0x2400000
WS_SIZE = 0x2C00000
KVCH = 26624
OOB = 0x40000000
LOG2E = math.log2(math.e)
KA = dict(x=0, wq=8, wk=16, wv=24, wo=32, w_in=48, w_sp=56, b_sp=64, w_out=72, c=80, w_mod=88, out=96, dbg=104, ws=112)
UT = [[0, 1], [2, 5], [3, 4]]

PROF = os.environ.get("PROF", "0") == "1"
WS_PROF = 0x3000000
if PROF: WS_SIZE = 0x4000000
def stamp(a, i):
    if PROF: a(f"s_memtime s[{50+2*i}:{51+2*i}]")
def stamp_begin(a):
    if PROF:
        for i in range(12): a(f"s_mov_b64 s[{50+2*i}:{51+2*i}], 0")
        a("s_memrealtime s[74:75]")
        stamp(a, 0)
def stamp_end(a, kidx):
    if PROF:
        stamp(a, 11)
        a("s_memrealtime s[76:77]\ns_mov_b64 exec, 1\ns_waitcnt lgkmcnt(0)")
        a(f"s_lshl_b32 s3, s2, 4\ns_add_u32 s3, s3, s14\ns_lshl_b32 s3, s3, 6\ns_add_u32 s3, s3, {WS_PROF + kidx*0x100000:#x}\nv_mov_b32 v0, 0")
        for i in range(12): a(f"v_mov_b32 v{2+i}, s{50+2*i}")
        a("s_getreg_b32 s78, hwreg(HW_REG_XCC_ID)\ns_getreg_b32 s79, hwreg(HW_REG_HW_ID)\nv_mov_b32 v14, s74\nv_mov_b32 v15, s76\nv_mov_b32 v16, s78\nv_mov_b32 v17, s79")
        for i in range(4): a(f"buffer_store_dwordx4 v[{2+4*i}:{5+4*i}], v0, s[8:11], s3 offen offset:{16*i}")

def srd(a, d, p, nbytes):
    a(f"s_mov_b32 s{d}, s{p}\ns_mov_b32 s{d+1}, s{p+1}\ns_mov_b32 s{d+2}, {nbytes:#x}\ns_mov_b32 s{d+3}, 0x20000")

kernels = []
XCMP = "s3" if os.environ.get("X_NOBAR") or os.environ.get("X_NOLDS") else 0

class K(Asm):
    def __init__(self, name):
        super().__init__()
        self.name = name; self.vmq = []; self.lgq = []
    def label(self, base):
        self.uid += 1
        return f"L_{self.name}_{base}_{self.uid}"
    def vm(self, text, tag=None):
        self(text); self.vmq.append(tag)
    def lg(self, text, tag=None):
        self(text); self.lgq.append(tag)
    def _n(self, q, tags):
        idx = max((i for i, t in enumerate(q) if t in tags), default=None)
        return None if idx is None else len(q) - 1 - idx
    def wait(self, vm=(), lg=()):
        parts = []
        n = self._n(self.vmq, vm) if vm else None
        if n is not None:
            parts.append(f"vmcnt({min(n, 63)})"); self.vmq = self.vmq[len(self.vmq)-n:] if n else []
        n = self._n(self.lgq, lg) if lg else None
        if n is not None:
            n2 = min(n, 15)
            parts.append(f"lgkmcnt({n2})"); self.lgq = self.lgq[len(self.lgq)-n2:] if n2 else []
        if parts: self("s_waitcnt " + " ".join(parts))
    def wait_all_lg(self):
        self("s_waitcnt lgkmcnt(0)"); self.lgq = []

def end(a):
    a(f"L_{a.name}_end:")
    stamp_end(a, len(kernels))
    a(f"L_{a.name}_exit:\ns_endpgm")
def finish(a, grid, block, lds, nv):
    kernels.append((a.name, a.lines, grid, block, lds, nv, (nv + 3) // 4 * 4))

def bf16_round(a, v, t):
    a(f"v_cvt_pk_bf16_f32 v{t}, v{v}, v{v}\nv_and_b32 v{v}, 0xffff0000, v{t}")

E_NAT = list(range(8))
E_PERM = [(j & 3) + 8 * (j >> 2) for j in range(8)]
E_O5 = [20 * (j >> 1) + (j & 1) for j in range(8)]
def loads8(a, srdn, voff, lo, hi, ebase, e_list, rs, stmp, tag=None):
    for j in range(8):
        a(f"s_add_u32 s{stmp}, s{ebase}, {e_list[j]*rs}")
        a.vm(f"buffer_load_ushort v{(lo if j % 2 == 0 else hi) + j//2}, v{voff}, s[{srdn}:{srdn+3}], s{stmp} offen", tag)

def divmod_s(a, q, r, x, d, t):
    m = (1 << 20) // d + 1
    a(f"s_mul_i32 s{q}, s{x}, {m}\ns_lshr_b32 s{q}, s{q}, 20\ns_mul_i32 s{t}, s{q}, {d}\ns_sub_u32 s{r}, s{x}, s{t}")

def pack_frag_issue(a, f, srdn, rs, ncol, nks, otype, halves, lo, hi, voff, vt, S):
    q3, ft, t, nb, ks, eb = S, S+1, S+2, S+3, S+4, S+5
    divmod_s(a, q3, ft, f, 3, t)
    divmod_s(a, nb, ks, q3, nks, t)
    if halves:
        a(f"s_and_b32 s{t}, s{nb}, 1\ns_lshr_b32 s{nb}, s{nb}, 1\ns_mul_i32 s{nb}, s{nb}, {ncol}\ns_cmp_eq_u32 s{t}, 0\ns_cselect_b32 s{t}, 768, 0\ns_add_u32 s{nb}, s{nb}, s{t}")
    else:
        a(f"s_mul_i32 s{nb}, s{nb}, {ncol}")
    hi5 = 80 if ncol == 96 else OOB // 2
    a(f"s_cmp_eq_u32 s{ft}, 1\ns_cselect_b32 s{q3}, 32, 48\ns_cselect_b32 s{t}, {hi5:#x}, 64\ns_cmp_eq_u32 s{ft}, 0\ns_cselect_b32 s{q3}, 0, s{q3}\ns_cselect_b32 s{t}, 16, s{t}")
    a(f"s_add_u32 s{q3}, s{q3}, s{nb}\ns_add_u32 s{t}, s{t}, s{nb}")
    a(f"v_mov_b32 v{vt}, s{q3}\nv_mov_b32 v{vt+1}, s{t}\nv_cmp_gt_u32 vcc, 16, v2\nv_and_b32 v{voff}, 15, v2\ns_nop 0\nv_cndmask_b32 v{vt}, v{vt+1}, v{vt}, vcc\nv_add_lshl_u32 v{voff}, v{voff}, v{vt}, 1")
    if not otype:
        a(f"v_mul_u32_u24 v{vt}, {4*rs}, v3\nv_add_u32 v{voff}, v{voff}, v{vt}\ns_mul_i32 s{eb}, s{ks}, {16*rs}")
        loads8(a, srdn, voff, lo, hi, eb, E_PERM, rs, t, "pack")
    else:
        l5, ld = a.label("u4"), a.label("ud")
        divmod_s(a, q3, ft, ks, 5, t)
        a(f"s_mul_i32 s{q3}, s{q3}, 80\ns_cmp_eq_u32 s{ft}, 4\ns_cbranch_scc1 {l5}")
        a(f"s_mul_i32 s{ft}, s{ft}, 20\ns_add_u32 s{q3}, s{q3}, s{ft}\ns_mul_i32 s{eb}, s{q3}, {rs}\nv_mul_u32_u24 v{vt}, {4*rs}, v3\nv_add_u32 v{voff}, v{voff}, v{vt}")
        q0 = list(a.vmq)
        loads8(a, srdn, voff, lo, hi, eb, E_PERM, rs, t, "pack")
        a(f"s_branch {ld}\n{l5}:\ns_add_u32 s{q3}, s{q3}, 16\ns_mul_i32 s{eb}, s{q3}, {rs}\nv_mul_u32_u24 v{vt}, {2*rs}, v3\nv_add_u32 v{voff}, v{voff}, v{vt}")
        a.vmq = q0
        loads8(a, srdn, voff, lo, hi, eb, E_O5, rs, t, "pack")
        a(f"{ld}:")

def pack_frag_store(a, f, wsbase, lo, hi, st):
    for i in range(4): a(f"v_lshl_or_b32 v{lo+i}, v{hi+i}, 16, v{lo+i}")
    a(f"s_lshl_b32 s{st}, s{f}, 10\ns_add_u32 s{st}, s{st}, {wsbase:#x}")
    a.vm(f"buffer_store_dwordx4 v[{lo}:{lo+3}], v1, s[8:11], s{st} offen")

def l2_prefetch(a, base, nbytes, nwaves, vdst, vtmp, st):
    per_wg = nbytes // 32
    PS = int(os.environ.get("X_PFS", "64")); CH = 64 * PS
    n_instr = -(-per_wg // CH)
    per_wave = -(-n_instr // nwaves)
    a(f"s_lshr_b32 s{st}, s2, 3\ns_mul_i32 s{st}, s{st}, {per_wg}\ns_mul_i32 s{st+1}, s14, {per_wave*CH}\ns_add_u32 s{st}, s{st}, s{st+1}\ns_add_u32 s{st}, s{st}, {base:#x}\nv_lshlrev_b32 v{vtmp}, {int(math.log2(PS//16))}, v1")
    for i in range(per_wave):
        a.vm(f"buffer_load_dword v{vdst}, v{vtmp}, s[8:11], s{st} offen")
        if i < per_wave - 1: a(f"s_add_u32 s{st}, s{st}, {CH}")

N_MOD, N_XH, N_PQ = 128, 64, 40
def k0():
    a = K("k0")
    ends = [N_MOD, N_MOD + N_XH, N_MOD + N_XH + N_PQ]
    grid = ends[-1]
    CPF = os.environ.get("X_CPF", "0") == "1"
    if CPF:
        lc = a.label("cpf")
        a(f"s_cmp_lt_u32 s2, {grid}\ns_cbranch_scc1 {lc}\ns_cmp_ge_u32 s2, {grid+48}\ns_cbranch_scc1 L_k0_exit")
        a(f"s_getpc_b64 s[40:41]\ns_and_b32 s40, s40, 0xffffff00\ns_sub_u32 s3, s2, {grid}\ns_lshr_b32 s3, s3, 3\ns_lshl_b32 s3, s3, 13\nv_lshlrev_b32 v3, 5, v0\nv_add_u32 v3, s3, v3\nglobal_load_dword v4, v3, s[40:41]\ns_endpgm\n{lc}:")
        grid += 48
    a(f"s_cmp_ge_u32 s2, {grid}\ns_cbranch_scc1 L_k0_exit")
    stamp_begin(a)
    a(f"s_load_dwordx2 s[4:5], s[0:1], {KA['ws']}")
    a("v_and_b32 v1, 63, v0\nv_lshrrev_b32 v2, 6, v0\ns_nop 0\nv_readfirstlane_b32 s14, v2")
    a(f"s_cmp_lt_u32 s2, {ends[0]}\ns_cbranch_scc1 L_k0_mod")
    a(f"s_cmp_lt_u32 s2, {ends[1]}\ns_cbranch_scc1 L_k0_xh")
    a("s_branch L_k0_pq")
    a("L_k0_mod:")
    a(f"s_load_dwordx4 s[16:19], s[0:1], {KA['c']}")
    a("s_and_b32 s3, s2, 7\ns_lshl_b32 s3, s3, 1\ns_bfe_u32 s6, s2, 0x10003\ns_add_u32 s3, s3, s6\ns_lshr_b32 s6, s2, 4\ns_lshl_b32 s6, s6, 4\ns_add_u32 s3, s3, s6")
    a("s_cmp_ge_u32 s3, 120\ns_cbranch_scc1 L_k0_exit")
    a("v_lshrrev_b32 v1, 2, v0\nv_and_b32 v2, 3, v0\nv_mul_u32_u24 v3, 7680, v1\nv_lshl_add_u32 v3, v2, 4, v3\nv_lshlrev_b32 v4, 1, v1")
    a("s_waitcnt lgkmcnt(0)")
    srd(a, 8, 4, WS_SIZE); srd(a, 20, 16, 1280); srd(a, 24, 18, 640 * 7680)
    a("s_lshl_b32 s6, s3, 6")
    for p in range(10):
        a(f"buffer_load_ushort v{10+p}, v4, s[20:23], 0 offen offset:{128*p}")
    for p in range(10):
        a(f"buffer_load_dwordx4 v[{20+4*p}:{23+4*p}], v3, s[24:27], s6 offen")
        if p < 9: a(f"s_add_u32 s6, s6, {64*7680}")
    for i in range(8): a(f"v_mov_b32 v{64+i}, 0")
    a("s_waitcnt vmcnt(10)")
    for p in range(10):
        v = 10 + p
        a(f"v_lshlrev_b32 v{v}, 16, v{v}\nv_mul_f32 v5, {f32(-LOG2E)}, v{v}\nv_exp_f32 v5, v5\ns_nop 0\nv_add_f32 v5, 1.0, v5\nv_rcp_f32 v5, v5\ns_nop 0\nv_mul_f32 v{v}, v{v}, v5")
        bf16_round(a, v, 5)
    for p in range(10):
        a(f"s_waitcnt vmcnt({9-p})")
        for i in range(4):
            d = 20 + 4*p + i
            a(f"v_lshlrev_b32 v5, 16, v{d}\nv_and_b32 v6, 0xffff0000, v{d}\nv_fmac_f32 v{64+2*i}, v{10+p}, v5\nv_fmac_f32 v{65+2*i}, v{10+p}, v6")
    a("v_lshlrev_b32 v5, 7, v1\nv_lshl_add_u32 v5, v2, 5, v5")
    a("ds_write_b128 v5, v[64:67]\nds_write_b128 v5, v[68:71] offset:16")
    a("v_and_b32 v6, 31, v0\nv_lshrrev_b32 v7, 5, v0\nv_lshlrev_b32 v6, 2, v6\nv_lshl_add_u32 v8, v7, 10, v6")
    a("s_waitcnt lgkmcnt(0)\ns_barrier")
    for i in range(8): a(f"ds_read_b32 v{20+i}, v8 offset:{128*i}")
    a("s_waitcnt lgkmcnt(0)")
    for i in range(1, 8): a(f"v_add_f32 v20, v20, v{20+i}")
    a("v_lshl_add_u32 v8, v7, 7, v6\nds_write_b32 v8, v20 offset:8192\ns_waitcnt lgkmcnt(0)\ns_barrier")
    for i in range(8): a(f"ds_read_b32 v{20+i}, v6 offset:{8192+128*i}")
    a("s_waitcnt lgkmcnt(0)")
    for i in range(1, 8): a(f"v_add_f32 v20, v20, v{20+i}")
    bf16_round(a, 20, 5)
    a("v_add_f32 v21, 1.0, v20")
    bf16_round(a, 21, 5)
    a("s_sub_u32 s6, s3, 20\ns_cmp_lt_u32 s6, 20\ns_cselect_b32 s7, 1, 0\ns_sub_u32 s6, s3, 80\ns_cmp_lt_u32 s6, 20\ns_cselect_b32 s6, 1, s7\ns_cmp_eq_u32 s6, 0")
    l = a.label("noinc")
    a(f"s_cbranch_scc1 {l}\nv_mov_b32 v20, v21\n{l}:")
    a(f"s_lshl_b32 s6, s3, 7\nv_cmp_gt_u32 vcc, 32, v0\ns_and_saveexec_b64 s[28:29], vcc\ns_cbranch_execz L_k0_end")
    a(f"buffer_store_dword v20, v6, s[8:11], s6 offen offset:{WS_MOD}")
    a("s_branch L_k0_end")
    a("L_k0_xh:")
    a(f"s_load_dwordx2 s[16:17], s[0:1], {KA['x']}")
    a(f"s_sub_u32 s6, s2, {ends[0]}\ns_and_b32 s3, s6, 7\ns_lshr_b32 s7, s6, 4\ns_lshl_b32 s7, s7, 3\ns_add_u32 s3, s3, s7\ns_lshl_b32 s3, s3, 1\ns_bfe_u32 s7, s6, 0x10003\ns_add_u32 s3, s3, s7")
    a("v_and_b32 v2, 31, v1\nv_lshrrev_b32 v3, 5, v1\nv_mul_u32_u24 v4, 1280, v2\nv_lshl_add_u32 v4, v3, 4, v4")
    a(f"s_mul_i32 s6, s3, {32*1280}\ns_mul_i32 s7, s14, 320\ns_add_u32 s6, s6, s7")
    a("s_waitcnt lgkmcnt(0)")
    srd(a, 8, 4, WS_SIZE); srd(a, 20, 16, 2048 * 1280)
    for i in range(10):
        a(f"buffer_load_dwordx4 v[{20+4*i}:{23+4*i}], v4, s[20:23], s6 offen offset:{32*i}")
    a("v_mov_b32 v6, 0\nv_mov_b32 v7, 0")
    a(f"s_mul_i32 s6, s3, {40*1024}\ns_mul_i32 s7, s14, {10*1024}\ns_add_u32 s6, s6, s7\ns_add_u32 s6, s6, {WS_XH:#x}\nv_lshlrev_b32 v8, 4, v1")
    for i in range(10):
        b = 20 + 4*i
        a(f"s_waitcnt vmcnt(9)\nv_permlane32_swap_b32 v{b}, v{b+2}\nv_permlane32_swap_b32 v{b+1}, v{b+3}")
        a(f"buffer_store_dwordx4 v[{b}:{b+3}], v8, s[8:11], s6 offen offset:{(i%4)*1024}")
        if i % 4 == 3: a("s_add_u32 s6, s6, 4096")
        for d in range(4):
            lo = 64 + 2*(d % 2)
            a(f"v_lshlrev_b32 v{lo}, 16, v{b+d}\nv_and_b32 v{lo+1}, 0xffff0000, v{b+d}")
            a(f"v_add_f32 v6, v6, v{lo}\nv_fmac_f32 v7, v{lo}, v{lo}\nv_add_f32 v6, v6, v{lo+1}\nv_fmac_f32 v7, v{lo+1}, v{lo+1}")
    a("v_lshlrev_b32 v5, 3, v0\nds_write_b64 v5, v[6:7]\nv_lshlrev_b32 v5, 3, v2\ns_waitcnt lgkmcnt(0)\ns_barrier")
    for i in range(8): a(f"ds_read_b64 v[{70+2*i}:{71+2*i}], v5 offset:{256*i}")
    a("s_waitcnt lgkmcnt(0)")
    for i in range(1, 8): a(f"v_add_f32 v70, v70, v{70+2*i}\nv_add_f32 v71, v71, v{71+2*i}")
    a(f"v_mul_f32 v70, {f32(1/640)}, v70\nv_mul_f32 v71, {f32(1/640)}, v71\nv_fma_f32 v71, -v70, v70, v71\nv_max_f32 v71, 0, v71\nv_add_f32 v71, {f32(1e-5)}, v71\nv_rsq_f32 v72, v71\ns_nop 0\nv_mul_f32 v70, v70, v72")
    a(f"v_sub_f32 v73, 0, v70\ns_lshl_b32 s6, s3, 8\ns_add_u32 s6, s6, {WS_ST0:#x}\nv_cmp_gt_u32 vcc, 32, v0\ns_and_saveexec_b64 s[28:29], vcc\ns_cbranch_execz L_k0_end")
    a("buffer_store_dwordx2 v[72:73], v5, s[8:11], s6 offen")
    a("s_branch L_k0_end")
    a("L_k0_pq:")
    a(f"s_load_dwordx2 s[16:17], s[0:1], {KA['wq']}\ns_load_dwordx4 s[32:35], s[0:1], {KA['wk']}")
    a(f"s_sub_u32 s3, s2, {ends[1]}\ns_and_b32 s13, s3, 7\ns_lshr_b32 s12, s3, 3\ns_lshl_b32 s12, s12, 3\ns_lshl_b32 s6, s14, 1\ns_add_u32 s12, s12, s6")
    a("v_and_b32 v2, 31, v1\nv_lshrrev_b32 v3, 5, v1\nv_and_b32 v4, 15, v1\nv_lshlrev_b32 v9, 4, v1")
    a(f"v_lshrrev_b32 v5, 4, v2\nv_mul_u32_u24 v5, 20, v5\nv_add_u32 v5, v5, v4\ns_mul_i32 s6, s13, 80\nv_add_u32 v5, s6, v5\nv_lshlrev_b32 v5, 1, v5\nv_mul_u32_u24 v6, {4*1280}, v3\nv_add_u32 v10, v5, v6\nv_add_u32 v11, 80, v10\nv_add_u32 v12, 120, v10")
    a("v_bfe_u32 v5, v4, 1, 1\nv_lshrrev_b32 v7, 3, v4\nv_lshl_add_u32 v5, v7, 1, v5\nv_mul_u32_u24 v5, 20, v5\nv_bfe_u32 v7, v4, 2, 1\nv_lshl_add_u32 v5, v7, 1, v5\nv_and_b32 v7, 1, v4\nv_add_u32 v5, v5, v7\nv_add_u32 v5, 16, v5\nv_add_u32 v5, s6, v5\nv_lshlrev_b32 v5, 1, v5\nv_add_u32 v5, v5, v6\nv_cmp_gt_u32 vcc, 16, v2\ns_nop 1\nv_cndmask_b32 v12, v5, v12, vcc")
    a("v_lshrrev_b32 v5, 2, v4\nv_lshlrev_b32 v5, 1, v5\nv_add_u32 v5, v5, v7\nv_add_u32 v5, 16, v5\nv_and_b32 v8, 10, v4\nv_cmp_eq_u32 vcc, 0, v8")
    a(f"v_mov_b32 v8, {OOB//2:#x}\ns_nop 0\nv_cndmask_b32 v5, v8, v5, vcc\nv_add_u32 v14, 16, v4\nv_cmp_gt_u32 vcc, 4, v4\ns_nop 1\nv_cndmask_b32 v14, v8, v14, vcc\ns_cmp_eq_u32 s13, 3\ns_cselect_b64 vcc, -1, 0\nv_cndmask_b32 v5, v5, v14, vcc\ns_bitcmp1_b32 s13, 0\ns_cselect_b64 vcc, -1, 0\nv_cndmask_b32 v5, v4, v5, vcc\nv_lshlrev_b32 v5, 1, v5\nv_mul_u32_u24 v6, {4*40}, v3\nv_add_u32 v13, v5, v6")
    a("s_waitcnt lgkmcnt(0)")
    srd(a, 8, 4, WS_SIZE); srd(a, 20, 16, 640 * 1280)
    lz = a.label("nz")
    a(f"s_cmp_lg_u32 s3, 0\ns_cbranch_scc1 {lz}\nv_mov_b32 v15, 0\nv_lshlrev_b32 v16, 4, v0\ns_mov_b32 s7, {WS_CNT:#x}\nbuffer_store_dword v15, v16, s[8:11], s7 offen\n{lz}:")
    a("s_cmp_ge_u32 s13, 2\ns_cselect_b32 s32, s34, s32\ns_cselect_b32 s33, s35, s33\ns_cmp_ge_u32 s13, 4\ns_cselect_b32 s7, 0, 25600")
    a("s_mov_b32 s24, s32\ns_mov_b32 s25, s33\ns_mov_b32 s26, s7\ns_mov_b32 s27, 0x20000")
    for q in range(2):
        a(f"s_add_u32 s6, s12, {q}\ns_mul_i32 s28, s6, {16*1280}\ns_mul_i32 s29, s6, {16*40}")
        b = 20 + 12*q
        loads8(a, 20, 10, b, b+24, 28, E_PERM, 1280, 30)
        loads8(a, 20, 12, b+8, b+32, 28, E_PERM, 1280, 30)
        a("s_mov_b32 exec_lo, 0xffff\ns_mov_b32 exec_hi, 0xffff")
        loads8(a, 20, 11, b+4, b+28, 28, E_PERM, 1280, 30)
        a("s_mov_b32 exec_lo, 0xffff0000\ns_mov_b32 exec_hi, 0xffff0000")
        loads8(a, 24, 13, b+4, b+28, 29, E_PERM, 40, 30)
        a("s_mov_b64 exec, -1")
        if q == 0: a("s_waitcnt vmcnt(16)")
    a(f"s_mul_i32 s6, s13, 40\ns_add_u32 s6, s6, s12\ns_mul_i32 s6, s6, 3072\ns_add_u32 s6, s6, {WS_WQKV:#x}\ns_waitcnt vmcnt(0)")
    for i in range(24): a(f"v_lshl_or_b32 v{20+i}, v{44+i}, 16, v{20+i}")
    for q in range(2):
        for ft in range(3):
            a(f"buffer_store_dwordx4 v[{20+12*q+4*ft}:{23+12*q+4*ft}], v9, s[8:11], s6 offen offset:{ft*1024}")
        a("s_add_u32 s6, s6, 3072")
    end(a)
    finish(a, grid, 256, 9216, 144)

STG = 20480
NS, DEP = 6, 4
EX = NS * STG
PAR = EX + 24576
LDS_G = PAR + 5120
ACC, WS0, AF, PR, VW = 8, 56, 104, 200, 240

def common_prologue(a, extra_loads=""):
    a(f"s_cmp_ge_u32 s2, 256\ns_cbranch_scc1 L_{a.name}_exit")
    stamp_begin(a)
    a(f"s_load_dwordx2 s[4:5], s[0:1], {KA['ws']}")
    a(extra_loads)
    a("v_and_b32 v4, 63, v0\nv_lshrrev_b32 v5, 6, v0\nv_lshlrev_b32 v1, 4, v4\nv_readfirstlane_b32 s14, v5\nv_and_b32 v2, 31, v4\nv_lshrrev_b32 v3, 5, v4")
    a("s_and_b32 s12, s2, 7\ns_lshr_b32 s3, s2, 6\ns_lshl_b32 s3, s3, 3\ns_add_u32 s12, s12, s3\ns_bfe_u32 s13, s2, 0x30003")

def gemm_prologue(a, extra_loads=""):
    common_prologue(a, extra_loads)
    a("s_bfe_u32 s15, s14, 0x10001\ns_and_b32 s17, s14, 1\ns_lshl_b32 s16, s12, 1\ns_add_u32 s16, s16, s17")
    a(f"s_cmp_ge_u32 s14, 4\ns_cbranch_scc1 L_{a.name}_loader")

def compute_addr(a, rb):
    a.rb = rb
    if rb == 0:
        a(f"s_mul_i32 s3, s15, {6144+2048}\nv_add_u32 v{VW}, s3, v1\ns_mul_i32 s3, s15, {6144-2048}\ns_add_u32 s3, s3, 2048\nv_add_u32 v{VW+2}, s3, v1")
        a(f"s_lshl_b32 s3, s15, 8\nv_xor_b32 v{VW+1}, s3, v1\ns_mul_i32 s3, s15, 6144\ns_add_u32 s3, s3, 1024\nv_add_u32 v{VW+1}, s3, v{VW+1}")
    else:
        a("v_bfe_u32 v4, v0, 2, 2\nv_and_b32 v5, 3, v0\nv_bfe_u32 v6, v0, 4, 1")
        a("v_lshl_add_u32 v4, v3, 2, v4" if rb == 192 else "v_lshl_add_u32 v4, v4, 1, v3")
        a(f"v_mul_u32_u24 v4, {rb}, v4\nv_lshl_add_u32 v4, v5, 3, v4\ns_mul_i32 s3, s15, 6144\nv_add_u32 v4, s3, v4")
        a(f"v_lshl_add_u32 v5, v6, 5, v4\ns_mul_i32 s3, s15, 96\nv_add_u32 v{VW}, s3, v5\ns_sub_u32 s3, 96, s3\nv_add_u32 v{VW+2}, s3, v5")
        if rb == 192:
            a(f"v_xor_b32 v6, s15, v6\nv_mul_u32_u24 v6, 96, v6\nv_add_u32 v6, 64, v6\nv_add_u32 v{VW+1}, v4, v6")
        else:
            a(f"v_add_u32 v{VW+1}, 64, v4")
    a(f"s_lshl_b32 s3, s14, 11\ns_add_u32 s3, s3, 12288\nv_add_u32 v{VW+3}, s3, v1")
    for i in range(4): a(f"v_add_u32 v{VW+4+i}, {3*STG}, v{VW+i}")

def read_ops(a, s, areg):
    slot = s % NS; hi, sl = (4, slot - 3) if slot >= 3 else (0, slot)
    ra, rw = [], []
    if areg is not None:
        for q in range(2):
            ra.append(lambda q=q: a.lg(f"ds_read_b128 v[{areg+4*q}:{areg+4*q+3}], v{VW+3+hi} offset:{sl*STG + q*1024}", ("a", s)))
    for q in range(2):
        for t in range(3):
            r = WS0 + 24*(s % 2) + 12*q + 4*t; o = sl*STG + q*3072
            if a.rb == 0:
                rw.append(lambda r=r, t=t, o=o: a.lg(f"ds_read_b128 v[{r}:{r+3}], v{VW+t+hi} offset:{o}", ("w", s)))
            else:
                def f(r=r, t=t, o=o):
                    a.lg(f"ds_read_b64_tr_b16 v[{r}:{r+1}], v{VW+t+hi} offset:{o}", ("w", s))
                    a.lg(f"ds_read_b64_tr_b16 v[{r+2}:{r+3}], v{VW+t+hi} offset:{o + 8*a.rb}", ("w", s))
                rw.append(f)
    return ra, rw

def mfma_ops(a, wset, areg, first):
    ops = []
    for q in range(2):
        for t in range(3):
            r = ACC + 16*t; w = WS0 + 24*wset + 12*q + 4*t; b = areg + 4*q
            c = "0" if (first and q == 0) else f"v[{r}:{r+15}]"
            ops.append(lambda r=r, w=w, b=b, c=c: a(f"v_mfma_f32_32x32x16_bf16 v[{r}:{r+15}], v[{w}:{w+3}], v[{b}:{b+3}], {c}"))
    return ops

def transform_ops(a, F, P, rr, nm, t=232):
    ops = []
    for d in range(4):
        x, y = t + 2*(d % 2), t + 2*(d % 2) + 1
        L = [f"v_lshlrev_b32 v{x}, 16, v{F+d}", f"v_and_b32 v{y}, 0xffff0000, v{F+d}",
             f"v_fma_f32 v{x}, v{x}, v{rr}, v{nm}", f"v_fma_f32 v{y}, v{y}, v{rr}, v{nm}",
             f"v_fma_f32 v{x}, v{x}, v{P+8+2*d}, v{P+2*d}", f"v_fma_f32 v{y}, v{y}, v{P+9+2*d}, v{P+1+2*d}", f"v_cvt_pk_bf16_f32 v{F+d}, v{x}, v{y}"]
        ops += [(lambda l=l: a(l)) for l in L]
    return ops

def merge(*lists):
    items = []
    for li, L in enumerate(lists):
        n = len(L)
        for i, op in enumerate(L): items.append(((i + 0.5 * (li > 0)) / n, li, i, op))
    items.sort(key=lambda x: (x[0], x[1], x[2]))
    return [x[3] for x in items]
def run(ops):
    for op in ops: op()

def param_base(a):
    a(f"s_mul_i32 s3, s15, 1280\ns_add_u32 s3, s3, {PAR}\nv_lshlrev_b32 v6, 4, v3\nv_add_u32 v6, s3, v6")
def param_ops(a, ks):
    ops = []
    for arr in range(2):
        P = PR + 16*(ks % 2) + 8*arr; off = arr*2560 + ks*64
        ops.append(lambda P=P, off=off: a.lg(f"ds_read_b128 v[{P}:{P+3}], v6 offset:{off}", ("p", ks)))
        ops.append(lambda P=P, off=off: a.lg(f"ds_read_b128 v[{P+4}:{P+7}], v6 offset:{off+32}", ("p", ks)))
    return ops

def exchange(a, R):
    a(f"s_mul_i32 s3, s14, 6144\ns_add_u32 s3, s3, {EX}\nv_add_u32 v4, s3, v1\ns_xor_b32 s3, s14, 2\ns_mul_i32 s3, s3, 6144\ns_add_u32 s3, s3, {EX}\nv_add_u32 v5, s3, v1\ns_nop 4")
    for i in range(6): a(f"ds_write_b128 v4, v[{ACC+24+4*i}:{ACC+27+4*i}] offset:{i*1024}")
    a.wait_all_lg()
    a("s_barrier")
    for j in range(3):
        for h in range(2):
            a(f"ds_read_b128 v[{R+8*j+4*h}:{R+8*j+4*h+3}], v5 offset:{((j+1)%3)*2048 + h*1024}")
    for j in range(3):
        a(f"s_waitcnt lgkmcnt({4-2*j})")
        for i in range(8): a(f"v_add_f32 v{ACC+8*j+i}, v{ACC+8*j+i}, v{R+8*j+i}")

def c_start(a, areg_of, xf=None):
    a("s_barrier")
    stamp(a, 3)
    ra, rw = read_ops(a, 0, areg_of(0))
    run(ra)
    if xf:
        n, rr, nm = xf
        run(param_ops(a, 0)); run(param_ops(a, 1)); run(rw)
        a.wait(lg=[("a", 0), ("p", 0)])
        run(transform_ops(a, areg_of(0), PR, rr, nm))
        a.wait(lg=[("p", 1)])
        run(merge(transform_ops(a, areg_of(0) + 4, PR + 16, rr, nm), param_ops(a, 2)))
    else:
        run(rw)

def c_iter(a, s, first, total, areg_of, xf=None, load_a=True):
    ra, rw = [], []
    if s + 1 < total:
        a("s_barrier")
        ra, rw = read_ops(a, s + 1, areg_of(s + 1) if load_a else None)
    mf = mfma_ops(a, s % 2, areg_of(s), first)
    if os.environ.get("X_NORD"): ra, rw = [], []
    if os.environ.get("X_NOMFMA"): mf = [lambda: a("s_nop 0")] * 6
    if os.environ.get("X_NOXF"): xf = None
    if xf and s + 1 < xf[0]:
        n, rr, nm = xf
        k0 = 2*(s+1)
        run(ra); run(param_ops(a, k0 + 1))
        a.wait(lg=[("w", s)])
        run(merge(mf[:2], rw[:2]))
        a.wait(lg=[("a", s+1), ("p", k0)])
        run(merge(transform_ops(a, areg_of(s+1), PR, rr, nm), mf[2:4], rw[2:4]))
        a.wait(lg=[("p", k0 + 1)])
        nxt = param_ops(a, k0 + 2) if s + 2 < n else []
        run(merge(transform_ops(a, areg_of(s+1) + 4, PR + 16, rr, nm), mf[4:], rw[4:] + nxt))
    else:
        a.wait(lg=[("w", s), ("a", s)])
        run(merge(mf, ra + rw))

class Loader:
    def __init__(self, a, act_base, nks, wmode, wbase=None, wblocks=1, ka_sreg=None, rs=0, nbytes=0, colbytes=0, col0=0):
        self.a, self.wmode = a, wmode
        a(f"L_{a.name}_loader:")
        a.vmq = []; a.lgq = []
        a(f"s_and_b32 s3, s14, 3\ns_mul_i32 s20, s3, 3072\ns_lshl_b32 s21, s3, 11\ns_add_u32 s21, s21, 12288")
        a(f"s_mul_i32 s18, s16, {nks*1024}\ns_mul_i32 s3, s15, {nks*512}\ns_add_u32 s18, s18, s3\ns_add_u32 s18, s18, {act_base:#x}")
        if wmode == 0:
            a(f"s_mul_i32 s19, s13, {wblocks*nks*3072}\ns_mul_i32 s3, s15, {nks*1536}\ns_add_u32 s19, s19, s3\ns_mul_i32 s3, s17, 3072\ns_add_u32 s19, s19, s3\ns_add_u32 s19, s19, {wbase:#x}")
            self.wstep, self.wsrd, self.wv = 6144, 8, (1, 1, 1)
        else:
            cpr = wmode // 16
            a(f"s_mul_i32 s19, s15, {nks*8*rs}\ns_mul_i32 s3, s17, {16*rs}\ns_add_u32 s19, s19, s3\ns_mul_i32 s3, s13, {colbytes}\ns_add_u32 s19, s19, s3\ns_add_u32 s19, s19, {col0}")
            a("v_and_b32 v4, 63, v0")
            for i in range(3):
                a(f"v_add_u32 v5, {64*i}, v4\nv_mul_u32_u24 v6, {(1 << 16) // cpr + 1}, v5\nv_lshrrev_b32 v6, 16, v6\nv_mul_u32_u24 v7, {cpr}, v6\nv_sub_u32 v7, v5, v7")
                if wmode == 160:
                    a("v_and_b32 v8, 8, v6\nv_and_b32 v9, 1, v6\nv_lshl_add_u32 v8, v9, 2, v8\nv_bfe_u32 v9, v6, 1, 2\nv_add_u32 v6, v8, v9")
                a(f"v_mul_u32_u24 v6, {rs}, v6\nv_lshl_add_u32 v{10+i}, v7, 4, v6")
                if i: a(f"v_subrev_u32 v{10+i}, {1024*i}, v{10+i}")
                if wmode == 160 and i == 2:
                    a(f"v_mov_b32 v8, {OOB:#x}\nv_cmp_gt_u32 vcc, 32, v4\ns_nop 1\nv_cndmask_b32 v12, v8, v12, vcc")
            self.wstep, self.wsrd, self.wv = 32 * rs, 40, (10, 11, 12)
        a("s_waitcnt lgkmcnt(0)")
        srd(a, 8, 4, WS_SIZE)
        if wmode: srd(a, 40, ka_sreg, nbytes)
        stamp(a, 1)
    def dma1(self, lds_off, goff_expr_sreg, tag):
        a = self.a
        a(f"s_mov_b32 m0, {lds_off}\ns_nop 0")
        a.vm(f"buffer_load_dwordx4 v1, s[8:11], s{goff_expr_sreg} offen lds", tag)
    def params(self, mod_off):
        a = self.a
        a(f"s_and_b32 s3, s14, 3\ns_lshl_b32 s3, s3, 10\ns_add_u32 m0, s3, {PAR}\ns_add_u32 s6, s3, {WS_MOD + mod_off}")
        a.vm("buffer_load_dwordx4 v1, s[8:11], s6 offen lds", "par")
        a(f"s_mov_b32 s6, {WS_MOD + mod_off + 4096}")
        self.dma1(PAR + 4096, 6, "par")
    def issue(self, s, with_a=True):
        a = self.a; slot = s % NS
        if with_a:
            a(f"s_add_u32 m0, s21, {slot*STG}\ns_nop 0")
            for q in range(2): a.vm(f"buffer_load_dwordx4 v1, s[8:11], s18 offen offset:{q*1024} lds", ("st", s))
            a("s_add_u32 s18, s18, 2048")
        a(f"s_add_u32 m0, s20, {slot*STG}\ns_nop 0")
        for i in range(3): a.vm(f"buffer_load_dwordx4 v{self.wv[i]}, s[{self.wsrd}:{self.wsrd+3}], s19 offen offset:{i*1024} lds", ("st", s))
        a(f"s_add_u32 s19, s19, {self.wstep}")
    def start(self, issue):
        issue(0); issue(1)
        stamp(self.a, 2)
    def step(self, s, total, issue):
        a = self.a
        a.wait(vm=[("st", s)])
        a("s_barrier")
        if s == 0:
            for t in range(2, DEP): issue(t)
        if s + DEP < total: issue(s + DEP)

def prefetch(a, srdn, base, nbytes, nw, widx, vdst, vtmp, st):
    per_wg = -(-nbytes // 32 // 128) * 128
    per_wave = -(-per_wg // (8192 * nw))
    a(f"s_lshr_b32 s{st}, s2, 3\ns_mul_i32 s{st}, s{st}, {per_wg}\ns_mul_i32 s{st+1}, s{widx}, {per_wave*8192}\ns_add_u32 s{st}, s{st}, s{st+1}\ns_add_u32 s{st}, s{st}, {base:#x}\nv_lshlrev_b32 v{vtmp}, 3, v1")
    for i in range(per_wave):
        a.vm(f"buffer_load_dword v{vdst}, v{vtmp}, s[{srdn}:{srdn+3}], s{st} offen")
        if i < per_wave - 1: a(f"s_add_u32 s{st}, s{st}, 8192")

def unit_off(a, d, per_nb, base):
    a(f"s_lshl_b32 s{d}, s16, 3\ns_add_u32 s{d}, s{d}, s13\ns_mul_i32 s{d}, s{d}, {per_nb}\ns_mul_i32 s6, s15, 3\ns_add_u32 s{d}, s{d}, s6\ns_lshl_b32 s{d}, s{d}, 10\ns_add_u32 s{d}, s{d}, {base:#x}")

def k1():
    a = K("k1")
    gemm_prologue(a)
    compute_addr(a, 0); param_base(a)
    RR, NM = 236, 237
    a(f"v_lshlrev_b32 v7, 3, v2\ns_lshl_b32 s6, s16, 8\ns_add_u32 s6, s6, {WS_ST0:#x}\ns_waitcnt lgkmcnt(0)")
    srd(a, 8, 4, WS_SIZE)
    stamp(a, 1)
    a(f"buffer_load_dwordx2 v[{RR}:{NM}], v7, s[8:11], s6 offen\ns_waitcnt vmcnt(0)")
    areg = lambda s: AF + 8*(s % 2)
    xf = (10, RR, NM)
    c_start(a, areg, xf)
    for s in range(10): c_iter(a, s, s == 0, 10, areg, xf)
    stamp(a, 4)
    T = WS0
    exchange(a, T)
    stamp(a, 5)
    R = ACC
    QS = LOG2E / math.sqrt(20.0)
    unit_off(a, 17, 5, WS_Q)
    a(f"s_mov_b32 s7, {f32(QS)}")
    def qunit(i):
        for j in range(8): a(f"v_mul_f32 v{T+j}, s7, v{R+8*i+j}")
        for d in range(4): a(f"v_cvt_pk_bf16_f32 v{T+8+4*i+d}, v{T+2*d}, v{T+2*d+1}")
        a(f"buffer_store_dwordx4 v[{T+8+4*i}:{T+11+4*i}], v1, s[8:11], s17 offen offset:{i*1024}")
    qunit(0); qunit(1)
    lsp = a.label("spare")
    a(f"s_cmp_eq_u32 s15, 1\ns_cbranch_scc1 {lsp}")
    qunit(2)
    a(f"s_branch L_k1_end\n{lsp}:")
    a("s_cmp_ge_u32 s13, 4\ns_cbranch_scc1 L_k1_end")
    S = R + 16
    a(f"s_lshr_b32 s6, s16, 3\ns_mul_i32 s17, s6, {KVCH}\ns_add_u32 s17, s17, {WS_KV:#x}\ns_and_b32 s18, s16, 7")
    l1, lv, l2 = a.label("k2"), a.label("v"), a.label("k2b")
    a(f"s_cmp_eq_u32 s13, 3\ns_cbranch_scc0 {l1}\nv_mov_b32 v{S+4}, 1.0\ns_mov_b32 exec_lo, 0\nv_mov_b32 v{S}, 1.0\ns_mov_b32 exec_lo, -1\n{l1}:")
    for d in range(4): a(f"v_cvt_pk_bf16_f32 v{T+d}, v{S+2*d}, v{S+2*d+1}")
    a(f"s_cmp_ge_u32 s13, 2\ns_cbranch_scc1 {lv}\ns_cmp_eq_u32 s13, 1\ns_cbranch_scc1 {l2}")
    a(f"s_lshl_b32 s18, s18, 10\ns_add_u32 s17, s17, s18\nbuffer_store_dwordx4 v[{T}:{T+3}], v1, s[8:11], s17 offen\ns_branch L_k1_end")
    a(f"{l2}:\ns_lshl_b32 s18, s18, 8\ns_add_u32 s17, s17, s18\ns_add_u32 s17, s17, 24576\nv_lshrrev_b32 v4, 2, v1\nbuffer_store_dword v{T}, v4, s[8:11], s17 offen\ns_branch L_k1_end")
    a(f"{lv}:")
    a(f"s_lshl_b32 s3, s14, 11\nv_lshlrev_b32 v4, 5, v2\nv_lshl_add_u32 v4, v3, 3, v4\nv_add_u32 v4, s3, v4")
    a(f"ds_write_b64 v4, v[{T}:{T+1}]\nds_write_b64 v4, v[{T+2}:{T+3}] offset:16")
    a("v_lshrrev_b32 v4, 4, v1\nv_and_b32 v5, 15, v4\nv_lshrrev_b32 v4, 4, v4")
    a("v_and_b32 v6, 1, v4\nv_lshlrev_b32 v6, 4, v6\nv_lshl_add_u32 v6, v3, 2, v6\nv_lshrrev_b32 v7, 2, v5\nv_add_u32 v6, v6, v7\nv_lshlrev_b32 v6, 5, v6\nv_and_b32 v7, 3, v5\nv_lshl_add_u32 v6, v7, 3, v6\nv_add_u32 v6, s3, v6")
    a("s_waitcnt lgkmcnt(0)")
    a(f"ds_read_b64_tr_b16 v[{T+4}:{T+5}], v6\nds_read_b64_tr_b16 v[{T+6}:{T+7}], v6 offset:256")
    a("v_and_b32 v6, 1, v4\nv_lshlrev_b32 v6, 10, v6\nv_lshl_add_u32 v6, v3, 9, v6\nv_lshl_add_u32 v6, v5, 4, v6")
    a(f"s_lshl_b32 s18, s18, 11\ns_add_u32 s17, s17, s18\ns_add_u32 s17, s17, 8192\ns_cmp_eq_u32 s13, 2\ns_cselect_b32 s6, 256, 0\ns_add_u32 s17, s17, s6")
    a(f"s_waitcnt lgkmcnt(0)\nbuffer_store_dwordx4 v[{T+4}:{T+7}], v6, s[8:11], s17 offen")
    a("s_branch L_k1_end")
    L = Loader(a, WS_XH, 40, 0, wbase=WS_WQKV)
    L.params(0)
    L.start(L.issue)
    for s in range(10): L.step(s, 10, L.issue)
    end(a)
    finish(a, 256, 512, LDS_G, 248)

def k2():
    K2T = os.environ.get("X_K2T"); SYNC = os.environ.get("X_SYNC", "bar")
    a = K("k2")
    common_prologue(a, f"s_load_dwordx4 s[32:35], s[0:1], {KA['w_in']}\ns_load_dwordx2 s[36:37], s[0:1], {KA['wo']}\ns_load_dwordx2 s[38:39], s[0:1], {KA['w_out']}")
    SA = [(8, 24), (40, 56)]; OO = [72, 88]; PP = [104, 112]; QQ1 = [120, 128]; QQ2 = [124, 132]
    KA_, KB_, V1, V2 = 136, 140, 144, 148
    VA, VB, VN, VNB, DUM, OA, CA = 4, 5, 6, 152, 153, 154, 160
    NB = 6
    FLAG = NB * KVCH
    a("s_mov_b32 s27, 0")
    a("s_cmp_ge_u32 s14, 4\ns_cbranch_scc1 L_k2_helper")
    a("v_lshrrev_b32 v7, 2, v1")
    a("s_lshr_b32 s15, s14, 1\ns_and_b32 s16, s14, 1\ns_lshl_b32 s16, s16, 1\ns_lshl_b32 s17, s12, 1\ns_add_u32 s17, s17, s15")
    a(f"s_lshl_b32 s18, s17, 3\ns_add_u32 s18, s18, s13\ns_mul_i32 s18, s18, 5120\ns_add_u32 s18, s18, {WS_Q:#x}\ns_lshl_b32 s6, s16, 10\ns_add_u32 s19, s18, s6\ns_lshl_b32 s6, s16, 2\ns_add_u32 s18, s18, s6\ns_add_u32 s18, s18, 4096")
    a("s_waitcnt lgkmcnt(0)")
    srd(a, 8, 4, WS_SIZE)
    stamp(a, 1)
    for X in range(2):
        a(f"buffer_load_dwordx4 v[{QQ1[X]}:{QQ1[X]+3}], v1, s[8:11], s19 offen offset:{1024*X}\nbuffer_load_dword v{QQ2[X]}, v1, s[8:11], s18 offen offset:{4*X}")
    def qk1(X, S): return f"v_mfma_f32_32x32x16_bf16 v[{S}:{S+15}], v[{KB_}:{KB_+3}], v[{QQ2[X]}:{QQ2[X]+3}], 0"
    def qk2(X, S): return f"v_mfma_f32_32x32x16_bf16 v[{S}:{S+15}], v[{KA_}:{KA_+3}], v[{QQ1[X]}:{QQ1[X]+3}], v[{S}:{S+15}]"
    def pv(X, V, P): return f"v_mfma_f32_32x32x16_bf16 v[{OO[X]}:{OO[X]+15}], v[{V}:{V+3}], v[{P}:{P+3}], v[{OO[X]}:{OO[X]+15}]"
    def rKA(t, va): return f"ds_read_b128 v[{KA_}:{KA_+3}], v{va} offset:{t*1024}"
    def rKB(t, vb): return f"ds_read_b32 v{KB_}, v{vb} offset:{24576+t*256}"
    def rV(t, p, va): return f"ds_read_b128 v[{(V1, V2)[p]}:{(V1, V2)[p]+3}], v{va} offset:{8192+t*2048+p*1024}"
    def scores():
        for X in range(2): a(qk1(X, SA[X][0]))
        for X in range(2): a(qk2(X, SA[X][0]))
    def max_reduce():
        for X in range(2):
            for i in range(0, 16, 2): a(f"v_max3_f32 v{PP[X]}, v{SA[X][0]+i}, v{SA[X][0]+i+1}, v{PP[X]}")
    def finish_max():
        a("v_cmp_eq_u32 vcc, 0, v3")
        for X in range(2):
            M = PP[X]
            a(f"v_mov_b32 v{M+1}, v{M}\ns_nop 1\nv_permlane32_swap_b32 v{M}, v{M+1}\ns_nop 1\nv_max_f32 v{M}, v{M}, v{M+1}")
            a(f"v_and_b32 v{M+1}, 0xffff0000, v{M}\nv_sub_f32 v{M+2}, v{M}, v{M+1}\nv_and_b32 v{M+3}, 0xffff0000, v{M+2}\nv_sub_f32 v{M+2}, v{M+2}, v{M+3}")
            a(f"v_lshrrev_b32 v{M+1}, 16, v{M+1}\nv_or_b32 v{M+1}, v{M+1}, v{M+3}\nv_lshrrev_b32 v{M+2}, 16, v{M+2}")
            a(f"v_cndmask_b32 v{QQ2[X]+1}, 0, v{M+1}, vcc\nv_cndmask_b32 v{QQ2[X]+2}, 0, v{M+2}, vcc")
    def reset_max():
        for X in range(2): a(f"v_mov_b32 v{QQ2[X]+1}, 0\nv_mov_b32 v{QQ2[X]+2}, 0\nv_mov_b32 v{PP[X]}, 0xff800000")
    reset_max()
    for r in (QQ2[0]+3, QQ2[1]+3, KB_+3): a(f"v_mov_b32 v{r}, 0")
    for r in (KB_+1, KB_+2): a(f"v_mov_b32 v{r}, 0xbf80bf80")
    def main_init():
        a(f"s_mov_b32 s24, 0\ns_mov_b32 s25, {KVCH}\nv_mov_b32 v{VNB}, {FLAG+68}\nv_mov_b32 v{VA}, v1\nv_mov_b32 v{VN}, v1\nv_mov_b32 v{VB}, v7")
        for X in range(2):
            for i in range(16): a(f"v_mov_b32 v{OO[X]+i}, 0")
            for i in range(4): a(f"v_mov_b32 v{SA[X][1]+12+i}, 0")
        for i in range(4): a(f"v_mov_b32 v{V2+i}, 0")
    main_init()
    a(f"s_mul_i32 s6, s13, 20\ns_mul_i32 s7, s16, 5\ns_add_u32 s6, s6, s7\ns_mul_i32 s22, s17, {40*1024}\ns_add_u32 s22, s22, {WS_O:#x}")
    for X in range(2):
        for i, g in enumerate((0, 2, 4)):
            a(f"v_add_u32 v8, s6, v3\nv_add_u32 v8, {5*X+g}, v8" if g < 4 else f"v_mov_b32 v8, s6\nv_add_u32 v8, {5*X+4}, v8")
            a(f"v_lshrrev_b32 v9, 2, v8\nv_lshlrev_b32 v9, 10, v9\nv_and_b32 v10, 1, v8\nv_lshl_add_u32 v9, v10, 9, v9\nv_bfe_u32 v10, v8, 1, 1\nv_lshl_add_u32 v9, v10, 3, v9\nv_lshl_add_u32 v{OA+3*X+i}, v2, 4, v9")
    a(f"v_mov_b32 v{CA}, {FLAG+32}\nv_mov_b32 v{CA+2}, 0\nv_add_u32 v{CA+3}, {FLAG+32}, v7\nds_write_b32 v{CA+3}, v{CA+2}\nv_mov_b32 v{CA+1}, 1")
    a("s_waitcnt vmcnt(0) lgkmcnt(0)\ns_barrier")
    stamp(a, 2)
    a(rKA(0, 1)); a(rKB(0, 7)); a("s_waitcnt lgkmcnt(0)")
    scores()
    a("s_nop 10")
    max_reduce()
    finish_max()
    a("L_k2_main:")
    for X in range(2):
        for i in range(2): a(f"v_mov_b32 v{PP[X]+4+i}, 0")
    scores()
    a(rKB(1, VB)); a(f"ds_read_b32 v{DUM}, v{VB}"); a(rKA(1, VA)); a(rV(0, 0, VA))
    a("s_nop 5")
    stamp(a, 3)
    slow = []
    a("L_k2_loop:")
    for t in range(8):
        kt, vt = (t + 2) % 8, (t + 1) % 8
        if PROF and os.environ.get("X_GT"):
            if t == 0: a("s_memtime s[80:81]")
            if t == 3: a("s_lshl_b32 m0, s24, 1\ns_nop 0\ns_movreld_b32 s56, s80")
        for gi in range(4):
            for X in range(2):
                S, Sp = (SA[X][0], SA[X][1]) if t % 2 == 0 else (SA[X][1], SA[X][0])
                P = PP[X]
                cv, mf, rd = [([(6, Sp+12), (7, Sp+14)], qk1(X, Sp), rKB(kt, VB)),
                              ([(0, S), (1, S+2)], pv(X, V2, P+4), rV(t, 1, VN)),
                              ([(2, S+4), (3, S+6)], qk2(X, Sp), rKA(kt, VA)),
                              ([(4, S+8), (5, S+10)], pv(X, V1, P), rV(vt, 0, VN))][gi]
                for d, r in cv: a(f"v_cvt_pk_bf16_f32 v{P+d}, v{r}, v{r+1}")
                if gi % 2 == 0 and X == 0: a("s_waitcnt lgkmcnt(2)")
                a(mf)
                if X == 1: a(rd)
                if X == 0 and (t, gi) == (5, 0):
                    ls, l2, l5 = a.label("bs"), a.label("g2"), a.label("g5")
                    a(f"s_cmp_eq_u32 s24, 5\ns_cselect_b32 s26, {-5*KVCH}, s25\ns_bitcmp1_b32 39, s24\ns_cbranch_scc0 {ls}\ns_cmp_eq_u32 s24, 2\ns_cbranch_scc1 {l2}\ns_cmp_eq_u32 s24, 5\ns_cbranch_scc1 {l5}\ns_barrier\ns_branch {ls}")
                    a(f"{l2}:\ns_mov_b64 exec, 1\nds_add_u32 v{CA}, v{CA+1}\ns_mov_b64 exec, -1\ns_branch {ls}")
                    a(f"{l5}:\nds_read_b32 v{DUM}, v{CA} offset:4\ns_waitcnt lgkmcnt(0)\nv_readfirstlane_b32 s3, v{DUM}\ns_cmp_lt_u32 s3, 4\ns_cbranch_scc1 {l5}\n{ls}:")
                if X == 0 and (t, gi) == (6, 0): a(f"v_add_u32 v{VB}, s26, v{VB}\nv_add_u32 v{VA}, s26, v{VA}")
                if X == 0 and (t, gi) == (7, 2): a(f"v_add_u32 v{VN}, s26, v{VN}")
                for i in range(4): a(f"v_exp_f32 v{S+4*gi+i}, v{S+4*gi+i}")
    a("s_add_u32 s24, s24, 1\ns_cmp_lt_u32 s24, 8\ns_cbranch_scc1 L_k2_loop")
    for X in range(2):
        a(f"v_cvt_pk_bf16_f32 v{PP[X]+6}, v{SA[X][1]+12}, v{SA[X][1]+13}\nv_cvt_pk_bf16_f32 v{PP[X]+7}, v{SA[X][1]+14}, v{SA[X][1]+15}")
    a("s_waitcnt lgkmcnt(0)\nv_cmp_eq_u32 vcc, 0, v3")
    for X in range(2): a(pv(X, V2, PP[X]+4))
    a(f"v_mov_b32 v{KA_}, {f32(2.0**30)}\nv_mov_b32 v{KA_+1}, {f32(2.0**-30)}\ns_mov_b64 s[28:29], 0\ns_nop 8")
    if not os.environ.get("X_GT"): stamp(a, 4)
    for X in range(2):
        O, T, L = OO[X], SA[X][0], PP[X]
        a(f"v_cndmask_b32 v{L}, v{O}, v{O+4}, vcc\nv_rcp_f32 v{L+1}, v{L}")
        a(f"v_cmp_nle_f32 s[30:31], v{L}, v{KA_}\ns_or_b64 s[28:29], s[28:29], s[30:31]\nv_cmp_nge_f32 s[30:31], v{L}, v{KA_+1}\ns_or_b64 s[28:29], s[28:29], s[30:31]")
        for i, r in enumerate((8, 9, 10, 11, 12, 13, 14, 15, 0, 1, 2, 3)): a(f"v_mul_f32 v{T+6+i}, v{O+r}, v{L+1}")
        for d in range(6): a(f"v_cvt_pk_bf16_f32 v{T+d}, v{T+6+2*d}, v{T+7+2*d}")
        a(f"buffer_store_dwordx2 v[{T}:{T+1}], v{OA+3*X}, s[8:11], s22 offen\nbuffer_store_dwordx2 v[{T+2}:{T+3}], v{OA+3*X+1}, s[8:11], s22 offen")
        a(f"s_mov_b32 exec_hi, 0\nbuffer_store_dwordx2 v[{T+4}:{T+5}], v{OA+3*X+2}, s[8:11], s22 offen\ns_mov_b32 exec_hi, -1")
    a(f"s_cmp_eq_u32 s27, 1\ns_cbranch_scc1 L_k2_end")
    a(f"s_cmp_lg_u64 s[28:29], 0\ns_cselect_b32 s3, 1, 0\nv_mov_b32 v{V1}, s3\ns_lshl_b32 s6, s14, 2\ns_add_u32 s6, s6, {FLAG}\nv_mov_b32 v{V1+1}, s6\nds_write_b32 v{V1+1}, v{V1}\ns_waitcnt lgkmcnt(0)")
    def vote(lend):
        a(f"s_barrier\nv_mov_b32 v44, {FLAG}\nds_read_b128 v[40:43], v44\ns_waitcnt lgkmcnt(0)")
        for i in range(1, 4): a(f"v_or_b32 v40, v40, v{40+i}")
        a(f"s_nop 0\nv_readfirstlane_b32 s3, v40\ns_cmp_eq_u32 s3, {XCMP}\ns_cbranch_scc1 {lend}\ns_mov_b32 s27, 1")
    vote("L_k2_end")
    reset_max()
    a("s_mov_b32 s24, 0")
    a("L_k2_maxloop:")
    a("s_barrier\ns_barrier")
    for t in range(8):
        a(rKA(t, 1)); a(rKB(t, 7)); a("s_waitcnt lgkmcnt(0)")
        scores()
        a("s_nop 10")
        max_reduce()
    a("s_add_u32 s24, s24, 1\ns_cmp_lt_u32 s24, 8\ns_cbranch_scc1 L_k2_maxloop")
    finish_max()
    main_init()
    a(f"s_barrier\nds_write_b32 v{CA+3}, v{CA+2}\ns_waitcnt lgkmcnt(0)\ns_barrier")
    a(rKA(0, 1)); a(rKB(0, 7)); a("s_waitcnt lgkmcnt(0)")
    a("s_branch L_k2_main")
    for x in slow: a(x)
    a("L_k2_helper:")
    a(f"s_setprio {os.environ.get('X_HPRIO', '2')}")
    a(f"s_sub_u32 s15, s14, 4\ns_lshl_b32 s21, s15, 10\ns_add_u32 s20, s21, {WS_KV:#x}\ns_waitcnt lgkmcnt(0)")
    srd(a, 8, 4, WS_SIZE)
    stamp(a, 1)
    THR = int(os.environ.get("X_THR", "9"))
    def dma(goff, loff):
        ld = a.label("d")
        for i in range(7):
            if i == 6: a(f"s_cmp_ge_u32 s15, 2\ns_cbranch_scc1 {ld}")
            if goff and i > THR: a(f"s_waitcnt vmcnt({THR})")
            a(f"s_add_u32 m0, s21, {loff + i*4096}\ns_add_u32 s23, s20, {goff + i*4096}\nbuffer_load_dwordx4 v1, s[8:11], s23 offen lds")
        a(f"{ld}:")
    a("L_k2_hmain:")
    dma(0, 0)
    a("s_waitcnt vmcnt(0)\ns_barrier")
    if os.environ.get("X_K2T") == "1": a("s_branch L_k2_end")
    a(f"v_mov_b32 v6, {FLAG+32}\nv_mov_b32 v7, 1")
    def dma_loop(g0, n, lds0):
        lg, lp = a.label("dg"), a.label("dp")
        a(f"s_add_u32 s28, s20, {g0*KVCH}\ns_add_u32 s29, s21, {lds0}\ns_mov_b32 s31, {n}\nv_mov_b32 v5, {FLAG+64+4*g0}")
        a(f"{lg}:\ns_cmp_lt_u32 s15, 2\ns_cselect_b32 s30, 7, 6\ns_mov_b32 s22, s28\ns_mov_b32 m0, s29")
        a(f"{lp}:\ns_waitcnt vmcnt({THR})\nbuffer_load_dwordx4 v1, s[8:11], s22 offen lds\ns_add_u32 m0, m0, 4096\ns_add_u32 s22, s22, 4096\ns_sub_u32 s30, s30, 1\ns_cmp_lg_u32 s30, 0\ns_cbranch_scc1 {lp}")
        a(f"s_waitcnt vmcnt(0)\nds_add_u32 v5, v7\nv_add_u32 v5, 4, v5\ns_add_u32 s28, s28, {KVCH}\ns_add_u32 s29, s29, {KVCH}\ns_sub_u32 s31, s31, 1\ns_cmp_lg_u32 s31, 0\ns_cbranch_scc1 {lg}")
    dma(KVCH, KVCH); dma(2*KVCH, 2*KVCH)
    a("s_waitcnt vmcnt(0)\ns_barrier")
    for g in (3, 4, 5): dma(g*KVCH, g*KVCH)
    a("s_waitcnt vmcnt(0)\ns_barrier")
    stamp(a, 2)
    lns = a.label("noside")
    if os.environ.get("X_K2T") == "2": a("s_branch L_k2_end")
    a(f"s_cmp_lg_u32 s27, 0\ns_cbranch_scc1 {lns}")
    pack_weights(a)
    a(f"s_lshr_b32 s3, s2, 3\ns_lshl_b32 s3, s3, 7\ns_add_u32 s3, s3, {WS_CNT:#x}\nv_mov_b32 v4, 0\nv_mov_b32 v5, 1\ns_waitcnt vmcnt(0)\ns_mov_b64 exec, 1")
    a("buffer_atomic_add v5, v4, s[8:11], s3 offen\ns_mov_b64 exec, -1")
    stamp(a, 3)
    a(f"{lns}:")
    lw = a.label("wdone")
    a(f"v_mov_b32 v6, {FLAG+32}\nv_mov_b32 v7, 1\n{lw}:\nds_read_b32 v8, v6\ns_waitcnt lgkmcnt(0)\nv_readfirstlane_b32 s3, v8\ns_cmp_ge_u32 s3, 4\ns_cbranch_scc1 {lw}x\ns_sleep 8\ns_branch {lw}\n{lw}x:")
    dma(6*KVCH, 0); dma(7*KVCH, KVCH)
    a("s_waitcnt vmcnt(0)\ns_mov_b64 exec, 1\nds_add_u32 v6, v7 offset:4\ns_mov_b64 exec, -1\ns_waitcnt lgkmcnt(0)")
    stamp(a, 4)
    a(f"s_cmp_eq_u32 s27, 1\ns_cbranch_scc1 L_k2_end")
    srd(a, 40, 34, 2048 * 4096)
    a("s_lshl_b32 s17, s12, 1\ns_lshr_b32 s3, s15, 1\ns_add_u32 s17, s17, s3\ns_lshl_b32 s16, s13, 4\ns_and_b32 s3, s15, 1\ns_lshl_b32 s3, s3, 3\ns_add_u32 s16, s16, s3")
    a("s_lshl_b32 s6, s17, 17\ns_lshl_b32 s7, s16, 5\ns_add_u32 s6, s6, s7\nv_lshlrev_b32 v4, 12, v2\nv_lshl_add_u32 v4, v3, 4, v4")
    for i in range(8): a(f"buffer_load_dwordx4 v[{8+4*i}:{11+4*i}], v4, s[40:43], s6 offen offset:{32*i} nt")
    a(f"s_lshl_b32 s6, s17, 7\ns_add_u32 s6, s6, s16\ns_lshl_b32 s6, s6, 10\ns_add_u32 s6, s6, {WS_WSP:#x}")
    for i in range(8):
        a(f"s_waitcnt vmcnt(7)\nbuffer_store_dwordx4 v[{8+4*i}:{11+4*i}], v1, s[8:11], s6 offen offset:{(i%4)*1024}")
        if i == 3: a("s_add_u32 s6, s6, 4096")
    stamp(a, 5)
    def pf(which):
        lp, lgo, lskip = a.label("ppoll"), a.label("pgo"), a.label("pskip")
        a(f"v_lshlrev_b32 v4, 7, v2\ns_mov_b32 s3, {WS_CNT:#x}\ns_mov_b32 s29, 8\n{lp}:")
        a(f"buffer_load_dword v5, v4, s[8:11], s3 offen sc1\ns_waitcnt vmcnt(0)\nv_cmp_gt_u32 vcc, 32, v5\ns_cbranch_vccz {lgo}\ns_sub_u32 s29, s29, 1\ns_cbranch_scc1 {lskip}\ns_sleep 4\ns_branch {lp}\n{lgo}:")
        for b, n in which: prefetch(a, 8, b, n, 4, 15, 8, 4, 28)
        a(f"{lskip}:")
    PFA = os.environ.get("X_PFA", "2")
    if PFA == "1": pf([(WS_WO, 960 * 1024)])
    if PFA == "2": pf([(WS_WIN, 1920 * 1024)])
    if PFA == "3": pf([(WS_WO, 960 * 1024), (WS_WIN, 1920 * 1024)])
    if PROF: a("s_waitcnt vmcnt(0)")
    stamp(a, 7)
    vote("L_k2_end")
    a("s_mov_b32 s24, 0")
    a("L_k2_hmax:")
    a("s_barrier")
    dma(0, 0)
    a(f"s_add_u32 s20, s20, {KVCH}\ns_waitcnt vmcnt(0)\ns_barrier\ns_add_u32 s24, s24, 1\ns_cmp_lt_u32 s24, 8\ns_cbranch_scc1 L_k2_hmax")
    a(f"s_add_u32 s20, s21, {WS_KV:#x}\ns_barrier\ns_branch L_k2_hmain")
    end(a)
    finish(a, 256, 512, FLAG + 320, 164)


def pack_weights(a):
    LO, HI, PC = 8, 24, 40
    lo_, ld = a.label("pko"), a.label("pkd")
    a(f"s_lshl_b32 s28, s2, 2\ns_add_u32 s28, s28, s15\nv_mul_u32_u24 v5, {4*3072}, v3\ns_cmp_ge_u32 s28, 480\ns_cbranch_scc1 {lo_}")
    srd(a, 40, 32, 640 * 3072)
    divmod_s(a, 16, 17, 28, 10, 3)
    divmod_s(a, 18, 19, 16, 6, 3)
    a("s_mul_i32 s6, s18, 96\ns_lshl_b32 s7, s19, 5\ns_add_u32 s6, s6, s7\ns_cmp_lt_u32 s19, 3\ns_cselect_b32 s7, 864, 0\ns_add_u32 s6, s6, s7\ns_sub_u32 s6, s6, 96")
    a(f"v_add_lshl_u32 v4, v2, s6, 1\nv_add_u32 v4, v4, v5\ns_mul_i32 s22, s17, {64*3072}")
    for q in range(4):
        loads8(a, 40, 4, LO + 4*q, HI + 4*q, 22, [16*q + e for e in E_PERM], 3072, 7)
    a(f"v_lshlrev_b32 v6, 4, v3\ns_lshl_b32 s7, s17, 8\ns_add_u32 s7, s7, {WS_MOD + 7680}")
    for q in range(4):
        for arr in range(2):
            for hf in range(2):
                P = PC + 16*q + 8*arr + 4*hf
                a(f"buffer_load_dwordx4 v[{P}:{P+3}], v6, s[8:11], s7 offen offset:{arr*2560 + 64*q + 32*hf}")
    a("v_mov_b32 v6, 0\nv_mov_b32 v7, 0")
    a(f"s_mul_i32 s22, s18, 40\ns_lshl_b32 s7, s17, 2\ns_add_u32 s22, s22, s7\ns_mul_i32 s22, s22, 6\ns_add_u32 s22, s22, s19\ns_lshl_b32 s22, s22, 10\ns_add_u32 s22, s22, {WS_WIN:#x}\ns_waitcnt vmcnt(0)")
    for q in range(4):
        for d in range(4):
            l, h, P = LO + 4*q + d, HI + 4*q + d, PC + 16*q
            a(f"v_lshlrev_b32 v{l}, 16, v{l}\nv_lshlrev_b32 v{h}, 16, v{h}\nv_fmac_f32 v7, v{l}, v{P+2*d}\nv_fmac_f32 v7, v{h}, v{P+2*d+1}\nv_mul_f32 v{l}, v{l}, v{P+8+2*d}\nv_mul_f32 v{h}, v{h}, v{P+9+2*d}")
            a(f"v_cvt_pk_bf16_f32 v{l}, v{l}, v{h}\nv_lshlrev_b32 v{h}, 16, v{l}\nv_and_b32 v5, 0xffff0000, v{l}\nv_add_f32 v6, v6, v{h}\nv_add_f32 v6, v6, v5")
        a(f"buffer_store_dwordx4 v[{LO+4*q}:{LO+4*q+3}], v1, s[8:11], s22 offen sc1\ns_add_u32 s22, s22, 6144")
    a("v_mov_b32 v40, v6\nv_mov_b32 v41, v7\ns_nop 1\nv_permlane32_swap_b32 v6, v40\nv_permlane32_swap_b32 v7, v41\ns_nop 1\nv_add_f32 v6, v6, v40\nv_add_f32 v7, v7, v41")
    a(f"s_mul_i32 s22, s17, {1536*8}\ns_lshl_b32 s7, s16, 8\ns_add_u32 s22, s22, s7\ns_add_u32 s22, s22, {WS_UTP:#x}\nv_lshlrev_b32 v4, 3, v2\ns_mov_b32 exec_hi, 0")
    a(f"buffer_store_dwordx2 v[6:7], v4, s[8:11], s22 offen\ns_mov_b32 exec_hi, -1\ns_branch {ld}")
    a(f"{lo_}:\ns_sub_u32 s28, s28, 480\ns_cmp_ge_u32 s28, 528\ns_cbranch_scc1 {ld}")
    a(f"s_mov_b32 s42, {768*1280}\ns_mov_b32 s31, {WS_WOUT:#x}\ns_mov_b32 s6, {(1<<20)//12+1}\ns_cmp_lt_u32 s28, 240\ns_cselect_b32 s40, s36, s38\ns_cselect_b32 s41, s37, s39\ns_mov_b32 s43, 0x20000\ns_cselect_b32 s30, 40, 48")
    a(f"s_cmov_b32 s42, {640*1280}\ns_cmov_b32 s31, {WS_WO:#x}\ns_cmov_b32 s6, {(1<<20)//10+1}\ns_cselect_b32 s7, 0, 240\ns_sub_u32 s28, s28, s7")
    a("s_mul_i32 s16, s28, s6\ns_lshr_b32 s16, s16, 20\ns_lshr_b32 s7, s30, 2\ns_mul_i32 s7, s7, s16\ns_sub_u32 s17, s28, s7")
    divmod_s(a, 18, 19, 16, 3, 3)
    a(f"s_mul_i32 s6, s18, 80\ns_lshl_b32 s7, s19, 5\ns_add_u32 s6, s6, s7\nv_add_lshl_u32 v4, v2, s6, 1\nv_mul_u32_u24 v5, {4*1280}, v3\nv_add_u32 v4, v4, v5\ns_mul_i32 s22, s17, {64*1280}")
    for q in range(4):
        loads8(a, 40, 4, LO + 4*q, HI + 4*q, 22, [16*q + e for e in E_PERM], 1280, 7)
    a("s_mul_i32 s22, s18, s30\ns_lshl_b32 s7, s17, 2\ns_add_u32 s22, s22, s7\ns_mul_i32 s22, s22, 3\ns_add_u32 s22, s22, s19\ns_lshl_b32 s22, s22, 10\ns_add_u32 s22, s22, s31\ns_waitcnt vmcnt(0)")
    for q in range(4):
        for d in range(4): a(f"v_lshl_or_b32 v{LO+4*q+d}, v{HI+4*q+d}, 16, v{LO+4*q+d}")
        a(f"buffer_store_dwordx4 v[{LO+4*q}:{LO+4*q+3}], v1, s[8:11], s22 offen sc1\ns_add_u32 s22, s22, 3072")
    a(f"{ld}:")

class G6:
    def __init__(self, kpst, nacc):
        self.kpst, self.nacc = kpst, nacc
        self.stg = 12288 + kpst * 2048
        self.ns = 6 if kpst == 4 else 8
        self.dep = self.ns - 2
        self.par = self.ns * self.stg
        self.fs = kpst * (1 + nacc) * 4
        self.ACC, self.FR = 8, 8 + 16 * nacc
        self.VA, self.VWr = 4, 6
        self.half = self.ns // 2
    def prologue(self, a, extra=""):
        common_prologue(a, extra)
        a(f"s_cmp_ge_u32 s14, 6\ns_cbranch_scc1 L_{a.name}_loader")
        a("s_cmp_ge_u32 s14, 3\ns_cselect_b32 s17, 1, 0\ns_mul_i32 s3, s17, 3\ns_sub_u32 s15, s14, s3\ns_lshl_b32 s16, s12, 1\ns_add_u32 s16, s16, s17")
        a(f"s_mul_i32 s3, s17, {self.kpst*1024}\ns_add_u32 s3, s3, 12288\nv_add_u32 v4, s3, v1\nv_add_u32 v5, {self.half*self.stg}, v4")
        a(f"s_lshl_b32 s3, s15, 10\nv_add_u32 v6, s3, v1\nv_add_u32 v7, {self.half*self.stg}, v6")
    def reads(self, a, s):
        slot = s % self.ns; hi, sl = (1, slot - self.half) if slot >= self.half else (0, slot)
        F = self.FR + (s % 2) * self.fs
        ops = []
        for q in range(self.kpst):
            r = F + q * (1 + self.nacc) * 4
            ops.append(lambda r=r, q=q: a.lg(f"ds_read_b128 v[{r}:{r+3}], v{4+hi} offset:{sl*self.stg + q*1024}", ("f", s, q)))
            for n in range(self.nacc):
                rw = r + 4 + 4*n
                ops.append(lambda rw=rw, q=q, n=n: a.lg(f"ds_read_b128 v[{rw}:{rw+3}], v{6+hi} offset:{sl*self.stg + (q*self.nacc + n)*3072}", ("f", s, q)))
        return ops
    def start(self, a):
        a("s_barrier")
        stamp(a, 3)
        run(self.reads(a, 0))
    def iter(self, a, s, first, total):
        rd = []
        if s + 1 < total:
            a("s_barrier")
            rd = self.reads(a, s + 1)
        F = self.FR + (s % 2) * self.fs
        per = len(rd) // self.kpst if rd else 0
        for q in range(self.kpst):
            a.wait(lg=[("f", s, q)])
            r = F + q * (1 + self.nacc) * 4
            for n in range(self.nacc):
                d = self.ACC + 16*n
                c = "0" if (first and q == 0) else f"v[{d}:{d+15}]"
                a(f"v_mfma_f32_32x32x16_bf16 v[{d}:{d+15}], v[{r+4+4*n}:{r+7+4*n}], v[{r}:{r+3}], {c}")
            run(rd[q*per:(q+1)*per])
    def loader(self, a, act_base, nks, w_base, mask_half):
        self.mask = mask_half
        a(f"L_{a.name}_loader:")
        a.vmq = []; a.lgq = []
        k = self.kpst
        a(f"s_sub_u32 s15, s14, 6\ns_mul_i32 s20, s15, 3072\ns_mul_i32 s21, s15, {k*512}\ns_add_u32 s21, s21, 12288")
        a(f"s_lshl_b32 s16, s12, 1\ns_lshr_b32 s3, s15, 1\ns_add_u32 s16, s16, s3\ns_mul_i32 s18, s16, {nks*1024}\ns_and_b32 s3, s15, 1\ns_mul_i32 s3, s3, {k*512}\ns_add_u32 s18, s18, s3\ns_add_u32 s18, s18, {act_base:#x}")
        a(f"s_mul_i32 s19, s13, {nks*3072*self.nacc}\ns_add_u32 s19, s19, s20\ns_add_u32 s19, s19, {w_base:#x}")
        a("s_waitcnt lgkmcnt(0)")
        srd(a, 8, 4, WS_SIZE)
        stamp(a, 1)
        self.a = a
    def dma1(self, lds_off, sreg, tag, imm=0):
        a = self.a
        a(f"s_mov_b32 m0, {lds_off}\ns_nop 0")
        a.vm(f"buffer_load_dwordx4 v1, s[8:11], s{sreg} offen offset:{imm} lds", tag)
    def issue(self, s):
        a = self.a; slot = s % self.ns
        a(f"s_add_u32 m0, s21, {slot*self.stg}\ns_nop 0")
        for q in range(self.kpst // 2): a.vm(f"buffer_load_dwordx4 v1, s[8:11], s18 offen offset:{q*1024} lds", ("st", s))
        a(f"s_add_u32 m0, s20, {slot*self.stg}\ns_add_u32 s18, s18, {self.kpst*1024}")
        for i in range(3):
            if i == 2 and self.mask: a("s_mov_b32 exec_lo, 0xffff\ns_mov_b32 exec_hi, 0xffff")
            a.vm(f"buffer_load_dwordx4 v1, s[8:11], s19 offen offset:{i*1024} lds", ("st", s))
        if self.mask: a("s_mov_b64 exec, -1")
        a("s_add_u32 s19, s19, 12288")
    def lstart(self):
        self.issue(0); self.issue(1)
        stamp(self.a, 2)
    def lstep(self, s, total):
        a = self.a
        a.wait(vm=[("st", s)])
        a("s_barrier")
        if s == 0:
            for t in range(2, self.dep): self.issue(t)
        if s + self.dep < total: self.issue(s + self.dep)

def unit_off6(a, d, per_nb, base):
    a(f"s_lshl_b32 s{d}, s16, 3\ns_add_u32 s{d}, s{d}, s13\ns_mul_i32 s{d}, s{d}, {per_nb}\ns_lshl_b32 s6, s15, 1\ns_add_u32 s{d}, s{d}, s6\ns_lshl_b32 s{d}, s{d}, 10\ns_add_u32 s{d}, s{d}, {base:#x}")

def stats_addr(a, base, st):
    a(f"s_mul_i32 s7, s13, 3\ns_add_u32 s7, s7, s15\ns_mul_i32 s{st}, s16, 6144\ns_lshr_b32 s3, s7, 1\ns_lshl_b32 s3, s3, 9\ns_add_u32 s{st}, s{st}, s3\ns_and_b32 s3, s7, 1\ns_lshl_b32 s3, s3, 3\ns_add_u32 s{st}, s{st}, s3\ns_add_u32 s{st}, s{st}, {base:#x}")
def stats_store(a, V, st, flags=""):
    a(f"v_mov_b32 v{V+2}, v{V}\nv_mov_b32 v{V+3}, v{V+1}\ns_nop 1\nv_permlane32_swap_b32 v{V}, v{V+2}\nv_permlane32_swap_b32 v{V+1}, v{V+3}\ns_nop 1\nv_add_f32 v{V}, v{V}, v{V+2}\nv_add_f32 v{V+1}, v{V+1}, v{V+3}\nv_max_f32 v{V+1}, 0, v{V+1}")
    a("s_mov_b32 exec_hi, 0")
    a.vm(f"buffer_store_dwordx2 v[{V}:{V+1}], v1, s[8:11], s{st} offen {flags}")
    a("s_mov_b32 exec_hi, -1")
def stats_load(a, D, st, tag, flags=""):
    for i in range(6): a.vm(f"buffer_load_dwordx4 v[{D+4*i}:{D+4*i+3}], v1, s[8:11], s{st + i//4} offen offset:{1024*(i%4)} {flags}", tag)
def stats_base(a, st, base):
    a(f"s_mul_i32 s{st}, s16, 6144\ns_add_u32 s{st}, s{st}, {base:#x}\ns_add_u32 s{st+1}, s{st}, 4096")
def stats_finish(a, D, n, rr, nm):
    for i in range(1, 12): a(f"v_add_f32 v{D}, v{D}, v{D+2*i}\nv_add_f32 v{D+1}, v{D+1}, v{D+2*i+1}")
    a(f"v_mov_b32 v{D+2}, v{D}\nv_mov_b32 v{D+3}, v{D+1}\ns_nop 1\nv_permlane32_swap_b32 v{D}, v{D+2}\nv_permlane32_swap_b32 v{D+1}, v{D+3}\ns_nop 1\nv_add_f32 v{D}, v{D}, v{D+2}\nv_add_f32 v{D+1}, v{D+1}, v{D+3}")
    a(f"v_mul_f32 v{D}, {f32(1/n)}, v{D}\nv_mul_f32 v{D+1}, {f32(1/n)}, v{D+1}\nv_fma_f32 v{D+1}, -v{D}, v{D}, v{D+1}\nv_max_f32 v{D+1}, 0, v{D+1}\nv_add_f32 v{D+1}, {f32(1e-5)}, v{D+1}\nv_rsq_f32 v{rr}, v{D+1}\ns_nop 0\nv_mul_f32 v{nm}, v{D}, v{rr}\nv_sub_f32 v{nm}, 0, v{nm}")

def kproj(name, act_base, w_base, nks, gate_off, final):
    a = K(name); g = G6(4, 1)
    nst = nks // 4
    g.prologue(a, f"s_load_dwordx2 s[34:35], s[0:1], {KA['out']}" if final else "")
    G, XR, T, ST = 88, 104, 112, 124
    unit_off6(a, 22, 5, 0)
    a(f"s_add_u32 s23, s22, {(WS_X1 if final else WS_XH):#x}\ns_add_u32 s22, s22, {WS_X1:#x}")
    a(f"s_lshl_b32 s3, s15, 7\ns_add_u32 s3, s3, {g.par}\nv_lshlrev_b32 v128, 4, v3\nv_add_u32 v128, s3, v128")
    if final:
        a(f"v_mul_u32_u24 v129, 1280, v2\nv_lshl_add_u32 v129, v3, 4, v129\ns_mul_i32 s28, s16, {32*1280}\ns_mul_i32 s6, s13, 160\ns_add_u32 s28, s28, s6\ns_lshl_b32 s6, s15, 6\ns_add_u32 s28, s28, s6")
    else:
        stats_addr(a, WS_ST2, 28)
        a(f"s_sub_u32 s29, s28, {WS_ST2 - WS_ST1}")
    a("s_waitcnt lgkmcnt(0)")
    srd(a, 8, 4, WS_SIZE)
    if final: srd(a, 24, 34, 2048 * 1280)
    stamp(a, 1)
    g.start(a)
    for i in range(2): a.vm(f"buffer_load_dwordx4 v[{XR+4*i}:{XR+4*i+3}], v1, s[8:11], s23 offen offset:{1024*i}", "epi")
    if not final:
        a("v_mov_b32 v130, -1\nv_mov_b32 v131, -1\ns_mov_b32 exec_hi, 0")
        a.vm("buffer_store_dwordx2 v[130:131], v1, s[8:11], s28 offen")
        a("s_mov_b32 exec_hi, -1")
        a(f"s_lshl_b32 s30, s2, 8\ns_add_u32 s31, s30, {WS_UTP:#x}\nv_lshlrev_b32 v129, 3, v2\ns_cmp_ge_u32 s2, 48\ns_cselect_b32 s31, {OOB:#x}, s31\ns_cmp_lg_u32 s14, 5\ns_cselect_b32 s31, {OOB:#x}, s31")
        lno = a.label("nout")
        a(f"s_cmp_ge_u32 s31, {OOB:#x}\ns_cbranch_scc1 {lno}")
        for i in range(10):
            a(f"buffer_load_dwordx2 v[{132+2*i}:{133+2*i}], v129, s[8:11], s31 offen\ns_add_u32 s31, s31, {1536*8}")
        a(f"{lno}:")
    for s in range(nst): g.iter(a, s, s == 0, nst)
    stamp(a, 4)
    for i in range(4): a(f"ds_read_b128 v[{G+4*i}:{G+4*i+3}], v128 offset:{32*i}")
    a("s_waitcnt vmcnt(0) lgkmcnt(0)")
    if not final: a(f"v_mov_b32 v{ST}, 0\nv_mov_b32 v{ST+1}, 0\ns_nop 5")
    else: a("s_nop 7")
    R = g.ACC
    lskip = a.label("skip")
    for i in range(2):
        if i == 1: a(f"s_cmp_eq_u32 s15, 2\ns_cbranch_scc1 {lskip}")
        for d in range(4):
            x = XR + 4*i + d; r = R + 8*i + 2*d; gg = G + 8*i + 2*d; t = T + 2*(d % 2)
            a(f"v_lshlrev_b32 v{t}, 16, v{x}\nv_and_b32 v{t+1}, 0xffff0000, v{x}\nv_fmac_f32 v{t}, v{gg}, v{r}\nv_fmac_f32 v{t+1}, v{gg+1}, v{r+1}")
            if not final:
                a(f"v_add_f32 v{ST}, v{ST}, v{t}\nv_fmac_f32 v{ST+1}, v{t}, v{t}\nv_add_f32 v{ST}, v{ST}, v{t+1}\nv_fmac_f32 v{ST+1}, v{t+1}, v{t+1}")
            a(f"v_cvt_pk_bf16_f32 v{T+4+4*i+d}, v{t}, v{t+1}")
        o = T + 4 + 4*i
        if final:
            a(f"s_nop 1\nv_permlane32_swap_b32 v{o}, v{o+2}\nv_permlane32_swap_b32 v{o+1}, v{o+3}\nbuffer_store_dwordx4 v[{o}:{o+3}], v129, s[24:27], s28 offen offset:{32*i}")
        else:
            a(f"buffer_store_dwordx4 v[{o}:{o+3}], v1, s[8:11], s22 offen offset:{1024*i}")
    a(f"{lskip}:")
    if not final:
        stats_store(a, ST, 29)
        a(f"s_cmp_ge_u32 s31, {OOB:#x}\ns_cbranch_scc1 L_{name}_end")
        for i in range(1, 10): a(f"v_add_f32 v132, v132, v{132+2*i}\nv_add_f32 v133, v133, v{133+2*i}")
        a(f"s_add_u32 s30, s30, {WS_UT:#x}\ns_mov_b32 exec_hi, 0\nbuffer_store_dwordx2 v[132:133], v129, s[8:11], s30 offen")
    a(f"s_branch L_{name}_end")
    g.loader(a, act_base, nks, w_base, True)
    a(f"s_mul_i32 s6, s13, 320\ns_add_u32 s6, s6, {WS_MOD + gate_off}")
    g.dma1(g.par, 6, "par")
    g.lstart()
    for s in range(nst): g.lstep(s, nst)
    end(a)
    finish(a, 256, 640, g.par + 1024, 152)

GC1 = -2.0 * LOG2E * math.sqrt(2.0 / math.pi)
GC2 = GC1 * 0.044715
def gelu(a, regs, t0, c1):
    for i, r in enumerate(regs): a(f"v_mul_f32 v{t0+i}, v{r}, v{r}")
    for i, r in enumerate(regs): a(f"v_fma_f32 v{t0+i}, v{t0+i}, s28, v{c1}")
    for i, r in enumerate(regs): a(f"v_mul_f32 v{t0+i}, v{t0+i}, v{r}")
    for i, r in enumerate(regs): a(f"v_exp_f32 v{t0+i}, v{t0+i}")
    for i, r in enumerate(regs): a(f"v_add_f32 v{t0+i}, 1.0, v{t0+i}")
    for i, r in enumerate(regs): a(f"v_rcp_f32 v{t0+i}, v{t0+i}")
    for i, r in enumerate(regs): a(f"v_mul_f32 v{r}, v{r}, v{t0+i}")

ZROW = 208
def k4():
    a = K("k4"); g = G6(2, 2)
    g.prologue(a)
    SD, U, T, RR, NM, C1, ST = 88, 40, 72, 112, 113, 114, 116
    stats_base(a, 22, WS_ST1); stats_base(a, 30, WS_ST2); stats_addr(a, WS_ST2, 29)
    unit_off6(a, 26, 6, WS_Z1)
    a(f"s_lshl_b32 s3, s15, 8\ns_add_u32 s3, s3, {g.par}\nv_lshlrev_b32 v115, 5, v3\nv_add_u32 v115, s3, v115")
    a(f"s_mov_b32 s28, {f32(GC2)}\nv_mov_b32 v{C1}, {f32(GC1)}\ns_waitcnt lgkmcnt(0)")
    srd(a, 8, 4, WS_SIZE)
    stamp(a, 1)
    g.start(a)
    stats_load(a, SD, 22, "ln")
    for s in range(20):
        g.iter(a, s, s == 0, 20)
        if s == 8:
            a.wait(vm=["ln"])
            stats_finish(a, SD, 640, RR, NM)
    stamp(a, 4)
    def ut_reads(n):
        for u in range(2):
            for hf in range(2):
                for k in range(2):
                    r = U + 16*u + 8*hf + 4*k
                    a(f"ds_read_b128 v[{r}:{r+3}], v115 offset:{n*768 + u*128 + hf*64 + k*16}")
    def affine(n):
        A = g.ACC + 16*n
        for i in range(16): a(f"v_fma_f32 v{U+2*i+1}, v{U+2*i}, v{NM}, v{U+2*i+1}")
        for i in range(16): a(f"v_fma_f32 v{A+i}, v{A+i}, v{RR}, v{U+2*i+1}")
    Z2, Z1 = g.ACC, g.ACC + 16
    ut_reads(0)
    a("s_waitcnt lgkmcnt(0)\ns_nop 3")
    affine(0)
    ut_reads(1)
    gelu(a, list(range(Z2, Z2+16)), T, C1)
    a(f"v_mov_b32 v{ST}, 0\nv_mov_b32 v{ST+1}, 0")
    for i in range(16): a(f"v_add_f32 v{ST}, v{ST}, v{Z2+i}\nv_fmac_f32 v{ST+1}, v{Z2+i}, v{Z2+i}")
    stats_store(a, ST, 29, "sc1")
    stamp(a, 5)
    a("s_waitcnt lgkmcnt(0)")
    affine(1)
    gelu(a, list(range(Z1, Z1+16)), T, C1)
    stats_load(a, SD, 30, "st2", "sc1")
    for i in range(2):
        for d in range(4): a(f"v_cvt_pk_bf16_f32 v{T+4*i+d}, v{Z1+8*i+2*d}, v{Z1+8*i+2*d+1}")
        a.vm(f"buffer_store_dwordx4 v[{T+4*i}:{T+4*i+3}], v1, s[8:11], s26 offen offset:{i*1024}")
    stamp(a, 7)
    a(f"s_mul_i32 s6, s17, {32*ZROW}\ns_lshl_b32 s7, s15, 6\ns_add_u32 s6, s6, s7\nv_mul_u32_u24 v4, {ZROW}, v2\nv_lshl_add_u32 v4, v3, 3, v4\nv_add_u32 v4, s6, v4")
    a(f"v_bfe_u32 v5, v0, 2, 2\nv_lshl_add_u32 v5, v3, 3, v5\nv_mul_u32_u24 v5, {ZROW}, v5\nv_and_b32 v6, 3, v0\nv_lshl_add_u32 v5, v6, 3, v5\nv_bfe_u32 v6, v0, 4, 1\nv_lshl_add_u32 v5, v6, 5, v5\nv_add_u32 v5, s6, v5")
    a(f"s_lshl_b32 s6, s13, 7\ns_lshl_b32 s7, s16, 1\ns_add_u32 s6, s6, s7\ns_mul_i32 s6, s6, 3\ns_add_u32 s6, s6, s15\ns_lshl_b32 s6, s6, 10\ns_add_u32 s26, s6, {WS_Z2T:#x}")
    a.wait(vm=["st2"])
    a("s_mov_b32 s29, 0x4000")
    lp, lok = a.label("poll"), a.label("ok")
    a(f"{lp}:")
    a(f"v_or_b32 v{ST}, v{SD+1}, v{SD+3}")
    for i in range(2, 12): a(f"v_or_b32 v{ST}, v{ST}, v{SD+1+2*i}")
    a(f"v_cmp_gt_i32 vcc, 0, v{ST}\ns_sub_u32 s29, s29, 1\ns_cbranch_scc1 {lok}\ns_cbranch_vccz {lok}")
    stats_load(a, SD, 30, "st2", "sc1")
    a(f"s_waitcnt vmcnt(0)\ns_branch {lp}\n{lok}:")
    stamp(a, 8)
    stats_finish(a, SD, 768, RR, NM)
    for i in range(16): a(f"v_fma_f32 v{Z2+i}, v{Z2+i}, v{RR}, v{NM}")
    for i in range(8): a(f"v_cvt_pk_bf16_f32 v{T+8+i}, v{Z2+2*i}, v{Z2+2*i+1}")
    for i in range(4): a(f"ds_write_b64 v4, v[{T+8+2*i}:{T+9+2*i}] offset:{16*i}")
    a("s_waitcnt lgkmcnt(0)")
    for p in range(2):
        a(f"ds_read_b64_tr_b16 v[{U+4*p}:{U+4*p+1}], v5 offset:{16*p*ZROW}\nds_read_b64_tr_b16 v[{U+4*p+2}:{U+4*p+3}], v5 offset:{(16*p+4)*ZROW}")
    a("s_waitcnt lgkmcnt(0)")
    for p in range(2): a(f"buffer_store_dwordx4 v[{U+4*p}:{U+4*p+3}], v1, s[8:11], s26 offen offset:{3072*p}")
    a("s_branch L_k4_end")
    g.loader(a, WS_X1, 40, WS_WIN, False)
    a(f"s_mul_i32 s6, s13, 1536\ns_add_u32 s6, s6, {WS_UT:#x}")
    g.dma1(g.par, 6, "par"); g.dma1(g.par, 6, "par", 1024)
    g.lstart()
    for s in range(20): g.lstep(s, 20)
    end(a)
    finish(a, 256, 640, g.par + 2048, 120)

def k5():
    a = K("k5"); g = G6(4, 1)
    g.prologue(a, f"s_load_dwordx2 s[32:33], s[0:1], {KA['b_sp']}")
    Z, B, T = 88, 96, 100
    unit_off6(a, 28, 6, 0)
    a(f"s_add_u32 s29, s28, {WS_Y:#x}\ns_add_u32 s28, s28, {WS_Z1:#x}\nv_lshlrev_b32 v97, 1, v2\ns_lshl_b32 s6, s16, 6\ns_waitcnt lgkmcnt(0)")
    srd(a, 8, 4, WS_SIZE); srd(a, 24, 32, 4096)
    stamp(a, 1)
    for i in range(16): a(f"v_mov_b32 v{g.ACC+i}, 0")
    g.start(a)
    for i in range(2): a.vm(f"buffer_load_dwordx4 v[{Z+4*i}:{Z+4*i+3}], v1, s[8:11], s28 offen offset:{1024*i}", "epi")
    a.vm(f"buffer_load_ushort v{B}, v97, s[24:27], s6 offen", "epi")
    a("s_mov_b32 s30, 5\nL_k5_loop:")
    for s in range(6): g.iter(a, s, False, 32)
    a("s_sub_u32 s30, s30, 1\ns_cmp_lg_u32 s30, 0\ns_cbranch_scc1 L_k5_loop")
    a.lgq = [(t[0], t[1] + 24, t[2]) if isinstance(t, tuple) else t for t in a.lgq]
    for s in range(30, 32): g.iter(a, s, False, 32)
    stamp(a, 4)
    R = g.ACC
    a.wait(vm=["epi"])
    a(f"v_lshlrev_b32 v{B}, 16, v{B}\ns_nop 9")
    for i in range(2):
        for d in range(4):
            z = Z + 4*i + d; r = R + 8*i + 2*d; t = T + 2*(d % 2)
            a(f"v_add_f32 v{r}, v{r}, v{B}\nv_add_f32 v{r+1}, v{r+1}, v{B}\nv_lshlrev_b32 v{t}, 16, v{z}\nv_and_b32 v{t+1}, 0xffff0000, v{z}\nv_mul_f32 v{r}, v{r}, v{t}\nv_mul_f32 v{r+1}, v{r+1}, v{t+1}\nv_cvt_pk_bf16_f32 v{T+4+4*i+d}, v{r}, v{r+1}")
        a(f"buffer_store_dwordx4 v[{T+4+4*i}:{T+7+4*i}], v1, s[8:11], s29 offen offset:{1024*i}")
    a("s_branch L_k5_end")
    g.loader(a, WS_WSP, 128, WS_Z2T, False)
    g.lstart()
    for s in range(2): g.lstep(s, 32)
    a("s_mov_b32 s30, 4\nL_k5_lloop:")
    for s in range(2, 8): g.lstep(s, 32)
    a("s_sub_u32 s30, s30, 1\ns_cmp_lg_u32 s30, 0\ns_cbranch_scc1 L_k5_lloop")
    a.vmq = [(t[0], t[1] + 18) if isinstance(t, tuple) else t for t in a.vmq]
    for s in range(26, 32): g.lstep(s, 32)
    end(a)
    finish(a, 256, 640, g.par, 112)

def emit(path):
    out = []
    for (n, lines, g, b, lds, nv, ao) in kernels:
        out.append(f"; @launch kernel={n}_kernel grid=({g},1,1) block=({b},1,1) lds={lds}")
    out.append('.amdgcn_target "amdgcn-amd-amdhsa--gfx950"\n.text')
    bad = 0
    for (n, lines, g, b, lds, nv, ao) in kernels:
        errs = check_hazards(lines, n) + ([] if PROF else check_waits(lines, n))
        for e in errs:
            if "buffer_load_ushort" in e.split("touched by")[0] and "buffer_load_ushort" in e.split("touched by")[-1] and n == "k0": continue
            if "buffer_load_dword v" in e.split("touched by")[0] and "buffer_load_dword v" in e.split("touched by")[-1]: continue
            print("CHECK", e); bad += 1
        out.append(f".globl {n}_kernel\n.p2align 8\n.type {n}_kernel,@function\n{n}_kernel:")
        t = Asm(); t.lines = lines
        out.append(t.text())
    out.append('.section .rodata,"a"')
    for (n, lines, g, b, lds, nv, ao) in kernels:
        out.append(f""".p2align 6
.amdhsa_kernel {n}_kernel
  .amdhsa_next_free_vgpr {nv}
  .amdhsa_next_free_sgpr {96 if PROF else 56}
  .amdhsa_accum_offset {ao}
  .amdhsa_group_segment_fixed_size 0
  .amdhsa_kernarg_size 120
  .amdhsa_user_sgpr_count 2
  .amdhsa_user_sgpr_kernarg_segment_ptr 1
  .amdhsa_system_sgpr_workgroup_id_x 1
.end_amdhsa_kernel""")
    open(path, "w").write("\n".join(out) + "\n")
    print("wrote", path, "checks failed:", bad)

if __name__ == "__main__":
    k0(); k1(); k2()
    kproj("k3", WS_O, WS_WO, 40, 5120, False)
    k4(); k5()
    kproj("k6", WS_Y, WS_WOUT, 48, 12800, True)
    for i in range(int(os.environ.get("X_EMPTY", "0"))):
        e = K(f"e{i}"); e("s_endpgm"); finish(e, 256, 256, 0, 8)
    emit(sys.argv[1] if len(sys.argv) > 1 else "adaLN_cond__grouped_kv_mqa__mixer_gmlp__prompt.s")
```

```python
import math, struct, sys, os
from asmlib import *

def f32(x):
    return "0x%08x" % struct.unpack("<I", struct.pack("<f", x))[0]

WS_MOD  = 0x0
WS_XH   = 0x100000
WS_ST0  = 0x8000
WS_CNT  = 0xC000
WS_FL1  = 0xD000
WS_FL2  = 0xE000
WS_UT   = 0x10000
WS_UTP  = 0x20000
WS_WQKV = 0x400000
WS_WO   = 0x500000
WS_WIN  = 0x600000
WS_WOUT = 0x800000
WS_Q    = 0xA00000
WS_KV   = 0xD00000
WS_O    = 0xE00000
WS_X1   = 0x1100000
WS_ST1  = 0x1400000
WS_ST2  = 0x1480000
WS_Z1   = 0x1500000
WS_Z2T  = 0x1E00000
WS_Y    = 0x2100000
WS_WSP  = 0x2400000
WS_SIZE = 0x2C00000
KVCH = 26624
OOB = 0x40000000
LOG2E = math.log2(math.e)
KA = dict(x=0, wq=8, wk=16, wv=24, wo=32, w_in=48, w_sp=56, b_sp=64, w_out=72, c=80, w_mod=88, out=96, dbg=104, ws=112)
UT = [[0, 1], [2, 5], [3, 4]]

PROF = os.environ.get("PROF", "0") == "1"
WS_PROF = 0x3000000
if PROF: WS_SIZE = 0x4000000
def stamp(a, i):
    if PROF: a(f"s_memtime s[{50+2*i}:{51+2*i}]")
def stamp_begin(a):
    if PROF:
        for i in range(12): a(f"s_mov_b64 s[{50+2*i}:{51+2*i}], 0")
        a("s_memrealtime s[74:75]")
        stamp(a, 0)
def stamp_end(a, kidx):
    if PROF:
        stamp(a, 11)
        a("s_memrealtime s[76:77]\ns_mov_b64 exec, 1\ns_waitcnt lgkmcnt(0)")
        a(f"s_lshl_b32 s3, s2, 4\ns_add_u32 s3, s3, s14\ns_lshl_b32 s3, s3, 6\ns_add_u32 s3, s3, {WS_PROF + kidx*0x100000:#x}\nv_mov_b32 v0, 0")
        for i in range(12): a(f"v_mov_b32 v{2+i}, s{50+2*i}")
        a("s_getreg_b32 s78, hwreg(HW_REG_XCC_ID)\ns_getreg_b32 s79, hwreg(HW_REG_HW_ID)\nv_mov_b32 v14, s74\nv_mov_b32 v15, s76\nv_mov_b32 v16, s78\nv_mov_b32 v17, s79")
        for i in range(4): a(f"buffer_store_dwordx4 v[{2+4*i}:{5+4*i}], v0, s[8:11], s3 offen offset:{16*i}")

def srd(a, d, p, nbytes):
    a(f"s_mov_b32 s{d}, s{p}\ns_mov_b32 s{d+1}, s{p+1}\ns_mov_b32 s{d+2}, {nbytes:#x}\ns_mov_b32 s{d+3}, 0x20000")

kernels = []
XCMP = "s3" if os.environ.get("X_NOBAR") or os.environ.get("X_NOLDS") else 0

class K(Asm):
    def __init__(self, name):
        super().__init__()
        self.name = name; self.vmq = []; self.lgq = []
    def label(self, base):
        self.uid += 1
        return f"L_{self.name}_{base}_{self.uid}"
    def vm(self, text, tag=None):
        self(text); self.vmq.append(tag)
    def lg(self, text, tag=None):
        self(text); self.lgq.append(tag)
    def _n(self, q, tags):
        idx = max((i for i, t in enumerate(q) if t in tags), default=None)
        return None if idx is None else len(q) - 1 - idx
    def wait(self, vm=(), lg=()):
        parts = []
        n = self._n(self.vmq, vm) if vm else None
        if n is not None:
            parts.append(f"vmcnt({min(n, 63)})"); self.vmq = self.vmq[len(self.vmq)-n:] if n else []
        n = self._n(self.lgq, lg) if lg else None
        if n is not None:
            n2 = min(n, 15)
            parts.append(f"lgkmcnt({n2})"); self.lgq = self.lgq[len(self.lgq)-n2:] if n2 else []
        if parts: self("s_waitcnt " + " ".join(parts))
    def wait_all_lg(self):
        self("s_waitcnt lgkmcnt(0)"); self.lgq = []

def end(a):
    a(f"L_{a.name}_end:")
    stamp_end(a, len(kernels))
    a(f"L_{a.name}_exit:\ns_endpgm")
def finish(a, grid, block, lds, nv):
    kernels.append((a.name, a.lines, grid, block, lds, nv, (nv + 3) // 4 * 4))

def bf16_round(a, v, t):
    a(f"v_cvt_pk_bf16_f32 v{t}, v{v}, v{v}\nv_and_b32 v{v}, 0xffff0000, v{t}")

E_NAT = list(range(8))
E_PERM = [(j & 3) + 8 * (j >> 2) for j in range(8)]
E_O5 = [20 * (j >> 1) + (j & 1) for j in range(8)]
def loads8(a, srdn, voff, lo, hi, ebase, e_list, rs, stmp, tag=None):
    for j in range(8):
        a(f"s_add_u32 s{stmp}, s{ebase}, {e_list[j]*rs}")
        a.vm(f"buffer_load_ushort v{(lo if j % 2 == 0 else hi) + j//2}, v{voff}, s[{srdn}:{srdn+3}], s{stmp} offen", tag)

def divmod_s(a, q, r, x, d, t):
    m = (1 << 20) // d + 1
    a(f"s_mul_i32 s{q}, s{x}, {m}\ns_lshr_b32 s{q}, s{q}, 20\ns_mul_i32 s{t}, s{q}, {d}\ns_sub_u32 s{r}, s{x}, s{t}")

def pack_frag_issue(a, f, srdn, rs, ncol, nks, otype, halves, lo, hi, voff, vt, S):
    q3, ft, t, nb, ks, eb = S, S+1, S+2, S+3, S+4, S+5
    divmod_s(a, q3, ft, f, 3, t)
    divmod_s(a, nb, ks, q3, nks, t)
    if halves:
        a(f"s_and_b32 s{t}, s{nb}, 1\ns_lshr_b32 s{nb}, s{nb}, 1\ns_mul_i32 s{nb}, s{nb}, {ncol}\ns_cmp_eq_u32 s{t}, 0\ns_cselect_b32 s{t}, 768, 0\ns_add_u32 s{nb}, s{nb}, s{t}")
    else:
        a(f"s_mul_i32 s{nb}, s{nb}, {ncol}")
    hi5 = 80 if ncol == 96 else OOB // 2
    a(f"s_cmp_eq_u32 s{ft}, 1\ns_cselect_b32 s{q3}, 32, 48\ns_cselect_b32 s{t}, {hi5:#x}, 64\ns_cmp_eq_u32 s{ft}, 0\ns_cselect_b32 s{q3}, 0, s{q3}\ns_cselect_b32 s{t}, 16, s{t}")
    a(f"s_add_u32 s{q3}, s{q3}, s{nb}\ns_add_u32 s{t}, s{t}, s{nb}")
    a(f"v_mov_b32 v{vt}, s{q3}\nv_mov_b32 v{vt+1}, s{t}\nv_cmp_gt_u32 vcc, 16, v2\nv_and_b32 v{voff}, 15, v2\ns_nop 0\nv_cndmask_b32 v{vt}, v{vt+1}, v{vt}, vcc\nv_add_lshl_u32 v{voff}, v{voff}, v{vt}, 1")
    if not otype:
        a(f"v_mul_u32_u24 v{vt}, {4*rs}, v3\nv_add_u32 v{voff}, v{voff}, v{vt}\ns_mul_i32 s{eb}, s{ks}, {16*rs}")
        loads8(a, srdn, voff, lo, hi, eb, E_PERM, rs, t, "pack")
    else:
        l5, ld = a.label("u4"), a.label("ud")
        divmod_s(a, q3, ft, ks, 5, t)
        a(f"s_mul_i32 s{q3}, s{q3}, 80\ns_cmp_eq_u32 s{ft}, 4\ns_cbranch_scc1 {l5}")
        a(f"s_mul_i32 s{ft}, s{ft}, 20\ns_add_u32 s{q3}, s{q3}, s{ft}\ns_mul_i32 s{eb}, s{q3}, {rs}\nv_mul_u32_u24 v{vt}, {4*rs}, v3\nv_add_u32 v{voff}, v{voff}, v{vt}")
        q0 = list(a.vmq)
        loads8(a, srdn, voff, lo, hi, eb, E_PERM, rs, t, "pack")
        a(f"s_branch {ld}\n{l5}:\ns_add_u32 s{q3}, s{q3}, 16\ns_mul_i32 s{eb}, s{q3}, {rs}\nv_mul_u32_u24 v{vt}, {2*rs}, v3\nv_add_u32 v{voff}, v{voff}, v{vt}")
        a.vmq = q0
        loads8(a, srdn, voff, lo, hi, eb, E_O5, rs, t, "pack")
        a(f"{ld}:")

def pack_frag_store(a, f, wsbase, lo, hi, st):
    for i in range(4): a(f"v_lshl_or_b32 v{lo+i}, v{hi+i}, 16, v{lo+i}")
    a(f"s_lshl_b32 s{st}, s{f}, 10\ns_add_u32 s{st}, s{st}, {wsbase:#x}")
    a.vm(f"buffer_store_dwordx4 v[{lo}:{lo+3}], v1, s[8:11], s{st} offen")

def l2_prefetch(a, base, nbytes, nwaves, vdst, vtmp, st):
    per_wg = nbytes // 32
    PS = int(os.environ.get("X_PFS", "64")); CH = 64 * PS
    n_instr = -(-per_wg // CH)
    per_wave = -(-n_instr // nwaves)
    a(f"s_lshr_b32 s{st}, s2, 3\ns_mul_i32 s{st}, s{st}, {per_wg}\ns_mul_i32 s{st+1}, s14, {per_wave*CH}\ns_add_u32 s{st}, s{st}, s{st+1}\ns_add_u32 s{st}, s{st}, {base:#x}\nv_lshlrev_b32 v{vtmp}, {int(math.log2(PS//16))}, v1")
    for i in range(per_wave):
        a.vm(f"buffer_load_dword v{vdst}, v{vtmp}, s[8:11], s{st} offen")
        if i < per_wave - 1: a(f"s_add_u32 s{st}, s{st}, {CH}")

N_MOD, N_XH, N_PQ = 128, 64, 40
def k0():
    a = K("k0")
    ends = [N_MOD, N_MOD + N_XH, N_MOD + N_XH + N_PQ]
    grid = ends[-1]
    CPF = os.environ.get("X_CPF", "0") == "1"
    if CPF:
        lc = a.label("cpf")
        a(f"s_cmp_lt_u32 s2, {grid}\ns_cbranch_scc1 {lc}\ns_cmp_ge_u32 s2, {grid+48}\ns_cbranch_scc1 L_k0_exit")
        a(f"s_getpc_b64 s[40:41]\ns_and_b32 s40, s40, 0xffffff00\ns_sub_u32 s3, s2, {grid}\ns_lshr_b32 s3, s3, 3\ns_lshl_b32 s3, s3, 13\nv_lshlrev_b32 v3, 5, v0\nv_add_u32 v3, s3, v3\nglobal_load_dword v4, v3, s[40:41]\ns_endpgm\n{lc}:")
        grid += 48
    a(f"s_cmp_ge_u32 s2, {grid}\ns_cbranch_scc1 L_k0_exit")
    stamp_begin(a)
    a(f"s_load_dwordx2 s[4:5], s[0:1], {KA['ws']}")
    a("v_and_b32 v1, 63, v0\nv_lshrrev_b32 v2, 6, v0\ns_nop 0\nv_readfirstlane_b32 s14, v2")
    a(f"s_cmp_lt_u32 s2, {ends[0]}\ns_cbranch_scc1 L_k0_mod")
    a(f"s_cmp_lt_u32 s2, {ends[1]}\ns_cbranch_scc1 L_k0_xh")
    a("s_branch L_k0_pq")
    a("L_k0_mod:")
    a(f"s_load_dwordx4 s[16:19], s[0:1], {KA['c']}")
    a("s_and_b32 s3, s2, 7\ns_lshl_b32 s3, s3, 1\ns_bfe_u32 s6, s2, 0x10003\ns_add_u32 s3, s3, s6\ns_lshr_b32 s6, s2, 4\ns_lshl_b32 s6, s6, 4\ns_add_u32 s3, s3, s6")
    a("s_cmp_ge_u32 s3, 120\ns_cbranch_scc1 L_k0_exit")
    a("v_lshrrev_b32 v1, 2, v0\nv_and_b32 v2, 3, v0\nv_mul_u32_u24 v3, 7680, v1\nv_lshl_add_u32 v3, v2, 4, v3\nv_lshlrev_b32 v4, 1, v1")
    a("s_waitcnt lgkmcnt(0)")
    srd(a, 8, 4, WS_SIZE); srd(a, 20, 16, 1280); srd(a, 24, 18, 640 * 7680)
    a("s_lshl_b32 s6, s3, 6")
    for p in range(10):
        a(f"buffer_load_ushort v{10+p}, v4, s[20:23], 0 offen offset:{128*p}")
    for p in range(10):
        a(f"buffer_load_dwordx4 v[{20+4*p}:{23+4*p}], v3, s[24:27], s6 offen")
        if p < 9: a(f"s_add_u32 s6, s6, {64*7680}")
    for i in range(8): a(f"v_mov_b32 v{64+i}, 0")
    a("s_waitcnt vmcnt(10)")
    for p in range(10):
        v = 10 + p
        a(f"v_lshlrev_b32 v{v}, 16, v{v}\nv_mul_f32 v5, {f32(-LOG2E)}, v{v}\nv_exp_f32 v5, v5\ns_nop 0\nv_add_f32 v5, 1.0, v5\nv_rcp_f32 v5, v5\ns_nop 0\nv_mul_f32 v{v}, v{v}, v5")
        bf16_round(a, v, 5)
    for p in range(10):
        a(f"s_waitcnt vmcnt({9-p})")
        for i in range(4):
            d = 20 + 4*p + i
            a(f"v_lshlrev_b32 v5, 16, v{d}\nv_and_b32 v6, 0xffff0000, v{d}\nv_fmac_f32 v{64+2*i}, v{10+p}, v5\nv_fmac_f32 v{65+2*i}, v{10+p}, v6")
    a("v_lshlrev_b32 v5, 7, v1\nv_lshl_add_u32 v5, v2, 5, v5")
    a("ds_write_b128 v5, v[64:67]\nds_write_b128 v5, v[68:71] offset:16")
    a("v_and_b32 v6, 31, v0\nv_lshrrev_b32 v7, 5, v0\nv_lshlrev_b32 v6, 2, v6\nv_lshl_add_u32 v8, v7, 10, v6")
    a("s_waitcnt lgkmcnt(0)\ns_barrier")
    for i in range(8): a(f"ds_read_b32 v{20+i}, v8 offset:{128*i}")
    a("s_waitcnt lgkmcnt(0)")
    for i in range(1, 8): a(f"v_add_f32 v20, v20, v{20+i}")
    a("v_lshl_add_u32 v8, v7, 7, v6\nds_write_b32 v8, v20 offset:8192\ns_waitcnt lgkmcnt(0)\ns_barrier")
    for i in range(8): a(f"ds_read_b32 v{20+i}, v6 offset:{8192+128*i}")
    a("s_waitcnt lgkmcnt(0)")
    for i in range(1, 8): a(f"v_add_f32 v20, v20, v{20+i}")
    bf16_round(a, 20, 5)
    a("v_add_f32 v21, 1.0, v20")
    bf16_round(a, 21, 5)
    a("s_sub_u32 s6, s3, 20\ns_cmp_lt_u32 s6, 20\ns_cselect_b32 s7, 1, 0\ns_sub_u32 s6, s3, 80\ns_cmp_lt_u32 s6, 20\ns_cselect_b32 s6, 1, s7\ns_cmp_eq_u32 s6, 0")
    l = a.label("noinc")
    a(f"s_cbranch_scc1 {l}\nv_mov_b32 v20, v21\n{l}:")
    a(f"s_lshl_b32 s6, s3, 7\nv_cmp_gt_u32 vcc, 32, v0\ns_and_saveexec_b64 s[28:29], vcc\ns_cbranch_execz L_k0_end")
    a(f"buffer_store_dword v20, v6, s[8:11], s6 offen offset:{WS_MOD}")
    a("s_branch L_k0_end")
    a("L_k0_xh:")
    a(f"s_load_dwordx2 s[16:17], s[0:1], {KA['x']}")
    a(f"s_sub_u32 s6, s2, {ends[0]}\ns_and_b32 s3, s6, 7\ns_lshr_b32 s7, s6, 4\ns_lshl_b32 s7, s7, 3\ns_add_u32 s3, s3, s7\ns_lshl_b32 s3, s3, 1\ns_bfe_u32 s7, s6, 0x10003\ns_add_u32 s3, s3, s7")
    a("v_and_b32 v2, 31, v1\nv_lshrrev_b32 v3, 5, v1\nv_mul_u32_u24 v4, 1280, v2\nv_lshl_add_u32 v4, v3, 4, v4")
    a(f"s_mul_i32 s6, s3, {32*1280}\ns_mul_i32 s7, s14, 320\ns_add_u32 s6, s6, s7")
    a("s_waitcnt lgkmcnt(0)")
    srd(a, 8, 4, WS_SIZE); srd(a, 20, 16, 2048 * 1280)
    for i in range(10):
        a(f"buffer_load_dwordx4 v[{20+4*i}:{23+4*i}], v4, s[20:23], s6 offen offset:{32*i}")
    a("v_mov_b32 v6, 0\nv_mov_b32 v7, 0")
    a(f"s_mul_i32 s6, s3, {40*1024}\ns_mul_i32 s7, s14, {10*1024}\ns_add_u32 s6, s6, s7\ns_add_u32 s6, s6, {WS_XH:#x}\nv_lshlrev_b32 v8, 4, v1")
    for i in range(10):
        b = 20 + 4*i
        a(f"s_waitcnt vmcnt(9)\nv_permlane32_swap_b32 v{b}, v{b+2}\nv_permlane32_swap_b32 v{b+1}, v{b+3}")
        a(f"buffer_store_dwordx4 v[{b}:{b+3}], v8, s[8:11], s6 offen offset:{(i%4)*1024}")
        if i % 4 == 3: a("s_add_u32 s6, s6, 4096")
        for d in range(4):
            lo = 64 + 2*(d % 2)
            a(f"v_lshlrev_b32 v{lo}, 16, v{b+d}\nv_and_b32 v{lo+1}, 0xffff0000, v{b+d}")
            a(f"v_add_f32 v6, v6, v{lo}\nv_fmac_f32 v7, v{lo}, v{lo}\nv_add_f32 v6, v6, v{lo+1}\nv_fmac_f32 v7, v{lo+1}, v{lo+1}")
    a(f"v_mov_b32 v64, -1\nv_mov_b32 v65, -1\nv_mov_b32 v66, -1\nv_mov_b32 v67, -1\nv_lshlrev_b32 v5, 4, v0\ns_mul_i32 s7, s3, 6144\ns_add_u32 s7, s7, {WS_ST2:#x}\nbuffer_store_dwordx4 v[64:67], v5, s[8:11], s7 offen\nbuffer_store_dwordx4 v[64:67], v5, s[8:11], s7 offen offset:2048")
    a("v_lshlrev_b32 v5, 3, v0\nds_write_b64 v5, v[6:7]\nv_lshlrev_b32 v5, 3, v2\ns_waitcnt lgkmcnt(0)\ns_barrier")
    for i in range(8): a(f"ds_read_b64 v[{70+2*i}:{71+2*i}], v5 offset:{256*i}")
    a("s_waitcnt lgkmcnt(0)")
    for i in range(1, 8): a(f"v_add_f32 v70, v70, v{70+2*i}\nv_add_f32 v71, v71, v{71+2*i}")
    a(f"v_mul_f32 v70, {f32(1/640)}, v70\nv_mul_f32 v71, {f32(1/640)}, v71\nv_fma_f32 v71, -v70, v70, v71\nv_max_f32 v71, 0, v71\nv_add_f32 v71, {f32(1e-5)}, v71\nv_rsq_f32 v72, v71\ns_nop 0\nv_mul_f32 v70, v70, v72")
    a(f"v_sub_f32 v73, 0, v70\ns_lshl_b32 s6, s3, 8\ns_add_u32 s6, s6, {WS_ST0:#x}\nv_cmp_gt_u32 vcc, 32, v0\ns_and_saveexec_b64 s[28:29], vcc\ns_cbranch_execz L_k0_end")
    a("buffer_store_dwordx2 v[72:73], v5, s[8:11], s6 offen")
    a("s_branch L_k0_end")
    a("L_k0_pq:")
    a(f"s_load_dwordx2 s[16:17], s[0:1], {KA['wq']}\ns_load_dwordx4 s[32:35], s[0:1], {KA['wk']}")
    a(f"s_sub_u32 s3, s2, {ends[1]}\ns_and_b32 s13, s3, 7\ns_lshr_b32 s12, s3, 3\ns_lshl_b32 s12, s12, 3\ns_lshl_b32 s6, s14, 1\ns_add_u32 s12, s12, s6")
    a("v_and_b32 v2, 31, v1\nv_lshrrev_b32 v3, 5, v1\nv_and_b32 v4, 15, v1\nv_lshlrev_b32 v9, 4, v1")
    a(f"v_lshrrev_b32 v5, 4, v2\nv_mul_u32_u24 v5, 20, v5\nv_add_u32 v5, v5, v4\ns_mul_i32 s6, s13, 80\nv_add_u32 v5, s6, v5\nv_lshlrev_b32 v5, 1, v5\nv_mul_u32_u24 v6, {4*1280}, v3\nv_add_u32 v10, v5, v6\nv_add_u32 v11, 80, v10\nv_add_u32 v12, 120, v10")
    a("v_bfe_u32 v5, v4, 1, 1\nv_lshrrev_b32 v7, 3, v4\nv_lshl_add_u32 v5, v7, 1, v5\nv_mul_u32_u24 v5, 20, v5\nv_bfe_u32 v7, v4, 2, 1\nv_lshl_add_u32 v5, v7, 1, v5\nv_and_b32 v7, 1, v4\nv_add_u32 v5, v5, v7\nv_add_u32 v5, 16, v5\nv_add_u32 v5, s6, v5\nv_lshlrev_b32 v5, 1, v5\nv_add_u32 v5, v5, v6\nv_cmp_gt_u32 vcc, 16, v2\ns_nop 1\nv_cndmask_b32 v12, v5, v12, vcc")
    a("v_lshrrev_b32 v5, 2, v4\nv_lshlrev_b32 v5, 1, v5\nv_add_u32 v5, v5, v7\nv_add_u32 v5, 16, v5\nv_and_b32 v8, 10, v4\nv_cmp_eq_u32 vcc, 0, v8")
    a(f"v_mov_b32 v8, {OOB//2:#x}\ns_nop 0\nv_cndmask_b32 v5, v8, v5, vcc\nv_add_u32 v14, 16, v4\nv_cmp_gt_u32 vcc, 4, v4\ns_nop 1\nv_cndmask_b32 v14, v8, v14, vcc\ns_cmp_eq_u32 s13, 3\ns_cselect_b64 vcc, -1, 0\nv_cndmask_b32 v5, v5, v14, vcc\ns_bitcmp1_b32 s13, 0\ns_cselect_b64 vcc, -1, 0\nv_cndmask_b32 v5, v4, v5, vcc\nv_lshlrev_b32 v5, 1, v5\nv_mul_u32_u24 v6, {4*40}, v3\nv_add_u32 v13, v5, v6")
    a("s_waitcnt lgkmcnt(0)")
    srd(a, 8, 4, WS_SIZE); srd(a, 20, 16, 640 * 1280)
    lz = a.label("nz")
    a(f"s_cmp_lg_u32 s3, 0\ns_cbranch_scc1 {lz}\nv_mov_b32 v16, 0\nv_mov_b32 v17, 0\nv_mov_b32 v18, 0\nv_mov_b32 v19, 0\nv_lshlrev_b32 v15, 4, v0\ns_mov_b32 s7, {WS_CNT:#x}\nbuffer_store_dwordx4 v[16:19], v15, s[8:11], s7 offen\ns_add_u32 s7, s7, 4096\nbuffer_store_dwordx4 v[16:19], v15, s[8:11], s7 offen\ns_add_u32 s7, s7, 4096\nbuffer_store_dwordx4 v[16:19], v15, s[8:11], s7 offen\n{lz}:")
    a("s_cmp_ge_u32 s13, 2\ns_cselect_b32 s32, s34, s32\ns_cselect_b32 s33, s35, s33\ns_cmp_ge_u32 s13, 4\ns_cselect_b32 s7, 0, 25600")
    a("s_mov_b32 s24, s32\ns_mov_b32 s25, s33\ns_mov_b32 s26, s7\ns_mov_b32 s27, 0x20000")
    for q in range(2):
        a(f"s_add_u32 s6, s12, {q}\ns_mul_i32 s28, s6, {16*1280}\ns_mul_i32 s29, s6, {16*40}")
        b = 20 + 12*q
        loads8(a, 20, 10, b, b+24, 28, E_PERM, 1280, 30)
        loads8(a, 20, 12, b+8, b+32, 28, E_PERM, 1280, 30)
        a("s_mov_b32 exec_lo, 0xffff\ns_mov_b32 exec_hi, 0xffff")
        loads8(a, 20, 11, b+4, b+28, 28, E_PERM, 1280, 30)
        a("s_mov_b32 exec_lo, 0xffff0000\ns_mov_b32 exec_hi, 0xffff0000")
        loads8(a, 24, 13, b+4, b+28, 29, E_PERM, 40, 30)
        a("s_mov_b64 exec, -1")
        if q == 0: a("s_waitcnt vmcnt(16)")
    a(f"s_mul_i32 s6, s13, 40\ns_add_u32 s6, s6, s12\ns_mul_i32 s6, s6, 3072\ns_add_u32 s6, s6, {WS_WQKV:#x}\ns_waitcnt vmcnt(0)")
    for i in range(24): a(f"v_lshl_or_b32 v{20+i}, v{44+i}, 16, v{20+i}")
    for q in range(2):
        for ft in range(3):
            a(f"buffer_store_dwordx4 v[{20+12*q+4*ft}:{23+12*q+4*ft}], v9, s[8:11], s6 offen offset:{ft*1024}")
        a("s_add_u32 s6, s6, 3072")
    end(a)
    finish(a, grid, 256, 9216, 144)

STG = 20480
NS, DEP = 6, 4
EX = NS * STG
PAR = EX + 24576
LDS_G = PAR + 5120
ACC, WS0, AF, PR, VW = 8, 56, 104, 200, 240

def common_prologue(a, extra_loads=""):
    a(f"s_cmp_ge_u32 s2, 256\ns_cbranch_scc1 L_{a.name}_exit")
    stamp_begin(a)
    a(f"s_load_dwordx2 s[4:5], s[0:1], {KA['ws']}")
    a(extra_loads)
    a("v_and_b32 v4, 63, v0\nv_lshrrev_b32 v5, 6, v0\nv_lshlrev_b32 v1, 4, v4\nv_readfirstlane_b32 s14, v5\nv_and_b32 v2, 31, v4\nv_lshrrev_b32 v3, 5, v4")
    a("s_and_b32 s12, s2, 7\ns_lshr_b32 s3, s2, 6\ns_lshl_b32 s3, s3, 3\ns_add_u32 s12, s12, s3\ns_bfe_u32 s13, s2, 0x30003")

def gemm_prologue(a, extra_loads=""):
    common_prologue(a, extra_loads)
    a("s_bfe_u32 s15, s14, 0x10001\ns_and_b32 s17, s14, 1\ns_lshl_b32 s16, s12, 1\ns_add_u32 s16, s16, s17")
    a(f"s_cmp_ge_u32 s14, 4\ns_cbranch_scc1 L_{a.name}_loader")

def compute_addr(a, rb):
    a.rb = rb
    if rb == 0:
        a(f"s_mul_i32 s3, s15, {6144+2048}\nv_add_u32 v{VW}, s3, v1\ns_mul_i32 s3, s15, {6144-2048}\ns_add_u32 s3, s3, 2048\nv_add_u32 v{VW+2}, s3, v1")
        a(f"s_lshl_b32 s3, s15, 8\nv_xor_b32 v{VW+1}, s3, v1\ns_mul_i32 s3, s15, 6144\ns_add_u32 s3, s3, 1024\nv_add_u32 v{VW+1}, s3, v{VW+1}")
    else:
        a("v_bfe_u32 v4, v0, 2, 2\nv_and_b32 v5, 3, v0\nv_bfe_u32 v6, v0, 4, 1")
        a("v_lshl_add_u32 v4, v3, 2, v4" if rb == 192 else "v_lshl_add_u32 v4, v4, 1, v3")
        a(f"v_mul_u32_u24 v4, {rb}, v4\nv_lshl_add_u32 v4, v5, 3, v4\ns_mul_i32 s3, s15, 6144\nv_add_u32 v4, s3, v4")
        a(f"v_lshl_add_u32 v5, v6, 5, v4\ns_mul_i32 s3, s15, 96\nv_add_u32 v{VW}, s3, v5\ns_sub_u32 s3, 96, s3\nv_add_u32 v{VW+2}, s3, v5")
        if rb == 192:
            a(f"v_xor_b32 v6, s15, v6\nv_mul_u32_u24 v6, 96, v6\nv_add_u32 v6, 64, v6\nv_add_u32 v{VW+1}, v4, v6")
        else:
            a(f"v_add_u32 v{VW+1}, 64, v4")
    a(f"s_lshl_b32 s3, s14, 11\ns_add_u32 s3, s3, 12288\nv_add_u32 v{VW+3}, s3, v1")
    for i in range(4): a(f"v_add_u32 v{VW+4+i}, {3*STG}, v{VW+i}")

def read_ops(a, s, areg):
    slot = s % NS; hi, sl = (4, slot - 3) if slot >= 3 else (0, slot)
    ra, rw = [], []
    if areg is not None:
        for q in range(2):
            ra.append(lambda q=q: a.lg(f"ds_read_b128 v[{areg+4*q}:{areg+4*q+3}], v{VW+3+hi} offset:{sl*STG + q*1024}", ("a", s)))
    for q in range(2):
        for t in range(3):
            r = WS0 + 24*(s % 2) + 12*q + 4*t; o = sl*STG + q*3072
            if a.rb == 0:
                rw.append(lambda r=r, t=t, o=o: a.lg(f"ds_read_b128 v[{r}:{r+3}], v{VW+t+hi} offset:{o}", ("w", s)))
            else:
                def f(r=r, t=t, o=o):
                    a.lg(f"ds_read_b64_tr_b16 v[{r}:{r+1}], v{VW+t+hi} offset:{o}", ("w", s))
                    a.lg(f"ds_read_b64_tr_b16 v[{r+2}:{r+3}], v{VW+t+hi} offset:{o + 8*a.rb}", ("w", s))
                rw.append(f)
    return ra, rw

def mfma_ops(a, wset, areg, first):
    ops = []
    for q in range(2):
        for t in range(3):
            r = ACC + 16*t; w = WS0 + 24*wset + 12*q + 4*t; b = areg + 4*q
            c = "0" if (first and q == 0) else f"v[{r}:{r+15}]"
            ops.append(lambda r=r, w=w, b=b, c=c: a(f"v_mfma_f32_32x32x16_bf16 v[{r}:{r+15}], v[{w}:{w+3}], v[{b}:{b+3}], {c}"))
    return ops

def transform_ops(a, F, P, rr, nm, t=232):
    ops = []
    for d in range(4):
        x, y = t + 2*(d % 2), t + 2*(d % 2) + 1
        L = [f"v_lshlrev_b32 v{x}, 16, v{F+d}", f"v_and_b32 v{y}, 0xffff0000, v{F+d}",
             f"v_fma_f32 v{x}, v{x}, v{rr}, v{nm}", f"v_fma_f32 v{y}, v{y}, v{rr}, v{nm}",
             f"v_fma_f32 v{x}, v{x}, v{P+8+2*d}, v{P+2*d}", f"v_fma_f32 v{y}, v{y}, v{P+9+2*d}, v{P+1+2*d}", f"v_cvt_pk_bf16_f32 v{F+d}, v{x}, v{y}"]
        ops += [(lambda l=l: a(l)) for l in L]
    return ops

def merge(*lists):
    items = []
    for li, L in enumerate(lists):
        n = len(L)
        for i, op in enumerate(L): items.append(((i + 0.5 * (li > 0)) / n, li, i, op))
    items.sort(key=lambda x: (x[0], x[1], x[2]))
    return [x[3] for x in items]
def run(ops):
    for op in ops: op()

def param_base(a):
    a(f"s_mul_i32 s3, s15, 1280\ns_add_u32 s3, s3, {PAR}\nv_lshlrev_b32 v6, 4, v3\nv_add_u32 v6, s3, v6")
def param_ops(a, ks):
    ops = []
    for arr in range(2):
        P = PR + 16*(ks % 2) + 8*arr; off = arr*2560 + ks*64
        ops.append(lambda P=P, off=off: a.lg(f"ds_read_b128 v[{P}:{P+3}], v6 offset:{off}", ("p", ks)))
        ops.append(lambda P=P, off=off: a.lg(f"ds_read_b128 v[{P+4}:{P+7}], v6 offset:{off+32}", ("p", ks)))
    return ops

def exchange(a, R):
    a(f"s_mul_i32 s3, s14, 6144\ns_add_u32 s3, s3, {EX}\nv_add_u32 v4, s3, v1\ns_xor_b32 s3, s14, 2\ns_mul_i32 s3, s3, 6144\ns_add_u32 s3, s3, {EX}\nv_add_u32 v5, s3, v1\ns_nop 4")
    for i in range(6): a(f"ds_write_b128 v4, v[{ACC+24+4*i}:{ACC+27+4*i}] offset:{i*1024}")
    a.wait_all_lg()
    a("s_barrier")
    for j in range(3):
        for h in range(2):
            a(f"ds_read_b128 v[{R+8*j+4*h}:{R+8*j+4*h+3}], v5 offset:{((j+1)%3)*2048 + h*1024}")
    for j in range(3):
        a(f"s_waitcnt lgkmcnt({4-2*j})")
        for i in range(8): a(f"v_add_f32 v{ACC+8*j+i}, v{ACC+8*j+i}, v{R+8*j+i}")

def c_start(a, areg_of, xf=None):
    a("s_barrier")
    stamp(a, 3)
    ra, rw = read_ops(a, 0, areg_of(0))
    run(ra)
    if xf:
        n, rr, nm = xf
        run(param_ops(a, 0)); run(param_ops(a, 1)); run(rw)
        a.wait(lg=[("a", 0), ("p", 0)])
        run(transform_ops(a, areg_of(0), PR, rr, nm))
        a.wait(lg=[("p", 1)])
        run(merge(transform_ops(a, areg_of(0) + 4, PR + 16, rr, nm), param_ops(a, 2)))
    else:
        run(rw)

def c_iter(a, s, first, total, areg_of, xf=None, load_a=True):
    ra, rw = [], []
    if s + 1 < total:
        a("s_barrier")
        ra, rw = read_ops(a, s + 1, areg_of(s + 1) if load_a else None)
    mf = mfma_ops(a, s % 2, areg_of(s), first)
    if os.environ.get("X_NORD"): ra, rw = [], []
    if os.environ.get("X_NOMFMA"): mf = [lambda: a("s_nop 0")] * 6
    if os.environ.get("X_NOXF"): xf = None
    if xf and s + 1 < xf[0]:
        n, rr, nm = xf
        k0 = 2*(s+1)
        run(ra); run(param_ops(a, k0 + 1))
        a.wait(lg=[("w", s)])
        run(merge(mf[:2], rw[:2]))
        a.wait(lg=[("a", s+1), ("p", k0)])
        run(merge(transform_ops(a, areg_of(s+1), PR, rr, nm), mf[2:4], rw[2:4]))
        a.wait(lg=[("p", k0 + 1)])
        nxt = param_ops(a, k0 + 2) if s + 2 < n else []
        run(merge(transform_ops(a, areg_of(s+1) + 4, PR + 16, rr, nm), mf[4:], rw[4:] + nxt))
    else:
        a.wait(lg=[("w", s), ("a", s)])
        run(merge(mf, ra + rw))

class Loader:
    def __init__(self, a, act_base, nks, wmode, wbase=None, wblocks=1, ka_sreg=None, rs=0, nbytes=0, colbytes=0, col0=0):
        self.a, self.wmode = a, wmode
        a(f"L_{a.name}_loader:")
        a.vmq = []; a.lgq = []
        a(f"s_and_b32 s3, s14, 3\ns_mul_i32 s20, s3, 3072\ns_lshl_b32 s21, s3, 11\ns_add_u32 s21, s21, 12288")
        a(f"s_mul_i32 s18, s16, {nks*1024}\ns_mul_i32 s3, s15, {nks*512}\ns_add_u32 s18, s18, s3\ns_add_u32 s18, s18, {act_base:#x}")
        if wmode == 0:
            a(f"s_mul_i32 s19, s13, {wblocks*nks*3072}\ns_mul_i32 s3, s15, {nks*1536}\ns_add_u32 s19, s19, s3\ns_mul_i32 s3, s17, 3072\ns_add_u32 s19, s19, s3\ns_add_u32 s19, s19, {wbase:#x}")
            self.wstep, self.wsrd, self.wv = 6144, 8, (1, 1, 1)
        else:
            cpr = wmode // 16
            a(f"s_mul_i32 s19, s15, {nks*8*rs}\ns_mul_i32 s3, s17, {16*rs}\ns_add_u32 s19, s19, s3\ns_mul_i32 s3, s13, {colbytes}\ns_add_u32 s19, s19, s3\ns_add_u32 s19, s19, {col0}")
            a("v_and_b32 v4, 63, v0")
            for i in range(3):
                a(f"v_add_u32 v5, {64*i}, v4\nv_mul_u32_u24 v6, {(1 << 16) // cpr + 1}, v5\nv_lshrrev_b32 v6, 16, v6\nv_mul_u32_u24 v7, {cpr}, v6\nv_sub_u32 v7, v5, v7")
                if wmode == 160:
                    a("v_and_b32 v8, 8, v6\nv_and_b32 v9, 1, v6\nv_lshl_add_u32 v8, v9, 2, v8\nv_bfe_u32 v9, v6, 1, 2\nv_add_u32 v6, v8, v9")
                a(f"v_mul_u32_u24 v6, {rs}, v6\nv_lshl_add_u32 v{10+i}, v7, 4, v6")
                if i: a(f"v_subrev_u32 v{10+i}, {1024*i}, v{10+i}")
                if wmode == 160 and i == 2:
                    a(f"v_mov_b32 v8, {OOB:#x}\nv_cmp_gt_u32 vcc, 32, v4\ns_nop 1\nv_cndmask_b32 v12, v8, v12, vcc")
            self.wstep, self.wsrd, self.wv = 32 * rs, 40, (10, 11, 12)
        a("s_waitcnt lgkmcnt(0)")
        srd(a, 8, 4, WS_SIZE)
        if wmode: srd(a, 40, ka_sreg, nbytes)
        stamp(a, 1)
    def dma1(self, lds_off, goff_expr_sreg, tag):
        a = self.a
        a(f"s_mov_b32 m0, {lds_off}\ns_nop 0")
        a.vm(f"buffer_load_dwordx4 v1, s[8:11], s{goff_expr_sreg} offen lds", tag)
    def params(self, mod_off):
        a = self.a
        a(f"s_and_b32 s3, s14, 3\ns_lshl_b32 s3, s3, 10\ns_add_u32 m0, s3, {PAR}\ns_add_u32 s6, s3, {WS_MOD + mod_off}")
        a.vm("buffer_load_dwordx4 v1, s[8:11], s6 offen lds", "par")
        a(f"s_mov_b32 s6, {WS_MOD + mod_off + 4096}")
        self.dma1(PAR + 4096, 6, "par")
    def issue(self, s, with_a=True):
        a = self.a; slot = s % NS
        if with_a:
            a(f"s_add_u32 m0, s21, {slot*STG}\ns_nop 0")
            for q in range(2): a.vm(f"buffer_load_dwordx4 v1, s[8:11], s18 offen offset:{q*1024} lds", ("st", s))
            a("s_add_u32 s18, s18, 2048")
        a(f"s_add_u32 m0, s20, {slot*STG}\ns_nop 0")
        for i in range(3): a.vm(f"buffer_load_dwordx4 v{self.wv[i]}, s[{self.wsrd}:{self.wsrd+3}], s19 offen offset:{i*1024} lds", ("st", s))
        a(f"s_add_u32 s19, s19, {self.wstep}")
    def start(self, issue):
        issue(0); issue(1)
        stamp(self.a, 2)
    def step(self, s, total, issue):
        a = self.a
        a.wait(vm=[("st", s)])
        a("s_barrier")
        if s == 0:
            for t in range(2, DEP): issue(t)
        if s + DEP < total: issue(s + DEP)

def prefetch(a, srdn, base, nbytes, nw, widx, vdst, vtmp, st):
    per_wg = -(-nbytes // 32 // 128) * 128
    per_wave = -(-per_wg // (8192 * nw))
    a(f"s_lshr_b32 s{st}, s2, 3\ns_mul_i32 s{st}, s{st}, {per_wg}\ns_mul_i32 s{st+1}, s{widx}, {per_wave*8192}\ns_add_u32 s{st}, s{st}, s{st+1}\ns_add_u32 s{st}, s{st}, {base:#x}\nv_lshlrev_b32 v{vtmp}, 3, v1")
    for i in range(per_wave):
        a.vm(f"buffer_load_dword v{vdst}, v{vtmp}, s[{srdn}:{srdn+3}], s{st} offen")
        if i < per_wave - 1: a(f"s_add_u32 s{st}, s{st}, 8192")

def unit_off(a, d, per_nb, base):
    a(f"s_lshl_b32 s{d}, s16, 3\ns_add_u32 s{d}, s{d}, s13\ns_mul_i32 s{d}, s{d}, {per_nb}\ns_mul_i32 s6, s15, 3\ns_add_u32 s{d}, s{d}, s6\ns_lshl_b32 s{d}, s{d}, 10\ns_add_u32 s{d}, s{d}, {base:#x}")

def k1():
    a = K("k1")
    gemm_prologue(a)
    compute_addr(a, 0); param_base(a)
    RR, NM = 236, 237
    a(f"v_lshlrev_b32 v7, 3, v2\ns_lshl_b32 s6, s16, 8\ns_add_u32 s6, s6, {WS_ST0:#x}\ns_waitcnt lgkmcnt(0)")
    srd(a, 8, 4, WS_SIZE)
    stamp(a, 1)
    a(f"buffer_load_dwordx2 v[{RR}:{NM}], v7, s[8:11], s6 offen\ns_waitcnt vmcnt(0)")
    areg = lambda s: AF + 8*(s % 2)
    xf = (10, RR, NM)
    c_start(a, areg, xf)
    for s in range(10): c_iter(a, s, s == 0, 10, areg, xf)
    stamp(a, 4)
    T = WS0
    exchange(a, T)
    stamp(a, 5)
    R = ACC
    QS = LOG2E / math.sqrt(20.0)
    unit_off(a, 17, 5, WS_Q)
    a(f"s_mov_b32 s7, {f32(QS)}")
    def qunit(i):
        for j in range(8): a(f"v_mul_f32 v{T+j}, s7, v{R+8*i+j}")
        for d in range(4): a(f"v_cvt_pk_bf16_f32 v{T+8+4*i+d}, v{T+2*d}, v{T+2*d+1}")
        a(f"buffer_store_dwordx4 v[{T+8+4*i}:{T+11+4*i}], v1, s[8:11], s17 offen offset:{i*1024}")
    qunit(0); qunit(1)
    lsp = a.label("spare")
    a(f"s_cmp_eq_u32 s15, 1\ns_cbranch_scc1 {lsp}")
    qunit(2)
    a(f"s_branch L_k1_end\n{lsp}:")
    a("s_cmp_ge_u32 s13, 4\ns_cbranch_scc1 L_k1_end")
    S = R + 16
    a(f"s_lshr_b32 s6, s16, 3\ns_mul_i32 s17, s6, {KVCH}\ns_add_u32 s17, s17, {WS_KV:#x}\ns_and_b32 s18, s16, 7")
    l1, lv, l2 = a.label("k2"), a.label("v"), a.label("k2b")
    a(f"s_cmp_eq_u32 s13, 3\ns_cbranch_scc0 {l1}\nv_mov_b32 v{S+4}, 1.0\ns_mov_b32 exec_lo, 0\nv_mov_b32 v{S}, 1.0\ns_mov_b32 exec_lo, -1\n{l1}:")
    for d in range(4): a(f"v_cvt_pk_bf16_f32 v{T+d}, v{S+2*d}, v{S+2*d+1}")
    a(f"s_cmp_ge_u32 s13, 2\ns_cbranch_scc1 {lv}\ns_cmp_eq_u32 s13, 1\ns_cbranch_scc1 {l2}")
    a(f"s_lshl_b32 s18, s18, 10\ns_add_u32 s17, s17, s18\nbuffer_store_dwordx4 v[{T}:{T+3}], v1, s[8:11], s17 offen\ns_branch L_k1_end")
    a(f"{l2}:\ns_lshl_b32 s18, s18, 8\ns_add_u32 s17, s17, s18\ns_add_u32 s17, s17, 24576\nv_lshrrev_b32 v4, 2, v1\nbuffer_store_dword v{T}, v4, s[8:11], s17 offen\ns_branch L_k1_end")
    a(f"{lv}:")
    a(f"s_lshl_b32 s3, s14, 11\nv_lshlrev_b32 v4, 5, v2\nv_lshl_add_u32 v4, v3, 3, v4\nv_add_u32 v4, s3, v4")
    a(f"ds_write_b64 v4, v[{T}:{T+1}]\nds_write_b64 v4, v[{T+2}:{T+3}] offset:16")
    a("v_lshrrev_b32 v4, 4, v1\nv_and_b32 v5, 15, v4\nv_lshrrev_b32 v4, 4, v4")
    a("v_and_b32 v6, 1, v4\nv_lshlrev_b32 v6, 4, v6\nv_lshl_add_u32 v6, v3, 2, v6\nv_lshrrev_b32 v7, 2, v5\nv_add_u32 v6, v6, v7\nv_lshlrev_b32 v6, 5, v6\nv_and_b32 v7, 3, v5\nv_lshl_add_u32 v6, v7, 3, v6\nv_add_u32 v6, s3, v6")
    a("s_waitcnt lgkmcnt(0)")
    a(f"ds_read_b64_tr_b16 v[{T+4}:{T+5}], v6\nds_read_b64_tr_b16 v[{T+6}:{T+7}], v6 offset:256")
    a("v_and_b32 v6, 1, v4\nv_lshlrev_b32 v6, 10, v6\nv_lshl_add_u32 v6, v3, 9, v6\nv_lshl_add_u32 v6, v5, 4, v6")
    a(f"s_lshl_b32 s18, s18, 11\ns_add_u32 s17, s17, s18\ns_add_u32 s17, s17, 8192\ns_cmp_eq_u32 s13, 2\ns_cselect_b32 s6, 256, 0\ns_add_u32 s17, s17, s6")
    a(f"s_waitcnt lgkmcnt(0)\nbuffer_store_dwordx4 v[{T+4}:{T+7}], v6, s[8:11], s17 offen")
    a("s_branch L_k1_end")
    L = Loader(a, WS_XH, 40, 0, wbase=WS_WQKV)
    L.params(0)
    L.start(L.issue)
    for s in range(10): L.step(s, 10, L.issue)
    end(a)
    finish(a, 256, 512, LDS_G, 248)

def k2():
    K2T = os.environ.get("X_K2T"); SYNC = os.environ.get("X_SYNC", "bar")
    a = K("k2")
    common_prologue(a, f"s_load_dwordx4 s[32:35], s[0:1], {KA['w_in']}\ns_load_dwordx2 s[36:37], s[0:1], {KA['wo']}\ns_load_dwordx2 s[38:39], s[0:1], {KA['w_out']}")
    SA = [(8, 24), (40, 56)]; OO = [72, 88]; PP = [104, 112]; QQ1 = [120, 128]; QQ2 = [124, 132]
    KA_, KB_, V1, V2 = 136, 140, 144, 148
    VA, VB, VN, VNB, DUM, OA, CA = 4, 5, 6, 152, 153, 154, 160
    NB = 6
    FLAG = NB * KVCH
    a("s_mov_b32 s27, 0")
    a("s_cmp_ge_u32 s14, 4\ns_cbranch_scc1 L_k2_helper")
    a("v_lshrrev_b32 v7, 2, v1")
    a("s_lshr_b32 s15, s14, 1\ns_and_b32 s16, s14, 1\ns_lshl_b32 s16, s16, 1\ns_lshl_b32 s17, s12, 1\ns_add_u32 s17, s17, s15")
    a(f"s_lshl_b32 s18, s17, 3\ns_add_u32 s18, s18, s13\ns_mul_i32 s18, s18, 5120\ns_add_u32 s18, s18, {WS_Q:#x}\ns_lshl_b32 s6, s16, 10\ns_add_u32 s19, s18, s6\ns_lshl_b32 s6, s16, 2\ns_add_u32 s18, s18, s6\ns_add_u32 s18, s18, 4096")
    a("s_waitcnt lgkmcnt(0)")
    srd(a, 8, 4, WS_SIZE)
    stamp(a, 1)
    for X in range(2):
        a(f"buffer_load_dwordx4 v[{QQ1[X]}:{QQ1[X]+3}], v1, s[8:11], s19 offen offset:{1024*X}\nbuffer_load_dword v{QQ2[X]}, v1, s[8:11], s18 offen offset:{4*X}")
    def qk1(X, S): return f"v_mfma_f32_32x32x16_bf16 v[{S}:{S+15}], v[{KB_}:{KB_+3}], v[{QQ2[X]}:{QQ2[X]+3}], 0"
    def qk2(X, S): return f"v_mfma_f32_32x32x16_bf16 v[{S}:{S+15}], v[{KA_}:{KA_+3}], v[{QQ1[X]}:{QQ1[X]+3}], v[{S}:{S+15}]"
    def pv(X, V, P): return f"v_mfma_f32_32x32x16_bf16 v[{OO[X]}:{OO[X]+15}], v[{V}:{V+3}], v[{P}:{P+3}], v[{OO[X]}:{OO[X]+15}]"
    def rKA(t, va): return f"ds_read_b128 v[{KA_}:{KA_+3}], v{va} offset:{t*1024}"
    def rKB(t, vb): return f"ds_read_b32 v{KB_}, v{vb} offset:{24576+t*256}"
    def rV(t, p, va): return f"ds_read_b128 v[{(V1, V2)[p]}:{(V1, V2)[p]+3}], v{va} offset:{8192+t*2048+p*1024}"
    def scores():
        for X in range(2): a(qk1(X, SA[X][0]))
        for X in range(2): a(qk2(X, SA[X][0]))
    def max_reduce():
        for X in range(2):
            for i in range(0, 16, 2): a(f"v_max3_f32 v{PP[X]}, v{SA[X][0]+i}, v{SA[X][0]+i+1}, v{PP[X]}")
    def finish_max():
        a("v_cmp_eq_u32 vcc, 0, v3")
        for X in range(2):
            M = PP[X]
            a(f"v_mov_b32 v{M+1}, v{M}\ns_nop 1\nv_permlane32_swap_b32 v{M}, v{M+1}\ns_nop 1\nv_max_f32 v{M}, v{M}, v{M+1}")
            a(f"v_and_b32 v{M+1}, 0xffff0000, v{M}\nv_sub_f32 v{M+2}, v{M}, v{M+1}\nv_and_b32 v{M+3}, 0xffff0000, v{M+2}\nv_sub_f32 v{M+2}, v{M+2}, v{M+3}")
            a(f"v_lshrrev_b32 v{M+1}, 16, v{M+1}\nv_or_b32 v{M+1}, v{M+1}, v{M+3}\nv_lshrrev_b32 v{M+2}, 16, v{M+2}")
            a(f"v_cndmask_b32 v{QQ2[X]+1}, 0, v{M+1}, vcc\nv_cndmask_b32 v{QQ2[X]+2}, 0, v{M+2}, vcc")
    def reset_max():
        for X in range(2): a(f"v_mov_b32 v{QQ2[X]+1}, 0\nv_mov_b32 v{QQ2[X]+2}, 0\nv_mov_b32 v{PP[X]}, 0xff800000")
    reset_max()
    for r in (QQ2[0]+3, QQ2[1]+3, KB_+3): a(f"v_mov_b32 v{r}, 0")
    for r in (KB_+1, KB_+2): a(f"v_mov_b32 v{r}, 0xbf80bf80")
    def main_init():
        a(f"s_mov_b32 s24, 0\ns_mov_b32 s25, {KVCH}\nv_mov_b32 v{VNB}, {FLAG+68}\nv_mov_b32 v{VA}, v1\nv_mov_b32 v{VN}, v1\nv_mov_b32 v{VB}, v7")
        for X in range(2):
            for i in range(16): a(f"v_mov_b32 v{OO[X]+i}, 0")
            for i in range(4): a(f"v_mov_b32 v{SA[X][1]+12+i}, 0")
        for i in range(4): a(f"v_mov_b32 v{V2+i}, 0")
    main_init()
    a(f"s_mul_i32 s6, s13, 20\ns_mul_i32 s7, s16, 5\ns_add_u32 s6, s6, s7\ns_mul_i32 s22, s17, {40*1024}\ns_add_u32 s22, s22, {WS_O:#x}")
    for X in range(2):
        for i, g in enumerate((0, 2, 4)):
            a(f"v_add_u32 v8, s6, v3\nv_add_u32 v8, {5*X+g}, v8" if g < 4 else f"v_mov_b32 v8, s6\nv_add_u32 v8, {5*X+4}, v8")
            a(f"v_lshrrev_b32 v9, 2, v8\nv_lshlrev_b32 v9, 10, v9\nv_and_b32 v10, 1, v8\nv_lshl_add_u32 v9, v10, 9, v9\nv_bfe_u32 v10, v8, 1, 1\nv_lshl_add_u32 v9, v10, 3, v9\nv_lshl_add_u32 v{OA+3*X+i}, v2, 4, v9")
    a(f"v_mov_b32 v{CA}, {FLAG+32}\nv_mov_b32 v{CA+2}, 0\nv_add_u32 v{CA+3}, {FLAG+32}, v7\nds_write_b32 v{CA+3}, v{CA+2}\nv_mov_b32 v{CA+1}, 1")
    a("s_waitcnt vmcnt(0) lgkmcnt(0)\ns_barrier")
    stamp(a, 2)
    a(rKA(0, 1)); a(rKB(0, 7)); a("s_waitcnt lgkmcnt(0)")
    scores()
    a("s_nop 10")
    max_reduce()
    finish_max()
    a("L_k2_main:")
    for X in range(2):
        for i in range(2): a(f"v_mov_b32 v{PP[X]+4+i}, 0")
    scores()
    a(rKB(1, VB)); a(f"ds_read_b32 v{DUM}, v{VB}"); a(rKA(1, VA)); a(rV(0, 0, VA))
    a("s_nop 5")
    stamp(a, 3)
    slow = []
    a("L_k2_loop:")
    for t in range(8):
        kt, vt = (t + 2) % 8, (t + 1) % 8
        if PROF and os.environ.get("X_GT"):
            if t == 0: a("s_memtime s[80:81]")
            if t == 3: a("s_lshl_b32 m0, s24, 1\ns_nop 0\ns_movreld_b32 s56, s80")
        for gi in range(4):
            for X in range(2):
                S, Sp = (SA[X][0], SA[X][1]) if t % 2 == 0 else (SA[X][1], SA[X][0])
                P = PP[X]
                cv, mf, rd = [([(6, Sp+12), (7, Sp+14)], qk1(X, Sp), rKB(kt, VB)),
                              ([(0, S), (1, S+2)], pv(X, V2, P+4), rV(t, 1, VN)),
                              ([(2, S+4), (3, S+6)], qk2(X, Sp), rKA(kt, VA)),
                              ([(4, S+8), (5, S+10)], pv(X, V1, P), rV(vt, 0, VN))][gi]
                for d, r in cv: a(f"v_cvt_pk_bf16_f32 v{P+d}, v{r}, v{r+1}")
                if gi % 2 == 0 and X == 0: a("s_waitcnt lgkmcnt(2)")
                a(mf)
                if X == 1: a(rd)
                if X == 0 and (t, gi) == (5, 0):
                    ls, l2, l5 = a.label("bs"), a.label("g2"), a.label("g5")
                    a(f"s_cmp_eq_u32 s24, 5\ns_cselect_b32 s26, {-5*KVCH}, s25\ns_bitcmp1_b32 39, s24\ns_cbranch_scc0 {ls}\ns_cmp_eq_u32 s24, 2\ns_cbranch_scc1 {l2}\ns_cmp_eq_u32 s24, 5\ns_cbranch_scc1 {l5}\ns_barrier\ns_branch {ls}")
                    a(f"{l2}:\ns_mov_b64 exec, 1\nds_add_u32 v{CA}, v{CA+1}\ns_mov_b64 exec, -1\ns_branch {ls}")
                    a(f"{l5}:\nds_read_b32 v{DUM}, v{CA} offset:4\ns_waitcnt lgkmcnt(0)\nv_readfirstlane_b32 s3, v{DUM}\ns_cmp_lt_u32 s3, 4\ns_cbranch_scc1 {l5}\n{ls}:")
                if X == 0 and (t, gi) == (6, 0): a(f"v_add_u32 v{VB}, s26, v{VB}\nv_add_u32 v{VA}, s26, v{VA}")
                if X == 0 and (t, gi) == (7, 2): a(f"v_add_u32 v{VN}, s26, v{VN}")
                for i in range(4): a(f"v_exp_f32 v{S+4*gi+i}, v{S+4*gi+i}")
    a("s_add_u32 s24, s24, 1\ns_cmp_lt_u32 s24, 8\ns_cbranch_scc1 L_k2_loop")
    for X in range(2):
        a(f"v_cvt_pk_bf16_f32 v{PP[X]+6}, v{SA[X][1]+12}, v{SA[X][1]+13}\nv_cvt_pk_bf16_f32 v{PP[X]+7}, v{SA[X][1]+14}, v{SA[X][1]+15}")
    a("s_waitcnt lgkmcnt(0)\nv_cmp_eq_u32 vcc, 0, v3")
    for X in range(2): a(pv(X, V2, PP[X]+4))
    a(f"v_mov_b32 v{KA_}, {f32(2.0**30)}\nv_mov_b32 v{KA_+1}, {f32(2.0**-30)}\ns_mov_b64 s[28:29], 0\ns_nop 8")
    if not os.environ.get("X_GT"): stamp(a, 4)
    for X in range(2):
        O, T, L = OO[X], SA[X][0], PP[X]
        a(f"v_cndmask_b32 v{L}, v{O}, v{O+4}, vcc\nv_rcp_f32 v{L+1}, v{L}")
        a(f"v_cmp_nle_f32 s[30:31], v{L}, v{KA_}\ns_or_b64 s[28:29], s[28:29], s[30:31]\nv_cmp_nge_f32 s[30:31], v{L}, v{KA_+1}\ns_or_b64 s[28:29], s[28:29], s[30:31]")
        for i, r in enumerate((8, 9, 10, 11, 12, 13, 14, 15, 0, 1, 2, 3)): a(f"v_mul_f32 v{T+6+i}, v{O+r}, v{L+1}")
        for d in range(6): a(f"v_cvt_pk_bf16_f32 v{T+d}, v{T+6+2*d}, v{T+7+2*d}")
        a(f"buffer_store_dwordx2 v[{T}:{T+1}], v{OA+3*X}, s[8:11], s22 offen\nbuffer_store_dwordx2 v[{T+2}:{T+3}], v{OA+3*X+1}, s[8:11], s22 offen")
        a(f"s_mov_b32 exec_hi, 0\nbuffer_store_dwordx2 v[{T+4}:{T+5}], v{OA+3*X+2}, s[8:11], s22 offen\ns_mov_b32 exec_hi, -1")
    a(f"s_cmp_eq_u32 s27, 1\ns_cbranch_scc1 L_k2_end")
    a(f"s_cmp_lg_u64 s[28:29], 0\ns_cselect_b32 s3, 1, 0\nv_mov_b32 v{V1}, s3\ns_lshl_b32 s6, s14, 2\ns_add_u32 s6, s6, {FLAG}\nv_mov_b32 v{V1+1}, s6\nds_write_b32 v{V1+1}, v{V1}\ns_waitcnt lgkmcnt(0)")
    def vote(lend):
        a(f"s_barrier\nv_mov_b32 v44, {FLAG}\nds_read_b128 v[40:43], v44\ns_waitcnt lgkmcnt(0)")
        for i in range(1, 4): a(f"v_or_b32 v40, v40, v{40+i}")
        a(f"s_nop 0\nv_readfirstlane_b32 s3, v40\ns_cmp_eq_u32 s3, {XCMP}\ns_cbranch_scc1 {lend}\ns_mov_b32 s27, 1")
    vote("L_k2_end")
    reset_max()
    a("s_mov_b32 s24, 0")
    a("L_k2_maxloop:")
    a("s_barrier\ns_barrier")
    for t in range(8):
        a(rKA(t, 1)); a(rKB(t, 7)); a("s_waitcnt lgkmcnt(0)")
        scores()
        a("s_nop 10")
        max_reduce()
    a("s_add_u32 s24, s24, 1\ns_cmp_lt_u32 s24, 8\ns_cbranch_scc1 L_k2_maxloop")
    finish_max()
    main_init()
    a(f"s_barrier\nds_write_b32 v{CA+3}, v{CA+2}\ns_waitcnt lgkmcnt(0)\ns_barrier")
    a(rKA(0, 1)); a(rKB(0, 7)); a("s_waitcnt lgkmcnt(0)")
    a("s_branch L_k2_main")
    for x in slow: a(x)
    a("L_k2_helper:")
    a(f"s_setprio {os.environ.get('X_HPRIO', '2')}")
    a(f"s_sub_u32 s15, s14, 4\ns_lshl_b32 s21, s15, 10\ns_add_u32 s20, s21, {WS_KV:#x}\ns_waitcnt lgkmcnt(0)")
    srd(a, 8, 4, WS_SIZE)
    stamp(a, 1)
    THR = int(os.environ.get("X_THR", "9"))
    def dma(goff, loff):
        ld = a.label("d")
        for i in range(7):
            if i == 6: a(f"s_cmp_ge_u32 s15, 2\ns_cbranch_scc1 {ld}")
            if goff and i > THR: a(f"s_waitcnt vmcnt({THR})")
            a(f"s_add_u32 m0, s21, {loff + i*4096}\ns_add_u32 s23, s20, {goff + i*4096}\nbuffer_load_dwordx4 v1, s[8:11], s23 offen lds")
        a(f"{ld}:")
    a("L_k2_hmain:")
    dma(0, 0)
    a("s_waitcnt vmcnt(0)\ns_barrier")
    if os.environ.get("X_K2T") == "1": a("s_branch L_k2_end")
    a(f"v_mov_b32 v6, {FLAG+32}\nv_mov_b32 v7, 1")
    def dma_loop(g0, n, lds0):
        lg, lp = a.label("dg"), a.label("dp")
        a(f"s_add_u32 s28, s20, {g0*KVCH}\ns_add_u32 s29, s21, {lds0}\ns_mov_b32 s31, {n}\nv_mov_b32 v5, {FLAG+64+4*g0}")
        a(f"{lg}:\ns_cmp_lt_u32 s15, 2\ns_cselect_b32 s30, 7, 6\ns_mov_b32 s22, s28\ns_mov_b32 m0, s29")
        a(f"{lp}:\ns_waitcnt vmcnt({THR})\nbuffer_load_dwordx4 v1, s[8:11], s22 offen lds\ns_add_u32 m0, m0, 4096\ns_add_u32 s22, s22, 4096\ns_sub_u32 s30, s30, 1\ns_cmp_lg_u32 s30, 0\ns_cbranch_scc1 {lp}")
        a(f"s_waitcnt vmcnt(0)\nds_add_u32 v5, v7\nv_add_u32 v5, 4, v5\ns_add_u32 s28, s28, {KVCH}\ns_add_u32 s29, s29, {KVCH}\ns_sub_u32 s31, s31, 1\ns_cmp_lg_u32 s31, 0\ns_cbranch_scc1 {lg}")
    dma(KVCH, KVCH); dma(2*KVCH, 2*KVCH)
    a("s_waitcnt vmcnt(0)\ns_barrier")
    for g in (3, 4, 5): dma(g*KVCH, g*KVCH)
    a("s_waitcnt vmcnt(0)\ns_barrier")
    stamp(a, 2)
    lns = a.label("noside")
    if os.environ.get("X_K2T") == "2": a("s_branch L_k2_end")
    a(f"s_cmp_lg_u32 s27, 0\ns_cbranch_scc1 {lns}")
    pack_weights(a)
    a(f"s_lshr_b32 s3, s2, 3\ns_lshl_b32 s3, s3, 7\ns_add_u32 s3, s3, {WS_CNT:#x}\nv_mov_b32 v4, 0\nv_mov_b32 v5, 1\ns_waitcnt vmcnt(0)\ns_mov_b64 exec, 1")
    a("buffer_atomic_add v5, v4, s[8:11], s3 offen\ns_mov_b64 exec, -1")
    stamp(a, 3)
    a(f"{lns}:")
    lw = a.label("wdone")
    a(f"v_mov_b32 v6, {FLAG+32}\nv_mov_b32 v7, 1\n{lw}:\nds_read_b32 v8, v6\ns_waitcnt lgkmcnt(0)\nv_readfirstlane_b32 s3, v8\ns_cmp_ge_u32 s3, 4\ns_cbranch_scc1 {lw}x\ns_sleep 8\ns_branch {lw}\n{lw}x:")
    dma(6*KVCH, 0); dma(7*KVCH, KVCH)
    a("s_waitcnt vmcnt(0)\ns_mov_b64 exec, 1\nds_add_u32 v6, v7 offset:4\ns_mov_b64 exec, -1\ns_waitcnt lgkmcnt(0)")
    stamp(a, 4)
    a(f"s_cmp_eq_u32 s27, 1\ns_cbranch_scc1 L_k2_end")
    srd(a, 40, 34, 2048 * 4096)
    a("s_lshl_b32 s17, s12, 1\ns_lshr_b32 s3, s15, 1\ns_add_u32 s17, s17, s3\ns_lshl_b32 s16, s13, 4\ns_and_b32 s3, s15, 1\ns_lshl_b32 s3, s3, 3\ns_add_u32 s16, s16, s3")
    a("s_lshl_b32 s6, s17, 17\ns_lshl_b32 s7, s16, 5\ns_add_u32 s6, s6, s7\nv_lshlrev_b32 v4, 12, v2\nv_lshl_add_u32 v4, v3, 4, v4")
    for i in range(8): a(f"buffer_load_dwordx4 v[{8+4*i}:{11+4*i}], v4, s[40:43], s6 offen offset:{32*i} nt")
    a(f"s_lshl_b32 s6, s17, 7\ns_add_u32 s6, s6, s16\ns_lshl_b32 s6, s6, 10\ns_add_u32 s6, s6, {WS_WSP:#x}")
    for i in range(8):
        a(f"s_waitcnt vmcnt(7)\nbuffer_store_dwordx4 v[{8+4*i}:{11+4*i}], v1, s[8:11], s6 offen offset:{(i%4)*1024}")
        if i == 3: a("s_add_u32 s6, s6, 4096")
    stamp(a, 5)
    def pf(which):
        lp, lgo, lskip = a.label("ppoll"), a.label("pgo"), a.label("pskip")
        a(f"v_lshlrev_b32 v4, 7, v2\ns_mov_b32 s3, {WS_CNT:#x}\ns_mov_b32 s29, 8\n{lp}:")
        a(f"buffer_load_dword v5, v4, s[8:11], s3 offen sc1\ns_waitcnt vmcnt(0)\nv_cmp_gt_u32 vcc, 32, v5\ns_cbranch_vccz {lgo}\ns_sub_u32 s29, s29, 1\ns_cbranch_scc1 {lskip}\ns_sleep 4\ns_branch {lp}\n{lgo}:")
        for b, n in which: prefetch(a, 8, b, n, 4, 15, 8, 4, 28)
        a(f"{lskip}:")
    PFA = os.environ.get("X_PFA", "2")
    if PFA == "1": pf([(WS_WO, 960 * 1024)])
    if PFA == "2": pf([(WS_WIN, 1920 * 1024)])
    if PFA == "3": pf([(WS_WO, 960 * 1024), (WS_WIN, 1920 * 1024)])
    if PROF: a("s_waitcnt vmcnt(0)")
    stamp(a, 7)
    vote("L_k2_end")
    a("s_mov_b32 s24, 0")
    a("L_k2_hmax:")
    a("s_barrier")
    dma(0, 0)
    a(f"s_add_u32 s20, s20, {KVCH}\ns_waitcnt vmcnt(0)\ns_barrier\ns_add_u32 s24, s24, 1\ns_cmp_lt_u32 s24, 8\ns_cbranch_scc1 L_k2_hmax")
    a(f"s_add_u32 s20, s21, {WS_KV:#x}\ns_barrier\ns_branch L_k2_hmain")
    end(a)
    finish(a, 256, 512, FLAG + 320, 164)


def pack_weights(a):
    LO, HI, PC = 8, 24, 40
    lo_, ld = a.label("pko"), a.label("pkd")
    a(f"s_lshl_b32 s28, s2, 2\ns_add_u32 s28, s28, s15\nv_mul_u32_u24 v5, {4*3072}, v3\ns_cmp_ge_u32 s28, 480\ns_cbranch_scc1 {lo_}")
    srd(a, 40, 32, 640 * 3072)
    divmod_s(a, 16, 17, 28, 10, 3)
    divmod_s(a, 18, 19, 16, 6, 3)
    a("s_mul_i32 s6, s18, 96\ns_lshl_b32 s7, s19, 5\ns_add_u32 s6, s6, s7\ns_cmp_lt_u32 s19, 3\ns_cselect_b32 s7, 864, 0\ns_add_u32 s6, s6, s7\ns_sub_u32 s6, s6, 96")
    a(f"v_add_lshl_u32 v4, v2, s6, 1\nv_add_u32 v4, v4, v5\ns_mul_i32 s22, s17, {64*3072}")
    for q in range(4):
        loads8(a, 40, 4, LO + 4*q, HI + 4*q, 22, [16*q + e for e in E_PERM], 3072, 7)
    a(f"v_lshlrev_b32 v6, 4, v3\ns_lshl_b32 s7, s17, 8\ns_add_u32 s7, s7, {WS_MOD + 7680}")
    for q in range(4):
        for arr in range(2):
            for hf in range(2):
                P = PC + 16*q + 8*arr + 4*hf
                a(f"buffer_load_dwordx4 v[{P}:{P+3}], v6, s[8:11], s7 offen offset:{arr*2560 + 64*q + 32*hf}")
    a("v_mov_b32 v6, 0\nv_mov_b32 v7, 0")
    a(f"s_mul_i32 s22, s18, 40\ns_lshl_b32 s7, s17, 2\ns_add_u32 s22, s22, s7\ns_mul_i32 s22, s22, 6\ns_add_u32 s22, s22, s19\ns_lshl_b32 s22, s22, 10\ns_add_u32 s22, s22, {WS_WIN:#x}\ns_waitcnt vmcnt(0)")
    for q in range(4):
        for d in range(4):
            l, h, P = LO + 4*q + d, HI + 4*q + d, PC + 16*q
            a(f"v_lshlrev_b32 v{l}, 16, v{l}\nv_lshlrev_b32 v{h}, 16, v{h}\nv_fmac_f32 v7, v{l}, v{P+2*d}\nv_fmac_f32 v7, v{h}, v{P+2*d+1}\nv_mul_f32 v{l}, v{l}, v{P+8+2*d}\nv_mul_f32 v{h}, v{h}, v{P+9+2*d}")
            a(f"v_cvt_pk_bf16_f32 v{l}, v{l}, v{h}\nv_lshlrev_b32 v{h}, 16, v{l}\nv_and_b32 v5, 0xffff0000, v{l}\nv_add_f32 v6, v6, v{h}\nv_add_f32 v6, v6, v5")
        a(f"buffer_store_dwordx4 v[{LO+4*q}:{LO+4*q+3}], v1, s[8:11], s22 offen sc1\ns_add_u32 s22, s22, 6144")
    a("v_mov_b32 v40, v6\nv_mov_b32 v41, v7\ns_nop 1\nv_permlane32_swap_b32 v6, v40\nv_permlane32_swap_b32 v7, v41\ns_nop 1\nv_add_f32 v6, v6, v40\nv_add_f32 v7, v7, v41")
    a(f"s_mul_i32 s22, s17, {1536*8}\ns_lshl_b32 s7, s16, 8\ns_add_u32 s22, s22, s7\ns_add_u32 s22, s22, {WS_UTP:#x}\nv_lshlrev_b32 v4, 3, v2\ns_mov_b32 exec_hi, 0")
    a(f"buffer_store_dwordx2 v[6:7], v4, s[8:11], s22 offen\ns_mov_b32 exec_hi, -1\ns_branch {ld}")
    a(f"{lo_}:\ns_sub_u32 s28, s28, 480\ns_cmp_ge_u32 s28, 528\ns_cbranch_scc1 {ld}")
    a(f"s_mov_b32 s42, {768*1280}\ns_mov_b32 s31, {WS_WOUT:#x}\ns_mov_b32 s6, {(1<<20)//12+1}\ns_cmp_lt_u32 s28, 240\ns_cselect_b32 s40, s36, s38\ns_cselect_b32 s41, s37, s39\ns_mov_b32 s43, 0x20000\ns_cselect_b32 s30, 40, 48")
    a(f"s_cmov_b32 s42, {640*1280}\ns_cmov_b32 s31, {WS_WO:#x}\ns_cmov_b32 s6, {(1<<20)//10+1}\ns_cselect_b32 s7, 0, 240\ns_sub_u32 s28, s28, s7")
    a("s_mul_i32 s16, s28, s6\ns_lshr_b32 s16, s16, 20\ns_lshr_b32 s7, s30, 2\ns_mul_i32 s7, s7, s16\ns_sub_u32 s17, s28, s7")
    divmod_s(a, 18, 19, 16, 3, 3)
    a(f"s_mul_i32 s6, s18, 80\ns_lshl_b32 s7, s19, 5\ns_add_u32 s6, s6, s7\nv_add_lshl_u32 v4, v2, s6, 1\nv_mul_u32_u24 v5, {4*1280}, v3\nv_add_u32 v4, v4, v5\ns_mul_i32 s22, s17, {64*1280}")
    for q in range(4):
        loads8(a, 40, 4, LO + 4*q, HI + 4*q, 22, [16*q + e for e in E_PERM], 1280, 7)
    a("s_mul_i32 s22, s18, s30\ns_lshl_b32 s7, s17, 2\ns_add_u32 s22, s22, s7\ns_mul_i32 s22, s22, 3\ns_add_u32 s22, s22, s19\ns_lshl_b32 s22, s22, 10\ns_add_u32 s22, s22, s31\ns_waitcnt vmcnt(0)")
    for q in range(4):
        for d in range(4): a(f"v_lshl_or_b32 v{LO+4*q+d}, v{HI+4*q+d}, 16, v{LO+4*q+d}")
        a(f"buffer_store_dwordx4 v[{LO+4*q}:{LO+4*q+3}], v1, s[8:11], s22 offen sc1\ns_add_u32 s22, s22, 3072")
    a(f"{ld}:")

SLOT, NSL, DEP6 = 20480, 6, 4
PAR6 = NSL * SLOT
class G6:
    def __init__(self, kpst, nacc, g0=0):
        self.kpst, self.nacc, self.g0 = kpst, nacc, g0
        self.fs = kpst * (1 + nacc) * 4
        self.ACC, self.FR = 8, 8 + 16 * nacc
    def addr(self, a):
        a(f"s_mul_i32 s3, s17, {self.kpst*1024}\ns_add_u32 s3, s3, 12288\nv_add_u32 v4, s3, v1\nv_add_u32 v5, {3*SLOT}, v4")
        a(f"s_lshl_b32 s3, s15, 10\nv_add_u32 v6, s3, v1\nv_add_u32 v7, {3*SLOT}, v6")
    def reads(self, a, s):
        slot = (self.g0 + s) % NSL; hi, sl = (1, slot - 3) if slot >= 3 else (0, slot)
        F = self.FR + (s % 2) * self.fs
        ops = []
        for q in range(self.kpst):
            r = F + q * (1 + self.nacc) * 4
            ops.append(lambda r=r, q=q: a.lg(f"ds_read_b128 v[{r}:{r+3}], v{4+hi} offset:{sl*SLOT + q*1024}", ("f", s, q)))
            for n in range(self.nacc):
                rw = r + 4 + 4*n
                ops.append(lambda rw=rw, q=q, n=n: a.lg(f"ds_read_b128 v[{rw}:{rw+3}], v{6+hi} offset:{sl*SLOT + (q*self.nacc + n)*3072}", ("f", s, q)))
        return ops
    def start(self, a):
        a("s_barrier")
        run(self.reads(a, 0))
    def iter(self, a, s, first, total):
        rd = []
        if s + 1 < total:
            a("s_barrier")
            rd = self.reads(a, s + 1)
        F = self.FR + (s % 2) * self.fs
        per = len(rd) // self.kpst if rd else 0
        for q in range(self.kpst):
            a.wait(lg=[("f", s, q)])
            r = F + q * (1 + self.nacc) * 4
            for n in range(self.nacc):
                d = self.ACC + 16*n
                c = "0" if (first and q == 0) else f"v[{d}:{d+15}]"
                a(f"v_mfma_f32_32x32x16_bf16 v[{d}:{d+15}], v[{r+4+4*n}:{r+7+4*n}], v[{r}:{r+3}], {c}")
            run(rd[q*per:(q+1)*per])
    def lsetup(self, a, act_base, nks, w_base, sa, sw, sl, aflags=""):
        self.a, self.sa, self.sw, self.sl, self.af = a, sa, sw, sl, aflags
        k = self.kpst
        a(f"s_mul_i32 s{sl}, s15, {k*512}\ns_add_u32 s{sl}, s{sl}, 12288")
        a(f"s_mul_i32 s{sa}, s16, {nks*1024}\ns_and_b32 s3, s15, 1\ns_mul_i32 s3, s3, {k*512}\ns_add_u32 s{sa}, s{sa}, s3\ns_add_u32 s{sa}, s{sa}, {act_base:#x}")
        a(f"s_mul_i32 s{sw}, s13, {nks*3072*self.nacc}\ns_add_u32 s{sw}, s{sw}, s20\ns_add_u32 s{sw}, s{sw}, {w_base:#x}")
    def issue_a(self, s):
        a = self.a; slot = (self.g0 + s) % NSL
        a(f"s_add_u32 m0, s{self.sl}, {slot*SLOT}\ns_nop 0")
        for q in range(self.kpst // 2): a.vm(f"buffer_load_dwordx4 v1, s[8:11], s{self.sa} offen offset:{q*1024} {self.af} lds", ("st", self.g0 + s))
        a(f"s_add_u32 s{self.sa}, s{self.sa}, {self.kpst*1024}")
    def issue_w(self, s):
        a = self.a; slot = (self.g0 + s) % NSL
        a(f"s_add_u32 m0, s20, {slot*SLOT}\ns_nop 0")
        for i in range(3): a.vm(f"buffer_load_dwordx4 v1, s[8:11], s{self.sw} offen offset:{i*1024} lds", ("st", self.g0 + s))
        a(f"s_add_u32 s{self.sw}, s{self.sw}, 12288")
    def issue(self, s):
        self.issue_a(s); self.issue_w(s)
    def lstep(self, s, total, nxt=None):
        a = self.a
        a.wait(vm=[("st", self.g0 + s)])
        a("s_barrier")
        if s + DEP6 < total: self.issue(s + DEP6)
        elif nxt is not None: nxt.issue_w(s + DEP6 - total)

def g6_prologue(a, extra=""):
    common_prologue(a, extra)
    a(f"s_cmp_ge_u32 s14, 6\ns_cbranch_scc1 L_{a.name}_loader")
    a("s_cmp_ge_u32 s14, 3\ns_cselect_b32 s17, 1, 0\ns_mul_i32 s3, s17, 3\ns_sub_u32 s15, s14, s3\ns_lshl_b32 s16, s12, 1\ns_add_u32 s16, s16, s17")
def g6_loader_entry(a):
    a(f"L_{a.name}_loader:")
    a.vmq = []; a.lgq = []
    a("s_sub_u32 s15, s14, 6\ns_mul_i32 s20, s15, 3072\ns_lshl_b32 s16, s12, 1\ns_lshr_b32 s3, s15, 1\ns_add_u32 s16, s16, s3")
def dma1(a, lds_off, sreg, tag, imm=0):
    a(f"s_mov_b32 m0, {lds_off}\ns_nop 0")
    a.vm(f"buffer_load_dwordx4 v1, s[8:11], s{sreg} offen offset:{imm} lds", tag)
def handoff_publish(a, base):
    l = a.label("pub")
    a(f"s_waitcnt vmcnt(0)\ns_barrier\ns_cmp_lg_u32 s14, 0\ns_cbranch_scc1 {l}")
    a(f"s_lshl_b32 s3, s12, 7\ns_lshl_b32 s6, s13, 2\ns_add_u32 s3, s3, s6\ns_add_u32 s3, s3, {base:#x}\nv_mov_b32 v8, 0\nv_mov_b32 v9, 1\ns_mov_b64 exec, 1\nbuffer_store_dword v9, v8, s[8:11], s3 offen sc1\ns_mov_b64 exec, -1\n{l}:")
    a.vmq = []
def handoff_wait(a, base):
    lp, lo = a.label("hp"), a.label("ho")
    a(f"s_barrier\ns_lshl_b32 s3, s12, 7\ns_add_u32 s3, s3, {base:#x}\nv_and_b32 v8, 7, v0\nv_lshlrev_b32 v8, 2, v8\ns_mov_b32 s29, 0x8000")
    a(f"{lp}:\nbuffer_load_dword v9, v8, s[8:11], s3 offen sc1\ns_waitcnt vmcnt(0)\nv_cmp_eq_u32 vcc, 0, v9\ns_sub_u32 s29, s29, 1\ns_cbranch_scc1 {lo}\ns_cbranch_vccnz {lp}\n{lo}:")
    a.vmq = []

def unit_off6(a, d, per_nb, base):
    a(f"s_lshl_b32 s{d}, s16, 3\ns_add_u32 s{d}, s{d}, s13\ns_mul_i32 s{d}, s{d}, {per_nb}\ns_lshl_b32 s6, s15, 1\ns_add_u32 s{d}, s{d}, s6\ns_lshl_b32 s{d}, s{d}, 10\ns_add_u32 s{d}, s{d}, {base:#x}")

def stats_addr(a, base, st):
    a(f"s_mul_i32 s7, s13, 3\ns_add_u32 s7, s7, s15\ns_mul_i32 s{st}, s16, 6144\ns_lshr_b32 s3, s7, 1\ns_lshl_b32 s3, s3, 9\ns_add_u32 s{st}, s{st}, s3\ns_and_b32 s3, s7, 1\ns_lshl_b32 s3, s3, 3\ns_add_u32 s{st}, s{st}, s3\ns_add_u32 s{st}, s{st}, {base:#x}")
def stats_store(a, V, st, flags=""):
    a(f"v_mov_b32 v{V+2}, v{V}\nv_mov_b32 v{V+3}, v{V+1}\ns_nop 1\nv_permlane32_swap_b32 v{V}, v{V+2}\nv_permlane32_swap_b32 v{V+1}, v{V+3}\ns_nop 1\nv_add_f32 v{V}, v{V}, v{V+2}\nv_add_f32 v{V+1}, v{V+1}, v{V+3}\nv_max_f32 v{V+1}, 0, v{V+1}")
    a("s_mov_b32 exec_hi, 0")
    a.vm(f"buffer_store_dwordx2 v[{V}:{V+1}], v1, s[8:11], s{st} offen {flags}")
    a("s_mov_b32 exec_hi, -1")
def stats_load(a, D, st, tag, flags=""):
    for i in range(6): a.vm(f"buffer_load_dwordx4 v[{D+4*i}:{D+4*i+3}], v1, s[8:11], s{st + i//4} offen offset:{1024*(i%4)} {flags}", tag)
def stats_base(a, st, base):
    a(f"s_mul_i32 s{st}, s16, 6144\ns_add_u32 s{st}, s{st}, {base:#x}\ns_add_u32 s{st+1}, s{st}, 4096")
def stats_finish(a, D, n, rr, nm):
    for i in range(1, 12): a(f"v_add_f32 v{D}, v{D}, v{D+2*i}\nv_add_f32 v{D+1}, v{D+1}, v{D+2*i+1}")
    a(f"v_mov_b32 v{D+2}, v{D}\nv_mov_b32 v{D+3}, v{D+1}\ns_nop 1\nv_permlane32_swap_b32 v{D}, v{D+2}\nv_permlane32_swap_b32 v{D+1}, v{D+3}\ns_nop 1\nv_add_f32 v{D}, v{D}, v{D+2}\nv_add_f32 v{D+1}, v{D+1}, v{D+3}")
    a(f"v_mul_f32 v{D}, {f32(1/n)}, v{D}\nv_mul_f32 v{D+1}, {f32(1/n)}, v{D+1}\nv_fma_f32 v{D+1}, -v{D}, v{D}, v{D+1}\nv_max_f32 v{D+1}, 0, v{D+1}\nv_add_f32 v{D+1}, {f32(1e-5)}, v{D+1}\nv_rsq_f32 v{rr}, v{D+1}\ns_nop 0\nv_mul_f32 v{nm}, v{D}, v{rr}\nv_sub_f32 v{nm}, 0, v{nm}")

def proj_epilogue(a, g, final, G, XR, T, ST, gaddr, oaddr):
    for i in range(4): a(f"ds_read_b128 v[{G+4*i}:{G+4*i+3}], v{gaddr} offset:{32*i}")
    a.wait(vm=["epi"])
    a("s_waitcnt lgkmcnt(0)"); a.lgq = []
    if not final: a(f"v_mov_b32 v{ST}, 0\nv_mov_b32 v{ST+1}, 0\ns_nop 5")
    else: a("s_nop 7")
    R = g.ACC
    lskip = a.label("skip")
    for i in range(2):
        if i == 1: a(f"s_cmp_eq_u32 s15, 2\ns_cbranch_scc1 {lskip}")
        for d in range(4):
            x = XR + 4*i + d; r = R + 8*i + 2*d; gg = G + 8*i + 2*d; t = T + 2*(d % 2)
            a(f"v_lshlrev_b32 v{t}, 16, v{x}\nv_and_b32 v{t+1}, 0xffff0000, v{x}\nv_fmac_f32 v{t}, v{gg}, v{r}\nv_fmac_f32 v{t+1}, v{gg+1}, v{r+1}")
            if not final:
                a(f"v_add_f32 v{ST}, v{ST}, v{t}\nv_fmac_f32 v{ST+1}, v{t}, v{t}\nv_add_f32 v{ST}, v{ST}, v{t+1}\nv_fmac_f32 v{ST+1}, v{t+1}, v{t+1}")
            a(f"v_cvt_pk_bf16_f32 v{T+4+4*i+d}, v{t}, v{t+1}")
        o = T + 4 + 4*i
        if final:
            a(f"s_nop 1\nv_permlane32_swap_b32 v{o}, v{o+2}\nv_permlane32_swap_b32 v{o+1}, v{o+3}\nbuffer_store_dwordx4 v[{o}:{o+3}], v{oaddr}, s[24:27], s28 offen offset:{32*i}")
        else:
            a(f"buffer_store_dwordx4 v[{o}:{o+3}], v1, s[8:11], s22 offen offset:{1024*i} sc1")
    a(f"{lskip}:")

GC1 = -2.0 * LOG2E * math.sqrt(2.0 / math.pi)
GC2 = GC1 * 0.044715
def gelu(a, regs, t0, c1):
    for i, r in enumerate(regs): a(f"v_mul_f32 v{t0+i}, v{r}, v{r}")
    for i, r in enumerate(regs): a(f"v_fma_f32 v{t0+i}, v{t0+i}, s28, v{c1}")
    for i, r in enumerate(regs): a(f"v_mul_f32 v{t0+i}, v{t0+i}, v{r}")
    for i, r in enumerate(regs): a(f"v_exp_f32 v{t0+i}, v{t0+i}")
    for i, r in enumerate(regs): a(f"v_add_f32 v{t0+i}, 1.0, v{t0+i}")
    for i, r in enumerate(regs): a(f"v_rcp_f32 v{t0+i}, v{t0+i}")
    for i, r in enumerate(regs): a(f"v_mul_f32 v{r}, v{r}, v{t0+i}")

ZROW = 208
def k34():
    a = K("k34"); g = G6(4, 1); h = G6(2, 2, 10)
    g6_prologue(a)
    g.addr(a)
    G, XR, T, ST = 88, 104, 112, 124
    UTL = PAR6 + 1024
    unit_off6(a, 22, 5, 0)
    a(f"s_add_u32 s23, s22, {WS_XH:#x}\ns_add_u32 s22, s22, {WS_X1:#x}")
    a(f"s_lshl_b32 s3, s15, 7\ns_add_u32 s3, s3, {PAR6}\nv_lshlrev_b32 v128, 4, v3\nv_add_u32 v128, s3, v128")
    stats_addr(a, WS_ST1, 29)
    a("s_waitcnt lgkmcnt(0)")
    srd(a, 8, 4, WS_SIZE)
    stamp(a, 1)
    g.start(a)
    stamp(a, 2)
    for i in range(2): a.vm(f"buffer_load_dwordx4 v[{XR+4*i}:{XR+4*i+3}], v1, s[8:11], s23 offen offset:{1024*i}", "epi")
    for s in range(10): g.iter(a, s, s == 0, 10)
    stamp(a, 3)
    proj_epilogue(a, g, False, G, XR, T, ST, 128, None)
    stats_store(a, ST, 29, "sc1")
    SD, U, T, RR, NM, C1, ST = 88, 40, 72, 112, 113, 114, 116
    h.addr(a)
    stats_base(a, 22, WS_ST1); stats_base(a, 30, WS_ST2)
    a(f"s_add_u32 s29, s29, {WS_ST2 - WS_ST1}")
    unit_off6(a, 26, 6, WS_Z1)
    a(f"s_lshl_b32 s3, s15, 8\ns_add_u32 s3, s3, {UTL}\nv_lshlrev_b32 v115, 5, v3\nv_add_u32 v115, s3, v115")
    a(f"s_mov_b32 s28, {f32(GC2)}\nv_mov_b32 v{C1}, {f32(GC1)}")
    handoff_publish(a, WS_FL1)
    stamp(a, 4)
    h.start(a)
    stamp(a, 5)
    stats_load(a, SD, 22, "ln", "sc1")
    for s in range(20):
        h.iter(a, s, s == 0, 20)
        if s == 8:
            a.wait(vm=["ln"])
            stats_finish(a, SD, 640, RR, NM)
    stamp(a, 6)
    def ut_reads(n):
        for u in range(2):
            for hf in range(2):
                for k in range(2):
                    r = U + 16*u + 8*hf + 4*k
                    a(f"ds_read_b128 v[{r}:{r+3}], v115 offset:{n*768 + u*128 + hf*64 + k*16}")
    def affine(n):
        A = h.ACC + 16*n
        for i in range(16): a(f"v_fma_f32 v{U+2*i+1}, v{U+2*i}, v{NM}, v{U+2*i+1}")
        for i in range(16): a(f"v_fma_f32 v{A+i}, v{A+i}, v{RR}, v{U+2*i+1}")
    Z2, Z1 = h.ACC, h.ACC + 16
    ut_reads(0)
    a("s_waitcnt lgkmcnt(0)\ns_nop 3")
    affine(0)
    ut_reads(1)
    gelu(a, list(range(Z2, Z2+16)), T, C1)
    a(f"v_mov_b32 v{ST}, 0\nv_mov_b32 v{ST+1}, 0")
    for i in range(16): a(f"v_add_f32 v{ST}, v{ST}, v{Z2+i}\nv_fmac_f32 v{ST+1}, v{Z2+i}, v{Z2+i}")
    stats_store(a, ST, 29, "sc1")
    stamp(a, 7)
    a("s_waitcnt lgkmcnt(0)")
    affine(1)
    gelu(a, list(range(Z1, Z1+16)), T, C1)
    stats_load(a, SD, 30, "st2", "sc1")
    for i in range(2):
        for d in range(4): a(f"v_cvt_pk_bf16_f32 v{T+4*i+d}, v{Z1+8*i+2*d}, v{Z1+8*i+2*d+1}")
        a.vm(f"buffer_store_dwordx4 v[{T+4*i}:{T+4*i+3}], v1, s[8:11], s26 offen offset:{i*1024}")
    stamp(a, 8)
    a(f"s_mul_i32 s6, s17, {32*ZROW}\ns_lshl_b32 s7, s15, 6\ns_add_u32 s6, s6, s7\nv_mul_u32_u24 v4, {ZROW}, v2\nv_lshl_add_u32 v4, v3, 3, v4\nv_add_u32 v4, s6, v4")
    a(f"v_bfe_u32 v5, v0, 2, 2\nv_lshl_add_u32 v5, v3, 3, v5\nv_mul_u32_u24 v5, {ZROW}, v5\nv_and_b32 v6, 3, v0\nv_lshl_add_u32 v5, v6, 3, v5\nv_bfe_u32 v6, v0, 4, 1\nv_lshl_add_u32 v5, v6, 5, v5\nv_add_u32 v5, s6, v5")
    a(f"s_lshl_b32 s6, s13, 7\ns_lshl_b32 s7, s16, 1\ns_add_u32 s6, s6, s7\ns_mul_i32 s6, s6, 3\ns_add_u32 s6, s6, s15\ns_lshl_b32 s6, s6, 10\ns_add_u32 s26, s6, {WS_Z2T:#x}")
    a.wait(vm=["st2"])
    a("s_mov_b32 s29, 0x4000")
    lp, lok = a.label("poll"), a.label("ok")
    a(f"{lp}:")
    a(f"v_or_b32 v{ST}, v{SD+1}, v{SD+3}")
    for i in range(2, 12): a(f"v_or_b32 v{ST}, v{ST}, v{SD+1+2*i}")
    a(f"v_cmp_gt_i32 vcc, 0, v{ST}\ns_sub_u32 s29, s29, 1\ns_cbranch_scc1 {lok}\ns_cbranch_vccz {lok}")
    stats_load(a, SD, 30, "st2", "sc1")
    a(f"s_waitcnt vmcnt(0)\ns_branch {lp}\n{lok}:")
    stamp(a, 9)
    stats_finish(a, SD, 768, RR, NM)
    for i in range(16): a(f"v_fma_f32 v{Z2+i}, v{Z2+i}, v{RR}, v{NM}")
    for i in range(8): a(f"v_cvt_pk_bf16_f32 v{T+8+i}, v{Z2+2*i}, v{Z2+2*i+1}")
    for i in range(4): a(f"ds_write_b64 v4, v[{T+8+2*i}:{T+9+2*i}] offset:{16*i}")
    a("s_waitcnt lgkmcnt(0)")
    for p in range(2):
        a(f"ds_read_b64_tr_b16 v[{U+4*p}:{U+4*p+1}], v5 offset:{16*p*ZROW}\nds_read_b64_tr_b16 v[{U+4*p+2}:{U+4*p+3}], v5 offset:{(16*p+4)*ZROW}")
    a("s_waitcnt lgkmcnt(0)")
    for p in range(2): a(f"buffer_store_dwordx4 v[{U+4*p}:{U+4*p+3}], v1, s[8:11], s26 offen offset:{3072*p}")
    a("s_branch L_k34_end")
    g6_loader_entry(a)
    g.lsetup(a, WS_O, 40, WS_WO, 18, 19, 21)
    h.lsetup(a, WS_X1, 40, WS_WIN, 22, 23, 26, "sc1")
    a(f"s_mul_i32 s6, s13, 320\ns_add_u32 s6, s6, {WS_MOD + 5120}\ns_waitcnt lgkmcnt(0)")
    srd(a, 8, 4, WS_SIZE)
    stamp(a, 1)
    dma1(a, PAR6, 6, "par")
    g.issue(0); g.issue(1)
    for s in range(10):
        a.wait(vm=[("st", s)])
        a("s_barrier")
        if s == 0: g.issue(2); g.issue(3)
        if s + DEP6 < 10: g.issue(s + DEP6)
        else: h.issue_w(s + DEP6 - 10)
    lu = a.label("nou")
    a(f"s_cmp_eq_u32 s15, 3\ns_cbranch_scc1 {lu}\ns_mul_i32 s6, s13, 1536\ns_lshl_b32 s7, s15, 9\ns_add_u32 s6, s6, s7\ns_add_u32 s6, s6, {WS_UTP:#x}\nv_lshrrev_b32 v10, 1, v1")
    for i in range(10): a(f"buffer_load_dwordx2 v[{12+2*i}:{13+2*i}], v10, s[8:11], s6 offen\ns_add_u32 s6, s6, {1536*8}")
    a(f"s_add_u32 s7, s7, {UTL}\nv_add_u32 v10, s7, v10\ns_waitcnt vmcnt(0)")
    for i in range(1, 10): a(f"v_add_f32 v12, v12, v{12+2*i}\nv_add_f32 v13, v13, v{13+2*i}")
    a(f"ds_write_b64 v10, v[12:13]\ns_waitcnt lgkmcnt(0)\n{lu}:")
    handoff_wait(a, WS_FL1)
    stamp(a, 4)
    for s in range(DEP6): h.issue_a(s)
    for s in range(20): h.lstep(s, 20)
    end(a)
    finish(a, 256, 640, PAR6 + 1024 + 1536, 132)

def k56():
    a = K("k56"); g = G6(4, 1); h = G6(4, 1, 32)
    g6_prologue(a, f"s_load_dwordx2 s[32:33], s[0:1], {KA['b_sp']}\ns_load_dwordx2 s[34:35], s[0:1], {KA['out']}")
    g.addr(a)
    Z, B, T = 88, 96, 100
    G, XR = 112, 128
    unit_off6(a, 28, 6, 0)
    unit_off6(a, 23, 5, WS_X1)
    a(f"s_add_u32 s29, s28, {WS_Y:#x}\ns_add_u32 s28, s28, {WS_Z1:#x}\nv_lshlrev_b32 v97, 1, v2\ns_lshl_b32 s6, s16, 6\ns_waitcnt lgkmcnt(0)")
    srd(a, 8, 4, WS_SIZE); srd(a, 24, 32, 4096)
    stamp(a, 1)
    for i in range(16): a(f"v_mov_b32 v{g.ACC+i}, 0")
    g.start(a)
    stamp(a, 2)
    for i in range(2): a.vm(f"buffer_load_dwordx4 v[{Z+4*i}:{Z+4*i+3}], v1, s[8:11], s28 offen offset:{1024*i}", "z")
    a.vm(f"buffer_load_ushort v{B}, v97, s[24:27], s6 offen", "z")
    for i in range(2): a.vm(f"buffer_load_dwordx4 v[{XR+4*i}:{XR+4*i+3}], v1, s[8:11], s23 offen offset:{1024*i}", "epi")
    a("s_mov_b32 s30, 5\nL_k56_loop:")
    for s in range(6): g.iter(a, s, False, 32)
    a("s_sub_u32 s30, s30, 1\ns_cmp_lg_u32 s30, 0\ns_cbranch_scc1 L_k56_loop")
    a.lgq = [(t[0], t[1] + 24, t[2]) if isinstance(t, tuple) else t for t in a.lgq]
    for s in range(30, 32): g.iter(a, s, False, 32)
    stamp(a, 3)
    R = g.ACC
    a.wait(vm=["z", "epi"])
    a(f"v_lshlrev_b32 v{B}, 16, v{B}\ns_nop 9")
    for i in range(2):
        for d in range(4):
            z = Z + 4*i + d; r = R + 8*i + 2*d; t = T + 2*(d % 2)
            a(f"v_add_f32 v{r}, v{r}, v{B}\nv_add_f32 v{r+1}, v{r+1}, v{B}\nv_lshlrev_b32 v{t}, 16, v{z}\nv_and_b32 v{t+1}, 0xffff0000, v{z}\nv_mul_f32 v{r}, v{r}, v{t}\nv_mul_f32 v{r+1}, v{r+1}, v{t+1}\nv_cvt_pk_bf16_f32 v{T+4+4*i+d}, v{r}, v{r+1}")
        a(f"buffer_store_dwordx4 v[{T+4+4*i}:{T+7+4*i}], v1, s[8:11], s29 offen offset:{1024*i} sc1")
    srd(a, 24, 34, 2048 * 1280)
    a(f"s_lshl_b32 s3, s15, 7\ns_add_u32 s3, s3, {PAR6}\nv_lshlrev_b32 v136, 4, v3\nv_add_u32 v136, s3, v136")
    a(f"v_mul_u32_u24 v137, 1280, v2\nv_lshl_add_u32 v137, v3, 4, v137\ns_mul_i32 s28, s16, {32*1280}\ns_mul_i32 s6, s13, 160\ns_add_u32 s28, s28, s6\ns_lshl_b32 s6, s15, 6\ns_add_u32 s28, s28, s6")
    handoff_publish(a, WS_FL2)
    stamp(a, 4)
    h.start(a)
    stamp(a, 5)
    for s in range(12): h.iter(a, s, s == 0, 12)
    stamp(a, 6)
    proj_epilogue(a, h, True, G, XR, 100, None, 136, 137)
    a("s_branch L_k56_end")
    g6_loader_entry(a)
    g.lsetup(a, WS_WSP, 128, WS_Z2T, 18, 19, 21)
    h.lsetup(a, WS_Y, 48, WS_WOUT, 22, 23, 26, "sc1")
    a(f"s_mul_i32 s6, s13, 320\ns_add_u32 s6, s6, {WS_MOD + 12800}\ns_waitcnt lgkmcnt(0)")
    srd(a, 8, 4, WS_SIZE)
    stamp(a, 1)
    dma1(a, PAR6, 6, "par")
    g.issue(0); g.issue(1)
    a.wait(vm=[("st", 0)]); a("s_barrier")
    g.issue(2); g.issue(3); g.issue(4)
    g.lstep(1, 32)
    a("s_mov_b32 s30, 4\nL_k56_lloop:")
    for s in range(2, 8): g.lstep(s, 32)
    a("s_sub_u32 s30, s30, 1\ns_cmp_lg_u32 s30, 0\ns_cbranch_scc1 L_k56_lloop")
    a.vmq = [(t[0], t[1] + 18) if isinstance(t, tuple) else t for t in a.vmq]
    for s in range(26, 32): g.lstep(s, 32, h)
    handoff_wait(a, WS_FL2)
    stamp(a, 4)
    for s in range(DEP6): h.issue_a(s)
    for s in range(12): h.lstep(s, 12)
    end(a)
    finish(a, 256, 640, PAR6 + 1024, 140)

def emit(path):
    out = []
    for (n, lines, g, b, lds, nv, ao) in kernels:
        out.append(f"; @launch kernel={n}_kernel grid=({g},1,1) block=({b},1,1) lds={lds}")
    out.append('.amdgcn_target "amdgcn-amd-amdhsa--gfx950"\n.text')
    bad = 0
    for (n, lines, g, b, lds, nv, ao) in kernels:
        errs = check_hazards(lines, n) + ([] if PROF else check_waits(lines, n))
        for e in errs:
            if "buffer_load_ushort" in e.split("touched by")[0] and "buffer_load_ushort" in e.split("touched by")[-1] and n == "k0": continue
            if "buffer_load_dword v" in e.split("touched by")[0] and "buffer_load_dword v" in e.split("touched by")[-1]: continue
            print("CHECK", e); bad += 1
        out.append(f".globl {n}_kernel\n.p2align 8\n.type {n}_kernel,@function\n{n}_kernel:")
        t = Asm(); t.lines = lines
        out.append(t.text())
    out.append('.section .rodata,"a"')
    for (n, lines, g, b, lds, nv, ao) in kernels:
        out.append(f""".p2align 6
.amdhsa_kernel {n}_kernel
  .amdhsa_next_free_vgpr {nv}
  .amdhsa_next_free_sgpr {96 if PROF else 56}
  .amdhsa_accum_offset {ao}
  .amdhsa_group_segment_fixed_size 0
  .amdhsa_kernarg_size 120
  .amdhsa_user_sgpr_count 2
  .amdhsa_user_sgpr_kernarg_segment_ptr 1
  .amdhsa_system_sgpr_workgroup_id_x 1
.end_amdhsa_kernel""")
    open(path, "w").write("\n".join(out) + "\n")
    print("wrote", path, "checks failed:", bad)

if __name__ == "__main__":
    for i in range(int(os.environ.get("X_EMPTY0", "0"))):
        e = K(f"f{i}"); e("s_endpgm"); finish(e, 256, 256, 0, 8)
    k0(); k1(); k2()
    k34(); k56()
    for i in range(int(os.environ.get("X_EMPTY", "0"))):
        e = K(f"e{i}"); e("s_endpgm"); finish(e, 256, 256, 0, 8)
    emit(sys.argv[1] if len(sys.argv) > 1 else "adaLN_cond__grouped_kv_mqa__mixer_gmlp__prompt.s")
```

```python
import math, struct, sys, os
from asmlib import *

def f32(x):
    return "0x%08x" % struct.unpack("<I", struct.pack("<f", x))[0]

WS_MOD  = 0x0
WS_XH   = 0x100000
WS_ST0  = 0x8000
WS_CNT  = 0xC000
WS_FL1  = 0xD000
WS_FL2  = 0xE000
WS_UT   = 0x10000
WS_UTP  = 0x20000
WS_WQKV = 0x400000
WS_WO   = 0x500000
WS_WIN  = 0x600000
WS_WOUT = 0x800000
WS_Q    = 0xA00000
WS_KV   = 0xD00000
WS_O    = 0xE00000
WS_X1   = 0x1080000
WS_ST1  = 0x1300000
WS_ST2  = 0x1360000
WS_Z1   = 0x13C0000
WS_Z2T  = 0x16C0000
WS_Y    = 0x19C0000
WS_WSP  = 0x1D00000
WS_SIZE = 0x2500000
KVCH = 26624
OOB = 0x40000000
LOG2E = math.log2(math.e)
KA = dict(x=0, wq=8, wk=16, wv=24, wo=32, w_in=48, w_sp=56, b_sp=64, w_out=72, c=80, w_mod=88, out=96, dbg=104, ws=112)
UT = [[0, 1], [2, 5], [3, 4]]

PROF = os.environ.get("PROF", "0") == "1"
WS_PROF = 0x3000000
if PROF: WS_SIZE = 0x4000000
def stamp(a, i):
    if PROF: a(f"s_memtime s[{50+2*i}:{51+2*i}]")
def stamp_begin(a):
    if PROF:
        for i in range(12): a(f"s_mov_b64 s[{50+2*i}:{51+2*i}], 0")
        a("s_memrealtime s[74:75]")
        stamp(a, 0)
def stamp_end(a, kidx):
    if PROF:
        stamp(a, 11)
        a("s_memrealtime s[76:77]\ns_mov_b64 exec, 1\ns_waitcnt lgkmcnt(0)")
        a(f"s_lshl_b32 s3, s2, 4\ns_add_u32 s3, s3, s14\ns_lshl_b32 s3, s3, 6\ns_add_u32 s3, s3, {WS_PROF + kidx*0x100000:#x}\nv_mov_b32 v0, 0")
        for i in range(12): a(f"v_mov_b32 v{2+i}, s{50+2*i}")
        a("s_getreg_b32 s78, hwreg(HW_REG_XCC_ID)\ns_getreg_b32 s79, hwreg(HW_REG_HW_ID)\nv_mov_b32 v14, s74\nv_mov_b32 v15, s76\nv_mov_b32 v16, s78\nv_mov_b32 v17, s79")
        for i in range(4): a(f"buffer_store_dwordx4 v[{2+4*i}:{5+4*i}], v0, s[8:11], s3 offen offset:{16*i}")

def srd(a, d, p, nbytes):
    a(f"s_mov_b32 s{d}, s{p}\ns_mov_b32 s{d+1}, s{p+1}\ns_mov_b32 s{d+2}, {nbytes:#x}\ns_mov_b32 s{d+3}, 0x20000")

kernels = []
XCMP = "s3" if os.environ.get("X_NOBAR") or os.environ.get("X_NOLDS") else 0

class K(Asm):
    def __init__(self, name):
        super().__init__()
        self.name = name; self.vmq = []; self.lgq = []
    def label(self, base):
        self.uid += 1
        return f"L_{self.name}_{base}_{self.uid}"
    def vm(self, text, tag=None):
        self(text); self.vmq.append(tag)
    def lg(self, text, tag=None):
        self(text); self.lgq.append(tag)
    def _n(self, q, tags):
        idx = max((i for i, t in enumerate(q) if t in tags), default=None)
        return None if idx is None else len(q) - 1 - idx
    def wait(self, vm=(), lg=()):
        parts = []
        n = self._n(self.vmq, vm) if vm else None
        if n is not None:
            parts.append(f"vmcnt({min(n, 63)})"); self.vmq = self.vmq[len(self.vmq)-n:] if n else []
        n = self._n(self.lgq, lg) if lg else None
        if n is not None:
            n2 = min(n, 15)
            parts.append(f"lgkmcnt({n2})"); self.lgq = self.lgq[len(self.lgq)-n2:] if n2 else []
        if parts: self("s_waitcnt " + " ".join(parts))
    def wait_all_lg(self):
        self("s_waitcnt lgkmcnt(0)"); self.lgq = []

def end(a):
    a(f"L_{a.name}_end:")
    stamp_end(a, len(kernels))
    a(f"L_{a.name}_exit:\ns_endpgm")
def finish(a, grid, block, lds, nv):
    kernels.append((a.name, a.lines, grid, block, lds, nv, (nv + 3) // 4 * 4))

def bf16_round(a, v, t):
    a(f"v_cvt_pk_bf16_f32 v{t}, v{v}, v{v}\nv_and_b32 v{v}, 0xffff0000, v{t}")

E_NAT = list(range(8))
E_PERM = [(j & 3) + 8 * (j >> 2) for j in range(8)]
E_O5 = [20 * (j >> 1) + (j & 1) for j in range(8)]
def loads8(a, srdn, voff, lo, hi, ebase, e_list, rs, stmp, tag=None):
    for j in range(8):
        a(f"s_add_u32 s{stmp}, s{ebase}, {e_list[j]*rs}")
        a.vm(f"buffer_load_ushort v{(lo if j % 2 == 0 else hi) + j//2}, v{voff}, s[{srdn}:{srdn+3}], s{stmp} offen", tag)

def divmod_s(a, q, r, x, d, t):
    m = (1 << 20) // d + 1
    a(f"s_mul_i32 s{q}, s{x}, {m}\ns_lshr_b32 s{q}, s{q}, 20\ns_mul_i32 s{t}, s{q}, {d}\ns_sub_u32 s{r}, s{x}, s{t}")

def pack_frag_issue(a, f, srdn, rs, ncol, nks, otype, halves, lo, hi, voff, vt, S):
    q3, ft, t, nb, ks, eb = S, S+1, S+2, S+3, S+4, S+5
    divmod_s(a, q3, ft, f, 3, t)
    divmod_s(a, nb, ks, q3, nks, t)
    if halves:
        a(f"s_and_b32 s{t}, s{nb}, 1\ns_lshr_b32 s{nb}, s{nb}, 1\ns_mul_i32 s{nb}, s{nb}, {ncol}\ns_cmp_eq_u32 s{t}, 0\ns_cselect_b32 s{t}, 768, 0\ns_add_u32 s{nb}, s{nb}, s{t}")
    else:
        a(f"s_mul_i32 s{nb}, s{nb}, {ncol}")
    hi5 = 80 if ncol == 96 else OOB // 2
    a(f"s_cmp_eq_u32 s{ft}, 1\ns_cselect_b32 s{q3}, 32, 48\ns_cselect_b32 s{t}, {hi5:#x}, 64\ns_cmp_eq_u32 s{ft}, 0\ns_cselect_b32 s{q3}, 0, s{q3}\ns_cselect_b32 s{t}, 16, s{t}")
    a(f"s_add_u32 s{q3}, s{q3}, s{nb}\ns_add_u32 s{t}, s{t}, s{nb}")
    a(f"v_mov_b32 v{vt}, s{q3}\nv_mov_b32 v{vt+1}, s{t}\nv_cmp_gt_u32 vcc, 16, v2\nv_and_b32 v{voff}, 15, v2\ns_nop 0\nv_cndmask_b32 v{vt}, v{vt+1}, v{vt}, vcc\nv_add_lshl_u32 v{voff}, v{voff}, v{vt}, 1")
    if not otype:
        a(f"v_mul_u32_u24 v{vt}, {4*rs}, v3\nv_add_u32 v{voff}, v{voff}, v{vt}\ns_mul_i32 s{eb}, s{ks}, {16*rs}")
        loads8(a, srdn, voff, lo, hi, eb, E_PERM, rs, t, "pack")
    else:
        l5, ld = a.label("u4"), a.label("ud")
        divmod_s(a, q3, ft, ks, 5, t)
        a(f"s_mul_i32 s{q3}, s{q3}, 80\ns_cmp_eq_u32 s{ft}, 4\ns_cbranch_scc1 {l5}")
        a(f"s_mul_i32 s{ft}, s{ft}, 20\ns_add_u32 s{q3}, s{q3}, s{ft}\ns_mul_i32 s{eb}, s{q3}, {rs}\nv_mul_u32_u24 v{vt}, {4*rs}, v3\nv_add_u32 v{voff}, v{voff}, v{vt}")
        q0 = list(a.vmq)
        loads8(a, srdn, voff, lo, hi, eb, E_PERM, rs, t, "pack")
        a(f"s_branch {ld}\n{l5}:\ns_add_u32 s{q3}, s{q3}, 16\ns_mul_i32 s{eb}, s{q3}, {rs}\nv_mul_u32_u24 v{vt}, {2*rs}, v3\nv_add_u32 v{voff}, v{voff}, v{vt}")
        a.vmq = q0
        loads8(a, srdn, voff, lo, hi, eb, E_O5, rs, t, "pack")
        a(f"{ld}:")

def pack_frag_store(a, f, wsbase, lo, hi, st):
    for i in range(4): a(f"v_lshl_or_b32 v{lo+i}, v{hi+i}, 16, v{lo+i}")
    a(f"s_lshl_b32 s{st}, s{f}, 10\ns_add_u32 s{st}, s{st}, {wsbase:#x}")
    a.vm(f"buffer_store_dwordx4 v[{lo}:{lo+3}], v1, s[8:11], s{st} offen")

def l2_prefetch(a, base, nbytes, nwaves, vdst, vtmp, st):
    per_wg = nbytes // 32
    PS = int(os.environ.get("X_PFS", "64")); CH = 64 * PS
    n_instr = -(-per_wg // CH)
    per_wave = -(-n_instr // nwaves)
    a(f"s_lshr_b32 s{st}, s2, 3\ns_mul_i32 s{st}, s{st}, {per_wg}\ns_mul_i32 s{st+1}, s14, {per_wave*CH}\ns_add_u32 s{st}, s{st}, s{st+1}\ns_add_u32 s{st}, s{st}, {base:#x}\nv_lshlrev_b32 v{vtmp}, {int(math.log2(PS//16))}, v1")
    for i in range(per_wave):
        a.vm(f"buffer_load_dword v{vdst}, v{vtmp}, s[8:11], s{st} offen")
        if i < per_wave - 1: a(f"s_add_u32 s{st}, s{st}, {CH}")

N_MOD, N_XH, N_PQ = 128, 64, 40
def k0():
    a = K("k0")
    ends = [N_MOD, N_MOD + N_XH, N_MOD + N_XH + N_PQ]
    grid = ends[-1]
    CPF = os.environ.get("X_CPF", "0") == "1"
    if CPF:
        lc = a.label("cpf")
        a(f"s_cmp_lt_u32 s2, {grid}\ns_cbranch_scc1 {lc}\ns_cmp_ge_u32 s2, {grid+48}\ns_cbranch_scc1 L_k0_exit")
        a(f"s_getpc_b64 s[40:41]\ns_and_b32 s40, s40, 0xffffff00\ns_sub_u32 s3, s2, {grid}\ns_lshr_b32 s3, s3, 3\ns_lshl_b32 s3, s3, 13\nv_lshlrev_b32 v3, 5, v0\nv_add_u32 v3, s3, v3\nglobal_load_dword v4, v3, s[40:41]\ns_endpgm\n{lc}:")
        grid += 48
    a(f"s_cmp_ge_u32 s2, {grid}\ns_cbranch_scc1 L_k0_exit")
    stamp_begin(a)
    a(f"s_load_dwordx2 s[4:5], s[0:1], {KA['ws']}")
    a("v_and_b32 v1, 63, v0\nv_lshrrev_b32 v2, 6, v0\ns_nop 0\nv_readfirstlane_b32 s14, v2")
    a(f"s_cmp_lt_u32 s2, {ends[0]}\ns_cbranch_scc1 L_k0_mod")
    a(f"s_cmp_lt_u32 s2, {ends[1]}\ns_cbranch_scc1 L_k0_xh")
    a("s_branch L_k0_pq")
    a("L_k0_mod:")
    a(f"s_load_dwordx4 s[16:19], s[0:1], {KA['c']}")
    a("s_and_b32 s3, s2, 7\ns_lshl_b32 s3, s3, 1\ns_bfe_u32 s6, s2, 0x10003\ns_add_u32 s3, s3, s6\ns_lshr_b32 s6, s2, 4\ns_lshl_b32 s6, s6, 4\ns_add_u32 s3, s3, s6")
    a("s_cmp_ge_u32 s3, 120\ns_cbranch_scc1 L_k0_exit")
    a("v_lshrrev_b32 v1, 2, v0\nv_and_b32 v2, 3, v0\nv_mul_u32_u24 v3, 7680, v1\nv_lshl_add_u32 v3, v2, 4, v3\nv_lshlrev_b32 v4, 1, v1")
    a("s_waitcnt lgkmcnt(0)")
    srd(a, 8, 4, WS_SIZE); srd(a, 20, 16, 1280); srd(a, 24, 18, 640 * 7680)
    a("s_lshl_b32 s6, s3, 6")
    for p in range(10):
        a(f"buffer_load_ushort v{10+p}, v4, s[20:23], 0 offen offset:{128*p}")
    for p in range(10):
        a(f"buffer_load_dwordx4 v[{20+4*p}:{23+4*p}], v3, s[24:27], s6 offen")
        if p < 9: a(f"s_add_u32 s6, s6, {64*7680}")
    for i in range(8): a(f"v_mov_b32 v{64+i}, 0")
    a("s_waitcnt vmcnt(10)")
    for p in range(10):
        v = 10 + p
        a(f"v_lshlrev_b32 v{v}, 16, v{v}\nv_mul_f32 v5, {f32(-LOG2E)}, v{v}\nv_exp_f32 v5, v5\ns_nop 0\nv_add_f32 v5, 1.0, v5\nv_rcp_f32 v5, v5\ns_nop 0\nv_mul_f32 v{v}, v{v}, v5")
        bf16_round(a, v, 5)
    for p in range(10):
        a(f"s_waitcnt vmcnt({9-p})")
        for i in range(4):
            d = 20 + 4*p + i
            a(f"v_lshlrev_b32 v5, 16, v{d}\nv_and_b32 v6, 0xffff0000, v{d}\nv_fmac_f32 v{64+2*i}, v{10+p}, v5\nv_fmac_f32 v{65+2*i}, v{10+p}, v6")
    a("v_lshlrev_b32 v5, 7, v1\nv_lshl_add_u32 v5, v2, 5, v5")
    a("ds_write_b128 v5, v[64:67]\nds_write_b128 v5, v[68:71] offset:16")
    a("v_and_b32 v6, 31, v0\nv_lshrrev_b32 v7, 5, v0\nv_lshlrev_b32 v6, 2, v6\nv_lshl_add_u32 v8, v7, 10, v6")
    a("s_waitcnt lgkmcnt(0)\ns_barrier")
    for i in range(8): a(f"ds_read_b32 v{20+i}, v8 offset:{128*i}")
    a("s_waitcnt lgkmcnt(0)")
    for i in range(1, 8): a(f"v_add_f32 v20, v20, v{20+i}")
    a("v_lshl_add_u32 v8, v7, 7, v6\nds_write_b32 v8, v20 offset:8192\ns_waitcnt lgkmcnt(0)\ns_barrier")
    for i in range(8): a(f"ds_read_b32 v{20+i}, v6 offset:{8192+128*i}")
    a("s_waitcnt lgkmcnt(0)")
    for i in range(1, 8): a(f"v_add_f32 v20, v20, v{20+i}")
    bf16_round(a, 20, 5)
    a("v_add_f32 v21, 1.0, v20")
    bf16_round(a, 21, 5)
    a("s_sub_u32 s6, s3, 20\ns_cmp_lt_u32 s6, 20\ns_cselect_b32 s7, 1, 0\ns_sub_u32 s6, s3, 80\ns_cmp_lt_u32 s6, 20\ns_cselect_b32 s6, 1, s7\ns_cmp_eq_u32 s6, 0")
    l = a.label("noinc")
    a(f"s_cbranch_scc1 {l}\nv_mov_b32 v20, v21\n{l}:")
    a(f"s_lshl_b32 s6, s3, 7\nv_cmp_gt_u32 vcc, 32, v0\ns_and_saveexec_b64 s[28:29], vcc\ns_cbranch_execz L_k0_end")
    a(f"buffer_store_dword v20, v6, s[8:11], s6 offen offset:{WS_MOD}")
    a("s_branch L_k0_end")
    a("L_k0_xh:")
    a(f"s_load_dwordx2 s[16:17], s[0:1], {KA['x']}")
    a(f"s_sub_u32 s6, s2, {ends[0]}\ns_and_b32 s3, s6, 7\ns_lshr_b32 s7, s6, 4\ns_lshl_b32 s7, s7, 3\ns_add_u32 s3, s3, s7\ns_lshl_b32 s3, s3, 1\ns_bfe_u32 s7, s6, 0x10003\ns_add_u32 s3, s3, s7")
    a("v_and_b32 v2, 31, v1\nv_lshrrev_b32 v3, 5, v1\nv_mul_u32_u24 v4, 1280, v2\nv_lshl_add_u32 v4, v3, 4, v4")
    a(f"s_mul_i32 s6, s3, {32*1280}\ns_mul_i32 s7, s14, 320\ns_add_u32 s6, s6, s7")
    a("s_waitcnt lgkmcnt(0)")
    srd(a, 8, 4, WS_SIZE); srd(a, 20, 16, 2048 * 1280)
    for i in range(10):
        a(f"buffer_load_dwordx4 v[{20+4*i}:{23+4*i}], v4, s[20:23], s6 offen offset:{32*i}")
    a("v_mov_b32 v6, 0\nv_mov_b32 v7, 0")
    a(f"s_mul_i32 s6, s3, {40*1024}\ns_mul_i32 s7, s14, {10*1024}\ns_add_u32 s6, s6, s7\ns_add_u32 s6, s6, {WS_XH:#x}\nv_lshlrev_b32 v8, 4, v1")
    for i in range(10):
        b = 20 + 4*i
        a(f"s_waitcnt vmcnt(9)\nv_permlane32_swap_b32 v{b}, v{b+2}\nv_permlane32_swap_b32 v{b+1}, v{b+3}")
        a(f"buffer_store_dwordx4 v[{b}:{b+3}], v8, s[8:11], s6 offen offset:{(i%4)*1024}")
        if i % 4 == 3: a("s_add_u32 s6, s6, 4096")
        for d in range(4):
            lo = 64 + 2*(d % 2)
            a(f"v_lshlrev_b32 v{lo}, 16, v{b+d}\nv_and_b32 v{lo+1}, 0xffff0000, v{b+d}")
            a(f"v_add_f32 v6, v6, v{lo}\nv_fmac_f32 v7, v{lo}, v{lo}\nv_add_f32 v6, v6, v{lo+1}\nv_fmac_f32 v7, v{lo+1}, v{lo+1}")
    a(f"v_mov_b32 v64, -1\nv_mov_b32 v65, -1\nv_mov_b32 v66, -1\nv_mov_b32 v67, -1\nv_lshlrev_b32 v5, 4, v0\ns_mul_i32 s7, s3, 6144\ns_add_u32 s7, s7, {WS_ST2:#x}\nbuffer_store_dwordx4 v[64:67], v5, s[8:11], s7 offen\nbuffer_store_dwordx4 v[64:67], v5, s[8:11], s7 offen offset:2048")
    a("v_lshlrev_b32 v5, 3, v0\nds_write_b64 v5, v[6:7]\nv_lshlrev_b32 v5, 3, v2\ns_waitcnt lgkmcnt(0)\ns_barrier")
    for i in range(8): a(f"ds_read_b64 v[{70+2*i}:{71+2*i}], v5 offset:{256*i}")
    a("s_waitcnt lgkmcnt(0)")
    for i in range(1, 8): a(f"v_add_f32 v70, v70, v{70+2*i}\nv_add_f32 v71, v71, v{71+2*i}")
    a(f"v_mul_f32 v70, {f32(1/640)}, v70\nv_mul_f32 v71, {f32(1/640)}, v71\nv_fma_f32 v71, -v70, v70, v71\nv_max_f32 v71, 0, v71\nv_add_f32 v71, {f32(1e-5)}, v71\nv_rsq_f32 v72, v71\ns_nop 0\nv_mul_f32 v70, v70, v72")
    a(f"v_sub_f32 v73, 0, v70\ns_lshl_b32 s6, s3, 8\ns_add_u32 s6, s6, {WS_ST0:#x}\nv_cmp_gt_u32 vcc, 32, v0\ns_and_saveexec_b64 s[28:29], vcc\ns_cbranch_execz L_k0_end")
    a("buffer_store_dwordx2 v[72:73], v5, s[8:11], s6 offen")
    a("s_branch L_k0_end")
    a("L_k0_pq:")
    a(f"s_load_dwordx2 s[16:17], s[0:1], {KA['wq']}\ns_load_dwordx4 s[32:35], s[0:1], {KA['wk']}")
    a(f"s_sub_u32 s3, s2, {ends[1]}\ns_and_b32 s13, s3, 7\ns_lshr_b32 s12, s3, 3\ns_lshl_b32 s12, s12, 3\ns_lshl_b32 s6, s14, 1\ns_add_u32 s12, s12, s6")
    a("v_and_b32 v2, 31, v1\nv_lshrrev_b32 v3, 5, v1\nv_and_b32 v4, 15, v1\nv_lshlrev_b32 v9, 4, v1")
    a(f"v_lshrrev_b32 v5, 4, v2\nv_mul_u32_u24 v5, 20, v5\nv_add_u32 v5, v5, v4\ns_mul_i32 s6, s13, 80\nv_add_u32 v5, s6, v5\nv_lshlrev_b32 v5, 1, v5\nv_mul_u32_u24 v6, {4*1280}, v3\nv_add_u32 v10, v5, v6\nv_add_u32 v11, 80, v10\nv_add_u32 v12, 120, v10")
    a("v_bfe_u32 v5, v4, 1, 1\nv_lshrrev_b32 v7, 3, v4\nv_lshl_add_u32 v5, v7, 1, v5\nv_mul_u32_u24 v5, 20, v5\nv_bfe_u32 v7, v4, 2, 1\nv_lshl_add_u32 v5, v7, 1, v5\nv_and_b32 v7, 1, v4\nv_add_u32 v5, v5, v7\nv_add_u32 v5, 16, v5\nv_add_u32 v5, s6, v5\nv_lshlrev_b32 v5, 1, v5\nv_add_u32 v5, v5, v6\nv_cmp_gt_u32 vcc, 16, v2\ns_nop 1\nv_cndmask_b32 v12, v5, v12, vcc")
    a("v_lshrrev_b32 v5, 2, v4\nv_lshlrev_b32 v5, 1, v5\nv_add_u32 v5, v5, v7\nv_add_u32 v5, 16, v5\nv_and_b32 v8, 10, v4\nv_cmp_eq_u32 vcc, 0, v8")
    a(f"v_mov_b32 v8, {OOB//2:#x}\ns_nop 0\nv_cndmask_b32 v5, v8, v5, vcc\nv_add_u32 v14, 16, v4\nv_cmp_gt_u32 vcc, 4, v4\ns_nop 1\nv_cndmask_b32 v14, v8, v14, vcc\ns_cmp_eq_u32 s13, 3\ns_cselect_b64 vcc, -1, 0\nv_cndmask_b32 v5, v5, v14, vcc\ns_bitcmp1_b32 s13, 0\ns_cselect_b64 vcc, -1, 0\nv_cndmask_b32 v5, v4, v5, vcc\nv_lshlrev_b32 v5, 1, v5\nv_mul_u32_u24 v6, {4*40}, v3\nv_add_u32 v13, v5, v6")
    a("s_waitcnt lgkmcnt(0)")
    srd(a, 8, 4, WS_SIZE); srd(a, 20, 16, 640 * 1280)
    lz = a.label("nz")
    a(f"s_cmp_lg_u32 s3, 0\ns_cbranch_scc1 {lz}\nv_mov_b32 v16, 0\nv_mov_b32 v17, 0\nv_mov_b32 v18, 0\nv_mov_b32 v19, 0\nv_lshlrev_b32 v15, 4, v0\ns_mov_b32 s7, {WS_CNT:#x}\nbuffer_store_dwordx4 v[16:19], v15, s[8:11], s7 offen\ns_add_u32 s7, s7, 4096\nbuffer_store_dwordx4 v[16:19], v15, s[8:11], s7 offen\ns_add_u32 s7, s7, 4096\nbuffer_store_dwordx4 v[16:19], v15, s[8:11], s7 offen\n{lz}:")
    a("s_cmp_ge_u32 s13, 2\ns_cselect_b32 s32, s34, s32\ns_cselect_b32 s33, s35, s33\ns_cmp_ge_u32 s13, 4\ns_cselect_b32 s7, 0, 25600")
    a("s_mov_b32 s24, s32\ns_mov_b32 s25, s33\ns_mov_b32 s26, s7\ns_mov_b32 s27, 0x20000")
    for q in range(2):
        a(f"s_add_u32 s6, s12, {q}\ns_mul_i32 s28, s6, {16*1280}\ns_mul_i32 s29, s6, {16*40}")
        b = 20 + 12*q
        loads8(a, 20, 10, b, b+24, 28, E_PERM, 1280, 30)
        loads8(a, 20, 12, b+8, b+32, 28, E_PERM, 1280, 30)
        a("s_mov_b32 exec_lo, 0xffff\ns_mov_b32 exec_hi, 0xffff")
        loads8(a, 20, 11, b+4, b+28, 28, E_PERM, 1280, 30)
        a("s_mov_b32 exec_lo, 0xffff0000\ns_mov_b32 exec_hi, 0xffff0000")
        loads8(a, 24, 13, b+4, b+28, 29, E_PERM, 40, 30)
        a("s_mov_b64 exec, -1")
        if q == 0: a("s_waitcnt vmcnt(16)")
    a(f"s_mul_i32 s6, s13, 40\ns_add_u32 s6, s6, s12\ns_mul_i32 s6, s6, 3072\ns_add_u32 s6, s6, {WS_WQKV:#x}\ns_waitcnt vmcnt(0)")
    for i in range(24): a(f"v_lshl_or_b32 v{20+i}, v{44+i}, 16, v{20+i}")
    for q in range(2):
        for ft in range(3):
            a(f"buffer_store_dwordx4 v[{20+12*q+4*ft}:{23+12*q+4*ft}], v9, s[8:11], s6 offen offset:{ft*1024}")
        a("s_add_u32 s6, s6, 3072")
    end(a)
    finish(a, grid, 256, 9216, 144)

STG = 20480
NS, DEP = 6, 4
EX = NS * STG
PAR = EX + 24576
LDS_G = PAR + 5120
ACC, WS0, AF, PR, VW = 8, 56, 104, 200, 240

def common_prologue(a, extra_loads=""):
    a(f"s_cmp_ge_u32 s2, 256\ns_cbranch_scc1 L_{a.name}_exit")
    stamp_begin(a)
    a(f"s_load_dwordx2 s[4:5], s[0:1], {KA['ws']}")
    a(extra_loads)
    a("v_and_b32 v4, 63, v0\nv_lshrrev_b32 v5, 6, v0\nv_lshlrev_b32 v1, 4, v4\nv_readfirstlane_b32 s14, v5\nv_and_b32 v2, 31, v4\nv_lshrrev_b32 v3, 5, v4")
    a("s_and_b32 s12, s2, 7\ns_lshr_b32 s3, s2, 6\ns_lshl_b32 s3, s3, 3\ns_add_u32 s12, s12, s3\ns_bfe_u32 s13, s2, 0x30003")

def gemm_prologue(a, extra_loads=""):
    common_prologue(a, extra_loads)
    a("s_bfe_u32 s15, s14, 0x10001\ns_and_b32 s17, s14, 1\ns_lshl_b32 s16, s12, 1\ns_add_u32 s16, s16, s17")
    a(f"s_cmp_ge_u32 s14, 4\ns_cbranch_scc1 L_{a.name}_loader")

def compute_addr(a, rb):
    a.rb = rb
    if rb == 0:
        a(f"s_mul_i32 s3, s15, {6144+2048}\nv_add_u32 v{VW}, s3, v1\ns_mul_i32 s3, s15, {6144-2048}\ns_add_u32 s3, s3, 2048\nv_add_u32 v{VW+2}, s3, v1")
        a(f"s_lshl_b32 s3, s15, 8\nv_xor_b32 v{VW+1}, s3, v1\ns_mul_i32 s3, s15, 6144\ns_add_u32 s3, s3, 1024\nv_add_u32 v{VW+1}, s3, v{VW+1}")
    else:
        a("v_bfe_u32 v4, v0, 2, 2\nv_and_b32 v5, 3, v0\nv_bfe_u32 v6, v0, 4, 1")
        a("v_lshl_add_u32 v4, v3, 2, v4" if rb == 192 else "v_lshl_add_u32 v4, v4, 1, v3")
        a(f"v_mul_u32_u24 v4, {rb}, v4\nv_lshl_add_u32 v4, v5, 3, v4\ns_mul_i32 s3, s15, 6144\nv_add_u32 v4, s3, v4")
        a(f"v_lshl_add_u32 v5, v6, 5, v4\ns_mul_i32 s3, s15, 96\nv_add_u32 v{VW}, s3, v5\ns_sub_u32 s3, 96, s3\nv_add_u32 v{VW+2}, s3, v5")
        if rb == 192:
            a(f"v_xor_b32 v6, s15, v6\nv_mul_u32_u24 v6, 96, v6\nv_add_u32 v6, 64, v6\nv_add_u32 v{VW+1}, v4, v6")
        else:
            a(f"v_add_u32 v{VW+1}, 64, v4")
    a(f"s_lshl_b32 s3, s14, 11\ns_add_u32 s3, s3, 12288\nv_add_u32 v{VW+3}, s3, v1")
    for i in range(4): a(f"v_add_u32 v{VW+4+i}, {3*STG}, v{VW+i}")

def read_ops(a, s, areg):
    slot = s % NS; hi, sl = (4, slot - 3) if slot >= 3 else (0, slot)
    ra, rw = [], []
    if areg is not None:
        for q in range(2):
            ra.append(lambda q=q: a.lg(f"ds_read_b128 v[{areg+4*q}:{areg+4*q+3}], v{VW+3+hi} offset:{sl*STG + q*1024}", ("a", s)))
    for q in range(2):
        for t in range(3):
            r = WS0 + 24*(s % 2) + 12*q + 4*t; o = sl*STG + q*3072
            if a.rb == 0:
                rw.append(lambda r=r, t=t, o=o: a.lg(f"ds_read_b128 v[{r}:{r+3}], v{VW+t+hi} offset:{o}", ("w", s)))
            else:
                def f(r=r, t=t, o=o):
                    a.lg(f"ds_read_b64_tr_b16 v[{r}:{r+1}], v{VW+t+hi} offset:{o}", ("w", s))
                    a.lg(f"ds_read_b64_tr_b16 v[{r+2}:{r+3}], v{VW+t+hi} offset:{o + 8*a.rb}", ("w", s))
                rw.append(f)
    return ra, rw

def mfma_ops(a, wset, areg, first):
    ops = []
    for q in range(2):
        for t in range(3):
            r = ACC + 16*t; w = WS0 + 24*wset + 12*q + 4*t; b = areg + 4*q
            c = "0" if (first and q == 0) else f"v[{r}:{r+15}]"
            ops.append(lambda r=r, w=w, b=b, c=c: a(f"v_mfma_f32_32x32x16_bf16 v[{r}:{r+15}], v[{w}:{w+3}], v[{b}:{b+3}], {c}"))
    return ops

def transform_ops(a, F, P, rr, nm, t=232):
    ops = []
    for d in range(4):
        x, y = t + 2*(d % 2), t + 2*(d % 2) + 1
        L = [f"v_lshlrev_b32 v{x}, 16, v{F+d}", f"v_and_b32 v{y}, 0xffff0000, v{F+d}",
             f"v_fma_f32 v{x}, v{x}, v{rr}, v{nm}", f"v_fma_f32 v{y}, v{y}, v{rr}, v{nm}",
             f"v_fma_f32 v{x}, v{x}, v{P+8+2*d}, v{P+2*d}", f"v_fma_f32 v{y}, v{y}, v{P+9+2*d}, v{P+1+2*d}", f"v_cvt_pk_bf16_f32 v{F+d}, v{x}, v{y}"]
        ops += [(lambda l=l: a(l)) for l in L]
    return ops

def merge(*lists):
    items = []
    for li, L in enumerate(lists):
        n = len(L)
        for i, op in enumerate(L): items.append(((i + 0.5 * (li > 0)) / n, li, i, op))
    items.sort(key=lambda x: (x[0], x[1], x[2]))
    return [x[3] for x in items]
def run(ops):
    for op in ops: op()

def param_base(a):
    a(f"s_mul_i32 s3, s15, 1280\ns_add_u32 s3, s3, {PAR}\nv_lshlrev_b32 v6, 4, v3\nv_add_u32 v6, s3, v6")
def param_ops(a, ks):
    ops = []
    for arr in range(2):
        P = PR + 16*(ks % 2) + 8*arr; off = arr*2560 + ks*64
        ops.append(lambda P=P, off=off: a.lg(f"ds_read_b128 v[{P}:{P+3}], v6 offset:{off}", ("p", ks)))
        ops.append(lambda P=P, off=off: a.lg(f"ds_read_b128 v[{P+4}:{P+7}], v6 offset:{off+32}", ("p", ks)))
    return ops

def exchange(a, R):
    a(f"s_mul_i32 s3, s14, 6144\ns_add_u32 s3, s3, {EX}\nv_add_u32 v4, s3, v1\ns_xor_b32 s3, s14, 2\ns_mul_i32 s3, s3, 6144\ns_add_u32 s3, s3, {EX}\nv_add_u32 v5, s3, v1\ns_nop 4")
    for i in range(6): a(f"ds_write_b128 v4, v[{ACC+24+4*i}:{ACC+27+4*i}] offset:{i*1024}")
    a.wait_all_lg()
    a("s_barrier")
    for j in range(3):
        for h in range(2):
            a(f"ds_read_b128 v[{R+8*j+4*h}:{R+8*j+4*h+3}], v5 offset:{((j+1)%3)*2048 + h*1024}")
    for j in range(3):
        a(f"s_waitcnt lgkmcnt({4-2*j})")
        for i in range(8): a(f"v_add_f32 v{ACC+8*j+i}, v{ACC+8*j+i}, v{R+8*j+i}")

def c_start(a, areg_of, xf=None):
    a("s_barrier")
    stamp(a, 3)
    ra, rw = read_ops(a, 0, areg_of(0))
    run(ra)
    if xf:
        n, rr, nm = xf
        run(param_ops(a, 0)); run(param_ops(a, 1)); run(rw)
        a.wait(lg=[("a", 0), ("p", 0)])
        run(transform_ops(a, areg_of(0), PR, rr, nm))
        a.wait(lg=[("p", 1)])
        run(merge(transform_ops(a, areg_of(0) + 4, PR + 16, rr, nm), param_ops(a, 2)))
    else:
        run(rw)

def c_iter(a, s, first, total, areg_of, xf=None, load_a=True):
    ra, rw = [], []
    if s + 1 < total:
        a("s_barrier")
        ra, rw = read_ops(a, s + 1, areg_of(s + 1) if load_a else None)
    mf = mfma_ops(a, s % 2, areg_of(s), first)
    if os.environ.get("X_NORD"): ra, rw = [], []
    if os.environ.get("X_NOMFMA"): mf = [lambda: a("s_nop 0")] * 6
    if os.environ.get("X_NOXF"): xf = None
    if xf and s + 1 < xf[0]:
        n, rr, nm = xf
        k0 = 2*(s+1)
        run(ra); run(param_ops(a, k0 + 1))
        a.wait(lg=[("w", s)])
        run(merge(mf[:2], rw[:2]))
        a.wait(lg=[("a", s+1), ("p", k0)])
        run(merge(transform_ops(a, areg_of(s+1), PR, rr, nm), mf[2:4], rw[2:4]))
        a.wait(lg=[("p", k0 + 1)])
        nxt = param_ops(a, k0 + 2) if s + 2 < n else []
        run(merge(transform_ops(a, areg_of(s+1) + 4, PR + 16, rr, nm), mf[4:], rw[4:] + nxt))
    else:
        a.wait(lg=[("w", s), ("a", s)])
        run(merge(mf, ra + rw))

class Loader:
    def __init__(self, a, act_base, nks, wmode, wbase=None, wblocks=1, ka_sreg=None, rs=0, nbytes=0, colbytes=0, col0=0):
        self.a, self.wmode = a, wmode
        a(f"L_{a.name}_loader:")
        a.vmq = []; a.lgq = []
        a(f"s_and_b32 s3, s14, 3\ns_mul_i32 s20, s3, 3072\ns_lshl_b32 s21, s3, 11\ns_add_u32 s21, s21, 12288")
        a(f"s_mul_i32 s18, s16, {nks*1024}\ns_mul_i32 s3, s15, {nks*512}\ns_add_u32 s18, s18, s3\ns_add_u32 s18, s18, {act_base:#x}")
        if wmode == 0:
            a(f"s_mul_i32 s19, s13, {wblocks*nks*3072}\ns_mul_i32 s3, s15, {nks*1536}\ns_add_u32 s19, s19, s3\ns_mul_i32 s3, s17, 3072\ns_add_u32 s19, s19, s3\ns_add_u32 s19, s19, {wbase:#x}")
            self.wstep, self.wsrd, self.wv = 6144, 8, (1, 1, 1)
        else:
            cpr = wmode // 16
            a(f"s_mul_i32 s19, s15, {nks*8*rs}\ns_mul_i32 s3, s17, {16*rs}\ns_add_u32 s19, s19, s3\ns_mul_i32 s3, s13, {colbytes}\ns_add_u32 s19, s19, s3\ns_add_u32 s19, s19, {col0}")
            a("v_and_b32 v4, 63, v0")
            for i in range(3):
                a(f"v_add_u32 v5, {64*i}, v4\nv_mul_u32_u24 v6, {(1 << 16) // cpr + 1}, v5\nv_lshrrev_b32 v6, 16, v6\nv_mul_u32_u24 v7, {cpr}, v6\nv_sub_u32 v7, v5, v7")
                if wmode == 160:
                    a("v_and_b32 v8, 8, v6\nv_and_b32 v9, 1, v6\nv_lshl_add_u32 v8, v9, 2, v8\nv_bfe_u32 v9, v6, 1, 2\nv_add_u32 v6, v8, v9")
                a(f"v_mul_u32_u24 v6, {rs}, v6\nv_lshl_add_u32 v{10+i}, v7, 4, v6")
                if i: a(f"v_subrev_u32 v{10+i}, {1024*i}, v{10+i}")
                if wmode == 160 and i == 2:
                    a(f"v_mov_b32 v8, {OOB:#x}\nv_cmp_gt_u32 vcc, 32, v4\ns_nop 1\nv_cndmask_b32 v12, v8, v12, vcc")
            self.wstep, self.wsrd, self.wv = 32 * rs, 40, (10, 11, 12)
        a("s_waitcnt lgkmcnt(0)")
        srd(a, 8, 4, WS_SIZE)
        if wmode: srd(a, 40, ka_sreg, nbytes)
        stamp(a, 1)
    def dma1(self, lds_off, goff_expr_sreg, tag):
        a = self.a
        a(f"s_mov_b32 m0, {lds_off}\ns_nop 0")
        a.vm(f"buffer_load_dwordx4 v1, s[8:11], s{goff_expr_sreg} offen lds", tag)
    def params(self, mod_off):
        a = self.a
        a(f"s_and_b32 s3, s14, 3\ns_lshl_b32 s3, s3, 10\ns_add_u32 m0, s3, {PAR}\ns_add_u32 s6, s3, {WS_MOD + mod_off}")
        a.vm("buffer_load_dwordx4 v1, s[8:11], s6 offen lds", "par")
        a(f"s_mov_b32 s6, {WS_MOD + mod_off + 4096}")
        self.dma1(PAR + 4096, 6, "par")
    def issue(self, s, with_a=True):
        a = self.a; slot = s % NS
        if with_a:
            a(f"s_add_u32 m0, s21, {slot*STG}\ns_nop 0")
            for q in range(2): a.vm(f"buffer_load_dwordx4 v1, s[8:11], s18 offen offset:{q*1024} lds", ("st", s))
            a("s_add_u32 s18, s18, 2048")
        a(f"s_add_u32 m0, s20, {slot*STG}\ns_nop 0")
        for i in range(3): a.vm(f"buffer_load_dwordx4 v{self.wv[i]}, s[{self.wsrd}:{self.wsrd+3}], s19 offen offset:{i*1024} lds", ("st", s))
        a(f"s_add_u32 s19, s19, {self.wstep}")
    def start(self, issue):
        issue(0); issue(1)
        stamp(self.a, 2)
    def step(self, s, total, issue):
        a = self.a
        a.wait(vm=[("st", s)])
        a("s_barrier")
        if s == 0:
            for t in range(2, DEP): issue(t)
        if s + DEP < total: issue(s + DEP)

def prefetch(a, srdn, base, nbytes, nw, widx, vdst, vtmp, st):
    per_wg = -(-nbytes // 32 // 128) * 128
    per_wave = -(-per_wg // (8192 * nw))
    a(f"s_lshr_b32 s{st}, s2, 3\ns_mul_i32 s{st}, s{st}, {per_wg}\ns_mul_i32 s{st+1}, s{widx}, {per_wave*8192}\ns_add_u32 s{st}, s{st}, s{st+1}\ns_add_u32 s{st}, s{st}, {base:#x}\nv_lshlrev_b32 v{vtmp}, 3, v1")
    for i in range(per_wave):
        a.vm(f"buffer_load_dword v{vdst}, v{vtmp}, s[{srdn}:{srdn+3}], s{st} offen")
        if i < per_wave - 1: a(f"s_add_u32 s{st}, s{st}, 8192")

def unit_off(a, d, per_nb, base):
    a(f"s_lshl_b32 s{d}, s16, 3\ns_add_u32 s{d}, s{d}, s13\ns_mul_i32 s{d}, s{d}, {per_nb}\ns_mul_i32 s6, s15, 3\ns_add_u32 s{d}, s{d}, s6\ns_lshl_b32 s{d}, s{d}, 10\ns_add_u32 s{d}, s{d}, {base:#x}")

def k1():
    a = K("k1")
    gemm_prologue(a)
    compute_addr(a, 0); param_base(a)
    RR, NM = 236, 237
    a(f"v_lshlrev_b32 v7, 3, v2\ns_lshl_b32 s6, s16, 8\ns_add_u32 s6, s6, {WS_ST0:#x}\ns_waitcnt lgkmcnt(0)")
    srd(a, 8, 4, WS_SIZE)
    stamp(a, 1)
    a(f"buffer_load_dwordx2 v[{RR}:{NM}], v7, s[8:11], s6 offen\ns_waitcnt vmcnt(0)")
    areg = lambda s: AF + 8*(s % 2)
    xf = (10, RR, NM)
    c_start(a, areg, xf)
    for s in range(10): c_iter(a, s, s == 0, 10, areg, xf)
    stamp(a, 4)
    T = WS0
    exchange(a, T)
    stamp(a, 5)
    R = ACC
    QS = LOG2E / math.sqrt(20.0)
    unit_off(a, 17, 5, WS_Q)
    a(f"s_mov_b32 s7, {f32(QS)}")
    def qunit(i):
        for j in range(8): a(f"v_mul_f32 v{T+j}, s7, v{R+8*i+j}")
        for d in range(4): a(f"v_cvt_pk_bf16_f32 v{T+8+4*i+d}, v{T+2*d}, v{T+2*d+1}")
        a(f"buffer_store_dwordx4 v[{T+8+4*i}:{T+11+4*i}], v1, s[8:11], s17 offen offset:{i*1024}")
    qunit(0); qunit(1)
    lsp = a.label("spare")
    a(f"s_cmp_eq_u32 s15, 1\ns_cbranch_scc1 {lsp}")
    qunit(2)
    a(f"s_branch L_k1_end\n{lsp}:")
    a("s_cmp_ge_u32 s13, 4\ns_cbranch_scc1 L_k1_end")
    S = R + 16
    a(f"s_lshr_b32 s6, s16, 3\ns_mul_i32 s17, s6, {KVCH}\ns_add_u32 s17, s17, {WS_KV:#x}\ns_and_b32 s18, s16, 7")
    l1, lv, l2 = a.label("k2"), a.label("v"), a.label("k2b")
    a(f"s_cmp_eq_u32 s13, 3\ns_cbranch_scc0 {l1}\nv_mov_b32 v{S+4}, 1.0\ns_mov_b32 exec_lo, 0\nv_mov_b32 v{S}, 1.0\ns_mov_b32 exec_lo, -1\n{l1}:")
    for d in range(4): a(f"v_cvt_pk_bf16_f32 v{T+d}, v{S+2*d}, v{S+2*d+1}")
    a(f"s_cmp_ge_u32 s13, 2\ns_cbranch_scc1 {lv}\ns_cmp_eq_u32 s13, 1\ns_cbranch_scc1 {l2}")
    a(f"s_lshl_b32 s18, s18, 10\ns_add_u32 s17, s17, s18\nbuffer_store_dwordx4 v[{T}:{T+3}], v1, s[8:11], s17 offen\ns_branch L_k1_end")
    a(f"{l2}:\ns_lshl_b32 s18, s18, 8\ns_add_u32 s17, s17, s18\ns_add_u32 s17, s17, 24576\nv_lshrrev_b32 v4, 2, v1\nbuffer_store_dword v{T}, v4, s[8:11], s17 offen\ns_branch L_k1_end")
    a(f"{lv}:")
    a(f"s_lshl_b32 s3, s14, 11\nv_lshlrev_b32 v4, 5, v2\nv_lshl_add_u32 v4, v3, 3, v4\nv_add_u32 v4, s3, v4")
    a(f"ds_write_b64 v4, v[{T}:{T+1}]\nds_write_b64 v4, v[{T+2}:{T+3}] offset:16")
    a("v_lshrrev_b32 v4, 4, v1\nv_and_b32 v5, 15, v4\nv_lshrrev_b32 v4, 4, v4")
    a("v_and_b32 v6, 1, v4\nv_lshlrev_b32 v6, 4, v6\nv_lshl_add_u32 v6, v3, 2, v6\nv_lshrrev_b32 v7, 2, v5\nv_add_u32 v6, v6, v7\nv_lshlrev_b32 v6, 5, v6\nv_and_b32 v7, 3, v5\nv_lshl_add_u32 v6, v7, 3, v6\nv_add_u32 v6, s3, v6")
    a("s_waitcnt lgkmcnt(0)")
    a(f"ds_read_b64_tr_b16 v[{T+4}:{T+5}], v6\nds_read_b64_tr_b16 v[{T+6}:{T+7}], v6 offset:256")
    a("v_and_b32 v6, 1, v4\nv_lshlrev_b32 v6, 10, v6\nv_lshl_add_u32 v6, v3, 9, v6\nv_lshl_add_u32 v6, v5, 4, v6")
    a(f"s_lshl_b32 s18, s18, 11\ns_add_u32 s17, s17, s18\ns_add_u32 s17, s17, 8192\ns_cmp_eq_u32 s13, 2\ns_cselect_b32 s6, 256, 0\ns_add_u32 s17, s17, s6")
    a(f"s_waitcnt lgkmcnt(0)\nbuffer_store_dwordx4 v[{T+4}:{T+7}], v6, s[8:11], s17 offen")
    a("s_branch L_k1_end")
    L = Loader(a, WS_XH, 40, 0, wbase=WS_WQKV)
    L.params(0)
    L.start(L.issue)
    for s in range(10): L.step(s, 10, L.issue)
    end(a)
    finish(a, 256, 512, LDS_G, 248)

def k2():
    K2T = os.environ.get("X_K2T"); SYNC = os.environ.get("X_SYNC", "bar")
    a = K("k2")
    common_prologue(a, f"s_load_dwordx4 s[32:35], s[0:1], {KA['w_in']}\ns_load_dwordx2 s[36:37], s[0:1], {KA['wo']}\ns_load_dwordx2 s[38:39], s[0:1], {KA['w_out']}\ns_load_dwordx2 s[44:45], s[0:1], {KA['out']}")
    SA = [(8, 24), (40, 56)]; OO = [72, 88]; PP = [104, 112]; QQ1 = [120, 128]; QQ2 = [124, 132]
    KA_, KB_, V1, V2 = 136, 140, 144, 148
    VA, VB, VN, VNB, DUM, OA, CA = 4, 5, 6, 152, 153, 154, 160
    NB = 6
    FLAG = NB * KVCH
    a("s_mov_b32 s27, 0")
    a("s_cmp_ge_u32 s14, 4\ns_cbranch_scc1 L_k2_helper")
    a("v_lshrrev_b32 v7, 2, v1")
    a("s_lshr_b32 s15, s14, 1\ns_and_b32 s16, s14, 1\ns_lshl_b32 s16, s16, 1\ns_lshl_b32 s17, s12, 1\ns_add_u32 s17, s17, s15")
    a(f"s_lshl_b32 s18, s17, 3\ns_add_u32 s18, s18, s13\ns_mul_i32 s18, s18, 5120\ns_add_u32 s18, s18, {WS_Q:#x}\ns_lshl_b32 s6, s16, 10\ns_add_u32 s19, s18, s6\ns_lshl_b32 s6, s16, 2\ns_add_u32 s18, s18, s6\ns_add_u32 s18, s18, 4096")
    a("s_waitcnt lgkmcnt(0)")
    srd(a, 8, 4, WS_SIZE)
    stamp(a, 1)
    for X in range(2):
        a(f"buffer_load_dwordx4 v[{QQ1[X]}:{QQ1[X]+3}], v1, s[8:11], s19 offen offset:{1024*X}\nbuffer_load_dword v{QQ2[X]}, v1, s[8:11], s18 offen offset:{4*X}")
    def qk1(X, S): return f"v_mfma_f32_32x32x16_bf16 v[{S}:{S+15}], v[{KB_}:{KB_+3}], v[{QQ2[X]}:{QQ2[X]+3}], 0"
    def qk2(X, S): return f"v_mfma_f32_32x32x16_bf16 v[{S}:{S+15}], v[{KA_}:{KA_+3}], v[{QQ1[X]}:{QQ1[X]+3}], v[{S}:{S+15}]"
    def pv(X, V, P): return f"v_mfma_f32_32x32x16_bf16 v[{OO[X]}:{OO[X]+15}], v[{V}:{V+3}], v[{P}:{P+3}], v[{OO[X]}:{OO[X]+15}]"
    def rKA(t, va): return f"ds_read_b128 v[{KA_}:{KA_+3}], v{va} offset:{t*1024}"
    def rKB(t, vb): return f"ds_read_b32 v{KB_}, v{vb} offset:{24576+t*256}"
    def rV(t, p, va): return f"ds_read_b128 v[{(V1, V2)[p]}:{(V1, V2)[p]+3}], v{va} offset:{8192+t*2048+p*1024}"
    def scores():
        for X in range(2): a(qk1(X, SA[X][0]))
        for X in range(2): a(qk2(X, SA[X][0]))
    def max_reduce():
        for X in range(2):
            for i in range(0, 16, 2): a(f"v_max3_f32 v{PP[X]}, v{SA[X][0]+i}, v{SA[X][0]+i+1}, v{PP[X]}")
    def finish_max():
        a("v_cmp_eq_u32 vcc, 0, v3")
        for X in range(2):
            M = PP[X]
            a(f"v_mov_b32 v{M+1}, v{M}\ns_nop 1\nv_permlane32_swap_b32 v{M}, v{M+1}\ns_nop 1\nv_max_f32 v{M}, v{M}, v{M+1}")
            a(f"v_and_b32 v{M+1}, 0xffff0000, v{M}\nv_sub_f32 v{M+2}, v{M}, v{M+1}\nv_and_b32 v{M+3}, 0xffff0000, v{M+2}\nv_sub_f32 v{M+2}, v{M+2}, v{M+3}")
            a(f"v_lshrrev_b32 v{M+1}, 16, v{M+1}\nv_or_b32 v{M+1}, v{M+1}, v{M+3}\nv_lshrrev_b32 v{M+2}, 16, v{M+2}")
            a(f"v_cndmask_b32 v{QQ2[X]+1}, 0, v{M+1}, vcc\nv_cndmask_b32 v{QQ2[X]+2}, 0, v{M+2}, vcc")
    def reset_max():
        for X in range(2): a(f"v_mov_b32 v{QQ2[X]+1}, 0\nv_mov_b32 v{QQ2[X]+2}, 0\nv_mov_b32 v{PP[X]}, 0xff800000")
    reset_max()
    for r in (QQ2[0]+3, QQ2[1]+3, KB_+3): a(f"v_mov_b32 v{r}, 0")
    for r in (KB_+1, KB_+2): a(f"v_mov_b32 v{r}, 0xbf80bf80")
    def main_init():
        a(f"s_mov_b32 s24, 0\ns_mov_b32 s25, {KVCH}\nv_mov_b32 v{VNB}, {FLAG+68}\nv_mov_b32 v{VA}, v1\nv_mov_b32 v{VN}, v1\nv_mov_b32 v{VB}, v7")
        for X in range(2):
            for i in range(16): a(f"v_mov_b32 v{OO[X]+i}, 0")
            for i in range(4): a(f"v_mov_b32 v{SA[X][1]+12+i}, 0")
        for i in range(4): a(f"v_mov_b32 v{V2+i}, 0")
    main_init()
    a(f"s_mul_i32 s6, s13, 20\ns_mul_i32 s7, s16, 5\ns_add_u32 s6, s6, s7\ns_mul_i32 s22, s17, {40*1024}\ns_add_u32 s22, s22, {WS_O:#x}")
    for X in range(2):
        for i, g in enumerate((0, 2, 4)):
            a(f"v_add_u32 v8, s6, v3\nv_add_u32 v8, {5*X+g}, v8" if g < 4 else f"v_mov_b32 v8, s6\nv_add_u32 v8, {5*X+4}, v8")
            a(f"v_lshrrev_b32 v9, 2, v8\nv_lshlrev_b32 v9, 10, v9\nv_and_b32 v10, 1, v8\nv_lshl_add_u32 v9, v10, 9, v9\nv_bfe_u32 v10, v8, 1, 1\nv_lshl_add_u32 v9, v10, 3, v9\nv_lshl_add_u32 v{OA+3*X+i}, v2, 4, v9")
    a(f"v_mov_b32 v{CA}, {FLAG+32}\nv_mov_b32 v{CA+2}, 0\nv_add_u32 v{CA+3}, {FLAG+32}, v7\nds_write_b32 v{CA+3}, v{CA+2}\nv_mov_b32 v{CA+1}, 1")
    a("s_waitcnt vmcnt(0) lgkmcnt(0)\ns_barrier")
    stamp(a, 2)
    a(rKA(0, 1)); a(rKB(0, 7)); a("s_waitcnt lgkmcnt(0)")
    scores()
    a("s_nop 10")
    max_reduce()
    finish_max()
    a("L_k2_main:")
    for X in range(2):
        for i in range(2): a(f"v_mov_b32 v{PP[X]+4+i}, 0")
    scores()
    a(rKB(1, VB)); a(f"ds_read_b32 v{DUM}, v{VB}"); a(rKA(1, VA)); a(rV(0, 0, VA))
    a("s_nop 5")
    stamp(a, 3)
    slow = []
    a("L_k2_loop:")
    for t in range(8):
        kt, vt = (t + 2) % 8, (t + 1) % 8
        if PROF and os.environ.get("X_GT"):
            if t == 0: a("s_memtime s[80:81]")
            if t == 3: a("s_lshl_b32 m0, s24, 1\ns_nop 0\ns_movreld_b32 s56, s80")
        for gi in range(4):
            for X in range(2):
                S, Sp = (SA[X][0], SA[X][1]) if t % 2 == 0 else (SA[X][1], SA[X][0])
                P = PP[X]
                cv, mf, rd = [([(6, Sp+12), (7, Sp+14)], qk1(X, Sp), rKB(kt, VB)),
                              ([(0, S), (1, S+2)], pv(X, V2, P+4), rV(t, 1, VN)),
                              ([(2, S+4), (3, S+6)], qk2(X, Sp), rKA(kt, VA)),
                              ([(4, S+8), (5, S+10)], pv(X, V1, P), rV(vt, 0, VN))][gi]
                for d, r in cv: a(f"v_cvt_pk_bf16_f32 v{P+d}, v{r}, v{r+1}")
                if gi % 2 == 0 and X == 0: a("s_waitcnt lgkmcnt(2)")
                a(mf)
                if X == 1: a(rd)
                if X == 0 and (t, gi) == (5, 0):
                    ls, l2, l5 = a.label("bs"), a.label("g2"), a.label("g5")
                    a(f"s_cmp_eq_u32 s24, 5\ns_cselect_b32 s26, {-5*KVCH}, s25\ns_bitcmp1_b32 39, s24\ns_cbranch_scc0 {ls}\ns_cmp_eq_u32 s24, 2\ns_cbranch_scc1 {l2}\ns_cmp_eq_u32 s24, 5\ns_cbranch_scc1 {l5}\ns_barrier\ns_branch {ls}")
                    a(f"{l2}:\ns_mov_b64 exec, 1\nds_add_u32 v{CA}, v{CA+1}\ns_mov_b64 exec, -1\ns_branch {ls}")
                    a(f"{l5}:\nds_read_b32 v{DUM}, v{CA} offset:4\ns_waitcnt lgkmcnt(0)\nv_readfirstlane_b32 s3, v{DUM}\ns_cmp_lt_u32 s3, 4\ns_cbranch_scc1 {l5}\n{ls}:")
                if X == 0 and (t, gi) == (6, 0): a(f"v_add_u32 v{VB}, s26, v{VB}\nv_add_u32 v{VA}, s26, v{VA}")
                if X == 0 and (t, gi) == (7, 2): a(f"v_add_u32 v{VN}, s26, v{VN}")
                for i in range(4): a(f"v_exp_f32 v{S+4*gi+i}, v{S+4*gi+i}")
    a("s_add_u32 s24, s24, 1\ns_cmp_lt_u32 s24, 8\ns_cbranch_scc1 L_k2_loop")
    for X in range(2):
        a(f"v_cvt_pk_bf16_f32 v{PP[X]+6}, v{SA[X][1]+12}, v{SA[X][1]+13}\nv_cvt_pk_bf16_f32 v{PP[X]+7}, v{SA[X][1]+14}, v{SA[X][1]+15}")
    a("s_waitcnt lgkmcnt(0)\nv_cmp_eq_u32 vcc, 0, v3")
    for X in range(2): a(pv(X, V2, PP[X]+4))
    a(f"v_mov_b32 v{KA_}, {f32(2.0**30)}\nv_mov_b32 v{KA_+1}, {f32(2.0**-30)}\ns_mov_b64 s[28:29], 0\ns_nop 8")
    if not os.environ.get("X_GT"): stamp(a, 4)
    for X in range(2):
        O, T, L = OO[X], SA[X][0], PP[X]
        a(f"v_cndmask_b32 v{L}, v{O}, v{O+4}, vcc\nv_rcp_f32 v{L+1}, v{L}")
        a(f"v_cmp_nle_f32 s[30:31], v{L}, v{KA_}\ns_or_b64 s[28:29], s[28:29], s[30:31]\nv_cmp_nge_f32 s[30:31], v{L}, v{KA_+1}\ns_or_b64 s[28:29], s[28:29], s[30:31]")
        for i, r in enumerate((8, 9, 10, 11, 12, 13, 14, 15, 0, 1, 2, 3)): a(f"v_mul_f32 v{T+6+i}, v{O+r}, v{L+1}")
        for d in range(6): a(f"v_cvt_pk_bf16_f32 v{T+d}, v{T+6+2*d}, v{T+7+2*d}")
        a(f"buffer_store_dwordx2 v[{T}:{T+1}], v{OA+3*X}, s[8:11], s22 offen\nbuffer_store_dwordx2 v[{T+2}:{T+3}], v{OA+3*X+1}, s[8:11], s22 offen")
        a(f"s_mov_b32 exec_hi, 0\nbuffer_store_dwordx2 v[{T+4}:{T+5}], v{OA+3*X+2}, s[8:11], s22 offen\ns_mov_b32 exec_hi, -1")
    a(f"s_cmp_eq_u32 s27, 1\ns_cbranch_scc1 L_k2_end")
    a(f"s_cmp_lg_u64 s[28:29], 0\ns_cselect_b32 s3, 1, 0\nv_mov_b32 v{V1}, s3\ns_lshl_b32 s6, s14, 2\ns_add_u32 s6, s6, {FLAG}\nv_mov_b32 v{V1+1}, s6\nds_write_b32 v{V1+1}, v{V1}\ns_waitcnt lgkmcnt(0)")
    def vote(lend):
        a(f"s_barrier\nv_mov_b32 v44, {FLAG}\nds_read_b128 v[40:43], v44\ns_waitcnt lgkmcnt(0)")
        for i in range(1, 4): a(f"v_or_b32 v40, v40, v{40+i}")
        a(f"s_nop 0\nv_readfirstlane_b32 s3, v40\ns_cmp_eq_u32 s3, {XCMP}\ns_cbranch_scc1 {lend}\ns_mov_b32 s27, 1")
    vote("L_k2_end")
    reset_max()
    a("s_mov_b32 s24, 0")
    a("L_k2_maxloop:")
    a("s_barrier\ns_barrier")
    for t in range(8):
        a(rKA(t, 1)); a(rKB(t, 7)); a("s_waitcnt lgkmcnt(0)")
        scores()
        a("s_nop 10")
        max_reduce()
    a("s_add_u32 s24, s24, 1\ns_cmp_lt_u32 s24, 8\ns_cbranch_scc1 L_k2_maxloop")
    finish_max()
    main_init()
    a(f"s_barrier\nds_write_b32 v{CA+3}, v{CA+2}\ns_waitcnt lgkmcnt(0)\ns_barrier")
    a(rKA(0, 1)); a(rKB(0, 7)); a("s_waitcnt lgkmcnt(0)")
    a("s_branch L_k2_main")
    for x in slow: a(x)
    a("L_k2_helper:")
    a(f"s_setprio {os.environ.get('X_HPRIO', '2')}")
    a(f"s_sub_u32 s15, s14, 4\ns_lshl_b32 s21, s15, 10\ns_add_u32 s20, s21, {WS_KV:#x}\ns_waitcnt lgkmcnt(0)")
    srd(a, 8, 4, WS_SIZE)
    stamp(a, 1)
    THR = int(os.environ.get("X_THR", "9"))
    def dma(goff, loff):
        ld = a.label("d")
        for i in range(7):
            if i == 6: a(f"s_cmp_ge_u32 s15, 2\ns_cbranch_scc1 {ld}")
            if goff and i > THR: a(f"s_waitcnt vmcnt({THR})")
            a(f"s_add_u32 m0, s21, {loff + i*4096}\ns_add_u32 s23, s20, {goff + i*4096}\nbuffer_load_dwordx4 v1, s[8:11], s23 offen lds")
        a(f"{ld}:")
    a("L_k2_hmain:")
    dma(0, 0)
    a("s_waitcnt vmcnt(0)\ns_barrier")
    if os.environ.get("X_K2T") == "1": a("s_branch L_k2_end")
    a(f"v_mov_b32 v6, {FLAG+32}\nv_mov_b32 v7, 1")
    def dma_loop(g0, n, lds0):
        lg, lp = a.label("dg"), a.label("dp")
        a(f"s_add_u32 s28, s20, {g0*KVCH}\ns_add_u32 s29, s21, {lds0}\ns_mov_b32 s31, {n}\nv_mov_b32 v5, {FLAG+64+4*g0}")
        a(f"{lg}:\ns_cmp_lt_u32 s15, 2\ns_cselect_b32 s30, 7, 6\ns_mov_b32 s22, s28\ns_mov_b32 m0, s29")
        a(f"{lp}:\ns_waitcnt vmcnt({THR})\nbuffer_load_dwordx4 v1, s[8:11], s22 offen lds\ns_add_u32 m0, m0, 4096\ns_add_u32 s22, s22, 4096\ns_sub_u32 s30, s30, 1\ns_cmp_lg_u32 s30, 0\ns_cbranch_scc1 {lp}")
        a(f"s_waitcnt vmcnt(0)\nds_add_u32 v5, v7\nv_add_u32 v5, 4, v5\ns_add_u32 s28, s28, {KVCH}\ns_add_u32 s29, s29, {KVCH}\ns_sub_u32 s31, s31, 1\ns_cmp_lg_u32 s31, 0\ns_cbranch_scc1 {lg}")
    dma(KVCH, KVCH); dma(2*KVCH, 2*KVCH)
    a("s_waitcnt vmcnt(0)\ns_barrier")
    for g in (3, 4, 5): dma(g*KVCH, g*KVCH)
    a("s_waitcnt vmcnt(0)\ns_barrier")
    stamp(a, 2)
    lns = a.label("noside")
    if os.environ.get("X_K2T") == "2": a("s_branch L_k2_end")
    a(f"s_cmp_lg_u32 s27, 0\ns_cbranch_scc1 {lns}")
    pack_weights(a)
    a(f"s_lshr_b32 s3, s2, 3\ns_lshl_b32 s3, s3, 7\ns_add_u32 s3, s3, {WS_CNT:#x}\nv_mov_b32 v4, 0\nv_mov_b32 v5, 1\ns_waitcnt vmcnt(0)\ns_mov_b64 exec, 1")
    a("buffer_atomic_add v5, v4, s[8:11], s3 offen\ns_mov_b64 exec, -1")
    stamp(a, 3)
    a(f"{lns}:")
    lw = a.label("wdone")
    a(f"v_mov_b32 v6, {FLAG+32}\nv_mov_b32 v7, 1\n{lw}:\nds_read_b32 v8, v6\ns_waitcnt lgkmcnt(0)\nv_readfirstlane_b32 s3, v8\ns_cmp_ge_u32 s3, 4\ns_cbranch_scc1 {lw}x\ns_sleep 8\ns_branch {lw}\n{lw}x:")
    dma(6*KVCH, 0); dma(7*KVCH, KVCH)
    a("s_waitcnt vmcnt(0)\ns_mov_b64 exec, 1\nds_add_u32 v6, v7 offset:4\ns_mov_b64 exec, -1\ns_waitcnt lgkmcnt(0)")
    stamp(a, 4)
    a(f"s_cmp_eq_u32 s27, 1\ns_cbranch_scc1 L_k2_end")
    srd(a, 40, 34, 2048 * 4096)
    a("s_lshl_b32 s17, s12, 1\ns_lshr_b32 s3, s15, 1\ns_add_u32 s17, s17, s3\ns_lshl_b32 s16, s13, 4\ns_and_b32 s3, s15, 1\ns_lshl_b32 s3, s3, 3\ns_add_u32 s16, s16, s3")
    a("s_lshl_b32 s6, s17, 17\ns_lshl_b32 s7, s16, 5\ns_add_u32 s6, s6, s7\nv_lshlrev_b32 v4, 12, v2\nv_lshl_add_u32 v4, v3, 4, v4")
    for i in range(8): a(f"buffer_load_dwordx4 v[{8+4*i}:{11+4*i}], v4, s[40:43], s6 offen offset:{32*i} nt")
    a(f"s_lshl_b32 s6, s17, 7\ns_add_u32 s6, s6, s16\ns_lshl_b32 s6, s6, 10\ns_add_u32 s6, s6, {WS_WSP:#x}")
    for i in range(8):
        a(f"s_waitcnt vmcnt(7)\nbuffer_store_dwordx4 v[{8+4*i}:{11+4*i}], v1, s[8:11], s6 offen offset:{(i%4)*1024}")
        if i == 3: a("s_add_u32 s6, s6, 4096")
    stamp(a, 5)
    if os.environ.get("X_PT", "1") == "1":
        a("v_lshlrev_b32 v4, 3, v1")
        def touch(srdn, base, per_rb, per_nb, nbytes):
            a(f"s_mul_i32 s28, s12, {per_rb}\ns_mul_i32 s3, s13, {per_nb}\ns_add_u32 s28, s28, s3\ns_add_u32 s28, s28, {base:#x}")
            n = nbytes // 128
            while n > 0:
                m = min(n, 64)
                if m < 64: a(f"s_mov_b32 exec_lo, {(1 << min(m, 32)) - 1:#x}\ns_mov_b32 exec_hi, {(1 << max(m - 32, 0)) - 1:#x}")
                a(f"buffer_load_dword v8, v4, s[{srdn}:{srdn+3}], s28 offen")
                n -= m
                if n > 0: a("s_add_u32 s28, s28, 8192")
            a("s_mov_b64 exec, -1")
        PTL = os.environ.get("X_PTL", "d")
        lt = [a.label("pt") for _ in range(5)]
        a(f"s_cmp_eq_u32 s15, 1\ns_cbranch_scc1 {lt[1]}\ns_cmp_eq_u32 s15, 2\ns_cbranch_scc1 {lt[2]}\ns_cmp_eq_u32 s15, 3\ns_cbranch_scc1 {lt[3]}")
        touch(8, WS_X1, 81920, 10240, 10240)
        if "o" in PTL: touch(8, WS_O, 81920, 10240, 10240)
        a(f"s_branch {lt[4]}\n{lt[1]}:")
        touch(8, WS_Y, 98304, 12288, 12288)
        a(f"s_branch {lt[4]}\n{lt[2]}:")
        touch(8, WS_ST1, 12288, 1536, 1536); touch(8, WS_ST2, 12288, 1536, 1536)
        if "z" in PTL: touch(8, WS_Z2T, 12288, 128*3072, 12288)
        a(f"s_branch {lt[4]}\n{lt[3]}:")
        srd(a, 40, 44, 2048 * 1280)
        if "d" in PTL: touch(40, 0, 81920, 10240, 10240)
        a(f"{lt[4]}:")
    def pf(which):
        lp, lgo, lskip = a.label("ppoll"), a.label("pgo"), a.label("pskip")
        a(f"v_lshlrev_b32 v4, 7, v2\ns_mov_b32 s3, {WS_CNT:#x}\ns_mov_b32 s29, 8\n{lp}:")
        a(f"buffer_load_dword v5, v4, s[8:11], s3 offen sc1\ns_waitcnt vmcnt(0)\nv_cmp_gt_u32 vcc, 32, v5\ns_cbranch_vccz {lgo}\ns_sub_u32 s29, s29, 1\ns_cbranch_scc1 {lskip}\ns_sleep 4\ns_branch {lp}\n{lgo}:")
        for b, n in which: prefetch(a, 8, b, n, 4, 15, 8, 4, 28)
        a(f"{lskip}:")
    PFA = os.environ.get("X_PFA", "2")
    if PFA == "1": pf([(WS_WO, 960 * 1024)])
    if PFA == "2": pf([(WS_WIN, 1920 * 1024)])
    if PFA == "3": pf([(WS_WO, 960 * 1024), (WS_WIN, 1920 * 1024)])
    if PROF: a("s_waitcnt vmcnt(0)")
    stamp(a, 7)
    vote("L_k2_end")
    a("s_mov_b32 s24, 0")
    a("L_k2_hmax:")
    a("s_barrier")
    dma(0, 0)
    a(f"s_add_u32 s20, s20, {KVCH}\ns_waitcnt vmcnt(0)\ns_barrier\ns_add_u32 s24, s24, 1\ns_cmp_lt_u32 s24, 8\ns_cbranch_scc1 L_k2_hmax")
    a(f"s_add_u32 s20, s21, {WS_KV:#x}\ns_barrier\ns_branch L_k2_hmain")
    end(a)
    finish(a, 256, 512, FLAG + 320, 164)


def pack_weights(a):
    LO, HI, PC = 8, 24, 40
    lo_, ld = a.label("pko"), a.label("pkd")
    a(f"s_lshl_b32 s28, s2, 2\ns_add_u32 s28, s28, s15\nv_mul_u32_u24 v5, {4*3072}, v3\ns_cmp_ge_u32 s28, 480\ns_cbranch_scc1 {lo_}")
    srd(a, 40, 32, 640 * 3072)
    divmod_s(a, 16, 17, 28, 10, 3)
    divmod_s(a, 18, 19, 16, 6, 3)
    a("s_mul_i32 s6, s18, 96\ns_lshl_b32 s7, s19, 5\ns_add_u32 s6, s6, s7\ns_cmp_lt_u32 s19, 3\ns_cselect_b32 s7, 864, 0\ns_add_u32 s6, s6, s7\ns_sub_u32 s6, s6, 96")
    a(f"v_add_lshl_u32 v4, v2, s6, 1\nv_add_u32 v4, v4, v5\ns_mul_i32 s22, s17, {64*3072}")
    for q in range(4):
        loads8(a, 40, 4, LO + 4*q, HI + 4*q, 22, [16*q + e for e in E_PERM], 3072, 7)
    a(f"v_lshlrev_b32 v6, 4, v3\ns_lshl_b32 s7, s17, 8\ns_add_u32 s7, s7, {WS_MOD + 7680}")
    for q in range(4):
        for arr in range(2):
            for hf in range(2):
                P = PC + 16*q + 8*arr + 4*hf
                a(f"buffer_load_dwordx4 v[{P}:{P+3}], v6, s[8:11], s7 offen offset:{arr*2560 + 64*q + 32*hf}")
    a("v_mov_b32 v6, 0\nv_mov_b32 v7, 0")
    a(f"s_mul_i32 s22, s18, 40\ns_lshl_b32 s7, s17, 2\ns_add_u32 s22, s22, s7\ns_mul_i32 s22, s22, 6\ns_add_u32 s22, s22, s19\ns_lshl_b32 s22, s22, 10\ns_add_u32 s22, s22, {WS_WIN:#x}\ns_waitcnt vmcnt(0)")
    for q in range(4):
        for d in range(4):
            l, h, P = LO + 4*q + d, HI + 4*q + d, PC + 16*q
            a(f"v_lshlrev_b32 v{l}, 16, v{l}\nv_lshlrev_b32 v{h}, 16, v{h}\nv_fmac_f32 v7, v{l}, v{P+2*d}\nv_fmac_f32 v7, v{h}, v{P+2*d+1}\nv_mul_f32 v{l}, v{l}, v{P+8+2*d}\nv_mul_f32 v{h}, v{h}, v{P+9+2*d}")
            a(f"v_cvt_pk_bf16_f32 v{l}, v{l}, v{h}\nv_lshlrev_b32 v{h}, 16, v{l}\nv_and_b32 v5, 0xffff0000, v{l}\nv_add_f32 v6, v6, v{h}\nv_add_f32 v6, v6, v5")
        a(f"buffer_store_dwordx4 v[{LO+4*q}:{LO+4*q+3}], v1, s[8:11], s22 offen sc1\ns_add_u32 s22, s22, 6144")
    a("v_mov_b32 v40, v6\nv_mov_b32 v41, v7\ns_nop 1\nv_permlane32_swap_b32 v6, v40\nv_permlane32_swap_b32 v7, v41\ns_nop 1\nv_add_f32 v6, v6, v40\nv_add_f32 v7, v7, v41")
    a(f"s_mul_i32 s22, s17, {1536*8}\ns_lshl_b32 s7, s16, 8\ns_add_u32 s22, s22, s7\ns_add_u32 s22, s22, {WS_UTP:#x}\nv_lshlrev_b32 v4, 3, v2\ns_mov_b32 exec_hi, 0")
    a(f"buffer_store_dwordx2 v[6:7], v4, s[8:11], s22 offen\ns_mov_b32 exec_hi, -1\ns_branch {ld}")
    a(f"{lo_}:\ns_sub_u32 s28, s28, 480\ns_cmp_ge_u32 s28, 528\ns_cbranch_scc1 {ld}")
    a(f"s_mov_b32 s42, {768*1280}\ns_mov_b32 s31, {WS_WOUT:#x}\ns_mov_b32 s6, {(1<<20)//12+1}\ns_cmp_lt_u32 s28, 240\ns_cselect_b32 s40, s36, s38\ns_cselect_b32 s41, s37, s39\ns_mov_b32 s43, 0x20000\ns_cselect_b32 s30, 40, 48")
    a(f"s_cmov_b32 s42, {640*1280}\ns_cmov_b32 s31, {WS_WO:#x}\ns_cmov_b32 s6, {(1<<20)//10+1}\ns_cselect_b32 s7, 0, 240\ns_sub_u32 s28, s28, s7")
    a("s_mul_i32 s16, s28, s6\ns_lshr_b32 s16, s16, 20\ns_lshr_b32 s7, s30, 2\ns_mul_i32 s7, s7, s16\ns_sub_u32 s17, s28, s7")
    divmod_s(a, 18, 19, 16, 3, 3)
    a(f"s_mul_i32 s6, s18, 80\ns_lshl_b32 s7, s19, 5\ns_add_u32 s6, s6, s7\nv_add_lshl_u32 v4, v2, s6, 1\nv_mul_u32_u24 v5, {4*1280}, v3\nv_add_u32 v4, v4, v5\ns_mul_i32 s22, s17, {64*1280}")
    for q in range(4):
        loads8(a, 40, 4, LO + 4*q, HI + 4*q, 22, [16*q + e for e in E_PERM], 1280, 7)
    a("s_mul_i32 s22, s18, s30\ns_lshl_b32 s7, s17, 2\ns_add_u32 s22, s22, s7\ns_mul_i32 s22, s22, 3\ns_add_u32 s22, s22, s19\ns_lshl_b32 s22, s22, 10\ns_add_u32 s22, s22, s31\ns_waitcnt vmcnt(0)")
    for q in range(4):
        for d in range(4): a(f"v_lshl_or_b32 v{LO+4*q+d}, v{HI+4*q+d}, 16, v{LO+4*q+d}")
        a(f"buffer_store_dwordx4 v[{LO+4*q}:{LO+4*q+3}], v1, s[8:11], s22 offen sc1\ns_add_u32 s22, s22, 3072")
    a(f"{ld}:")

SLOT, NSL, DEP6 = 20480, 6, 4
PAR6 = NSL * SLOT
class G6:
    def __init__(self, kpst, nacc, g0=0):
        self.kpst, self.nacc, self.g0 = kpst, nacc, g0
        self.fs = kpst * (1 + nacc) * 4
        self.ACC, self.FR = 8, 8 + 16 * nacc
    def addr(self, a):
        a(f"s_mul_i32 s3, s17, {self.kpst*1024}\ns_add_u32 s3, s3, 12288\nv_add_u32 v4, s3, v1\nv_add_u32 v5, {3*SLOT}, v4")
        a(f"s_lshl_b32 s3, s15, 10\nv_add_u32 v6, s3, v1\nv_add_u32 v7, {3*SLOT}, v6")
    def reads(self, a, s):
        slot = (self.g0 + s) % NSL; hi, sl = (1, slot - 3) if slot >= 3 else (0, slot)
        F = self.FR + (s % 2) * self.fs
        ops = []
        for q in range(self.kpst):
            r = F + q * (1 + self.nacc) * 4
            ops.append(lambda r=r, q=q: a.lg(f"ds_read_b128 v[{r}:{r+3}], v{4+hi} offset:{sl*SLOT + q*1024}", ("f", s, q)))
            for n in range(self.nacc):
                rw = r + 4 + 4*n
                ops.append(lambda rw=rw, q=q, n=n: a.lg(f"ds_read_b128 v[{rw}:{rw+3}], v{6+hi} offset:{sl*SLOT + (q*self.nacc + n)*3072}", ("f", s, q)))
        return ops
    def start(self, a):
        a("s_barrier")
        run(self.reads(a, 0))
    def iter(self, a, s, first, total):
        rd = []
        if s + 1 < total:
            a("s_barrier")
            rd = self.reads(a, s + 1)
        F = self.FR + (s % 2) * self.fs
        per = len(rd) // self.kpst if rd else 0
        for q in range(self.kpst):
            a.wait(lg=[("f", s, q)])
            r = F + q * (1 + self.nacc) * 4
            for n in range(self.nacc):
                d = self.ACC + 16*n
                c = "0" if (first and q == 0) else f"v[{d}:{d+15}]"
                a(f"v_mfma_f32_32x32x16_bf16 v[{d}:{d+15}], v[{r+4+4*n}:{r+7+4*n}], v[{r}:{r+3}], {c}")
            run(rd[q*per:(q+1)*per])
    def lsetup(self, a, act_base, nks, w_base, sa, sw, sl, aflags=""):
        self.a, self.sa, self.sw, self.sl, self.af = a, sa, sw, sl, aflags
        k = self.kpst
        a(f"s_mul_i32 s{sl}, s15, {k*512}\ns_add_u32 s{sl}, s{sl}, 12288")
        a(f"s_mul_i32 s{sa}, s16, {nks*1024}\ns_and_b32 s3, s15, 1\ns_mul_i32 s3, s3, {k*512}\ns_add_u32 s{sa}, s{sa}, s3\ns_add_u32 s{sa}, s{sa}, {act_base:#x}")
        a(f"s_mul_i32 s{sw}, s13, {nks*3072*self.nacc}\ns_add_u32 s{sw}, s{sw}, s20\ns_add_u32 s{sw}, s{sw}, {w_base:#x}")
    def issue_a(self, s):
        a = self.a; slot = (self.g0 + s) % NSL
        a(f"s_add_u32 m0, s{self.sl}, {slot*SLOT}\ns_nop 0")
        for q in range(self.kpst // 2): a.vm(f"buffer_load_dwordx4 v1, s[8:11], s{self.sa} offen offset:{q*1024} {self.af} lds", ("st", self.g0 + s))
        a(f"s_add_u32 s{self.sa}, s{self.sa}, {self.kpst*1024}")
    def issue_w(self, s):
        a = self.a; slot = (self.g0 + s) % NSL
        a(f"s_add_u32 m0, s20, {slot*SLOT}\ns_nop 0")
        for i in range(3): a.vm(f"buffer_load_dwordx4 v1, s[8:11], s{self.sw} offen offset:{i*1024} lds", ("st", self.g0 + s))
        a(f"s_add_u32 s{self.sw}, s{self.sw}, 12288")
    def issue(self, s):
        self.issue_a(s); self.issue_w(s)
    def lstep(self, s, total, nxt=None):
        a = self.a
        a.wait(vm=[("st", self.g0 + s)])
        a("s_barrier")
        if s + DEP6 < total: self.issue(s + DEP6)
        elif nxt is not None: nxt.issue_w(s + DEP6 - total)

def g6_prologue(a, extra=""):
    common_prologue(a, extra)
    a(f"s_cmp_ge_u32 s14, 6\ns_cbranch_scc1 L_{a.name}_loader")
    a("s_cmp_ge_u32 s14, 3\ns_cselect_b32 s17, 1, 0\ns_mul_i32 s3, s17, 3\ns_sub_u32 s15, s14, s3\ns_lshl_b32 s16, s12, 1\ns_add_u32 s16, s16, s17")
def g6_loader_entry(a):
    a(f"L_{a.name}_loader:")
    a.vmq = []; a.lgq = []
    a("s_sub_u32 s15, s14, 6\ns_mul_i32 s20, s15, 3072\ns_lshl_b32 s16, s12, 1\ns_lshr_b32 s3, s15, 1\ns_add_u32 s16, s16, s3")
def dma1(a, lds_off, sreg, tag, imm=0):
    a(f"s_mov_b32 m0, {lds_off}\ns_nop 0")
    a.vm(f"buffer_load_dwordx4 v1, s[8:11], s{sreg} offen offset:{imm} lds", tag)
def xid_publish(a, base):
    l = a.label("xid")
    a(f"s_cmp_lg_u32 s14, 6\ns_cbranch_scc1 {l}\ns_lshl_b32 s3, s12, 7\ns_lshl_b32 s6, s13, 2\ns_add_u32 s3, s3, s6\ns_add_u32 s3, s3, {base+32:#x}\ns_getreg_b32 s36, hwreg(HW_REG_XCC_ID, 0, 4)\ns_add_u32 s36, s36, 1\nv_mov_b32 v8, 0\nv_mov_b32 v9, s36\ns_mov_b64 exec, 1\nbuffer_store_dword v9, v8, s[8:11], s3 offen sc1\ns_mov_b64 exec, -1\n{l}:")
def xid_load(a, base, v):
    a(f"s_lshl_b32 s3, s12, 7\ns_add_u32 s3, s3, {base+32:#x}\nv_and_b32 v{v}, 7, v0\nv_lshlrev_b32 v{v}, 2, v{v}")
    a.vm(f"buffer_load_dword v{v}, v{v}, s[8:11], s3 offen sc1", "epi")
def pretouch(a, v, items):
    a(f"v_lshlrev_b32 v{v}, 3, v1")
    for sreg, n in items:
        a(f"s_mov_b64 exec, {(1 << n) - 1:#x}")
        a.vm(f"buffer_load_dword v{v+1}, v{v}, s[8:11], s{sreg} offen sc1", "epi")
    a("s_mov_b64 exec, -1")
def xid_decide(a, v):
    a(f"s_getreg_b32 s36, hwreg(HW_REG_XCC_ID, 0, 4)\ns_add_u32 s36, s36, 1\nv_cmp_ne_u32 vcc, s36, v{v}\ns_nop 1\ns_cmp_eq_u64 vcc, 0\ns_cselect_b32 s37, {XFAST}, 0")
def hstore(a, text):
    l1, l2 = a.label("hs"), a.label("hd")
    a(f"s_cmp_eq_u32 s37, 1\ns_cbranch_scc1 {l1}\n{text} sc1\ns_branch {l2}\n{l1}:")
    a.vm(text)
    a(f"{l2}:")
AFL = os.environ.get("X_AFL", "sc1")
XFAST = int(os.environ.get("X_FAST", "1"))
def handoff_publish(a, base):
    l = a.label("pub")
    a(f"s_waitcnt vmcnt(0)\ns_barrier\ns_cmp_lg_u32 s14, 0\ns_cbranch_scc1 {l}")
    a(f"s_lshl_b32 s3, s12, 7\ns_lshl_b32 s6, s13, 2\ns_add_u32 s3, s3, s6\ns_add_u32 s3, s3, {base:#x}\nv_mov_b32 v8, 0\nv_mov_b32 v9, 1\ns_mov_b64 exec, 1")
    hstore(a, "buffer_store_dword v9, v8, s[8:11], s3 offen")
    a(f"s_mov_b64 exec, -1\n{l}:")
    a.vmq = []
def handoff_wait(a, base):
    lp, lo = a.label("hp"), a.label("ho")
    a(f"s_barrier\ns_lshl_b32 s3, s12, 7\ns_add_u32 s3, s3, {base:#x}\nv_and_b32 v8, 7, v0\nv_lshlrev_b32 v8, 2, v8\ns_mov_b32 s29, 0x8000")
    a(f"{lp}:\nbuffer_load_dword v9, v8, s[8:11], s3 offen sc1\ns_waitcnt vmcnt(0)\nv_cmp_eq_u32 vcc, 0, v9\ns_sub_u32 s29, s29, 1\ns_cbranch_scc1 {lo}\ns_cbranch_vccnz {lp}\n{lo}:")
    a.vmq = []

def unit_off6(a, d, per_nb, base):
    a(f"s_lshl_b32 s{d}, s16, 3\ns_add_u32 s{d}, s{d}, s13\ns_mul_i32 s{d}, s{d}, {per_nb}\ns_lshl_b32 s6, s15, 1\ns_add_u32 s{d}, s{d}, s6\ns_lshl_b32 s{d}, s{d}, 10\ns_add_u32 s{d}, s{d}, {base:#x}")

def stats_addr(a, base, st):
    a(f"s_mul_i32 s7, s13, 3\ns_add_u32 s7, s7, s15\ns_mul_i32 s{st}, s16, 6144\ns_lshr_b32 s3, s7, 1\ns_lshl_b32 s3, s3, 9\ns_add_u32 s{st}, s{st}, s3\ns_and_b32 s3, s7, 1\ns_lshl_b32 s3, s3, 3\ns_add_u32 s{st}, s{st}, s3\ns_add_u32 s{st}, s{st}, {base:#x}")
def stats_store(a, V, st, flags=""):
    a(f"v_mov_b32 v{V+2}, v{V}\nv_mov_b32 v{V+3}, v{V+1}\ns_nop 1\nv_permlane32_swap_b32 v{V}, v{V+2}\nv_permlane32_swap_b32 v{V+1}, v{V+3}\ns_nop 1\nv_add_f32 v{V}, v{V}, v{V+2}\nv_add_f32 v{V+1}, v{V+1}, v{V+3}\nv_max_f32 v{V+1}, 0, v{V+1}")
    a("s_mov_b32 exec_hi, 0")
    hstore(a, f"buffer_store_dwordx2 v[{V}:{V+1}], v1, s[8:11], s{st} offen")
    a("s_mov_b32 exec_hi, -1")
def stats_load(a, D, st, tag, flags=""):
    for i in range(6): a.vm(f"buffer_load_dwordx4 v[{D+4*i}:{D+4*i+3}], v1, s[8:11], s{st + i//4} offen offset:{1024*(i%4)} {flags}", tag)
def stats_base(a, st, base):
    a(f"s_mul_i32 s{st}, s16, 6144\ns_add_u32 s{st}, s{st}, {base:#x}\ns_add_u32 s{st+1}, s{st}, 4096")
def stats_finish(a, D, n, rr, nm):
    for i in range(1, 12): a(f"v_add_f32 v{D}, v{D}, v{D+2*i}\nv_add_f32 v{D+1}, v{D+1}, v{D+2*i+1}")
    a(f"v_mov_b32 v{D+2}, v{D}\nv_mov_b32 v{D+3}, v{D+1}\ns_nop 1\nv_permlane32_swap_b32 v{D}, v{D+2}\nv_permlane32_swap_b32 v{D+1}, v{D+3}\ns_nop 1\nv_add_f32 v{D}, v{D}, v{D+2}\nv_add_f32 v{D+1}, v{D+1}, v{D+3}")
    a(f"v_mul_f32 v{D}, {f32(1/n)}, v{D}\nv_mul_f32 v{D+1}, {f32(1/n)}, v{D+1}\nv_fma_f32 v{D+1}, -v{D}, v{D}, v{D+1}\nv_max_f32 v{D+1}, 0, v{D+1}\nv_add_f32 v{D+1}, {f32(1e-5)}, v{D+1}\nv_rsq_f32 v{rr}, v{D+1}\ns_nop 0\nv_mul_f32 v{nm}, v{D}, v{rr}\nv_sub_f32 v{nm}, 0, v{nm}")

def proj_epilogue(a, g, final, G, XR, T, ST, gaddr, oaddr):
    for i in range(4): a(f"ds_read_b128 v[{G+4*i}:{G+4*i+3}], v{gaddr} offset:{32*i}")
    a.wait(vm=["epi"])
    a("s_waitcnt lgkmcnt(0)"); a.lgq = []
    if not final:
        xid_decide(a, 129)
        a(f"v_mov_b32 v{ST}, 0\nv_mov_b32 v{ST+1}, 0\ns_nop 0")
    else: a("s_nop 7")
    R = g.ACC
    lskip = a.label("skip")
    for i in range(2):
        if i == 1: a(f"s_cmp_eq_u32 s15, 2\ns_cbranch_scc1 {lskip}")
        for d in range(4):
            x = XR + 4*i + d; r = R + 8*i + 2*d; gg = G + 8*i + 2*d; t = T + 2*(d % 2)
            a(f"v_lshlrev_b32 v{t}, 16, v{x}\nv_and_b32 v{t+1}, 0xffff0000, v{x}\nv_fmac_f32 v{t}, v{gg}, v{r}\nv_fmac_f32 v{t+1}, v{gg+1}, v{r+1}")
            if not final:
                a(f"v_add_f32 v{ST}, v{ST}, v{t}\nv_fmac_f32 v{ST+1}, v{t}, v{t}\nv_add_f32 v{ST}, v{ST}, v{t+1}\nv_fmac_f32 v{ST+1}, v{t+1}, v{t+1}")
            a(f"v_cvt_pk_bf16_f32 v{T+4+4*i+d}, v{t}, v{t+1}")
        o = T + 4 + 4*i
        if final:
            a(f"s_nop 1\nv_permlane32_swap_b32 v{o}, v{o+2}\nv_permlane32_swap_b32 v{o+1}, v{o+3}\nbuffer_store_dwordx4 v[{o}:{o+3}], v{oaddr}, s[24:27], s28 offen offset:{32*i}")
        else:
            hstore(a, f"buffer_store_dwordx4 v[{o}:{o+3}], v1, s[8:11], s22 offen offset:{1024*i}")
    a(f"{lskip}:")

GC1 = -2.0 * LOG2E * math.sqrt(2.0 / math.pi)
GC2 = GC1 * 0.044715
def gelu(a, regs, t0, c1):
    for i, r in enumerate(regs): a(f"v_mul_f32 v{t0+i}, v{r}, v{r}")
    for i, r in enumerate(regs): a(f"v_fma_f32 v{t0+i}, v{t0+i}, s28, v{c1}")
    for i, r in enumerate(regs): a(f"v_mul_f32 v{t0+i}, v{t0+i}, v{r}")
    for i, r in enumerate(regs): a(f"v_exp_f32 v{t0+i}, v{t0+i}")
    for i, r in enumerate(regs): a(f"v_add_f32 v{t0+i}, 1.0, v{t0+i}")
    for i, r in enumerate(regs): a(f"v_rcp_f32 v{t0+i}, v{t0+i}")
    for i, r in enumerate(regs): a(f"v_mul_f32 v{r}, v{r}, v{t0+i}")

ZROW = 208
def k34():
    a = K("k34"); g = G6(4, 1); h = G6(2, 2, 10)
    g6_prologue(a)
    g.addr(a)
    G, XR, T, ST = 88, 104, 112, 124
    UTL = PAR6 + 1024
    unit_off6(a, 22, 5, 0)
    a(f"s_add_u32 s23, s22, {WS_XH:#x}\ns_add_u32 s22, s22, {WS_X1:#x}")
    a(f"s_lshl_b32 s3, s15, 7\ns_add_u32 s3, s3, {PAR6}\nv_lshlrev_b32 v128, 4, v3\nv_add_u32 v128, s3, v128")
    stats_addr(a, WS_ST1, 29)
    a("s_waitcnt lgkmcnt(0)")
    srd(a, 8, 4, WS_SIZE)
    stamp(a, 1)
    g.start(a)
    stamp(a, 2)
    for i in range(2): a.vm(f"buffer_load_dwordx4 v[{XR+4*i}:{XR+4*i+3}], v1, s[8:11], s23 offen offset:{1024*i}", "epi")
    for s in range(10):
        g.iter(a, s, s == 0, 10)
        if s == 5: xid_load(a, WS_FL1, 129)
    stamp(a, 3)
    proj_epilogue(a, g, False, G, XR, T, ST, 128, None)
    stats_store(a, ST, 29, "sc1")
    SD, U, T, RR, NM, C1, ST = 88, 40, 72, 112, 113, 114, 116
    h.addr(a)
    stats_base(a, 22, WS_ST1); stats_base(a, 30, WS_ST2)
    a(f"s_add_u32 s29, s29, {WS_ST2 - WS_ST1}")
    unit_off6(a, 26, 6, WS_Z1)
    a(f"s_lshl_b32 s3, s15, 8\ns_add_u32 s3, s3, {UTL}\nv_lshlrev_b32 v115, 5, v3\nv_add_u32 v115, s3, v115")
    a(f"s_mov_b32 s28, {f32(GC2)}\nv_mov_b32 v{C1}, {f32(GC1)}")
    handoff_publish(a, WS_FL1)
    stamp(a, 4)
    h.start(a)
    stamp(a, 5)
    stats_load(a, SD, 22, "ln", AFL)
    for s in range(20):
        h.iter(a, s, s == 0, 20)
        if s == 8:
            a.wait(vm=["ln"])
            stats_finish(a, SD, 640, RR, NM)
    stamp(a, 6)
    def ut_reads(n):
        for u in range(2):
            for hf in range(2):
                for k in range(2):
                    r = U + 16*u + 8*hf + 4*k
                    a(f"ds_read_b128 v[{r}:{r+3}], v115 offset:{n*768 + u*128 + hf*64 + k*16}")
    def affine(n):
        A = h.ACC + 16*n
        for i in range(16): a(f"v_fma_f32 v{U+2*i+1}, v{U+2*i}, v{NM}, v{U+2*i+1}")
        for i in range(16): a(f"v_fma_f32 v{A+i}, v{A+i}, v{RR}, v{U+2*i+1}")
    Z2, Z1 = h.ACC, h.ACC + 16
    ut_reads(0)
    a("s_waitcnt lgkmcnt(0)\ns_nop 3")
    affine(0)
    ut_reads(1)
    gelu(a, list(range(Z2, Z2+16)), T, C1)
    a(f"v_mov_b32 v{ST}, 0\nv_mov_b32 v{ST+1}, 0")
    for i in range(16): a(f"v_add_f32 v{ST}, v{ST}, v{Z2+i}\nv_fmac_f32 v{ST+1}, v{Z2+i}, v{Z2+i}")
    stats_store(a, ST, 29, "sc1")
    stamp(a, 7)
    a("s_waitcnt lgkmcnt(0)")
    affine(1)
    gelu(a, list(range(Z1, Z1+16)), T, C1)
    stats_load(a, SD, 30, "st2", "sc1")
    for i in range(2):
        for d in range(4): a(f"v_cvt_pk_bf16_f32 v{T+4*i+d}, v{Z1+8*i+2*d}, v{Z1+8*i+2*d+1}")
        a.vm(f"buffer_store_dwordx4 v[{T+4*i}:{T+4*i+3}], v1, s[8:11], s26 offen offset:{i*1024}")
    stamp(a, 8)
    a(f"s_mul_i32 s6, s17, {32*ZROW}\ns_lshl_b32 s7, s15, 6\ns_add_u32 s6, s6, s7\nv_mul_u32_u24 v4, {ZROW}, v2\nv_lshl_add_u32 v4, v3, 3, v4\nv_add_u32 v4, s6, v4")
    a(f"v_bfe_u32 v5, v0, 2, 2\nv_lshl_add_u32 v5, v3, 3, v5\nv_mul_u32_u24 v5, {ZROW}, v5\nv_and_b32 v6, 3, v0\nv_lshl_add_u32 v5, v6, 3, v5\nv_bfe_u32 v6, v0, 4, 1\nv_lshl_add_u32 v5, v6, 5, v5\nv_add_u32 v5, s6, v5")
    a(f"s_lshl_b32 s6, s13, 7\ns_lshl_b32 s7, s16, 1\ns_add_u32 s6, s6, s7\ns_mul_i32 s6, s6, 3\ns_add_u32 s6, s6, s15\ns_lshl_b32 s6, s6, 10\ns_add_u32 s26, s6, {WS_Z2T:#x}")
    a.wait(vm=["st2"])
    a("s_mov_b32 s29, 0x4000")
    lp, lok = a.label("poll"), a.label("ok")
    a(f"{lp}:")
    a(f"v_or_b32 v{ST}, v{SD+1}, v{SD+3}")
    for i in range(2, 12): a(f"v_or_b32 v{ST}, v{ST}, v{SD+1+2*i}")
    a(f"v_cmp_gt_i32 vcc, 0, v{ST}\ns_sub_u32 s29, s29, 1\ns_cbranch_scc1 {lok}\ns_cbranch_vccz {lok}")
    stats_load(a, SD, 30, "st2", "sc1")
    a(f"s_waitcnt vmcnt(0)\ns_branch {lp}\n{lok}:")
    stamp(a, 9)
    stats_finish(a, SD, 768, RR, NM)
    for i in range(16): a(f"v_fma_f32 v{Z2+i}, v{Z2+i}, v{RR}, v{NM}")
    for i in range(8): a(f"v_cvt_pk_bf16_f32 v{T+8+i}, v{Z2+2*i}, v{Z2+2*i+1}")
    for i in range(4): a(f"ds_write_b64 v4, v[{T+8+2*i}:{T+9+2*i}] offset:{16*i}")
    a("s_waitcnt lgkmcnt(0)")
    for p in range(2):
        a(f"ds_read_b64_tr_b16 v[{U+4*p}:{U+4*p+1}], v5 offset:{16*p*ZROW}\nds_read_b64_tr_b16 v[{U+4*p+2}:{U+4*p+3}], v5 offset:{(16*p+4)*ZROW}")
    a("s_waitcnt lgkmcnt(0)")
    for p in range(2): a(f"buffer_store_dwordx4 v[{U+4*p}:{U+4*p+3}], v1, s[8:11], s26 offen offset:{3072*p}")
    a("s_branch L_k34_end")
    g6_loader_entry(a)
    g.lsetup(a, WS_O, 40, WS_WO, 18, 19, 21)
    h.lsetup(a, WS_X1, 40, WS_WIN, 22, 23, 26, AFL)
    a(f"s_mul_i32 s6, s13, 320\ns_add_u32 s6, s6, {WS_MOD + 5120}\ns_waitcnt lgkmcnt(0)")
    srd(a, 8, 4, WS_SIZE)
    stamp(a, 1)
    dma1(a, PAR6, 6, "par")
    xid_publish(a, WS_FL1)
    g.issue(0); g.issue(1)
    for s in range(10):
        a.wait(vm=[("st", s)])
        a("s_barrier")
        if s == 0: g.issue(2); g.issue(3)
        if s + DEP6 < 10: g.issue(s + DEP6)
        else: h.issue_w(s + DEP6 - 10)
    lu = a.label("nou")
    a(f"s_cmp_eq_u32 s15, 3\ns_cbranch_scc1 {lu}\ns_mul_i32 s6, s13, 1536\ns_lshl_b32 s7, s15, 9\ns_add_u32 s6, s6, s7\ns_add_u32 s6, s6, {WS_UTP:#x}\nv_lshrrev_b32 v10, 1, v1")
    for i in range(10): a(f"buffer_load_dwordx2 v[{12+2*i}:{13+2*i}], v10, s[8:11], s6 offen\ns_add_u32 s6, s6, {1536*8}")
    a(f"s_add_u32 s7, s7, {UTL}\nv_add_u32 v10, s7, v10\ns_waitcnt vmcnt(0)")
    for i in range(1, 10): a(f"v_add_f32 v12, v12, v{12+2*i}\nv_add_f32 v13, v13, v{13+2*i}")
    a(f"ds_write_b64 v10, v[12:13]\ns_waitcnt lgkmcnt(0)\n{lu}:")
    handoff_wait(a, WS_FL1)
    stamp(a, 4)
    for s in range(DEP6): h.issue_a(s)
    for s in range(20): h.lstep(s, 20)
    end(a)
    finish(a, 256, 640, PAR6 + 1024 + 1536, 132)

def k56():
    a = K("k56"); g = G6(4, 1); h = G6(4, 1, 32)
    g6_prologue(a, f"s_load_dwordx2 s[32:33], s[0:1], {KA['b_sp']}\ns_load_dwordx2 s[34:35], s[0:1], {KA['out']}")
    g.addr(a)
    Z, B, T = 88, 96, 100
    G, XR = 112, 128
    unit_off6(a, 28, 6, 0)
    unit_off6(a, 23, 5, WS_X1)
    a(f"s_add_u32 s29, s28, {WS_Y:#x}\ns_add_u32 s28, s28, {WS_Z1:#x}\nv_lshlrev_b32 v97, 1, v2\ns_lshl_b32 s6, s16, 6\ns_waitcnt lgkmcnt(0)")
    srd(a, 8, 4, WS_SIZE); srd(a, 24, 32, 4096)
    stamp(a, 1)
    for i in range(16): a(f"v_mov_b32 v{g.ACC+i}, 0")
    g.start(a)
    stamp(a, 2)
    for i in range(2): a.vm(f"buffer_load_dwordx4 v[{Z+4*i}:{Z+4*i+3}], v1, s[8:11], s28 offen offset:{1024*i}", "z")
    a.vm(f"buffer_load_ushort v{B}, v97, s[24:27], s6 offen", "z")
    for i in range(2): a.vm(f"buffer_load_dwordx4 v[{XR+4*i}:{XR+4*i+3}], v1, s[8:11], s23 offen offset:{1024*i}", "epi")
    a("s_mov_b32 s30, 5\nL_k56_loop:")
    for s in range(6): g.iter(a, s, False, 32)
    a("s_sub_u32 s30, s30, 1\ns_cmp_lg_u32 s30, 0\ns_cbranch_scc1 L_k56_loop")
    a.lgq = [(t[0], t[1] + 24, t[2]) if isinstance(t, tuple) else t for t in a.lgq]
    xid_load(a, WS_FL2, 140)
    for s in range(30, 32): g.iter(a, s, False, 32)
    stamp(a, 3)
    R = g.ACC
    a.wait(vm=["z", "epi"])
    xid_decide(a, 140)
    a(f"v_lshlrev_b32 v{B}, 16, v{B}\ns_nop 3")
    for i in range(2):
        for d in range(4):
            z = Z + 4*i + d; r = R + 8*i + 2*d; t = T + 2*(d % 2)
            a(f"v_add_f32 v{r}, v{r}, v{B}\nv_add_f32 v{r+1}, v{r+1}, v{B}\nv_lshlrev_b32 v{t}, 16, v{z}\nv_and_b32 v{t+1}, 0xffff0000, v{z}\nv_mul_f32 v{r}, v{r}, v{t}\nv_mul_f32 v{r+1}, v{r+1}, v{t+1}\nv_cvt_pk_bf16_f32 v{T+4+4*i+d}, v{r}, v{r+1}")
        hstore(a, f"buffer_store_dwordx4 v[{T+4+4*i}:{T+7+4*i}], v1, s[8:11], s29 offen offset:{1024*i}")
    srd(a, 24, 34, 2048 * 1280)
    a(f"s_lshl_b32 s3, s15, 7\ns_add_u32 s3, s3, {PAR6}\nv_lshlrev_b32 v136, 4, v3\nv_add_u32 v136, s3, v136")
    a(f"v_mul_u32_u24 v137, 1280, v2\nv_lshl_add_u32 v137, v3, 4, v137\ns_mul_i32 s28, s16, {32*1280}\ns_mul_i32 s6, s13, 160\ns_add_u32 s28, s28, s6\ns_lshl_b32 s6, s15, 6\ns_add_u32 s28, s28, s6")
    handoff_publish(a, WS_FL2)
    stamp(a, 4)
    h.start(a)
    stamp(a, 5)
    for s in range(12): h.iter(a, s, s == 0, 12)
    stamp(a, 6)
    proj_epilogue(a, h, True, G, XR, 100, None, 136, 137)
    a("s_branch L_k56_end")
    g6_loader_entry(a)
    g.lsetup(a, WS_WSP, 128, WS_Z2T, 18, 19, 21)
    h.lsetup(a, WS_Y, 48, WS_WOUT, 22, 23, 26, AFL)
    a(f"s_mul_i32 s6, s13, 320\ns_add_u32 s6, s6, {WS_MOD + 12800}\ns_waitcnt lgkmcnt(0)")
    srd(a, 8, 4, WS_SIZE)
    stamp(a, 1)
    dma1(a, PAR6, 6, "par")
    xid_publish(a, WS_FL2)
    g.issue(0); g.issue(1)
    a.wait(vm=[("st", 0)]); a("s_barrier")
    g.issue(2); g.issue(3); g.issue(4)
    g.lstep(1, 32)
    a("s_mov_b32 s30, 4\nL_k56_lloop:")
    for s in range(2, 8): g.lstep(s, 32)
    a("s_sub_u32 s30, s30, 1\ns_cmp_lg_u32 s30, 0\ns_cbranch_scc1 L_k56_lloop")
    a.vmq = [(t[0], t[1] + 18) if isinstance(t, tuple) else t for t in a.vmq]
    for s in range(26, 32): g.lstep(s, 32, h)
    handoff_wait(a, WS_FL2)
    stamp(a, 4)
    for s in range(DEP6): h.issue_a(s)
    for s in range(12): h.lstep(s, 12)
    end(a)
    finish(a, 256, 640, PAR6 + 1024, 144)

def emit(path):
    out = []
    for (n, lines, g, b, lds, nv, ao) in kernels:
        out.append(f"; @launch kernel={n}_kernel grid=({g},1,1) block=({b},1,1) lds={lds}")
    out.append('.amdgcn_target "amdgcn-amd-amdhsa--gfx950"\n.text')
    bad = 0
    for (n, lines, g, b, lds, nv, ao) in kernels:
        errs = check_hazards(lines, n) + ([] if PROF else check_waits(lines, n))
        for e in errs:
            if "buffer_load_ushort" in e.split("touched by")[0] and "buffer_load_ushort" in e.split("touched by")[-1] and n == "k0": continue
            if "buffer_load_dword v" in e.split("touched by")[0] and "buffer_load_dword v" in e.split("touched by")[-1]: continue
            print("CHECK", e); bad += 1
        out.append(f".globl {n}_kernel\n.p2align 8\n.type {n}_kernel,@function\n{n}_kernel:")
        t = Asm(); t.lines = lines
        out.append(t.text())
    out.append('.section .rodata,"a"')
    for (n, lines, g, b, lds, nv, ao) in kernels:
        out.append(f""".p2align 6
.amdhsa_kernel {n}_kernel
  .amdhsa_next_free_vgpr {nv}
  .amdhsa_next_free_sgpr {96 if PROF else 56}
  .amdhsa_accum_offset {ao}
  .amdhsa_group_segment_fixed_size 0
  .amdhsa_kernarg_size 120
  .amdhsa_user_sgpr_count 2
  .amdhsa_user_sgpr_kernarg_segment_ptr 1
  .amdhsa_system_sgpr_workgroup_id_x 1
.end_amdhsa_kernel""")
    open(path, "w").write("\n".join(out) + "\n")
    print("wrote", path, "checks failed:", bad)

if __name__ == "__main__":
    for i in range(int(os.environ.get("X_EMPTY0", "0"))):
        e = K(f"f{i}"); e("s_endpgm"); finish(e, 256, 256, 0, 8)
    k0(); k1(); k2()
    k34(); k56()
    for i in range(int(os.environ.get("X_EMPTY", "0"))):
        e = K(f"e{i}"); e("s_endpgm"); finish(e, 256, 256, 0, 8)
    emit(sys.argv[1] if len(sys.argv) > 1 else "adaLN_cond__grouped_kv_mqa__mixer_gmlp__prompt.s")
```

```python
import math, struct, sys, os
from asmlib import *

def f32(x):
    return "0x%08x" % struct.unpack("<I", struct.pack("<f", x))[0]

WS_MOD  = 0x0
WS_XH   = 0x100000
WS_ST0  = 0x8000
WS_CNT  = 0xC000
WS_FL1  = 0x10000
WS_FL2  = 0x12000
WS_FL0  = 0x14000
WS_UT   = 0x18000
WS_UTP  = 0x20000
WS_WQKV = 0x400000
WS_WO   = 0x500000
WS_WIN  = 0x600000
WS_WOUT = 0x800000
WS_Q    = 0xA00000
WS_KV   = 0xD00000
WS_O    = 0xE00000
WS_X1   = 0x1080000
WS_ST1  = 0x1300000
WS_ST2  = 0x1360000
WS_Z1   = 0x13C0000
WS_Z2T  = 0x16C0000
WS_Y    = 0x19C0000
WS_WSP  = 0x1D00000
WS_SIZE = 0x2500000
KVCH = 26624
OOB = 0x40000000
LOG2E = math.log2(math.e)
KA = dict(x=0, wq=8, wk=16, wv=24, wo=32, w_in=48, w_sp=56, b_sp=64, w_out=72, c=80, w_mod=88, out=96, dbg=104, ws=112)
UT = [[0, 1], [2, 5], [3, 4]]

PROF = os.environ.get("PROF", "0") == "1"
WS_PROF = 0x3000000
if PROF: WS_SIZE = 0x4000000
def stamp(a, i):
    if PROF: a(f"s_memtime s[{50+2*i}:{51+2*i}]")
def stamp_begin(a):
    if PROF:
        for i in range(12): a(f"s_mov_b64 s[{50+2*i}:{51+2*i}], 0")
        a("s_memrealtime s[74:75]")
        stamp(a, 0)
def stamp_end(a, kidx):
    if PROF:
        stamp(a, 11)
        a("s_memrealtime s[76:77]\ns_mov_b64 exec, 1\ns_waitcnt lgkmcnt(0)")
        a(f"s_lshl_b32 s3, s2, 4\ns_add_u32 s3, s3, s14\ns_lshl_b32 s3, s3, 6\ns_add_u32 s3, s3, {WS_PROF + kidx*0x100000:#x}\nv_mov_b32 v0, 0")
        for i in range(12): a(f"v_mov_b32 v{2+i}, s{50+2*i}")
        a("s_getreg_b32 s78, hwreg(HW_REG_XCC_ID)\ns_getreg_b32 s79, hwreg(HW_REG_HW_ID)\nv_mov_b32 v14, s74\nv_mov_b32 v15, s76\nv_mov_b32 v16, s78\nv_mov_b32 v17, s79")
        for i in range(4): a(f"buffer_store_dwordx4 v[{2+4*i}:{5+4*i}], v0, s[8:11], s3 offen offset:{16*i}")

def srd(a, d, p, nbytes):
    a(f"s_mov_b32 s{d}, s{p}\ns_mov_b32 s{d+1}, s{p+1}\ns_mov_b32 s{d+2}, {nbytes:#x}\ns_mov_b32 s{d+3}, 0x20000")

kernels = []
XCMP = "s3" if os.environ.get("X_NOBAR") or os.environ.get("X_NOLDS") else 0

class K(Asm):
    def __init__(self, name):
        super().__init__()
        self.name = name; self.vmq = []; self.lgq = []
    def label(self, base):
        self.uid += 1
        return f"L_{self.name}_{base}_{self.uid}"
    def vm(self, text, tag=None):
        self(text); self.vmq.append(tag)
    def lg(self, text, tag=None):
        self(text); self.lgq.append(tag)
    def _n(self, q, tags):
        idx = max((i for i, t in enumerate(q) if t in tags), default=None)
        return None if idx is None else len(q) - 1 - idx
    def wait(self, vm=(), lg=()):
        parts = []
        n = self._n(self.vmq, vm) if vm else None
        if n is not None:
            parts.append(f"vmcnt({min(n, 63)})"); self.vmq = self.vmq[len(self.vmq)-n:] if n else []
        n = self._n(self.lgq, lg) if lg else None
        if n is not None:
            n2 = min(n, 15)
            parts.append(f"lgkmcnt({n2})"); self.lgq = self.lgq[len(self.lgq)-n2:] if n2 else []
        if parts: self("s_waitcnt " + " ".join(parts))
    def wait_all_lg(self):
        self("s_waitcnt lgkmcnt(0)"); self.lgq = []

def end(a):
    a(f"L_{a.name}_end:")
    stamp_end(a, len(kernels))
    a(f"L_{a.name}_exit:\ns_endpgm")
def finish(a, grid, block, lds, nv):
    kernels.append((a.name, a.lines, grid, block, lds, nv, (nv + 3) // 4 * 4))

def bf16_round(a, v, t):
    a(f"v_cvt_pk_bf16_f32 v{t}, v{v}, v{v}\nv_and_b32 v{v}, 0xffff0000, v{t}")

E_NAT = list(range(8))
E_PERM = [(j & 3) + 8 * (j >> 2) for j in range(8)]
E_O5 = [20 * (j >> 1) + (j & 1) for j in range(8)]
def loads8(a, srdn, voff, lo, hi, ebase, e_list, rs, stmp, tag=None):
    for j in range(8):
        a(f"s_add_u32 s{stmp}, s{ebase}, {e_list[j]*rs}")
        a.vm(f"buffer_load_ushort v{(lo if j % 2 == 0 else hi) + j//2}, v{voff}, s[{srdn}:{srdn+3}], s{stmp} offen", tag)

def divmod_s(a, q, r, x, d, t):
    m = (1 << 20) // d + 1
    a(f"s_mul_i32 s{q}, s{x}, {m}\ns_lshr_b32 s{q}, s{q}, 20\ns_mul_i32 s{t}, s{q}, {d}\ns_sub_u32 s{r}, s{x}, s{t}")

def pack_frag_issue(a, f, srdn, rs, ncol, nks, otype, halves, lo, hi, voff, vt, S):
    q3, ft, t, nb, ks, eb = S, S+1, S+2, S+3, S+4, S+5
    divmod_s(a, q3, ft, f, 3, t)
    divmod_s(a, nb, ks, q3, nks, t)
    if halves:
        a(f"s_and_b32 s{t}, s{nb}, 1\ns_lshr_b32 s{nb}, s{nb}, 1\ns_mul_i32 s{nb}, s{nb}, {ncol}\ns_cmp_eq_u32 s{t}, 0\ns_cselect_b32 s{t}, 768, 0\ns_add_u32 s{nb}, s{nb}, s{t}")
    else:
        a(f"s_mul_i32 s{nb}, s{nb}, {ncol}")
    hi5 = 80 if ncol == 96 else OOB // 2
    a(f"s_cmp_eq_u32 s{ft}, 1\ns_cselect_b32 s{q3}, 32, 48\ns_cselect_b32 s{t}, {hi5:#x}, 64\ns_cmp_eq_u32 s{ft}, 0\ns_cselect_b32 s{q3}, 0, s{q3}\ns_cselect_b32 s{t}, 16, s{t}")
    a(f"s_add_u32 s{q3}, s{q3}, s{nb}\ns_add_u32 s{t}, s{t}, s{nb}")
    a(f"v_mov_b32 v{vt}, s{q3}\nv_mov_b32 v{vt+1}, s{t}\nv_cmp_gt_u32 vcc, 16, v2\nv_and_b32 v{voff}, 15, v2\ns_nop 0\nv_cndmask_b32 v{vt}, v{vt+1}, v{vt}, vcc\nv_add_lshl_u32 v{voff}, v{voff}, v{vt}, 1")
    if not otype:
        a(f"v_mul_u32_u24 v{vt}, {4*rs}, v3\nv_add_u32 v{voff}, v{voff}, v{vt}\ns_mul_i32 s{eb}, s{ks}, {16*rs}")
        loads8(a, srdn, voff, lo, hi, eb, E_PERM, rs, t, "pack")
    else:
        l5, ld = a.label("u4"), a.label("ud")
        divmod_s(a, q3, ft, ks, 5, t)
        a(f"s_mul_i32 s{q3}, s{q3}, 80\ns_cmp_eq_u32 s{ft}, 4\ns_cbranch_scc1 {l5}")
        a(f"s_mul_i32 s{ft}, s{ft}, 20\ns_add_u32 s{q3}, s{q3}, s{ft}\ns_mul_i32 s{eb}, s{q3}, {rs}\nv_mul_u32_u24 v{vt}, {4*rs}, v3\nv_add_u32 v{voff}, v{voff}, v{vt}")
        q0 = list(a.vmq)
        loads8(a, srdn, voff, lo, hi, eb, E_PERM, rs, t, "pack")
        a(f"s_branch {ld}\n{l5}:\ns_add_u32 s{q3}, s{q3}, 16\ns_mul_i32 s{eb}, s{q3}, {rs}\nv_mul_u32_u24 v{vt}, {2*rs}, v3\nv_add_u32 v{voff}, v{voff}, v{vt}")
        a.vmq = q0
        loads8(a, srdn, voff, lo, hi, eb, E_O5, rs, t, "pack")
        a(f"{ld}:")

def pack_frag_store(a, f, wsbase, lo, hi, st):
    for i in range(4): a(f"v_lshl_or_b32 v{lo+i}, v{hi+i}, 16, v{lo+i}")
    a(f"s_lshl_b32 s{st}, s{f}, 10\ns_add_u32 s{st}, s{st}, {wsbase:#x}")
    a.vm(f"buffer_store_dwordx4 v[{lo}:{lo+3}], v1, s[8:11], s{st} offen")

def l2_prefetch(a, base, nbytes, nwaves, vdst, vtmp, st):
    per_wg = nbytes // 32
    PS = int(os.environ.get("X_PFS", "64")); CH = 64 * PS
    n_instr = -(-per_wg // CH)
    per_wave = -(-n_instr // nwaves)
    a(f"s_lshr_b32 s{st}, s2, 3\ns_mul_i32 s{st}, s{st}, {per_wg}\ns_mul_i32 s{st+1}, s14, {per_wave*CH}\ns_add_u32 s{st}, s{st}, s{st+1}\ns_add_u32 s{st}, s{st}, {base:#x}\nv_lshlrev_b32 v{vtmp}, {int(math.log2(PS//16))}, v1")
    for i in range(per_wave):
        a.vm(f"buffer_load_dword v{vdst}, v{vtmp}, s[8:11], s{st} offen")
        if i < per_wave - 1: a(f"s_add_u32 s{st}, s{st}, {CH}")

N_MOD, N_XH, N_PQ = 128, 64, 40
def k0():
    a = K("k0")
    ends = [N_MOD, N_MOD + N_XH, N_MOD + N_XH + N_PQ]
    grid = ends[-1]
    CPF = os.environ.get("X_CPF", "0") == "1"
    if CPF:
        lc = a.label("cpf")
        a(f"s_cmp_lt_u32 s2, {grid}\ns_cbranch_scc1 {lc}\ns_cmp_ge_u32 s2, {grid+48}\ns_cbranch_scc1 L_k0_exit")
        a(f"s_getpc_b64 s[40:41]\ns_and_b32 s40, s40, 0xffffff00\ns_sub_u32 s3, s2, {grid}\ns_lshr_b32 s3, s3, 3\ns_lshl_b32 s3, s3, 13\nv_lshlrev_b32 v3, 5, v0\nv_add_u32 v3, s3, v3\nglobal_load_dword v4, v3, s[40:41]\ns_endpgm\n{lc}:")
        grid += 48
    a(f"s_cmp_ge_u32 s2, {grid}\ns_cbranch_scc1 L_k0_exit")
    stamp_begin(a)
    a(f"s_load_dwordx2 s[4:5], s[0:1], {KA['ws']}")
    a("v_and_b32 v1, 63, v0\nv_lshrrev_b32 v2, 6, v0\ns_nop 0\nv_readfirstlane_b32 s14, v2")
    a(f"s_cmp_lt_u32 s2, {ends[0]}\ns_cbranch_scc1 L_k0_mod")
    a(f"s_cmp_lt_u32 s2, {ends[1]}\ns_cbranch_scc1 L_k0_xh")
    a("s_branch L_k0_pq")
    a("L_k0_mod:")
    a(f"s_load_dwordx4 s[16:19], s[0:1], {KA['c']}")
    a("s_and_b32 s3, s2, 7\ns_lshl_b32 s3, s3, 1\ns_bfe_u32 s6, s2, 0x10003\ns_add_u32 s3, s3, s6\ns_lshr_b32 s6, s2, 4\ns_lshl_b32 s6, s6, 4\ns_add_u32 s3, s3, s6")
    a("s_cmp_ge_u32 s3, 120\ns_cbranch_scc1 L_k0_exit")
    a("v_lshrrev_b32 v1, 2, v0\nv_and_b32 v2, 3, v0\nv_mul_u32_u24 v3, 7680, v1\nv_lshl_add_u32 v3, v2, 4, v3\nv_lshlrev_b32 v4, 1, v1")
    a("s_waitcnt lgkmcnt(0)")
    srd(a, 8, 4, WS_SIZE); srd(a, 20, 16, 1280); srd(a, 24, 18, 640 * 7680)
    stamp(a, 1)
    a("s_lshl_b32 s6, s3, 6")
    for p in range(10):
        a(f"buffer_load_ushort v{10+p}, v4, s[20:23], 0 offen offset:{128*p}")
    for p in range(10):
        a(f"buffer_load_dwordx4 v[{20+4*p}:{23+4*p}], v3, s[24:27], s6 offen")
        if p < 9: a(f"s_add_u32 s6, s6, {64*7680}")
    for i in range(8): a(f"v_mov_b32 v{64+i}, 0")
    stamp(a, 2)
    a("s_waitcnt vmcnt(10)")
    stamp(a, 3)
    for p in range(10):
        v = 10 + p
        a(f"v_lshlrev_b32 v{v}, 16, v{v}\nv_mul_f32 v5, {f32(-LOG2E)}, v{v}\nv_exp_f32 v5, v5\ns_nop 0\nv_add_f32 v5, 1.0, v5\nv_rcp_f32 v5, v5\ns_nop 0\nv_mul_f32 v{v}, v{v}, v5")
        bf16_round(a, v, 5)
    for p in range(10):
        a(f"s_waitcnt vmcnt({9-p})")
        for i in range(4):
            d = 20 + 4*p + i
            a(f"v_lshlrev_b32 v5, 16, v{d}\nv_and_b32 v6, 0xffff0000, v{d}\nv_fmac_f32 v{64+2*i}, v{10+p}, v5\nv_fmac_f32 v{65+2*i}, v{10+p}, v6")
    stamp(a, 4)
    a("v_lshlrev_b32 v5, 7, v1\nv_lshl_add_u32 v5, v2, 5, v5")
    a("ds_write_b128 v5, v[64:67]\nds_write_b128 v5, v[68:71] offset:16")
    a("v_and_b32 v6, 31, v0\nv_lshrrev_b32 v7, 5, v0\nv_lshlrev_b32 v6, 2, v6\nv_lshl_add_u32 v8, v7, 10, v6")
    a("s_waitcnt lgkmcnt(0)\ns_barrier")
    for i in range(8): a(f"ds_read_b32 v{20+i}, v8 offset:{128*i}")
    a("s_waitcnt lgkmcnt(0)")
    for i in range(1, 8): a(f"v_add_f32 v20, v20, v{20+i}")
    a("v_lshl_add_u32 v8, v7, 7, v6\nds_write_b32 v8, v20 offset:8192\ns_waitcnt lgkmcnt(0)\ns_barrier")
    for i in range(8): a(f"ds_read_b32 v{20+i}, v6 offset:{8192+128*i}")
    a("s_waitcnt lgkmcnt(0)")
    for i in range(1, 8): a(f"v_add_f32 v20, v20, v{20+i}")
    bf16_round(a, 20, 5)
    a("v_add_f32 v21, 1.0, v20")
    bf16_round(a, 21, 5)
    a("s_sub_u32 s6, s3, 20\ns_cmp_lt_u32 s6, 20\ns_cselect_b32 s7, 1, 0\ns_sub_u32 s6, s3, 80\ns_cmp_lt_u32 s6, 20\ns_cselect_b32 s6, 1, s7\ns_cmp_eq_u32 s6, 0")
    l = a.label("noinc")
    a(f"s_cbranch_scc1 {l}\nv_mov_b32 v20, v21\n{l}:")
    a(f"s_lshl_b32 s6, s3, 7\nv_cmp_gt_u32 vcc, 32, v0\ns_and_saveexec_b64 s[28:29], vcc\ns_cbranch_execz L_k0_end")
    a(f"buffer_store_dword v20, v6, s[8:11], s6 offen offset:{WS_MOD}")
    a("s_branch L_k0_end")
    a("L_k0_xh:")
    a(f"s_load_dwordx2 s[16:17], s[0:1], {KA['x']}")
    a(f"s_sub_u32 s6, s2, {ends[0]}\ns_and_b32 s3, s6, 7\ns_lshr_b32 s7, s6, 4\ns_lshl_b32 s7, s7, 3\ns_add_u32 s3, s3, s7\ns_lshl_b32 s3, s3, 1\ns_bfe_u32 s7, s6, 0x10003\ns_add_u32 s3, s3, s7")
    a("v_and_b32 v2, 31, v1\nv_lshrrev_b32 v3, 5, v1\nv_mul_u32_u24 v4, 1280, v2\nv_lshl_add_u32 v4, v3, 4, v4")
    a(f"s_mul_i32 s6, s3, {32*1280}\ns_mul_i32 s7, s14, 320\ns_add_u32 s6, s6, s7")
    a("s_waitcnt lgkmcnt(0)")
    srd(a, 8, 4, WS_SIZE); srd(a, 20, 16, 2048 * 1280)
    stamp(a, 1)
    for i in range(10):
        a(f"buffer_load_dwordx4 v[{20+4*i}:{23+4*i}], v4, s[20:23], s6 offen offset:{32*i}")
    a("v_mov_b32 v6, 0\nv_mov_b32 v7, 0")
    a(f"s_mul_i32 s6, s3, {40*1024}\ns_mul_i32 s7, s14, {10*1024}\ns_add_u32 s6, s6, s7\ns_add_u32 s6, s6, {WS_XH:#x}\nv_lshlrev_b32 v8, 4, v1")
    for i in range(10):
        b = 20 + 4*i
        a(f"s_waitcnt vmcnt(9)\nv_permlane32_swap_b32 v{b}, v{b+2}\nv_permlane32_swap_b32 v{b+1}, v{b+3}")
        a(f"buffer_store_dwordx4 v[{b}:{b+3}], v8, s[8:11], s6 offen offset:{(i%4)*1024}")
        if i % 4 == 3: a("s_add_u32 s6, s6, 4096")
        for d in range(4):
            lo = 64 + 2*(d % 2)
            a(f"v_lshlrev_b32 v{lo}, 16, v{b+d}\nv_and_b32 v{lo+1}, 0xffff0000, v{b+d}")
            a(f"v_add_f32 v6, v6, v{lo}\nv_fmac_f32 v7, v{lo}, v{lo}\nv_add_f32 v6, v6, v{lo+1}\nv_fmac_f32 v7, v{lo+1}, v{lo+1}")
    stamp(a, 4)
    a(f"v_mov_b32 v64, -1\nv_mov_b32 v65, -1\nv_mov_b32 v66, -1\nv_mov_b32 v67, -1\nv_lshlrev_b32 v5, 4, v0\ns_mul_i32 s7, s3, 6144\ns_add_u32 s7, s7, {WS_ST2:#x}\nbuffer_store_dwordx4 v[64:67], v5, s[8:11], s7 offen\nbuffer_store_dwordx4 v[64:67], v5, s[8:11], s7 offen offset:2048")
    a("v_lshlrev_b32 v5, 3, v0\nds_write_b64 v5, v[6:7]\nv_lshlrev_b32 v5, 3, v2\ns_waitcnt lgkmcnt(0)\ns_barrier")
    for i in range(8): a(f"ds_read_b64 v[{70+2*i}:{71+2*i}], v5 offset:{256*i}")
    a("s_waitcnt lgkmcnt(0)")
    for i in range(1, 8): a(f"v_add_f32 v70, v70, v{70+2*i}\nv_add_f32 v71, v71, v{71+2*i}")
    a(f"v_mul_f32 v70, {f32(1/640)}, v70\nv_mul_f32 v71, {f32(1/640)}, v71\nv_fma_f32 v71, -v70, v70, v71\nv_max_f32 v71, 0, v71\nv_add_f32 v71, {f32(1e-5)}, v71\nv_rsq_f32 v72, v71\ns_nop 0\nv_mul_f32 v70, v70, v72")
    a(f"v_sub_f32 v73, 0, v70\ns_lshl_b32 s6, s3, 8\ns_add_u32 s6, s6, {WS_ST0:#x}\nv_cmp_gt_u32 vcc, 32, v0\ns_and_saveexec_b64 s[28:29], vcc\ns_cbranch_execz L_k0_end")
    a("buffer_store_dwordx2 v[72:73], v5, s[8:11], s6 offen")
    a("s_branch L_k0_end")
    a("L_k0_pq:")
    a(f"s_load_dwordx2 s[16:17], s[0:1], {KA['wq']}\ns_load_dwordx4 s[32:35], s[0:1], {KA['wk']}")
    a(f"s_sub_u32 s3, s2, {ends[1]}\ns_and_b32 s13, s3, 7\ns_lshr_b32 s12, s3, 3\ns_lshl_b32 s12, s12, 3\ns_lshl_b32 s6, s14, 1\ns_add_u32 s12, s12, s6")
    a("v_and_b32 v2, 31, v1\nv_lshrrev_b32 v3, 5, v1\nv_and_b32 v4, 15, v1\nv_lshlrev_b32 v9, 4, v1")
    a(f"v_lshrrev_b32 v5, 4, v2\nv_mul_u32_u24 v5, 20, v5\nv_add_u32 v5, v5, v4\ns_mul_i32 s6, s13, 80\nv_add_u32 v5, s6, v5\nv_lshlrev_b32 v5, 1, v5\nv_mul_u32_u24 v6, {4*1280}, v3\nv_add_u32 v10, v5, v6\nv_add_u32 v11, 80, v10\nv_add_u32 v12, 120, v10")
    a("v_bfe_u32 v5, v4, 1, 1\nv_lshrrev_b32 v7, 3, v4\nv_lshl_add_u32 v5, v7, 1, v5\nv_mul_u32_u24 v5, 20, v5\nv_bfe_u32 v7, v4, 2, 1\nv_lshl_add_u32 v5, v7, 1, v5\nv_and_b32 v7, 1, v4\nv_add_u32 v5, v5, v7\nv_add_u32 v5, 16, v5\nv_add_u32 v5, s6, v5\nv_lshlrev_b32 v5, 1, v5\nv_add_u32 v5, v5, v6\nv_cmp_gt_u32 vcc, 16, v2\ns_nop 1\nv_cndmask_b32 v12, v5, v12, vcc")
    a("v_lshrrev_b32 v5, 2, v4\nv_lshlrev_b32 v5, 1, v5\nv_add_u32 v5, v5, v7\nv_add_u32 v5, 16, v5\nv_and_b32 v8, 10, v4\nv_cmp_eq_u32 vcc, 0, v8")
    a(f"v_mov_b32 v8, {OOB//2:#x}\ns_nop 0\nv_cndmask_b32 v5, v8, v5, vcc\nv_add_u32 v14, 16, v4\nv_cmp_gt_u32 vcc, 4, v4\ns_nop 1\nv_cndmask_b32 v14, v8, v14, vcc\ns_cmp_eq_u32 s13, 3\ns_cselect_b64 vcc, -1, 0\nv_cndmask_b32 v5, v5, v14, vcc\ns_bitcmp1_b32 s13, 0\ns_cselect_b64 vcc, -1, 0\nv_cndmask_b32 v5, v4, v5, vcc\nv_lshlrev_b32 v5, 1, v5\nv_mul_u32_u24 v6, {4*40}, v3\nv_add_u32 v13, v5, v6")
    a("s_waitcnt lgkmcnt(0)")
    srd(a, 8, 4, WS_SIZE); srd(a, 20, 16, 640 * 1280)
    lz = a.label("nz")
    a(f"s_cmp_lg_u32 s3, 0\ns_cbranch_scc1 {lz}\nv_mov_b32 v16, 0\nv_mov_b32 v17, 0\nv_mov_b32 v18, 0\nv_mov_b32 v19, 0\nv_lshlrev_b32 v15, 4, v0\ns_mov_b32 s7, {WS_CNT:#x}\nbuffer_store_dwordx4 v[16:19], v15, s[8:11], s7 offen\ns_mov_b32 s7, {WS_FL1:#x}\nbuffer_store_dwordx4 v[16:19], v15, s[8:11], s7 offen\ns_add_u32 s7, s7, 4096\nbuffer_store_dwordx4 v[16:19], v15, s[8:11], s7 offen\ns_add_u32 s7, s7, 4096\nbuffer_store_dwordx4 v[16:19], v15, s[8:11], s7 offen\ns_add_u32 s7, s7, 4096\nbuffer_store_dwordx4 v[16:19], v15, s[8:11], s7 offen\ns_add_u32 s7, s7, 4096\nbuffer_store_dwordx4 v[16:19], v15, s[8:11], s7 offen\ns_add_u32 s7, s7, 4096\nbuffer_store_dwordx4 v[16:19], v15, s[8:11], s7 offen\ns_add_u32 s7, s7, 4096\n{lz}:")
    a("s_cmp_ge_u32 s13, 2\ns_cselect_b32 s32, s34, s32\ns_cselect_b32 s33, s35, s33\ns_cmp_ge_u32 s13, 4\ns_cselect_b32 s7, 0, 25600")
    a("s_mov_b32 s24, s32\ns_mov_b32 s25, s33\ns_mov_b32 s26, s7\ns_mov_b32 s27, 0x20000")
    for q in range(2):
        a(f"s_add_u32 s6, s12, {q}\ns_mul_i32 s28, s6, {16*1280}\ns_mul_i32 s29, s6, {16*40}")
        b = 20 + 12*q
        loads8(a, 20, 10, b, b+24, 28, E_PERM, 1280, 30)
        loads8(a, 20, 12, b+8, b+32, 28, E_PERM, 1280, 30)
        a("s_mov_b32 exec_lo, 0xffff\ns_mov_b32 exec_hi, 0xffff")
        loads8(a, 20, 11, b+4, b+28, 28, E_PERM, 1280, 30)
        a("s_mov_b32 exec_lo, 0xffff0000\ns_mov_b32 exec_hi, 0xffff0000")
        loads8(a, 24, 13, b+4, b+28, 29, E_PERM, 40, 30)
        a("s_mov_b64 exec, -1")
        if q == 0: a("s_waitcnt vmcnt(16)")
    a(f"s_mul_i32 s6, s13, 40\ns_add_u32 s6, s6, s12\ns_mul_i32 s6, s6, 3072\ns_add_u32 s6, s6, {WS_WQKV:#x}\ns_waitcnt vmcnt(0)")
    stamp(a, 4)
    for i in range(24): a(f"v_lshl_or_b32 v{20+i}, v{44+i}, 16, v{20+i}")
    for q in range(2):
        for ft in range(3):
            a(f"buffer_store_dwordx4 v[{20+12*q+4*ft}:{23+12*q+4*ft}], v9, s[8:11], s6 offen offset:{ft*1024}")
        a("s_add_u32 s6, s6, 3072")
    end(a)
    finish(a, grid, 256, 9216, 144)

STG = 20480
NS, DEP = 6, 4
EX = NS * STG
PAR = EX + 24576
LDS_G = PAR + 5120
ACC, WS0, AF, PR, VW = 8, 56, 104, 200, 240

def common_prologue(a, extra_loads=""):
    a(f"s_cmp_ge_u32 s2, 256\ns_cbranch_scc1 L_{a.name}_exit")
    stamp_begin(a)
    a(f"s_load_dwordx2 s[4:5], s[0:1], {KA['ws']}")
    a(extra_loads)
    a("v_and_b32 v4, 63, v0\nv_lshrrev_b32 v5, 6, v0\nv_lshlrev_b32 v1, 4, v4\nv_readfirstlane_b32 s14, v5\nv_and_b32 v2, 31, v4\nv_lshrrev_b32 v3, 5, v4")
    a("s_and_b32 s12, s2, 7\ns_lshr_b32 s3, s2, 6\ns_lshl_b32 s3, s3, 3\ns_add_u32 s12, s12, s3\ns_bfe_u32 s13, s2, 0x30003")

def gemm_prologue(a, extra_loads=""):
    common_prologue(a, extra_loads)
    a("s_bfe_u32 s15, s14, 0x10001\ns_and_b32 s17, s14, 1\ns_lshl_b32 s16, s12, 1\ns_add_u32 s16, s16, s17")
    a(f"s_cmp_ge_u32 s14, 4\ns_cbranch_scc1 L_{a.name}_loader")

def compute_addr(a, rb):
    a.rb = rb
    if rb == 0:
        a(f"s_mul_i32 s3, s15, {6144+2048}\nv_add_u32 v{VW}, s3, v1\ns_mul_i32 s3, s15, {6144-2048}\ns_add_u32 s3, s3, 2048\nv_add_u32 v{VW+2}, s3, v1")
        a(f"s_lshl_b32 s3, s15, 8\nv_xor_b32 v{VW+1}, s3, v1\ns_mul_i32 s3, s15, 6144\ns_add_u32 s3, s3, 1024\nv_add_u32 v{VW+1}, s3, v{VW+1}")
    else:
        a("v_bfe_u32 v4, v0, 2, 2\nv_and_b32 v5, 3, v0\nv_bfe_u32 v6, v0, 4, 1")
        a("v_lshl_add_u32 v4, v3, 2, v4" if rb == 192 else "v_lshl_add_u32 v4, v4, 1, v3")
        a(f"v_mul_u32_u24 v4, {rb}, v4\nv_lshl_add_u32 v4, v5, 3, v4\ns_mul_i32 s3, s15, 6144\nv_add_u32 v4, s3, v4")
        a(f"v_lshl_add_u32 v5, v6, 5, v4\ns_mul_i32 s3, s15, 96\nv_add_u32 v{VW}, s3, v5\ns_sub_u32 s3, 96, s3\nv_add_u32 v{VW+2}, s3, v5")
        if rb == 192:
            a(f"v_xor_b32 v6, s15, v6\nv_mul_u32_u24 v6, 96, v6\nv_add_u32 v6, 64, v6\nv_add_u32 v{VW+1}, v4, v6")
        else:
            a(f"v_add_u32 v{VW+1}, 64, v4")
    a(f"s_lshl_b32 s3, s14, 11\ns_add_u32 s3, s3, 12288\nv_add_u32 v{VW+3}, s3, v1")
    for i in range(4): a(f"v_add_u32 v{VW+4+i}, {3*STG}, v{VW+i}")

def read_ops(a, s, areg):
    slot = s % NS; hi, sl = (4, slot - 3) if slot >= 3 else (0, slot)
    ra, rw = [], []
    if areg is not None:
        for q in range(2):
            ra.append(lambda q=q: a.lg(f"ds_read_b128 v[{areg+4*q}:{areg+4*q+3}], v{VW+3+hi} offset:{sl*STG + q*1024}", ("a", s)))
    for q in range(2):
        for t in range(3):
            r = WS0 + 24*(s % 2) + 12*q + 4*t; o = sl*STG + q*3072
            if a.rb == 0:
                rw.append(lambda r=r, t=t, o=o: a.lg(f"ds_read_b128 v[{r}:{r+3}], v{VW+t+hi} offset:{o}", ("w", s)))
            else:
                def f(r=r, t=t, o=o):
                    a.lg(f"ds_read_b64_tr_b16 v[{r}:{r+1}], v{VW+t+hi} offset:{o}", ("w", s))
                    a.lg(f"ds_read_b64_tr_b16 v[{r+2}:{r+3}], v{VW+t+hi} offset:{o + 8*a.rb}", ("w", s))
                rw.append(f)
    return ra, rw

def mfma_ops(a, wset, areg, first):
    ops = []
    for q in range(2):
        for t in range(3):
            r = ACC + 16*t; w = WS0 + 24*wset + 12*q + 4*t; b = areg + 4*q
            c = "0" if (first and q == 0) else f"v[{r}:{r+15}]"
            ops.append(lambda r=r, w=w, b=b, c=c: a(f"v_mfma_f32_32x32x16_bf16 v[{r}:{r+15}], v[{w}:{w+3}], v[{b}:{b+3}], {c}"))
    return ops

def transform_ops(a, F, P, rr, nm, t=232):
    ops = []
    for d in range(4):
        x, y = t + 2*(d % 2), t + 2*(d % 2) + 1
        L = [f"v_lshlrev_b32 v{x}, 16, v{F+d}", f"v_and_b32 v{y}, 0xffff0000, v{F+d}",
             f"v_fma_f32 v{x}, v{x}, v{rr}, v{nm}", f"v_fma_f32 v{y}, v{y}, v{rr}, v{nm}",
             f"v_fma_f32 v{x}, v{x}, v{P+8+2*d}, v{P+2*d}", f"v_fma_f32 v{y}, v{y}, v{P+9+2*d}, v{P+1+2*d}", f"v_cvt_pk_bf16_f32 v{F+d}, v{x}, v{y}"]
        ops += [(lambda l=l: a(l)) for l in L]
    return ops

def merge(*lists):
    items = []
    for li, L in enumerate(lists):
        n = len(L)
        for i, op in enumerate(L): items.append(((i + 0.5 * (li > 0)) / n, li, i, op))
    items.sort(key=lambda x: (x[0], x[1], x[2]))
    return [x[3] for x in items]
def run(ops):
    for op in ops: op()

def param_base(a):
    a(f"s_mul_i32 s3, s15, 1280\ns_add_u32 s3, s3, {PAR}\nv_lshlrev_b32 v6, 4, v3\nv_add_u32 v6, s3, v6")
def param_ops(a, ks):
    ops = []
    for arr in range(2):
        P = PR + 16*(ks % 2) + 8*arr; off = arr*2560 + ks*64
        ops.append(lambda P=P, off=off: a.lg(f"ds_read_b128 v[{P}:{P+3}], v6 offset:{off}", ("p", ks)))
        ops.append(lambda P=P, off=off: a.lg(f"ds_read_b128 v[{P+4}:{P+7}], v6 offset:{off+32}", ("p", ks)))
    return ops

def exchange(a, R):
    a(f"s_mul_i32 s3, s14, 6144\ns_add_u32 s3, s3, {EX}\nv_add_u32 v4, s3, v1\ns_xor_b32 s3, s14, 2\ns_mul_i32 s3, s3, 6144\ns_add_u32 s3, s3, {EX}\nv_add_u32 v5, s3, v1\ns_nop 4")
    for i in range(6): a(f"ds_write_b128 v4, v[{ACC+24+4*i}:{ACC+27+4*i}] offset:{i*1024}")
    a.wait_all_lg()
    a("s_barrier")
    for j in range(3):
        for h in range(2):
            a(f"ds_read_b128 v[{R+8*j+4*h}:{R+8*j+4*h+3}], v5 offset:{((j+1)%3)*2048 + h*1024}")
    for j in range(3):
        a(f"s_waitcnt lgkmcnt({4-2*j})")
        for i in range(8): a(f"v_add_f32 v{ACC+8*j+i}, v{ACC+8*j+i}, v{R+8*j+i}")

def c_start(a, areg_of, xf=None):
    a("s_barrier")
    stamp(a, 3)
    ra, rw = read_ops(a, 0, areg_of(0))
    run(ra)
    if xf:
        n, rr, nm = xf
        run(param_ops(a, 0)); run(param_ops(a, 1)); run(rw)
        a.wait(lg=[("a", 0), ("p", 0)])
        run(transform_ops(a, areg_of(0), PR, rr, nm))
        a.wait(lg=[("p", 1)])
        run(merge(transform_ops(a, areg_of(0) + 4, PR + 16, rr, nm), param_ops(a, 2)))
    else:
        run(rw)

def c_iter(a, s, first, total, areg_of, xf=None, load_a=True):
    ra, rw = [], []
    if s + 1 < total:
        a("s_barrier")
        ra, rw = read_ops(a, s + 1, areg_of(s + 1) if load_a else None)
    mf = mfma_ops(a, s % 2, areg_of(s), first)
    if os.environ.get("X_NORD"): ra, rw = [], []
    if os.environ.get("X_NOMFMA"): mf = [lambda: a("s_nop 0")] * 6
    if os.environ.get("X_NOXF"): xf = None
    if xf and s + 1 < xf[0]:
        n, rr, nm = xf
        k0 = 2*(s+1)
        run(ra); run(param_ops(a, k0 + 1))
        a.wait(lg=[("w", s)])
        run(merge(mf[:2], rw[:2]))
        a.wait(lg=[("a", s+1), ("p", k0)])
        run(merge(transform_ops(a, areg_of(s+1), PR, rr, nm), mf[2:4], rw[2:4]))
        a.wait(lg=[("p", k0 + 1)])
        nxt = param_ops(a, k0 + 2) if s + 2 < n else []
        run(merge(transform_ops(a, areg_of(s+1) + 4, PR + 16, rr, nm), mf[4:], rw[4:] + nxt))
    else:
        a.wait(lg=[("w", s), ("a", s)])
        run(merge(mf, ra + rw))

class Loader:
    def __init__(self, a, act_base, nks, wmode, wbase=None, wblocks=1, ka_sreg=None, rs=0, nbytes=0, colbytes=0, col0=0):
        self.a, self.wmode = a, wmode
        a(f"L_{a.name}_loader:")
        a.vmq = []; a.lgq = []
        a(f"s_and_b32 s3, s14, 3\ns_mul_i32 s20, s3, 3072\ns_lshl_b32 s21, s3, 11\ns_add_u32 s21, s21, 12288")
        a(f"s_mul_i32 s18, s16, {nks*1024}\ns_mul_i32 s3, s15, {nks*512}\ns_add_u32 s18, s18, s3\ns_add_u32 s18, s18, {act_base:#x}")
        if wmode == 0:
            a(f"s_mul_i32 s19, s13, {wblocks*nks*3072}\ns_mul_i32 s3, s15, {nks*1536}\ns_add_u32 s19, s19, s3\ns_mul_i32 s3, s17, 3072\ns_add_u32 s19, s19, s3\ns_add_u32 s19, s19, {wbase:#x}")
            self.wstep, self.wsrd, self.wv = 6144, 8, (1, 1, 1)
        else:
            cpr = wmode // 16
            a(f"s_mul_i32 s19, s15, {nks*8*rs}\ns_mul_i32 s3, s17, {16*rs}\ns_add_u32 s19, s19, s3\ns_mul_i32 s3, s13, {colbytes}\ns_add_u32 s19, s19, s3\ns_add_u32 s19, s19, {col0}")
            a("v_and_b32 v4, 63, v0")
            for i in range(3):
                a(f"v_add_u32 v5, {64*i}, v4\nv_mul_u32_u24 v6, {(1 << 16) // cpr + 1}, v5\nv_lshrrev_b32 v6, 16, v6\nv_mul_u32_u24 v7, {cpr}, v6\nv_sub_u32 v7, v5, v7")
                if wmode == 160:
                    a("v_and_b32 v8, 8, v6\nv_and_b32 v9, 1, v6\nv_lshl_add_u32 v8, v9, 2, v8\nv_bfe_u32 v9, v6, 1, 2\nv_add_u32 v6, v8, v9")
                a(f"v_mul_u32_u24 v6, {rs}, v6\nv_lshl_add_u32 v{10+i}, v7, 4, v6")
                if i: a(f"v_subrev_u32 v{10+i}, {1024*i}, v{10+i}")
                if wmode == 160 and i == 2:
                    a(f"v_mov_b32 v8, {OOB:#x}\nv_cmp_gt_u32 vcc, 32, v4\ns_nop 1\nv_cndmask_b32 v12, v8, v12, vcc")
            self.wstep, self.wsrd, self.wv = 32 * rs, 40, (10, 11, 12)
        a("s_waitcnt lgkmcnt(0)")
        srd(a, 8, 4, WS_SIZE)
        if wmode: srd(a, 40, ka_sreg, nbytes)
        stamp(a, 1)
    def dma1(self, lds_off, goff_expr_sreg, tag):
        a = self.a
        a(f"s_mov_b32 m0, {lds_off}\ns_nop 0")
        a.vm(f"buffer_load_dwordx4 v1, s[8:11], s{goff_expr_sreg} offen lds", tag)
    def params(self, mod_off):
        a = self.a
        a(f"s_and_b32 s3, s14, 3\ns_lshl_b32 s3, s3, 10\ns_add_u32 m0, s3, {PAR}\ns_add_u32 s6, s3, {WS_MOD + mod_off}")
        a.vm("buffer_load_dwordx4 v1, s[8:11], s6 offen lds", "par")
        a(f"s_mov_b32 s6, {WS_MOD + mod_off + 4096}")
        self.dma1(PAR + 4096, 6, "par")
    def issue(self, s, with_a=True):
        a = self.a; slot = s % NS
        if with_a:
            a(f"s_add_u32 m0, s21, {slot*STG}\ns_nop 0")
            for q in range(2): a.vm(f"buffer_load_dwordx4 v1, s[8:11], s18 offen offset:{q*1024} lds", ("st", s))
            a("s_add_u32 s18, s18, 2048")
        a(f"s_add_u32 m0, s20, {slot*STG}\ns_nop 0")
        for i in range(3): a.vm(f"buffer_load_dwordx4 v{self.wv[i]}, s[{self.wsrd}:{self.wsrd+3}], s19 offen offset:{i*1024} lds", ("st", s))
        a(f"s_add_u32 s19, s19, {self.wstep}")
    def start(self, issue):
        issue(0); issue(1)
        stamp(self.a, 2)
    def step(self, s, total, issue):
        a = self.a
        a.wait(vm=[("st", s)])
        a("s_barrier")
        if s == 0:
            for t in range(2, DEP): issue(t)
        if s + DEP < total: issue(s + DEP)

def prefetch(a, srdn, base, nbytes, nw, widx, vdst, vtmp, st):
    per_wg = -(-nbytes // 32 // 128) * 128
    per_wave = -(-per_wg // (8192 * nw))
    a(f"s_lshr_b32 s{st}, s2, 3\ns_mul_i32 s{st}, s{st}, {per_wg}\ns_mul_i32 s{st+1}, s{widx}, {per_wave*8192}\ns_add_u32 s{st}, s{st}, s{st+1}\ns_add_u32 s{st}, s{st}, {base:#x}\nv_lshlrev_b32 v{vtmp}, 3, v1")
    for i in range(per_wave):
        a.vm(f"buffer_load_dword v{vdst}, v{vtmp}, s[{srdn}:{srdn+3}], s{st} offen")
        if i < per_wave - 1: a(f"s_add_u32 s{st}, s{st}, 8192")

def unit_off(a, d, per_nb, base):
    a(f"s_lshl_b32 s{d}, s16, 3\ns_add_u32 s{d}, s{d}, s13\ns_mul_i32 s{d}, s{d}, {per_nb}\ns_mul_i32 s6, s15, 3\ns_add_u32 s{d}, s{d}, s6\ns_lshl_b32 s{d}, s{d}, 10\ns_add_u32 s{d}, s{d}, {base:#x}")

def k1():
    a = K("k1")
    gemm_prologue(a)
    compute_addr(a, 0); param_base(a)
    RR, NM = 236, 237
    a(f"v_lshlrev_b32 v7, 3, v2\ns_lshl_b32 s6, s16, 8\ns_add_u32 s6, s6, {WS_ST0:#x}\ns_waitcnt lgkmcnt(0)")
    srd(a, 8, 4, WS_SIZE)
    stamp(a, 1)
    a(f"buffer_load_dwordx2 v[{RR}:{NM}], v7, s[8:11], s6 offen\ns_waitcnt vmcnt(0)")
    areg = lambda s: AF + 8*(s % 2)
    xf = (10, RR, NM)
    c_start(a, areg, xf)
    for s in range(10): c_iter(a, s, s == 0, 10, areg, xf)
    stamp(a, 4)
    T = WS0
    exchange(a, T)
    stamp(a, 5)
    R = ACC
    QS = LOG2E / math.sqrt(20.0)
    unit_off(a, 17, 5, WS_Q)
    a(f"s_mov_b32 s7, {f32(QS)}")
    def qunit(i):
        for j in range(8): a(f"v_mul_f32 v{T+j}, s7, v{R+8*i+j}")
        for d in range(4): a(f"v_cvt_pk_bf16_f32 v{T+8+4*i+d}, v{T+2*d}, v{T+2*d+1}")
        a(f"buffer_store_dwordx4 v[{T+8+4*i}:{T+11+4*i}], v1, s[8:11], s17 offen offset:{i*1024}")
    qunit(0); qunit(1)
    lsp = a.label("spare")
    a(f"s_cmp_eq_u32 s15, 1\ns_cbranch_scc1 {lsp}")
    qunit(2)
    a(f"s_branch L_k1_end\n{lsp}:")
    a("s_cmp_ge_u32 s13, 4\ns_cbranch_scc1 L_k1_end")
    S = R + 16
    a(f"s_lshr_b32 s6, s16, 3\ns_mul_i32 s17, s6, {KVCH}\ns_add_u32 s17, s17, {WS_KV:#x}\ns_and_b32 s18, s16, 7")
    l1, lv, l2 = a.label("k2"), a.label("v"), a.label("k2b")
    a(f"s_cmp_eq_u32 s13, 3\ns_cbranch_scc0 {l1}\nv_mov_b32 v{S+4}, 1.0\ns_mov_b32 exec_lo, 0\nv_mov_b32 v{S}, 1.0\ns_mov_b32 exec_lo, -1\n{l1}:")
    for d in range(4): a(f"v_cvt_pk_bf16_f32 v{T+d}, v{S+2*d}, v{S+2*d+1}")
    a(f"s_cmp_ge_u32 s13, 2\ns_cbranch_scc1 {lv}\ns_cmp_eq_u32 s13, 1\ns_cbranch_scc1 {l2}")
    a(f"s_lshl_b32 s18, s18, 10\ns_add_u32 s17, s17, s18\nbuffer_store_dwordx4 v[{T}:{T+3}], v1, s[8:11], s17 offen\ns_branch L_k1_end")
    a(f"{l2}:\ns_lshl_b32 s18, s18, 8\ns_add_u32 s17, s17, s18\ns_add_u32 s17, s17, 24576\nv_lshrrev_b32 v4, 2, v1\nbuffer_store_dword v{T}, v4, s[8:11], s17 offen\ns_branch L_k1_end")
    a(f"{lv}:")
    a(f"s_lshl_b32 s3, s14, 11\nv_lshlrev_b32 v4, 5, v2\nv_lshl_add_u32 v4, v3, 3, v4\nv_add_u32 v4, s3, v4")
    a(f"ds_write_b64 v4, v[{T}:{T+1}]\nds_write_b64 v4, v[{T+2}:{T+3}] offset:16")
    a("v_lshrrev_b32 v4, 4, v1\nv_and_b32 v5, 15, v4\nv_lshrrev_b32 v4, 4, v4")
    a("v_and_b32 v6, 1, v4\nv_lshlrev_b32 v6, 4, v6\nv_lshl_add_u32 v6, v3, 2, v6\nv_lshrrev_b32 v7, 2, v5\nv_add_u32 v6, v6, v7\nv_lshlrev_b32 v6, 5, v6\nv_and_b32 v7, 3, v5\nv_lshl_add_u32 v6, v7, 3, v6\nv_add_u32 v6, s3, v6")
    a("s_waitcnt lgkmcnt(0)")
    a(f"ds_read_b64_tr_b16 v[{T+4}:{T+5}], v6\nds_read_b64_tr_b16 v[{T+6}:{T+7}], v6 offset:256")
    a("v_and_b32 v6, 1, v4\nv_lshlrev_b32 v6, 10, v6\nv_lshl_add_u32 v6, v3, 9, v6\nv_lshl_add_u32 v6, v5, 4, v6")
    a(f"s_lshl_b32 s18, s18, 11\ns_add_u32 s17, s17, s18\ns_add_u32 s17, s17, 8192\ns_cmp_eq_u32 s13, 2\ns_cselect_b32 s6, 256, 0\ns_add_u32 s17, s17, s6")
    a(f"s_waitcnt lgkmcnt(0)\nbuffer_store_dwordx4 v[{T+4}:{T+7}], v6, s[8:11], s17 offen")
    a("s_branch L_k1_end")
    L = Loader(a, WS_XH, 40, 0, wbase=WS_WQKV)
    L.params(0)
    L.start(L.issue)
    for s in range(10): L.step(s, 10, L.issue)
    end(a)
    finish(a, 256, 512, LDS_G, 248)

SLOT, NSL, DEP6 = 20480, 6, 4
PAR6 = NSL * SLOT
class G6:
    def __init__(self, kpst, nacc, g0=0):
        self.kpst, self.nacc, self.g0 = kpst, nacc, g0
        self.fs = kpst * (1 + nacc) * 4
        self.ACC, self.FR = 8, 8 + 16 * nacc
    def addr(self, a):
        a(f"s_mul_i32 s3, s17, {self.kpst*1024}\ns_add_u32 s3, s3, 12288\nv_add_u32 v4, s3, v1\nv_add_u32 v5, {3*SLOT}, v4")
        a(f"s_lshl_b32 s3, s15, 10\nv_add_u32 v6, s3, v1\nv_add_u32 v7, {3*SLOT}, v6")
    def reads(self, a, s):
        slot = (self.g0 + s) % NSL; hi, sl = (1, slot - 3) if slot >= 3 else (0, slot)
        F = self.FR + (s % 2) * self.fs
        ops = []
        for q in range(self.kpst):
            r = F + q * (1 + self.nacc) * 4
            ops.append(lambda r=r, q=q: a.lg(f"ds_read_b128 v[{r}:{r+3}], v{4+hi} offset:{sl*SLOT + q*1024}", ("f", s, q)))
            for n in range(self.nacc):
                rw = r + 4 + 4*n
                ops.append(lambda rw=rw, q=q, n=n: a.lg(f"ds_read_b128 v[{rw}:{rw+3}], v{6+hi} offset:{sl*SLOT + (q*self.nacc + n)*3072}", ("f", s, q)))
        return ops
    def start(self, a):
        a("s_barrier")
        run(self.reads(a, 0))
    def iter(self, a, s, first, total):
        rd = []
        if s + 1 < total:
            a("s_barrier")
            rd = self.reads(a, s + 1)
        F = self.FR + (s % 2) * self.fs
        per = len(rd) // self.kpst if rd else 0
        for q in range(self.kpst):
            a.wait(lg=[("f", s, q)])
            r = F + q * (1 + self.nacc) * 4
            for n in range(self.nacc):
                d = self.ACC + 16*n
                c = "0" if (first and q == 0) else f"v[{d}:{d+15}]"
                a(f"v_mfma_f32_32x32x16_bf16 v[{d}:{d+15}], v[{r+4+4*n}:{r+7+4*n}], v[{r}:{r+3}], {c}")
            run(rd[q*per:(q+1)*per])
    def lsetup(self, a, act_base, nks, w_base, sa, sw, sl, aflags=""):
        self.a, self.sa, self.sw, self.sl, self.af = a, sa, sw, sl, aflags
        k = self.kpst
        a(f"s_mul_i32 s{sl}, s15, {k*512}\ns_add_u32 s{sl}, s{sl}, 12288")
        a(f"s_mul_i32 s{sa}, s16, {nks*1024}\ns_and_b32 s3, s15, 1\ns_mul_i32 s3, s3, {k*512}\ns_add_u32 s{sa}, s{sa}, s3\ns_add_u32 s{sa}, s{sa}, {act_base:#x}")
        a(f"s_mul_i32 s{sw}, s13, {nks*3072*self.nacc}\ns_add_u32 s{sw}, s{sw}, s20\ns_add_u32 s{sw}, s{sw}, {w_base:#x}")
    def issue_a(self, s):
        a = self.a; slot = (self.g0 + s) % NSL
        a(f"s_add_u32 m0, s{self.sl}, {slot*SLOT}\ns_nop 0")
        for q in range(self.kpst // 2): a.vm(f"buffer_load_dwordx4 v1, s[8:11], s{self.sa} offen offset:{q*1024} {self.af} lds", ("st", self.g0 + s))
        a(f"s_add_u32 s{self.sa}, s{self.sa}, {self.kpst*1024}")
    def issue_w(self, s):
        a = self.a; slot = (self.g0 + s) % NSL
        a(f"s_add_u32 m0, s20, {slot*SLOT}\ns_nop 0")
        for i in range(3): a.vm(f"buffer_load_dwordx4 v1, s[8:11], s{self.sw} offen offset:{i*1024} lds", ("st", self.g0 + s))
        a(f"s_add_u32 s{self.sw}, s{self.sw}, 12288")
    def issue(self, s):
        self.issue_a(s); self.issue_w(s)
    def lstep(self, s, total, nxt=None):
        a = self.a
        a.wait(vm=[("st", self.g0 + s)])
        a("s_barrier")
        if s + DEP6 < total: self.issue(s + DEP6)
        elif nxt is not None: nxt.issue_w(s + DEP6 - total)

def g6_prologue(a, extra=""):
    common_prologue(a, extra)
    a(f"s_cmp_ge_u32 s14, 6\ns_cbranch_scc1 L_{a.name}_loader")
    a("s_cmp_ge_u32 s14, 3\ns_cselect_b32 s17, 1, 0\ns_mul_i32 s3, s17, 3\ns_sub_u32 s15, s14, s3\ns_lshl_b32 s16, s12, 1\ns_add_u32 s16, s16, s17")
def g6_loader_entry(a):
    a(f"L_{a.name}_loader:")
    a.vmq = []; a.lgq = []
    a("s_sub_u32 s15, s14, 6\ns_mul_i32 s20, s15, 3072\ns_lshl_b32 s16, s12, 1\ns_lshr_b32 s3, s15, 1\ns_add_u32 s16, s16, s3")
def dma1(a, lds_off, sreg, tag, imm=0):
    a(f"s_mov_b32 m0, {lds_off}\ns_nop 0")
    a.vm(f"buffer_load_dwordx4 v1, s[8:11], s{sreg} offen offset:{imm} lds", tag)
def xid_publish(a, base):
    l = a.label("xid")
    a(f"s_cmp_lg_u32 s14, 6\ns_cbranch_scc1 {l}\ns_lshl_b32 s3, s12, 8\ns_lshl_b32 s6, s13, 2\ns_add_u32 s3, s3, s6\ns_add_u32 s3, s3, {base:#x}\ns_getreg_b32 s7, hwreg(HW_REG_XCC_ID, 0, 4)\ns_add_u32 s7, s7, 1\nv_mov_b32 v8, 0\nv_mov_b32 v9, s7\ns_mov_b64 exec, 1\nbuffer_store_dword v9, v8, s[8:11], s3 offen sc1\ns_mov_b64 exec, -1\n{l}:")
def xid_load(a, base, v):
    a(f"s_lshl_b32 s3, s12, 8\ns_add_u32 s3, s3, {base:#x}\nv_and_b32 v{v}, 7, v0\nv_lshlrev_b32 v{v}, 2, v{v}")
    a.vm(f"buffer_load_dword v{v}, v{v}, s[8:11], s3 offen sc1", "epi")
def pretouch(a, v, items):
    a(f"v_lshlrev_b32 v{v}, 3, v1")
    for sreg, n in items:
        a(f"s_mov_b64 exec, {(1 << n) - 1:#x}")
        a.vm(f"buffer_load_dword v{v+1}, v{v}, s[8:11], s{sreg} offen sc1", "epi")
    a("s_mov_b64 exec, -1")
def xid_decide(a, v):
    a(f"s_getreg_b32 s36, hwreg(HW_REG_XCC_ID, 0, 4)\ns_add_u32 s36, s36, 1\nv_cmp_ne_u32 vcc, s36, v{v}\ns_nop 1\ns_cmp_eq_u64 vcc, 0\ns_cselect_b32 s37, {XFAST}, 0")
def hstore(a, text):
    l1, l2 = a.label("hs"), a.label("hd")
    a(f"s_cmp_eq_u32 s37, 1\ns_cbranch_scc1 {l1}\n{text} sc1\ns_branch {l2}\n{l1}:")
    a.vm(text)
    a(f"{l2}:")
AFL = os.environ.get("X_AFL", "sc1")
XFAST = int(os.environ.get("X_FAST", "1"))
def flag_addr(a, base):
    a(f"s_lshl_b32 s38, s12, 8\ns_mul_i32 s6, s13, 6\ns_add_u32 s6, s6, s14\ns_lshl_b32 s6, s6, 2\ns_add_u32 s38, s38, s6\ns_add_u32 s38, s38, {base+32:#x}")
def handoff_publish(a, base):
    a("v_mov_b32 v8, 0\nv_mov_b32 v9, 1\ns_mov_b64 exec, 1")
    stamp(a, 10)
    a("s_waitcnt vmcnt(0)")
    hstore(a, "buffer_store_dword v9, v8, s[8:11], s38 offen")
    a("s_mov_b64 exec, -1")
    a.vmq = []
def handoff_wait(a, base, n=48):
    lp, lo = a.label("hp"), a.label("ho")
    a(f"s_lshl_b32 s3, s12, 8\ns_add_u32 s3, s3, {base+32:#x}\nv_lshrrev_b32 v8, 2, v1\nv_min_u32 v8, {(n-1)*4}, v8\ns_mov_b32 s29, 0x8000")
    a(f"{lp}:\nbuffer_load_dword v9, v8, s[8:11], s3 offen sc1\ns_waitcnt vmcnt(0)\nv_cmp_eq_u32 vcc, 0, v9\ns_sub_u32 s29, s29, 1\ns_cbranch_scc1 {lo}\ns_cbranch_vccnz {lp}\n{lo}:")
    a.vmq = []

def unit_off6(a, d, per_nb, base):
    a(f"s_lshl_b32 s{d}, s16, 3\ns_add_u32 s{d}, s{d}, s13\ns_mul_i32 s{d}, s{d}, {per_nb}\ns_lshl_b32 s6, s15, 1\ns_add_u32 s{d}, s{d}, s6\ns_lshl_b32 s{d}, s{d}, 10\ns_add_u32 s{d}, s{d}, {base:#x}")

def stats_addr(a, base, st):
    a(f"s_mul_i32 s7, s13, 3\ns_add_u32 s7, s7, s15\ns_mul_i32 s{st}, s16, 6144\ns_lshr_b32 s3, s7, 1\ns_lshl_b32 s3, s3, 9\ns_add_u32 s{st}, s{st}, s3\ns_and_b32 s3, s7, 1\ns_lshl_b32 s3, s3, 3\ns_add_u32 s{st}, s{st}, s3\ns_add_u32 s{st}, s{st}, {base:#x}")
def stats_store(a, V, st, flags=""):
    a(f"v_mov_b32 v{V+2}, v{V}\nv_mov_b32 v{V+3}, v{V+1}\ns_nop 1\nv_permlane32_swap_b32 v{V}, v{V+2}\nv_permlane32_swap_b32 v{V+1}, v{V+3}\ns_nop 1\nv_add_f32 v{V}, v{V}, v{V+2}\nv_add_f32 v{V+1}, v{V+1}, v{V+3}\nv_max_f32 v{V+1}, 0, v{V+1}")
    a("s_mov_b32 exec_hi, 0")
    hstore(a, f"buffer_store_dwordx2 v[{V}:{V+1}], v1, s[8:11], s{st} offen")
    a("s_mov_b32 exec_hi, -1")
def stats_load(a, D, st, tag, flags=""):
    for i in range(6): a.vm(f"buffer_load_dwordx4 v[{D+4*i}:{D+4*i+3}], v1, s[8:11], s{st + i//4} offen offset:{1024*(i%4)} {flags}", tag)
def stats_base(a, st, base):
    a(f"s_mul_i32 s{st}, s16, 6144\ns_add_u32 s{st}, s{st}, {base:#x}\ns_add_u32 s{st+1}, s{st}, 4096")
def stats_finish(a, D, n, rr, nm):
    for i in range(1, 12): a(f"v_add_f32 v{D}, v{D}, v{D+2*i}\nv_add_f32 v{D+1}, v{D+1}, v{D+2*i+1}")
    a(f"v_mov_b32 v{D+2}, v{D}\nv_mov_b32 v{D+3}, v{D+1}\ns_nop 1\nv_permlane32_swap_b32 v{D}, v{D+2}\nv_permlane32_swap_b32 v{D+1}, v{D+3}\ns_nop 1\nv_add_f32 v{D}, v{D}, v{D+2}\nv_add_f32 v{D+1}, v{D+1}, v{D+3}")
    a(f"v_mul_f32 v{D}, {f32(1/n)}, v{D}\nv_mul_f32 v{D+1}, {f32(1/n)}, v{D+1}\nv_fma_f32 v{D+1}, -v{D}, v{D}, v{D+1}\nv_max_f32 v{D+1}, 0, v{D+1}\nv_add_f32 v{D+1}, {f32(1e-5)}, v{D+1}\nv_rsq_f32 v{rr}, v{D+1}\ns_nop 0\nv_mul_f32 v{nm}, v{D}, v{rr}\nv_sub_f32 v{nm}, 0, v{nm}")

def proj_epilogue(a, g, final, G, XR, T, ST, gaddr, oaddr):
    a.wait(vm=["epi"])
    a("s_waitcnt lgkmcnt(0)"); a.lgq = []
    if not final: a("s_nop 8")
    else: a("s_nop 8")
    R = g.ACC
    lskip = a.label("skip")
    for i in range(2):
        if i == 1: a(f"s_cmp_eq_u32 s15, 2\ns_cbranch_scc1 {lskip}")
        for d in range(4):
            x = XR + 4*i + d; r = R + 8*i + 2*d; gg = G + 8*i + 2*d; t = T + 2*(d % 2)
            a(f"v_lshlrev_b32 v{t}, 16, v{x}\nv_and_b32 v{t+1}, 0xffff0000, v{x}\nv_fmac_f32 v{t}, v{gg}, v{r}\nv_fmac_f32 v{t+1}, v{gg+1}, v{r+1}")
            if not final:
                a(f"v_add_f32 v{ST}, v{ST}, v{t}\nv_fmac_f32 v{ST+1}, v{t}, v{t}\nv_add_f32 v{ST}, v{ST}, v{t+1}\nv_fmac_f32 v{ST+1}, v{t+1}, v{t+1}")
            a(f"v_cvt_pk_bf16_f32 v{T+4+4*i+d}, v{t}, v{t+1}")
        o = T + 4 + 4*i
        if final:
            a(f"s_nop 1\nv_permlane32_swap_b32 v{o}, v{o+2}\nv_permlane32_swap_b32 v{o+1}, v{o+3}\nbuffer_store_dwordx4 v[{o}:{o+3}], v{oaddr}, s[24:27], s28 offen offset:{32*i}")
        else:
            hstore(a, f"buffer_store_dwordx4 v[{o}:{o+3}], v1, s[8:11], s22 offen offset:{1024*i}")
    a(f"{lskip}:")

GC1 = -2.0 * LOG2E * math.sqrt(2.0 / math.pi)
GC2 = GC1 * 0.044715
def gelu(a, regs, t0, c1):
    for i, r in enumerate(regs): a(f"v_mul_f32 v{t0+i}, v{r}, v{r}")
    for i, r in enumerate(regs): a(f"v_fma_f32 v{t0+i}, v{t0+i}, s28, v{c1}")
    for i, r in enumerate(regs): a(f"v_mul_f32 v{t0+i}, v{t0+i}, v{r}")
    for i, r in enumerate(regs): a(f"v_exp_f32 v{t0+i}, v{t0+i}")
    for i, r in enumerate(regs): a(f"v_add_f32 v{t0+i}, 1.0, v{t0+i}")
    for i, r in enumerate(regs): a(f"v_rcp_f32 v{t0+i}, v{t0+i}")
    for i, r in enumerate(regs): a(f"v_mul_f32 v{r}, v{r}, v{t0+i}")

ZROW = 208
def k56():
    a = K("k56"); g = G6(4, 1); h = G6(4, 1, 32)
    g6_prologue(a, f"s_load_dwordx2 s[32:33], s[0:1], {KA['b_sp']}\ns_load_dwordx2 s[34:35], s[0:1], {KA['out']}")
    g.addr(a)
    Z, B, T = 88, 96, 100
    G, XR = 112, 128
    unit_off6(a, 28, 6, 0)
    unit_off6(a, 23, 5, WS_X1)
    flag_addr(a, WS_FL2)
    a(f"s_add_u32 s29, s28, {WS_Y:#x}\ns_add_u32 s28, s28, {WS_Z1:#x}\nv_lshlrev_b32 v97, 1, v2\ns_lshl_b32 s6, s16, 6\ns_waitcnt lgkmcnt(0)")
    srd(a, 8, 4, WS_SIZE); srd(a, 24, 32, 4096)
    stamp(a, 1)
    for i in range(16): a(f"v_mov_b32 v{g.ACC+i}, 0")
    g.start(a)
    stamp(a, 2)
    for i in range(2): a.vm(f"buffer_load_dwordx4 v[{Z+4*i}:{Z+4*i+3}], v1, s[8:11], s28 offen offset:{1024*i}", "z")
    a.vm(f"buffer_load_ushort v{B}, v97, s[24:27], s6 offen", "z")
    for i in range(2): a.vm(f"buffer_load_dwordx4 v[{XR+4*i}:{XR+4*i+3}], v1, s[8:11], s23 offen offset:{1024*i}", "epi")
    a("s_mov_b32 s30, 5\nL_k56_loop:")
    xid_load(a, WS_FL2, 140)
    for s in range(6): g.iter(a, s, False, 32)
    a("s_waitcnt vmcnt(0)\ns_sub_u32 s30, s30, 1\ns_cmp_lg_u32 s30, 0\ns_cbranch_scc1 L_k56_loop")
    a.vmq = []
    a.lgq = [(t[0], t[1] + 24, t[2]) if isinstance(t, tuple) else t for t in a.lgq]
    xid_decide(a, 140)
    a(f"v_lshlrev_b32 v{B}, 16, v{B}")
    for s in range(30, 32): g.iter(a, s, False, 32)
    stamp(a, 3)
    R = g.ACC
    a("s_nop 11")
    for i in range(2):
        for d in range(4):
            z = Z + 4*i + d; r = R + 8*i + 2*d; t = T + 2*(d % 2)
            a(f"v_add_f32 v{r}, v{r}, v{B}\nv_add_f32 v{r+1}, v{r+1}, v{B}\nv_lshlrev_b32 v{t}, 16, v{z}\nv_and_b32 v{t+1}, 0xffff0000, v{z}\nv_mul_f32 v{r}, v{r}, v{t}\nv_mul_f32 v{r+1}, v{r+1}, v{t+1}\nv_cvt_pk_bf16_f32 v{T+4+4*i+d}, v{r}, v{r+1}")
        hstore(a, f"buffer_store_dwordx4 v[{T+4+4*i}:{T+7+4*i}], v1, s[8:11], s29 offen offset:{1024*i}")
    handoff_publish(a, WS_FL2)
    srd(a, 24, 34, 2048 * 1280)
    a(f"s_lshl_b32 s3, s15, 7\ns_add_u32 s3, s3, {PAR6}\nv_lshlrev_b32 v136, 4, v3\nv_add_u32 v136, s3, v136")
    a(f"v_mul_u32_u24 v137, 1280, v2\nv_lshl_add_u32 v137, v3, 4, v137\ns_mul_i32 s28, s16, {32*1280}\ns_mul_i32 s6, s13, 160\ns_add_u32 s28, s28, s6\ns_lshl_b32 s6, s15, 6\ns_add_u32 s28, s28, s6")
    stamp(a, 4)
    h.start(a)
    stamp(a, 5)
    for s in range(12):
        h.iter(a, s, s == 0, 12)
        if s == 9:
            for i in range(4): a.lg(f"ds_read_b128 v[{G+4*i}:{G+4*i+3}], v136 offset:{32*i}")
    stamp(a, 6)
    proj_epilogue(a, h, True, G, XR, 100, None, 136, 137)
    a("s_branch L_k56_end")
    g6_loader_entry(a)
    g.lsetup(a, WS_WSP, 128, WS_Z2T, 18, 19, 21)
    h.lsetup(a, WS_Y, 48, WS_WOUT, 22, 23, 26, AFL)
    a(f"s_mul_i32 s6, s13, 320\ns_add_u32 s6, s6, {WS_MOD + 12800}\ns_waitcnt lgkmcnt(0)")
    srd(a, 8, 4, WS_SIZE)
    stamp(a, 1)
    dma1(a, PAR6, 6, "par")
    xid_publish(a, WS_FL2)
    g.issue(0); g.issue(1)
    a.wait(vm=[("st", 0)]); a("s_barrier")
    g.issue(2); g.issue(3); g.issue(4)
    g.lstep(1, 32)
    a("s_mov_b32 s30, 4\nL_k56_lloop:")
    for s in range(2, 8): g.lstep(s, 32)
    a("s_sub_u32 s30, s30, 1\ns_cmp_lg_u32 s30, 0\ns_cbranch_scc1 L_k56_lloop")
    a.vmq = [(t[0], t[1] + 18) if isinstance(t, tuple) else t for t in a.vmq]
    for s in range(26, 32): g.lstep(s, 32, h)
    handoff_wait(a, WS_FL2)
    stamp(a, 4)
    for s in range(DEP6): h.issue_a(s)
    for s in range(12): h.lstep(s, 12)
    end(a)
    finish(a, 256, 640, PAR6 + 1024, 144)

def phase_ab_compute(a, g, h):
    a("s_cmp_ge_u32 s14, 3\ns_cselect_b32 s17, 1, 0\ns_mul_i32 s3, s17, 3\ns_sub_u32 s15, s14, s3\ns_lshl_b32 s16, s12, 1\ns_add_u32 s16, s16, s17")
    a.vmq = []; a.lgq = []
    g.addr(a)
    G, XR, T, ST = 88, 104, 112, 124
    UTL = PAR6 + 1024
    unit_off6(a, 22, 5, 0)
    a(f"s_add_u32 s23, s22, {WS_XH:#x}\ns_add_u32 s22, s22, {WS_X1:#x}")
    a(f"s_lshl_b32 s3, s15, 7\ns_add_u32 s3, s3, {PAR6}\nv_lshlrev_b32 v128, 4, v3\nv_add_u32 v128, s3, v128")
    stats_addr(a, WS_ST1, 29)
    flag_addr(a, WS_FL1)
    g.start(a)
    stamp(a, 5)
    for i in range(2): a.vm(f"buffer_load_dwordx4 v[{XR+4*i}:{XR+4*i+3}], v1, s[8:11], s23 offen offset:{1024*i}", "epi")
    for s in range(10):
        g.iter(a, s, s == 0, 10)
        if s == 4: xid_load(a, WS_FL1, 129)
        if s == 7:
            for i in range(4): a.lg(f"ds_read_b128 v[{G+4*i}:{G+4*i+3}], v128 offset:{32*i}")
        if s == 8:
            a.wait(vm=["epi"])
            xid_decide(a, 129)
            a(f"v_mov_b32 v{ST}, 0\nv_mov_b32 v{ST+1}, 0")
    stamp(a, 6)
    proj_epilogue(a, g, False, G, XR, T, ST, 128, None)
    stats_store(a, ST, 29, "sc1")
    handoff_publish(a, WS_FL1)
    SD, U, T, RR, NM, C1, ST = 88, 40, 72, 112, 113, 114, 116
    h.addr(a)
    stats_base(a, 22, WS_ST1); stats_base(a, 30, WS_ST2)
    a(f"s_add_u32 s29, s29, {WS_ST2 - WS_ST1}")
    unit_off6(a, 26, 6, WS_Z1)
    a(f"s_lshl_b32 s3, s15, 8\ns_add_u32 s3, s3, {UTL}\nv_lshlrev_b32 v115, 5, v3\nv_add_u32 v115, s3, v115")
    a(f"s_mov_b32 s28, {f32(GC2)}\nv_mov_b32 v{C1}, {f32(GC1)}")
    h.start(a)
    stamp(a, 7)
    stats_load(a, SD, 22, "ln", AFL)
    for s in range(20):
        h.iter(a, s, s == 0, 20)
        if s == 8:
            a.wait(vm=["ln"])
            stats_finish(a, SD, 640, RR, NM)
    stamp(a, 8)
    def ut_reads(n):
        for u in range(2):
            for hf in range(2):
                for k in range(2):
                    r = U + 16*u + 8*hf + 4*k
                    a(f"ds_read_b128 v[{r}:{r+3}], v115 offset:{n*768 + u*128 + hf*64 + k*16}")
    def affine(n):
        A = h.ACC + 16*n
        for i in range(16): a(f"v_fma_f32 v{U+2*i+1}, v{U+2*i}, v{NM}, v{U+2*i+1}")
        for i in range(16): a(f"v_fma_f32 v{A+i}, v{A+i}, v{RR}, v{U+2*i+1}")
    Z2, Z1 = h.ACC, h.ACC + 16
    a("s_setprio 1")
    ut_reads(0)
    a("s_waitcnt lgkmcnt(0)\ns_nop 2")
    affine(0)
    ut_reads(1)
    gelu(a, list(range(Z2, Z2+16)), T, C1)
    a(f"v_mov_b32 v{ST}, 0\nv_mov_b32 v{ST+1}, 0")
    for i in range(16): a(f"v_add_f32 v{ST}, v{ST}, v{Z2+i}\nv_fmac_f32 v{ST+1}, v{Z2+i}, v{Z2+i}")
    stats_store(a, ST, 29, "sc1")
    a("s_setprio 0")
    a("s_waitcnt lgkmcnt(0)")
    affine(1)
    gelu(a, list(range(Z1, Z1+16)), T, C1)
    stats_load(a, SD, 30, "st2", "sc1")
    for i in range(2):
        for d in range(4): a(f"v_cvt_pk_bf16_f32 v{T+4*i+d}, v{Z1+8*i+2*d}, v{Z1+8*i+2*d+1}")
        a.vm(f"buffer_store_dwordx4 v[{T+4*i}:{T+4*i+3}], v1, s[8:11], s26 offen offset:{i*1024}")
    a(f"s_mul_i32 s6, s17, {32*ZROW}\ns_lshl_b32 s7, s15, 6\ns_add_u32 s6, s6, s7\nv_mul_u32_u24 v4, {ZROW}, v2\nv_lshl_add_u32 v4, v3, 3, v4\nv_add_u32 v4, s6, v4")
    a(f"v_bfe_u32 v5, v0, 2, 2\nv_lshl_add_u32 v5, v3, 3, v5\nv_mul_u32_u24 v5, {ZROW}, v5\nv_and_b32 v6, 3, v0\nv_lshl_add_u32 v5, v6, 3, v5\nv_bfe_u32 v6, v0, 4, 1\nv_lshl_add_u32 v5, v6, 5, v5\nv_add_u32 v5, s6, v5")
    a(f"s_lshl_b32 s6, s13, 7\ns_lshl_b32 s7, s16, 1\ns_add_u32 s6, s6, s7\ns_mul_i32 s6, s6, 3\ns_add_u32 s6, s6, s15\ns_lshl_b32 s6, s6, 10\ns_add_u32 s26, s6, {WS_Z2T:#x}")
    a.wait(vm=["st2"])
    a("s_mov_b32 s29, 0x4000")
    lp, lok = a.label("poll"), a.label("ok")
    a(f"{lp}:")
    a(f"v_or_b32 v{ST}, v{SD+1}, v{SD+3}")
    for i in range(2, 12): a(f"v_or_b32 v{ST}, v{ST}, v{SD+1+2*i}")
    a(f"v_cmp_gt_i32 vcc, 0, v{ST}\ns_sub_u32 s29, s29, 1\ns_cbranch_scc1 {lok}\ns_cbranch_vccz {lok}")
    stats_load(a, SD, 30, "st2", "sc1")
    a(f"s_waitcnt vmcnt(0)\ns_branch {lp}\n{lok}:")
    stamp(a, 9)
    stats_finish(a, SD, 768, RR, NM)
    for i in range(16): a(f"v_fma_f32 v{Z2+i}, v{Z2+i}, v{RR}, v{NM}")
    for i in range(8): a(f"v_cvt_pk_bf16_f32 v{T+8+i}, v{Z2+2*i}, v{Z2+2*i+1}")
    for i in range(4): a(f"ds_write_b64 v4, v[{T+8+2*i}:{T+9+2*i}] offset:{16*i}")
    a("s_waitcnt lgkmcnt(0)")
    for p in range(2):
        a(f"ds_read_b64_tr_b16 v[{U+4*p}:{U+4*p+1}], v5 offset:{16*p*ZROW}\nds_read_b64_tr_b16 v[{U+4*p+2}:{U+4*p+3}], v5 offset:{(16*p+4)*ZROW}")
    a("s_waitcnt lgkmcnt(0)")
    for p in range(2): a(f"buffer_store_dwordx4 v[{U+4*p}:{U+4*p+3}], v1, s[8:11], s26 offen offset:{3072*p}")
    a("s_branch L_k234_end")

def k234():
    K2T = os.environ.get("X_K2T"); SYNC = os.environ.get("X_SYNC", "bar")
    a = K("k234"); GA = G6(4, 1, 3); GB = G6(2, 2, 13)
    common_prologue(a, f"s_load_dwordx4 s[32:35], s[0:1], {KA['w_in']}\ns_load_dwordx2 s[36:37], s[0:1], {KA['wo']}\ns_load_dwordx2 s[38:39], s[0:1], {KA['w_out']}\ns_load_dwordx2 s[44:45], s[0:1], {KA['out']}")
    SA = [(8, 24), (40, 56)]; OO = [72, 88]; PP = [104, 112]; QQ1 = [120, 128]; QQ2 = [124, 132]
    KA_, KB_, V1, V2 = 136, 140, 144, 148
    VA, VB, VN, VNB, DUM, OA, CA = 4, 5, 6, 152, 153, 154, 160
    NB = 6
    FLAG = NB * KVCH
    a("s_mov_b32 s27, 0")
    a("s_cmp_ge_u32 s14, 6\ns_cbranch_scc1 L_k234_helper\ns_cmp_ge_u32 s14, 4\ns_cbranch_scc1 L_k234_idle")
    a("v_lshrrev_b32 v7, 2, v1")
    a("s_lshr_b32 s15, s14, 1\ns_and_b32 s16, s14, 1\ns_lshl_b32 s16, s16, 1\ns_lshl_b32 s17, s12, 1\ns_add_u32 s17, s17, s15")
    a(f"s_lshl_b32 s18, s17, 3\ns_add_u32 s18, s18, s13\ns_mul_i32 s18, s18, 5120\ns_add_u32 s18, s18, {WS_Q:#x}\ns_lshl_b32 s6, s16, 10\ns_add_u32 s19, s18, s6\ns_lshl_b32 s6, s16, 2\ns_add_u32 s18, s18, s6\ns_add_u32 s18, s18, 4096")
    a("s_waitcnt lgkmcnt(0)")
    srd(a, 8, 4, WS_SIZE)
    stamp(a, 1)
    for X in range(2):
        a(f"buffer_load_dwordx4 v[{QQ1[X]}:{QQ1[X]+3}], v1, s[8:11], s19 offen offset:{1024*X}\nbuffer_load_dword v{QQ2[X]}, v1, s[8:11], s18 offen offset:{4*X}")
    def qk1(X, S): return f"v_mfma_f32_32x32x16_bf16 v[{S}:{S+15}], v[{KB_}:{KB_+3}], v[{QQ2[X]}:{QQ2[X]+3}], 0"
    def qk2(X, S): return f"v_mfma_f32_32x32x16_bf16 v[{S}:{S+15}], v[{KA_}:{KA_+3}], v[{QQ1[X]}:{QQ1[X]+3}], v[{S}:{S+15}]"
    def pv(X, V, P): return f"v_mfma_f32_32x32x16_bf16 v[{OO[X]}:{OO[X]+15}], v[{V}:{V+3}], v[{P}:{P+3}], v[{OO[X]}:{OO[X]+15}]"
    def rKA(t, va): return f"ds_read_b128 v[{KA_}:{KA_+3}], v{va} offset:{t*1024}"
    def rKB(t, vb): return f"ds_read_b32 v{KB_}, v{vb} offset:{24576+t*256}"
    def rV(t, p, va): return f"ds_read_b128 v[{(V1, V2)[p]}:{(V1, V2)[p]+3}], v{va} offset:{8192+t*2048+p*1024}"
    def scores():
        for X in range(2): a(qk1(X, SA[X][0]))
        for X in range(2): a(qk2(X, SA[X][0]))
    def max_reduce():
        for X in range(2):
            for i in range(0, 16, 2): a(f"v_max3_f32 v{PP[X]}, v{SA[X][0]+i}, v{SA[X][0]+i+1}, v{PP[X]}")
    def finish_max():
        a("v_cmp_eq_u32 vcc, 0, v3")
        for X in range(2):
            M = PP[X]
            a(f"v_mov_b32 v{M+1}, v{M}\ns_nop 1\nv_permlane32_swap_b32 v{M}, v{M+1}\ns_nop 1\nv_max_f32 v{M}, v{M}, v{M+1}")
            a(f"v_and_b32 v{M+1}, 0xffff0000, v{M}\nv_sub_f32 v{M+2}, v{M}, v{M+1}\nv_and_b32 v{M+3}, 0xffff0000, v{M+2}\nv_sub_f32 v{M+2}, v{M+2}, v{M+3}")
            a(f"v_lshrrev_b32 v{M+1}, 16, v{M+1}\nv_or_b32 v{M+1}, v{M+1}, v{M+3}\nv_lshrrev_b32 v{M+2}, 16, v{M+2}")
            a(f"v_cndmask_b32 v{QQ2[X]+1}, 0, v{M+1}, vcc\nv_cndmask_b32 v{QQ2[X]+2}, 0, v{M+2}, vcc")
    def reset_max():
        for X in range(2): a(f"v_mov_b32 v{QQ2[X]+1}, 0\nv_mov_b32 v{QQ2[X]+2}, 0\nv_mov_b32 v{PP[X]}, 0xff800000")
    a(f"s_lshl_b32 s38, s12, 8\ns_lshl_b32 s6, s13, 2\ns_add_u32 s6, s6, s14\ns_lshl_b32 s6, s6, 2\ns_add_u32 s38, s38, s6\ns_add_u32 s38, s38, {WS_FL0+32:#x}\ns_mov_b32 s39, 0\ns_lshl_b32 s49, s14, 2\ns_add_u32 s49, s49, {FLAG}")
    reset_max()
    for r in (QQ2[0]+3, QQ2[1]+3, KB_+3): a(f"v_mov_b32 v{r}, 0")
    for r in (KB_+1, KB_+2): a(f"v_mov_b32 v{r}, 0xbf80bf80")
    def main_init():
        a(f"s_mov_b32 s24, 0\ns_mov_b32 s25, {KVCH}\nv_mov_b32 v{VNB}, {FLAG+68}\nv_mov_b32 v{VA}, v1\nv_mov_b32 v{VN}, v1\nv_mov_b32 v{VB}, v7")
        for X in range(2):
            for i in range(16): a(f"v_mov_b32 v{OO[X]+i}, 0")
            for i in range(4): a(f"v_mov_b32 v{SA[X][1]+12+i}, 0")
        for i in range(4): a(f"v_mov_b32 v{V2+i}, 0")
    main_init()
    a(f"s_mul_i32 s6, s13, 20\ns_mul_i32 s7, s16, 5\ns_add_u32 s6, s6, s7\ns_mul_i32 s22, s17, {40*1024}\ns_add_u32 s22, s22, {WS_O:#x}")
    for X in range(2):
        for i, g in enumerate((0, 2, 4)):
            a(f"v_add_u32 v8, s6, v3\nv_add_u32 v8, {5*X+g}, v8" if g < 4 else f"v_mov_b32 v8, s6\nv_add_u32 v8, {5*X+4}, v8")
            a(f"v_lshrrev_b32 v9, 2, v8\nv_lshlrev_b32 v9, 10, v9\nv_and_b32 v10, 1, v8\nv_lshl_add_u32 v9, v10, 9, v9\nv_bfe_u32 v10, v8, 1, 1\nv_lshl_add_u32 v9, v10, 3, v9\nv_lshl_add_u32 v{OA+3*X+i}, v2, 4, v9")
    a(f"v_mov_b32 v{CA}, {FLAG+32}\nv_mov_b32 v{CA+2}, 0\nv_add_u32 v{CA+3}, {FLAG+32}, v7\nds_write_b32 v{CA+3}, v{CA+2}\nv_mov_b32 v{CA+1}, 1")
    a("s_waitcnt vmcnt(0) lgkmcnt(0)\ns_barrier")
    stamp(a, 2)
    a(rKA(0, 1)); a(rKB(0, 7)); a("s_waitcnt lgkmcnt(0)")
    scores()
    a("s_nop 10")
    max_reduce()
    finish_max()
    a("L_k234_main:")
    for X in range(2):
        for i in range(2): a(f"v_mov_b32 v{PP[X]+4+i}, 0")
    scores()
    a(rKB(1, VB)); a(f"ds_read_b32 v{DUM}, v{VB}"); a(rKA(1, VA)); a(rV(0, 0, VA))
    a("s_nop 5")
    stamp(a, 3)
    slow = []
    a("L_k234_loop:")
    for t in range(8):
        kt, vt = (t + 2) % 8, (t + 1) % 8
        if PROF and os.environ.get("X_GT"):
            if t == 0: a("s_memtime s[80:81]")
            if t == 3: a("s_lshl_b32 m0, s24, 1\ns_nop 0\ns_movreld_b32 s56, s80")
        for gi in range(4):
            for X in range(2):
                S, Sp = (SA[X][0], SA[X][1]) if t % 2 == 0 else (SA[X][1], SA[X][0])
                P = PP[X]
                cv, mf, rd = [([(6, Sp+12), (7, Sp+14)], qk1(X, Sp), rKB(kt, VB)),
                              ([(0, S), (1, S+2)], pv(X, V2, P+4), rV(t, 1, VN)),
                              ([(2, S+4), (3, S+6)], qk2(X, Sp), rKA(kt, VA)),
                              ([(4, S+8), (5, S+10)], pv(X, V1, P), rV(vt, 0, VN))][gi]
                for d, r in cv: a(f"v_cvt_pk_bf16_f32 v{P+d}, v{r}, v{r+1}")
                if gi % 2 == 0 and X == 0: a("s_waitcnt lgkmcnt(2)")
                a(mf)
                if X == 1: a(rd)
                if X == 0 and (t, gi) == (5, 0):
                    ls, l2, l5 = a.label("bs"), a.label("g2"), a.label("g5")
                    a(f"s_cmp_eq_u32 s24, 5\ns_cselect_b32 s26, {-5*KVCH}, s25\ns_bitcmp1_b32 0x67, s24\ns_cbranch_scc0 {ls}\ns_bitcmp1_b32 0x44, s24\ns_cbranch_scc1 {l2}\ns_cmp_eq_u32 s24, 5\ns_cbranch_scc1 {l5}\ns_barrier\ns_branch {ls}")
                    a(f"{l2}:\ns_mov_b64 exec, 1\nds_add_u32 v{CA}, v{CA+1}\ns_mov_b64 exec, -1\ns_branch {ls}")
                    a(f"{l5}:\nds_read_b32 v{DUM}, v{CA} offset:4\ns_waitcnt lgkmcnt(0)\nv_readfirstlane_b32 s3, v{DUM}\ns_cmp_lt_u32 s3, 4\ns_cbranch_scc1 {l5}")
                    xid_load(a, WS_FL1, VNB)
                    a(f"{ls}:")
                if X == 0 and (t, gi) == (6, 0): a(f"v_add_u32 v{VB}, s26, v{VB}\nv_add_u32 v{VA}, s26, v{VA}")
                if X == 0 and (t, gi) == (7, 2): a(f"v_add_u32 v{VN}, s26, v{VN}")
                for i in range(4): a(f"v_exp_f32 v{S+4*gi+i}, v{S+4*gi+i}")
    a("s_add_u32 s24, s24, 1\ns_cmp_lt_u32 s24, 8\ns_cbranch_scc1 L_k234_loop")
    for X in range(2):
        a(f"v_cvt_pk_bf16_f32 v{PP[X]+6}, v{SA[X][1]+12}, v{SA[X][1]+13}\nv_cvt_pk_bf16_f32 v{PP[X]+7}, v{SA[X][1]+14}, v{SA[X][1]+15}")
    a("s_waitcnt vmcnt(0)")
    xid_decide(a, VNB)
    a("s_waitcnt lgkmcnt(0)\nv_cmp_eq_u32 vcc, 0, v3")
    for X in range(2): a(pv(X, V2, PP[X]+4))
    a(f"v_mov_b32 v{KA_}, {f32(2.0**30)}\nv_mov_b32 v{KA_+1}, {f32(2.0**-30)}\ns_mov_b64 s[28:29], 0\nv_mov_b32 v{V1+1}, s49\ns_nop 7")
    if not os.environ.get("X_GT"): stamp(a, 4)
    a("s_cmp_eq_u32 s39, 1\ns_cbranch_scc1 L_k234_rb")
    for X in range(2):
        O, T, L = OO[X], SA[X][0], PP[X]
        a(f"v_cndmask_b32 v{L}, v{O}, v{O+4}, vcc\nv_rcp_f32 v{L+1}, v{L}")
        a(f"v_cmp_nle_f32 s[30:31], v{L}, v{KA_}\ns_or_b64 s[28:29], s[28:29], s[30:31]\nv_cmp_nge_f32 s[30:31], v{L}, v{KA_+1}\ns_or_b64 s[28:29], s[28:29], s[30:31]")
        for i, r in enumerate((8, 9, 10, 11, 12, 13, 14, 15, 0, 1, 2, 3)): a(f"v_mul_f32 v{T+6+i}, v{O+r}, v{L+1}")
        for d in range(6): a(f"v_cvt_pk_bf16_f32 v{T+d}, v{T+6+2*d}, v{T+7+2*d}")
        hstore(a, f"buffer_store_dwordx2 v[{T}:{T+1}], v{OA+3*X}, s[8:11], s22 offen")
        hstore(a, f"buffer_store_dwordx2 v[{T+2}:{T+3}], v{OA+3*X+1}, s[8:11], s22 offen")
        a("s_mov_b32 exec_hi, 0")
        hstore(a, f"buffer_store_dwordx2 v[{T+4}:{T+5}], v{OA+3*X+2}, s[8:11], s22 offen")
        a("s_mov_b32 exec_hi, -1")
    a(f"s_cmp_eq_u32 s27, 1\ns_cbranch_scc1 L_k234_pub")
    lbad = a.label("bad")
    a(f"s_cmp_lg_u64 s[28:29], 0\ns_cselect_b32 s3, 1, 0\nv_mov_b32 v{V1}, s3\nds_write_b32 v{V1+1}, v{V1}\ns_cbranch_scc1 {lbad}")
    handoff_publish(a, WS_FL0)
    a(f"s_mov_b32 s39, 1\n{lbad}:\ns_waitcnt lgkmcnt(0)")
    def vote(lend):
        a(f"s_barrier\nv_mov_b32 v44, {FLAG}\nds_read_b128 v[40:43], v44\ns_waitcnt lgkmcnt(0)")
        for i in range(1, 4): a(f"v_or_b32 v40, v40, v{40+i}")
        a(f"s_nop 0\nv_readfirstlane_b32 s3, v40\ns_cmp_eq_u32 s3, {XCMP}\ns_cbranch_scc1 {lend}\ns_mov_b32 s27, 1")
    vote("L_k234_pa")
    reset_max()
    a("s_mov_b32 s24, 0")
    a("L_k234_maxloop:")
    a("s_barrier\ns_barrier")
    for t in range(8):
        a(rKA(t, 1)); a(rKB(t, 7)); a("s_waitcnt lgkmcnt(0)")
        scores()
        a("s_nop 10")
        max_reduce()
    a("s_add_u32 s24, s24, 1\ns_cmp_lt_u32 s24, 8\ns_cbranch_scc1 L_k234_maxloop")
    finish_max()
    main_init()
    a(f"s_barrier\nds_write_b32 v{CA+3}, v{CA+2}\ns_waitcnt lgkmcnt(0)\ns_barrier")
    a(rKA(0, 1)); a(rKB(0, 7)); a("s_waitcnt lgkmcnt(0)")
    a("s_branch L_k234_main")
    for x in slow: a(x)
    a("L_k234_pub:")
    handoff_publish(a, WS_FL0)
    a("L_k234_rb:\ns_barrier")
    a("L_k234_pa:")
    phase_ab_compute(a, GA, GB)
    a("L_k234_idle:")
    a("s_waitcnt lgkmcnt(0)")
    srd(a, 8, 4, WS_SIZE)
    a("s_barrier\ns_barrier\ns_barrier")
    a("v_lshlrev_b32 v4, 3, v1")
    def touch(srdn, base, per_rb, per_nb, nbytes):
        a(f"s_mul_i32 s28, s12, {per_rb}\ns_mul_i32 s3, s13, {per_nb}\ns_add_u32 s28, s28, s3\ns_add_u32 s28, s28, {base:#x}")
        n = nbytes // 128
        while n > 0:
            m = min(n, 64)
            if m < 64: a(f"s_mov_b32 exec_lo, {(1 << min(m, 32)) - 1:#x}\ns_mov_b32 exec_hi, {(1 << max(m - 32, 0)) - 1:#x}")
            a(f"buffer_load_dword v8, v4, s[{srdn}:{srdn+3}], s28 offen")
            n -= m
            if n > 0: a("s_add_u32 s28, s28, 8192")
        a("s_mov_b64 exec, -1")
    lt1, lt2 = a.label("pt"), a.label("pt")
    a(f"s_cmp_eq_u32 s14, 5\ns_cbranch_scc1 {lt1}")
    touch(8, WS_O, 81920, 10240, 10240); touch(8, WS_X1, 81920, 10240, 10240); touch(8, WS_ST1, 12288, 1536, 1536); touch(8, WS_ST2, 12288, 1536, 1536)
    a(f"s_branch {lt2}\n{lt1}:")
    touch(8, WS_Y, 98304, 12288, 12288)
    srd(a, 40, 44, 2048 * 1280)
    touch(40, 0, 81920, 10240, 10240)
    a(f"{lt2}:\ns_waitcnt vmcnt(0)")
    vote("L_k234_pa")
    a("s_mov_b32 s24, 21\nL_k234_idleb:\ns_barrier\ns_sub_u32 s24, s24, 1\ns_cmp_lg_u32 s24, 0\ns_cbranch_scc1 L_k234_idleb\ns_branch L_k234_pa")
    a("L_k234_helper:")
    a(f"s_setprio {os.environ.get('X_HPRIO', '2')}")
    a(f"s_sub_u32 s15, s14, 6\ns_lshl_b32 s47, s15, 10\ns_add_u32 s46, s47, {WS_KV:#x}\ns_waitcnt lgkmcnt(0)")
    srd(a, 8, 4, WS_SIZE)
    stamp(a, 1)
    xid_publish(a, WS_FL1)
    THR = int(os.environ.get("X_THR", "9"))
    def dma(goff, loff):
        ld = a.label("d")
        for i in range(7):
            if i == 6: a(f"s_cmp_ge_u32 s15, 2\ns_cbranch_scc1 {ld}")
            if goff and i > THR: a(f"s_waitcnt vmcnt({THR})")
            a(f"s_add_u32 m0, s47, {loff + i*4096}\ns_add_u32 s48, s46, {goff + i*4096}\nbuffer_load_dwordx4 v1, s[8:11], s48 offen lds")
        a(f"{ld}:")
    a("L_k234_hmain:")
    dma(0, 0)
    a("s_waitcnt vmcnt(0)\ns_barrier")
    if os.environ.get("X_K2T") == "1": a("s_branch L_k234_end")
    a(f"v_mov_b32 v6, {FLAG+32}\nv_mov_b32 v7, 1")
    dma(KVCH, KVCH); dma(2*KVCH, 2*KVCH)
    a("s_waitcnt vmcnt(0)\ns_barrier")
    for g in (3, 4, 5): dma(g*KVCH, g*KVCH)
    a("s_waitcnt vmcnt(0)\ns_barrier")
    stamp(a, 2)
    lns = a.label("noside")
    if os.environ.get("X_K2T") == "2": a("s_branch L_k234_end")
    a(f"s_cmp_lg_u32 s27, 0\ns_cbranch_scc1 {lns}")
    pack_weights(a)
    a(f"s_lshr_b32 s3, s2, 3\ns_lshl_b32 s3, s3, 7\ns_add_u32 s3, s3, {WS_CNT:#x}\nv_mov_b32 v4, 0\nv_mov_b32 v5, 1\ns_waitcnt vmcnt(0)\ns_mov_b64 exec, 1")
    a("buffer_atomic_add v5, v4, s[8:11], s3 offen\ns_mov_b64 exec, -1")
    stamp(a, 3)
    a(f"{lns}:")
    lw = a.label("wdone")
    a(f"v_mov_b32 v6, {FLAG+32}\nv_mov_b32 v7, 1\n{lw}:\nds_read_b32 v8, v6\ns_waitcnt lgkmcnt(0)\nv_readfirstlane_b32 s3, v8\ns_cmp_ge_u32 s3, 4\ns_cbranch_scc1 {lw}x\ns_sleep 8\ns_branch {lw}\n{lw}x:")
    dma(6*KVCH, 0); dma(7*KVCH, KVCH)
    a("s_waitcnt vmcnt(0)\ns_mov_b64 exec, 1\nds_add_u32 v6, v7 offset:4\ns_mov_b64 exec, -1\ns_waitcnt lgkmcnt(0)")
    stamp(a, 4)
    a(f"s_cmp_eq_u32 s27, 1\ns_cbranch_scc1 L_k234_ra")
    srd(a, 40, 34, 2048 * 4096)
    a("s_lshl_b32 s17, s12, 1\ns_lshr_b32 s3, s15, 1\ns_add_u32 s17, s17, s3\ns_lshl_b32 s16, s13, 4\ns_and_b32 s3, s15, 1\ns_lshl_b32 s3, s3, 3\ns_add_u32 s16, s16, s3")
    a("s_lshl_b32 s6, s17, 17\ns_lshl_b32 s7, s16, 5\ns_add_u32 s6, s6, s7\nv_lshlrev_b32 v4, 12, v2\nv_lshl_add_u32 v4, v3, 4, v4")
    for i in range(8): a(f"buffer_load_dwordx4 v[{8+4*i}:{11+4*i}], v4, s[40:43], s6 offen offset:{32*i} nt")
    a(f"s_lshl_b32 s6, s17, 7\ns_add_u32 s6, s6, s16\ns_lshl_b32 s6, s6, 10\ns_add_u32 s6, s6, {WS_WSP:#x}")
    for i in range(8):
        a(f"s_waitcnt vmcnt(7)\nbuffer_store_dwordx4 v[{8+4*i}:{11+4*i}], v1, s[8:11], s6 offen offset:{(i%4)*1024}")
        if i == 3: a("s_add_u32 s6, s6, 4096")
    stamp(a, 5)
    lp, lgo = a.label("ppoll"), a.label("pgo")
    a(f"v_lshlrev_b32 v4, 7, v2\ns_mov_b32 s3, {WS_CNT:#x}\ns_mov_b32 s29, 0x8000\n{lp}:")
    a(f"buffer_load_dword v5, v4, s[8:11], s3 offen sc1\ns_waitcnt vmcnt(0)\nv_cmp_gt_u32 vcc, 32, v5\ns_sub_u32 s29, s29, 1\ns_cbranch_scc1 {lgo}\ns_cbranch_vccz {lgo}\ns_sleep 2\ns_branch {lp}\n{lgo}:")
    if os.environ.get("X_PFA", "2") == "2": prefetch(a, 8, WS_WIN, 1920 * 1024, 4, 15, 8, 4, 28)
    stamp(a, 6)
    a("L_k234_ra:")
    a("s_mul_i32 s20, s15, 3072\ns_lshl_b32 s16, s12, 1\ns_lshr_b32 s3, s15, 1\ns_add_u32 s16, s16, s3")
    GA.lsetup(a, WS_O, 40, WS_WO, 18, 19, 21, AFL)
    GB.lsetup(a, WS_X1, 40, WS_WIN, 22, 23, 26, AFL)
    lw2 = a.label("w6")
    a(f"v_mov_b32 v6, {FLAG+32}\n{lw2}:\nds_read_b32 v11, v6\ns_waitcnt lgkmcnt(0)\nv_readfirstlane_b32 s3, v11\ns_cmp_ge_u32 s3, 8\ns_cbranch_scc1 {lw2}x\ns_sleep 8\ns_branch {lw2}\n{lw2}x:")
    a.vmq = []
    a(f"s_mul_i32 s6, s13, 320\ns_add_u32 s6, s6, {WS_MOD + 5120}")
    dma1(a, PAR6, 6, "par")
    a(f"s_mul_i32 s6, s13, 1536\ns_lshl_b32 s7, s15, 9\ns_add_u32 s6, s6, s7\ns_add_u32 s6, s6, {WS_UTP:#x}\nv_lshrrev_b32 v10, 1, v1")
    for i in range(10):
        a.vm(f"buffer_load_dwordx2 v[{12+2*i}:{13+2*i}], v10, s[8:11], s6 offen", "ut")
        a(f"s_add_u32 s6, s6, {1536*8}")
    for s in range(3): GA.issue_w(s)
    lu = a.label("nou")
    a.wait(vm=["ut"])
    a(f"s_cmp_eq_u32 s15, 3\ns_cbranch_scc1 {lu}")
    for i in range(1, 10): a(f"v_add_f32 v12, v12, v{12+2*i}\nv_add_f32 v13, v13, v{13+2*i}")
    a(f"s_lshl_b32 s7, s15, 9\ns_add_u32 s7, s7, {PAR6+1024}\nv_add_u32 v10, s7, v10\nds_write_b64 v10, v[12:13]\ns_waitcnt lgkmcnt(0)\n{lu}:")
    stamp(a, 7)
    a("s_cmp_eq_u32 s27, 1\ns_cbranch_scc1 L_k234_wend")
    vote("L_k234_la")
    a("s_waitcnt vmcnt(0)\ns_mov_b32 s24, 0")
    a("L_k234_hmax:")
    a("s_barrier")
    dma(0, 0)
    a(f"s_add_u32 s46, s46, {KVCH}\ns_waitcnt vmcnt(0)\ns_barrier\ns_add_u32 s24, s24, 1\ns_cmp_lt_u32 s24, 8\ns_cbranch_scc1 L_k234_hmax")
    a(f"s_add_u32 s46, s47, {WS_KV:#x}\ns_barrier\ns_branch L_k234_hmain")
    a("L_k234_wend:\ns_barrier")
    a("L_k234_la:")
    GA.issue_w(3)
    handoff_wait(a, WS_FL0, 32)
    stamp(a, 8)
    for s in range(DEP6): GA.issue_a(s)
    for s in range(10): GA.lstep(s, 10, GB)
    handoff_wait(a, WS_FL1, 48)
    stamp(a, 9)
    for s in range(DEP6): GB.issue_a(s)
    for s in range(20): GB.lstep(s, 20)
    end(a)
    finish(a, 256, 640, FLAG + 320, 164)


def pack_weights(a):
    LO, HI, PC = 8, 24, 40
    lo_, ld = a.label("pko"), a.label("pkd")
    a(f"s_lshl_b32 s28, s2, 2\ns_add_u32 s28, s28, s15\nv_mul_u32_u24 v5, {4*3072}, v3\ns_cmp_ge_u32 s28, 480\ns_cbranch_scc1 {lo_}")
    srd(a, 40, 32, 640 * 3072)
    divmod_s(a, 16, 17, 28, 10, 3)
    divmod_s(a, 18, 19, 16, 6, 3)
    a("s_mul_i32 s6, s18, 96\ns_lshl_b32 s7, s19, 5\ns_add_u32 s6, s6, s7\ns_cmp_lt_u32 s19, 3\ns_cselect_b32 s7, 864, 0\ns_add_u32 s6, s6, s7\ns_sub_u32 s6, s6, 96")
    a(f"v_add_lshl_u32 v4, v2, s6, 1\nv_add_u32 v4, v4, v5\ns_mul_i32 s22, s17, {64*3072}")
    for q in range(4):
        loads8(a, 40, 4, LO + 4*q, HI + 4*q, 22, [16*q + e for e in E_PERM], 3072, 7)
    a(f"v_lshlrev_b32 v6, 4, v3\ns_lshl_b32 s7, s17, 8\ns_add_u32 s7, s7, {WS_MOD + 7680}")
    for q in range(4):
        for arr in range(2):
            for hf in range(2):
                P = PC + 16*q + 8*arr + 4*hf
                a(f"buffer_load_dwordx4 v[{P}:{P+3}], v6, s[8:11], s7 offen offset:{arr*2560 + 64*q + 32*hf}")
    a("v_mov_b32 v6, 0\nv_mov_b32 v7, 0")
    a(f"s_mul_i32 s22, s18, 40\ns_lshl_b32 s7, s17, 2\ns_add_u32 s22, s22, s7\ns_mul_i32 s22, s22, 6\ns_add_u32 s22, s22, s19\ns_lshl_b32 s22, s22, 10\ns_add_u32 s22, s22, {WS_WIN:#x}\ns_waitcnt vmcnt(0)")
    for q in range(4):
        for d in range(4):
            l, h, P = LO + 4*q + d, HI + 4*q + d, PC + 16*q
            a(f"v_lshlrev_b32 v{l}, 16, v{l}\nv_lshlrev_b32 v{h}, 16, v{h}\nv_fmac_f32 v7, v{l}, v{P+2*d}\nv_fmac_f32 v7, v{h}, v{P+2*d+1}\nv_mul_f32 v{l}, v{l}, v{P+8+2*d}\nv_mul_f32 v{h}, v{h}, v{P+9+2*d}")
            a(f"v_cvt_pk_bf16_f32 v{l}, v{l}, v{h}\nv_lshlrev_b32 v{h}, 16, v{l}\nv_and_b32 v5, 0xffff0000, v{l}\nv_add_f32 v6, v6, v{h}\nv_add_f32 v6, v6, v5")
        a(f"buffer_store_dwordx4 v[{LO+4*q}:{LO+4*q+3}], v1, s[8:11], s22 offen sc1\ns_add_u32 s22, s22, 6144")
    a("v_mov_b32 v40, v6\nv_mov_b32 v41, v7\ns_nop 1\nv_permlane32_swap_b32 v6, v40\nv_permlane32_swap_b32 v7, v41\ns_nop 1\nv_add_f32 v6, v6, v40\nv_add_f32 v7, v7, v41")
    a(f"s_mul_i32 s22, s17, {1536*8}\ns_lshl_b32 s7, s16, 8\ns_add_u32 s22, s22, s7\ns_add_u32 s22, s22, {WS_UTP:#x}\nv_lshlrev_b32 v4, 3, v2\ns_mov_b32 exec_hi, 0")
    a(f"buffer_store_dwordx2 v[6:7], v4, s[8:11], s22 offen sc1\ns_mov_b32 exec_hi, -1\ns_branch {ld}")
    a(f"{lo_}:\ns_sub_u32 s28, s28, 480\ns_cmp_ge_u32 s28, 528\ns_cbranch_scc1 {ld}")
    a(f"s_mov_b32 s42, {768*1280}\ns_mov_b32 s31, {WS_WOUT:#x}\ns_mov_b32 s6, {(1<<20)//12+1}\ns_cmp_lt_u32 s28, 240\ns_cselect_b32 s40, s36, s38\ns_cselect_b32 s41, s37, s39\ns_mov_b32 s43, 0x20000\ns_cselect_b32 s30, 40, 48")
    a(f"s_cmov_b32 s42, {640*1280}\ns_cmov_b32 s31, {WS_WO:#x}\ns_cmov_b32 s6, {(1<<20)//10+1}\ns_cselect_b32 s7, 0, 240\ns_sub_u32 s28, s28, s7")
    a("s_mul_i32 s16, s28, s6\ns_lshr_b32 s16, s16, 20\ns_lshr_b32 s7, s30, 2\ns_mul_i32 s7, s7, s16\ns_sub_u32 s17, s28, s7")
    divmod_s(a, 18, 19, 16, 3, 3)
    a(f"s_mul_i32 s6, s18, 80\ns_lshl_b32 s7, s19, 5\ns_add_u32 s6, s6, s7\nv_add_lshl_u32 v4, v2, s6, 1\nv_mul_u32_u24 v5, {4*1280}, v3\nv_add_u32 v4, v4, v5\ns_mul_i32 s22, s17, {64*1280}")
    for q in range(4):
        loads8(a, 40, 4, LO + 4*q, HI + 4*q, 22, [16*q + e for e in E_PERM], 1280, 7)
    a("s_mul_i32 s22, s18, s30\ns_lshl_b32 s7, s17, 2\ns_add_u32 s22, s22, s7\ns_mul_i32 s22, s22, 3\ns_add_u32 s22, s22, s19\ns_lshl_b32 s22, s22, 10\ns_add_u32 s22, s22, s31\ns_waitcnt vmcnt(0)")
    for q in range(4):
        for d in range(4): a(f"v_lshl_or_b32 v{LO+4*q+d}, v{HI+4*q+d}, 16, v{LO+4*q+d}")
        a(f"buffer_store_dwordx4 v[{LO+4*q}:{LO+4*q+3}], v1, s[8:11], s22 offen sc1\ns_add_u32 s22, s22, 3072")
    a(f"{ld}:")

def emit(path):
    out = []
    for (n, lines, g, b, lds, nv, ao) in kernels:
        out.append(f"; @launch kernel={n}_kernel grid=({g},1,1) block=({b},1,1) lds={lds}")
    out.append('.amdgcn_target "amdgcn-amd-amdhsa--gfx950"\n.text')
    bad = 0
    for (n, lines, g, b, lds, nv, ao) in kernels:
        errs = check_hazards(lines, n) + ([] if PROF else check_waits(lines, n))
        for e in errs:
            if "buffer_load_ushort" in e.split("touched by")[0] and "buffer_load_ushort" in e.split("touched by")[-1] and n == "k0": continue
            if "buffer_load_dword v" in e.split("touched by")[0] and "buffer_load_dword v" in e.split("touched by")[-1]: continue
            print("CHECK", e); bad += 1
        out.append(f".globl {n}_kernel\n.p2align 8\n.type {n}_kernel,@function\n{n}_kernel:")
        t = Asm(); t.lines = lines
        out.append(t.text())
    out.append('.section .rodata,"a"')
    for (n, lines, g, b, lds, nv, ao) in kernels:
        out.append(f""".p2align 6
.amdhsa_kernel {n}_kernel
  .amdhsa_next_free_vgpr {nv}
  .amdhsa_next_free_sgpr {96 if PROF else 56}
  .amdhsa_accum_offset {ao}
  .amdhsa_group_segment_fixed_size 0
  .amdhsa_kernarg_size 120
  .amdhsa_user_sgpr_count 2
  .amdhsa_user_sgpr_kernarg_segment_ptr 1
  .amdhsa_system_sgpr_workgroup_id_x 1
.end_amdhsa_kernel""")
    open(path, "w").write("\n".join(out) + "\n")
    print("wrote", path, "checks failed:", bad)

if __name__ == "__main__":
    for i in range(int(os.environ.get("X_EMPTY0", "0"))):
        e = K(f"f{i}"); e("s_endpgm"); finish(e, 256, 256, 0, 8)
    k0(); k1(); k234()
    k56()
    for i in range(int(os.environ.get("X_EMPTY", "0"))):
        e = K(f"e{i}"); e("s_endpgm"); finish(e, 256, 256, 0, 8)
    emit(sys.argv[1] if len(sys.argv) > 1 else "adaLN_cond__grouped_kv_mqa__mixer_gmlp__prompt.s")
```

```python
import math, struct, sys, os
from asmlib import *

def f32(x):
    return "0x%08x" % struct.unpack("<I", struct.pack("<f", x))[0]

WS_MOD  = 0x0
WS_XH   = 0x100000
WS_ST0  = 0x8000
WS_CNT  = 0xC000
WS_FL1  = 0x10000
WS_FL2  = 0x12000
WS_FL0  = 0x14000
WS_UT   = 0x18000
WS_UTP  = 0x20000
WS_WQKV = 0x400000
WS_WO   = 0x500000
WS_WIN  = 0x600000
WS_WOUT = 0x800000
WS_Q    = 0xA00000
WS_KV   = 0xD00000
WS_O    = 0xE00000
WS_X1   = 0x1080000
WS_ST1  = 0x1300000
WS_ST2  = 0x1360000
WS_Z1   = 0x13C0000
WS_Z2T  = 0x16C0000
WS_Y    = 0x19C0000
WS_WSP  = 0x1D00000
WS_SIZE = 0x2500000
KVCH = 26624
OOB = 0x40000000
LOG2E = math.log2(math.e)
KA = dict(x=0, wq=8, wk=16, wv=24, wo=32, w_in=48, w_sp=56, b_sp=64, w_out=72, c=80, w_mod=88, out=96, dbg=104, ws=112)
UT = [[0, 1], [2, 5], [3, 4]]

PROF = os.environ.get("PROF", "0") == "1"
WS_PROF = 0x3000000
if PROF: WS_SIZE = 0x4000000
def stamp(a, i):
    if PROF: a(f"s_memtime s[{50+2*i}:{51+2*i}]")
DBG = os.environ.get("X_DBG") == "1"
def stamp_begin(a):
    if DBG: a("s_memrealtime s[52:53]\ns_memtime s[54:55]")
    if PROF:
        for i in range(12): a(f"s_mov_b64 s[{50+2*i}:{51+2*i}], 0")
        a("s_memrealtime s[74:75]")
        stamp(a, 0)
def stamp_end(a, kidx):
    if DBG:
        l = a.label("dbg")
        a(f"s_cmp_lg_u32 s2, 8\ns_cbranch_scc1 {l}\ns_cmp_lg_u32 s14, 0\ns_cbranch_scc1 {l}\ns_memrealtime s[56:57]\ns_memtime s[58:59]\ns_load_dwordx2 s[60:61], s[0:1], {KA['dbg']}\ns_waitcnt lgkmcnt(0)")
        a(f"s_sub_u32 s60, s60, {512*kidx - 12*kidx}\ns_subb_u32 s61, s61, 0\ns_sub_u32 s58, s58, s54\ns_mov_b64 exec, 1\nv_mov_b32 v0, 0\nv_mov_b32 v2, s52\nv_mov_b32 v3, s56\nv_mov_b32 v4, s58\nglobal_store_dwordx3 v0, v[2:4], s[60:61]\n{l}:")
    if PROF:
        stamp(a, 11)
        a("s_memrealtime s[76:77]\ns_mov_b64 exec, 1\ns_waitcnt lgkmcnt(0)")
        a(f"s_lshl_b32 s3, s2, 4\ns_add_u32 s3, s3, s14\ns_lshl_b32 s3, s3, 6\ns_add_u32 s3, s3, {WS_PROF + kidx*0x100000:#x}\nv_mov_b32 v0, 0")
        for i in range(12): a(f"v_mov_b32 v{2+i}, s{50+2*i}")
        a("s_getreg_b32 s78, hwreg(HW_REG_XCC_ID)\ns_getreg_b32 s79, hwreg(HW_REG_HW_ID)\nv_mov_b32 v14, s74\nv_mov_b32 v15, s76\nv_mov_b32 v16, s78\nv_mov_b32 v17, s79")
        for i in range(4): a(f"buffer_store_dwordx4 v[{2+4*i}:{5+4*i}], v0, s[8:11], s3 offen offset:{16*i}")

def srd(a, d, p, nbytes):
    a(f"s_mov_b32 s{d}, s{p}\ns_mov_b32 s{d+1}, s{p+1}\ns_mov_b32 s{d+2}, {nbytes:#x}\ns_mov_b32 s{d+3}, 0x20000")

kernels = []
XCMP = "s3" if os.environ.get("X_NOBAR") or os.environ.get("X_NOLDS") else 0

class K(Asm):
    def __init__(self, name):
        super().__init__()
        self.name = name; self.vmq = []; self.lgq = []
    def label(self, base):
        self.uid += 1
        return f"L_{self.name}_{base}_{self.uid}"
    def vm(self, text, tag=None):
        self(text); self.vmq.append(tag)
    def lg(self, text, tag=None):
        self(text); self.lgq.append(tag)
    def _n(self, q, tags):
        idx = max((i for i, t in enumerate(q) if t in tags), default=None)
        return None if idx is None else len(q) - 1 - idx
    def wait(self, vm=(), lg=()):
        parts = []
        n = self._n(self.vmq, vm) if vm else None
        if n is not None:
            parts.append(f"vmcnt({min(n, 63)})"); self.vmq = self.vmq[len(self.vmq)-n:] if n else []
        n = self._n(self.lgq, lg) if lg else None
        if n is not None:
            n2 = min(n, 15)
            parts.append(f"lgkmcnt({n2})"); self.lgq = self.lgq[len(self.lgq)-n2:] if n2 else []
        if parts: self("s_waitcnt " + " ".join(parts))
    def wait_all_lg(self):
        self("s_waitcnt lgkmcnt(0)"); self.lgq = []

def end(a):
    a(f"L_{a.name}_end:")
    stamp_end(a, len(kernels))
    a(f"L_{a.name}_exit:\ns_endpgm")
def finish(a, grid, block, lds, nv):
    kernels.append((a.name, a.lines, grid, block, lds, nv, (nv + 3) // 4 * 4))

def bf16_round(a, v, t):
    a(f"v_cvt_pk_bf16_f32 v{t}, v{v}, v{v}\nv_and_b32 v{v}, 0xffff0000, v{t}")

E_NAT = list(range(8))
E_PERM = [(j & 3) + 8 * (j >> 2) for j in range(8)]
E_O5 = [20 * (j >> 1) + (j & 1) for j in range(8)]
def loads8(a, srdn, voff, lo, hi, ebase, e_list, rs, stmp, tag=None):
    for j in range(8):
        a(f"s_add_u32 s{stmp}, s{ebase}, {e_list[j]*rs}")
        a.vm(f"buffer_load_ushort v{(lo if j % 2 == 0 else hi) + j//2}, v{voff}, s[{srdn}:{srdn+3}], s{stmp} offen", tag)

def divmod_s(a, q, r, x, d, t):
    m = (1 << 20) // d + 1
    a(f"s_mul_i32 s{q}, s{x}, {m}\ns_lshr_b32 s{q}, s{q}, 20\ns_mul_i32 s{t}, s{q}, {d}\ns_sub_u32 s{r}, s{x}, s{t}")

def pack_frag_issue(a, f, srdn, rs, ncol, nks, otype, halves, lo, hi, voff, vt, S):
    q3, ft, t, nb, ks, eb = S, S+1, S+2, S+3, S+4, S+5
    divmod_s(a, q3, ft, f, 3, t)
    divmod_s(a, nb, ks, q3, nks, t)
    if halves:
        a(f"s_and_b32 s{t}, s{nb}, 1\ns_lshr_b32 s{nb}, s{nb}, 1\ns_mul_i32 s{nb}, s{nb}, {ncol}\ns_cmp_eq_u32 s{t}, 0\ns_cselect_b32 s{t}, 768, 0\ns_add_u32 s{nb}, s{nb}, s{t}")
    else:
        a(f"s_mul_i32 s{nb}, s{nb}, {ncol}")
    hi5 = 80 if ncol == 96 else OOB // 2
    a(f"s_cmp_eq_u32 s{ft}, 1\ns_cselect_b32 s{q3}, 32, 48\ns_cselect_b32 s{t}, {hi5:#x}, 64\ns_cmp_eq_u32 s{ft}, 0\ns_cselect_b32 s{q3}, 0, s{q3}\ns_cselect_b32 s{t}, 16, s{t}")
    a(f"s_add_u32 s{q3}, s{q3}, s{nb}\ns_add_u32 s{t}, s{t}, s{nb}")
    a(f"v_mov_b32 v{vt}, s{q3}\nv_mov_b32 v{vt+1}, s{t}\nv_cmp_gt_u32 vcc, 16, v2\nv_and_b32 v{voff}, 15, v2\ns_nop 0\nv_cndmask_b32 v{vt}, v{vt+1}, v{vt}, vcc\nv_add_lshl_u32 v{voff}, v{voff}, v{vt}, 1")
    if not otype:
        a(f"v_mul_u32_u24 v{vt}, {4*rs}, v3\nv_add_u32 v{voff}, v{voff}, v{vt}\ns_mul_i32 s{eb}, s{ks}, {16*rs}")
        loads8(a, srdn, voff, lo, hi, eb, E_PERM, rs, t, "pack")
    else:
        l5, ld = a.label("u4"), a.label("ud")
        divmod_s(a, q3, ft, ks, 5, t)
        a(f"s_mul_i32 s{q3}, s{q3}, 80\ns_cmp_eq_u32 s{ft}, 4\ns_cbranch_scc1 {l5}")
        a(f"s_mul_i32 s{ft}, s{ft}, 20\ns_add_u32 s{q3}, s{q3}, s{ft}\ns_mul_i32 s{eb}, s{q3}, {rs}\nv_mul_u32_u24 v{vt}, {4*rs}, v3\nv_add_u32 v{voff}, v{voff}, v{vt}")
        q0 = list(a.vmq)
        loads8(a, srdn, voff, lo, hi, eb, E_PERM, rs, t, "pack")
        a(f"s_branch {ld}\n{l5}:\ns_add_u32 s{q3}, s{q3}, 16\ns_mul_i32 s{eb}, s{q3}, {rs}\nv_mul_u32_u24 v{vt}, {2*rs}, v3\nv_add_u32 v{voff}, v{voff}, v{vt}")
        a.vmq = q0
        loads8(a, srdn, voff, lo, hi, eb, E_O5, rs, t, "pack")
        a(f"{ld}:")

def pack_frag_store(a, f, wsbase, lo, hi, st):
    for i in range(4): a(f"v_lshl_or_b32 v{lo+i}, v{hi+i}, 16, v{lo+i}")
    a(f"s_lshl_b32 s{st}, s{f}, 10\ns_add_u32 s{st}, s{st}, {wsbase:#x}")
    a.vm(f"buffer_store_dwordx4 v[{lo}:{lo+3}], v1, s[8:11], s{st} offen")

def l2_prefetch(a, base, nbytes, nwaves, vdst, vtmp, st):
    per_wg = nbytes // 32
    PS = int(os.environ.get("X_PFS", "64")); CH = 64 * PS
    n_instr = -(-per_wg // CH)
    per_wave = -(-n_instr // nwaves)
    a(f"s_lshr_b32 s{st}, s2, 3\ns_mul_i32 s{st}, s{st}, {per_wg}\ns_mul_i32 s{st+1}, s14, {per_wave*CH}\ns_add_u32 s{st}, s{st}, s{st+1}\ns_add_u32 s{st}, s{st}, {base:#x}\nv_lshlrev_b32 v{vtmp}, {int(math.log2(PS//16))}, v1")
    for i in range(per_wave):
        a.vm(f"buffer_load_dword v{vdst}, v{vtmp}, s[8:11], s{st} offen")
        if i < per_wave - 1: a(f"s_add_u32 s{st}, s{st}, {CH}")

N_MOD, N_XH, N_PQ = 128, 64, 40
def k0():
    a = K("k0")
    ends = [N_MOD, N_MOD + N_XH, N_MOD + N_XH + N_PQ]
    grid = ends[-1]
    CPF = os.environ.get("X_CPF", "0") == "1"
    if CPF:
        lc = a.label("cpf")
        a(f"s_cmp_lt_u32 s2, {grid}\ns_cbranch_scc1 {lc}\ns_cmp_ge_u32 s2, {grid+48}\ns_cbranch_scc1 L_k0_exit")
        a(f"s_getpc_b64 s[40:41]\ns_and_b32 s40, s40, 0xffffff00\ns_sub_u32 s3, s2, {grid}\ns_lshr_b32 s3, s3, 3\ns_lshl_b32 s3, s3, 13\nv_lshlrev_b32 v3, 5, v0\nv_add_u32 v3, s3, v3\nglobal_load_dword v4, v3, s[40:41]\ns_endpgm\n{lc}:")
        grid += 48
    a(f"s_cmp_ge_u32 s2, {grid}\ns_cbranch_scc1 L_k0_exit")
    stamp_begin(a)
    a(f"s_load_dwordx2 s[4:5], s[0:1], {KA['ws']}")
    a("v_and_b32 v1, 63, v0\nv_lshrrev_b32 v2, 6, v0\ns_nop 0\nv_readfirstlane_b32 s14, v2")
    a(f"s_cmp_lt_u32 s2, {ends[0]}\ns_cbranch_scc1 L_k0_mod")
    a(f"s_cmp_lt_u32 s2, {ends[1]}\ns_cbranch_scc1 L_k0_xh")
    a("s_branch L_k0_pq")
    a("L_k0_mod:")
    a(f"s_load_dwordx4 s[16:19], s[0:1], {KA['c']}")
    a("s_and_b32 s3, s2, 7\ns_lshl_b32 s3, s3, 1\ns_bfe_u32 s6, s2, 0x10003\ns_add_u32 s3, s3, s6\ns_lshr_b32 s6, s2, 4\ns_lshl_b32 s6, s6, 4\ns_add_u32 s3, s3, s6")
    a("s_cmp_ge_u32 s3, 120\ns_cbranch_scc1 L_k0_exit")
    a("v_lshrrev_b32 v1, 2, v0\nv_and_b32 v2, 3, v0\nv_mul_u32_u24 v3, 7680, v1\nv_lshl_add_u32 v3, v2, 4, v3\nv_lshlrev_b32 v4, 1, v1")
    a("s_waitcnt lgkmcnt(0)")
    srd(a, 8, 4, WS_SIZE); srd(a, 20, 16, 1280); srd(a, 24, 18, 640 * 7680)
    stamp(a, 1)
    a("s_lshl_b32 s6, s3, 6")
    for p in range(10):
        a(f"buffer_load_ushort v{10+p}, v4, s[20:23], 0 offen offset:{128*p}")
    for p in range(10):
        a(f"buffer_load_dwordx4 v[{20+4*p}:{23+4*p}], v3, s[24:27], s6 offen")
        if p < 9: a(f"s_add_u32 s6, s6, {64*7680}")
    for i in range(8): a(f"v_mov_b32 v{64+i}, 0")
    stamp(a, 2)
    a("s_waitcnt vmcnt(10)")
    stamp(a, 3)
    for p in range(10):
        v = 10 + p
        a(f"v_lshlrev_b32 v{v}, 16, v{v}\nv_mul_f32 v5, {f32(-LOG2E)}, v{v}\nv_exp_f32 v5, v5\ns_nop 0\nv_add_f32 v5, 1.0, v5\nv_rcp_f32 v5, v5\ns_nop 0\nv_mul_f32 v{v}, v{v}, v5")
        bf16_round(a, v, 5)
    for p in range(10):
        a(f"s_waitcnt vmcnt({9-p})")
        for i in range(4):
            d = 20 + 4*p + i
            a(f"v_lshlrev_b32 v5, 16, v{d}\nv_and_b32 v6, 0xffff0000, v{d}\nv_fmac_f32 v{64+2*i}, v{10+p}, v5\nv_fmac_f32 v{65+2*i}, v{10+p}, v6")
    stamp(a, 4)
    a("v_lshlrev_b32 v5, 7, v1\nv_lshl_add_u32 v5, v2, 5, v5")
    a("ds_write_b128 v5, v[64:67]\nds_write_b128 v5, v[68:71] offset:16")
    a("v_and_b32 v6, 31, v0\nv_lshrrev_b32 v7, 5, v0\nv_lshlrev_b32 v6, 2, v6\nv_lshl_add_u32 v8, v7, 10, v6")
    a("s_waitcnt lgkmcnt(0)\ns_barrier")
    for i in range(8): a(f"ds_read_b32 v{20+i}, v8 offset:{128*i}")
    a("s_waitcnt lgkmcnt(0)")
    for i in range(1, 8): a(f"v_add_f32 v20, v20, v{20+i}")
    a("v_lshl_add_u32 v8, v7, 7, v6\nds_write_b32 v8, v20 offset:8192\ns_waitcnt lgkmcnt(0)\ns_barrier")
    for i in range(8): a(f"ds_read_b32 v{20+i}, v6 offset:{8192+128*i}")
    a("s_waitcnt lgkmcnt(0)")
    for i in range(1, 8): a(f"v_add_f32 v20, v20, v{20+i}")
    bf16_round(a, 20, 5)
    a("v_add_f32 v21, 1.0, v20")
    bf16_round(a, 21, 5)
    a("s_sub_u32 s6, s3, 20\ns_cmp_lt_u32 s6, 20\ns_cselect_b32 s7, 1, 0\ns_sub_u32 s6, s3, 80\ns_cmp_lt_u32 s6, 20\ns_cselect_b32 s6, 1, s7\ns_cmp_eq_u32 s6, 0")
    l = a.label("noinc")
    a(f"s_cbranch_scc1 {l}\nv_mov_b32 v20, v21\n{l}:")
    a(f"s_lshl_b32 s6, s3, 7\nv_cmp_gt_u32 vcc, 32, v0\ns_and_saveexec_b64 s[28:29], vcc\ns_cbranch_execz L_k0_end")
    a(f"buffer_store_dword v20, v6, s[8:11], s6 offen offset:{WS_MOD}")
    a("s_branch L_k0_end")
    a("L_k0_xh:")
    a(f"s_load_dwordx2 s[16:17], s[0:1], {KA['x']}")
    a(f"s_sub_u32 s6, s2, {ends[0]}\ns_and_b32 s3, s6, 7\ns_lshr_b32 s7, s6, 4\ns_lshl_b32 s7, s7, 3\ns_add_u32 s3, s3, s7\ns_lshl_b32 s3, s3, 1\ns_bfe_u32 s7, s6, 0x10003\ns_add_u32 s3, s3, s7")
    a("v_and_b32 v2, 31, v1\nv_lshrrev_b32 v3, 5, v1\nv_mul_u32_u24 v4, 1280, v2\nv_lshl_add_u32 v4, v3, 4, v4")
    a(f"s_mul_i32 s6, s3, {32*1280}\ns_mul_i32 s7, s14, 320\ns_add_u32 s6, s6, s7")
    a("s_waitcnt lgkmcnt(0)")
    srd(a, 8, 4, WS_SIZE); srd(a, 20, 16, 2048 * 1280)
    stamp(a, 1)
    for i in range(10):
        a(f"buffer_load_dwordx4 v[{20+4*i}:{23+4*i}], v4, s[20:23], s6 offen offset:{32*i}")
    a("v_mov_b32 v6, 0\nv_mov_b32 v7, 0")
    a(f"s_mul_i32 s6, s3, {40*1024}\ns_mul_i32 s7, s14, {10*1024}\ns_add_u32 s6, s6, s7\ns_add_u32 s6, s6, {WS_XH:#x}\nv_lshlrev_b32 v8, 4, v1")
    for i in range(10):
        b = 20 + 4*i
        a(f"s_waitcnt vmcnt(9)\nv_permlane32_swap_b32 v{b}, v{b+2}\nv_permlane32_swap_b32 v{b+1}, v{b+3}")
        a(f"buffer_store_dwordx4 v[{b}:{b+3}], v8, s[8:11], s6 offen offset:{(i%4)*1024}")
        if i % 4 == 3: a("s_add_u32 s6, s6, 4096")
        for d in range(4):
            lo = 64 + 2*(d % 2)
            a(f"v_lshlrev_b32 v{lo}, 16, v{b+d}\nv_and_b32 v{lo+1}, 0xffff0000, v{b+d}")
            a(f"v_add_f32 v6, v6, v{lo}\nv_fmac_f32 v7, v{lo}, v{lo}\nv_add_f32 v6, v6, v{lo+1}\nv_fmac_f32 v7, v{lo+1}, v{lo+1}")
    stamp(a, 4)
    a(f"v_mov_b32 v64, -1\nv_mov_b32 v65, -1\nv_mov_b32 v66, -1\nv_mov_b32 v67, -1\nv_lshlrev_b32 v5, 4, v0\ns_mul_i32 s7, s3, 6144\ns_add_u32 s7, s7, {WS_ST2:#x}\nbuffer_store_dwordx4 v[64:67], v5, s[8:11], s7 offen\nbuffer_store_dwordx4 v[64:67], v5, s[8:11], s7 offen offset:2048")
    a("v_lshlrev_b32 v5, 3, v0\nds_write_b64 v5, v[6:7]\nv_lshlrev_b32 v5, 3, v2\ns_waitcnt lgkmcnt(0)\ns_barrier")
    for i in range(8): a(f"ds_read_b64 v[{70+2*i}:{71+2*i}], v5 offset:{256*i}")
    a("s_waitcnt lgkmcnt(0)")
    for i in range(1, 8): a(f"v_add_f32 v70, v70, v{70+2*i}\nv_add_f32 v71, v71, v{71+2*i}")
    a(f"v_mul_f32 v70, {f32(1/640)}, v70\nv_mul_f32 v71, {f32(1/640)}, v71\nv_fma_f32 v71, -v70, v70, v71\nv_max_f32 v71, 0, v71\nv_add_f32 v71, {f32(1e-5)}, v71\nv_rsq_f32 v72, v71\ns_nop 0\nv_mul_f32 v70, v70, v72")
    a(f"v_sub_f32 v73, 0, v70\ns_lshl_b32 s6, s3, 8\ns_add_u32 s6, s6, {WS_ST0:#x}\nv_cmp_gt_u32 vcc, 32, v0\ns_and_saveexec_b64 s[28:29], vcc\ns_cbranch_execz L_k0_end")
    a("buffer_store_dwordx2 v[72:73], v5, s[8:11], s6 offen")
    a("s_branch L_k0_end")
    a("L_k0_pq:")
    a(f"s_load_dwordx2 s[16:17], s[0:1], {KA['wq']}\ns_load_dwordx4 s[32:35], s[0:1], {KA['wk']}")
    a(f"s_sub_u32 s3, s2, {ends[1]}\ns_and_b32 s13, s3, 7\ns_lshr_b32 s12, s3, 3\ns_lshl_b32 s12, s12, 3\ns_lshl_b32 s6, s14, 1\ns_add_u32 s12, s12, s6")
    a("v_and_b32 v2, 31, v1\nv_lshrrev_b32 v3, 5, v1\nv_and_b32 v4, 15, v1\nv_lshlrev_b32 v9, 4, v1")
    a(f"v_lshrrev_b32 v5, 4, v2\nv_mul_u32_u24 v5, 20, v5\nv_add_u32 v5, v5, v4\ns_mul_i32 s6, s13, 80\nv_add_u32 v5, s6, v5\nv_lshlrev_b32 v5, 1, v5\nv_mul_u32_u24 v6, {4*1280}, v3\nv_add_u32 v10, v5, v6\nv_add_u32 v11, 80, v10\nv_add_u32 v12, 120, v10")
    a("v_bfe_u32 v5, v4, 1, 1\nv_lshrrev_b32 v7, 3, v4\nv_lshl_add_u32 v5, v7, 1, v5\nv_mul_u32_u24 v5, 20, v5\nv_bfe_u32 v7, v4, 2, 1\nv_lshl_add_u32 v5, v7, 1, v5\nv_and_b32 v7, 1, v4\nv_add_u32 v5, v5, v7\nv_add_u32 v5, 16, v5\nv_add_u32 v5, s6, v5\nv_lshlrev_b32 v5, 1, v5\nv_add_u32 v5, v5, v6\nv_cmp_gt_u32 vcc, 16, v2\ns_nop 1\nv_cndmask_b32 v12, v5, v12, vcc")
    a("v_lshrrev_b32 v5, 2, v4\nv_lshlrev_b32 v5, 1, v5\nv_add_u32 v5, v5, v7\nv_add_u32 v5, 16, v5\nv_and_b32 v8, 10, v4\nv_cmp_eq_u32 vcc, 0, v8")
    a(f"v_mov_b32 v8, {OOB//2:#x}\ns_nop 0\nv_cndmask_b32 v5, v8, v5, vcc\nv_add_u32 v14, 16, v4\nv_cmp_gt_u32 vcc, 4, v4\ns_nop 1\nv_cndmask_b32 v14, v8, v14, vcc\ns_cmp_eq_u32 s13, 3\ns_cselect_b64 vcc, -1, 0\nv_cndmask_b32 v5, v5, v14, vcc\ns_bitcmp1_b32 s13, 0\ns_cselect_b64 vcc, -1, 0\nv_cndmask_b32 v5, v4, v5, vcc\nv_lshlrev_b32 v5, 1, v5\nv_mul_u32_u24 v6, {4*40}, v3\nv_add_u32 v13, v5, v6")
    a("s_waitcnt lgkmcnt(0)")
    srd(a, 8, 4, WS_SIZE); srd(a, 20, 16, 640 * 1280)
    lz = a.label("nz")
    a(f"s_cmp_lg_u32 s3, 0\ns_cbranch_scc1 {lz}\nv_mov_b32 v16, 0\nv_mov_b32 v17, 0\nv_mov_b32 v18, 0\nv_mov_b32 v19, 0\nv_lshlrev_b32 v15, 4, v0\ns_mov_b32 s7, {WS_CNT:#x}\nbuffer_store_dwordx4 v[16:19], v15, s[8:11], s7 offen\ns_mov_b32 s7, {WS_FL1:#x}\nbuffer_store_dwordx4 v[16:19], v15, s[8:11], s7 offen\ns_add_u32 s7, s7, 4096\nbuffer_store_dwordx4 v[16:19], v15, s[8:11], s7 offen\ns_add_u32 s7, s7, 4096\nbuffer_store_dwordx4 v[16:19], v15, s[8:11], s7 offen\ns_add_u32 s7, s7, 4096\nbuffer_store_dwordx4 v[16:19], v15, s[8:11], s7 offen\ns_add_u32 s7, s7, 4096\nbuffer_store_dwordx4 v[16:19], v15, s[8:11], s7 offen\ns_add_u32 s7, s7, 4096\nbuffer_store_dwordx4 v[16:19], v15, s[8:11], s7 offen\ns_add_u32 s7, s7, 4096\n{lz}:")
    a("s_cmp_ge_u32 s13, 2\ns_cselect_b32 s32, s34, s32\ns_cselect_b32 s33, s35, s33\ns_cmp_ge_u32 s13, 4\ns_cselect_b32 s7, 0, 25600")
    a("s_mov_b32 s24, s32\ns_mov_b32 s25, s33\ns_mov_b32 s26, s7\ns_mov_b32 s27, 0x20000")
    for q in range(2):
        a(f"s_add_u32 s6, s12, {q}\ns_mul_i32 s28, s6, {16*1280}\ns_mul_i32 s29, s6, {16*40}")
        b = 20 + 12*q
        loads8(a, 20, 10, b, b+24, 28, E_PERM, 1280, 30)
        loads8(a, 20, 12, b+8, b+32, 28, E_PERM, 1280, 30)
        a("s_mov_b32 exec_lo, 0xffff\ns_mov_b32 exec_hi, 0xffff")
        loads8(a, 20, 11, b+4, b+28, 28, E_PERM, 1280, 30)
        a("s_mov_b32 exec_lo, 0xffff0000\ns_mov_b32 exec_hi, 0xffff0000")
        loads8(a, 24, 13, b+4, b+28, 29, E_PERM, 40, 30)
        a("s_mov_b64 exec, -1")
        if q == 0: a("s_waitcnt vmcnt(16)")
    a(f"s_mul_i32 s6, s13, 40\ns_add_u32 s6, s6, s12\ns_mul_i32 s6, s6, 3072\ns_add_u32 s6, s6, {WS_WQKV:#x}\ns_waitcnt vmcnt(0)")
    stamp(a, 4)
    for i in range(24): a(f"v_lshl_or_b32 v{20+i}, v{44+i}, 16, v{20+i}")
    for q in range(2):
        for ft in range(3):
            a(f"buffer_store_dwordx4 v[{20+12*q+4*ft}:{23+12*q+4*ft}], v9, s[8:11], s6 offen offset:{ft*1024}")
        a("s_add_u32 s6, s6, 3072")
    end(a)
    finish(a, grid, 256, 9216, 144)

STG = 20480
NS, DEP = 6, 4
EX = NS * STG
PAR = EX + 24576
LDS_G = PAR + 5120
ACC, WS0, AF, PR, VW = 8, 56, 104, 200, 240

def common_prologue(a, extra_loads=""):
    a(f"s_cmp_ge_u32 s2, 256\ns_cbranch_scc1 L_{a.name}_exit")
    stamp_begin(a)
    a(f"s_load_dwordx2 s[4:5], s[0:1], {KA['ws']}")
    a(extra_loads)
    a("v_and_b32 v4, 63, v0\nv_lshrrev_b32 v5, 6, v0\nv_lshlrev_b32 v1, 4, v4\nv_readfirstlane_b32 s14, v5\nv_and_b32 v2, 31, v4\nv_lshrrev_b32 v3, 5, v4")
    a("s_and_b32 s12, s2, 7\ns_lshr_b32 s3, s2, 6\ns_lshl_b32 s3, s3, 3\ns_add_u32 s12, s12, s3\ns_bfe_u32 s13, s2, 0x30003")

def gemm_prologue(a, extra_loads=""):
    common_prologue(a, extra_loads)
    a("s_bfe_u32 s15, s14, 0x10001\ns_and_b32 s17, s14, 1\ns_lshl_b32 s16, s12, 1\ns_add_u32 s16, s16, s17")
    a(f"s_cmp_ge_u32 s14, 4\ns_cbranch_scc1 L_{a.name}_loader")

def compute_addr(a, rb):
    a.rb = rb
    if rb == 0:
        a(f"s_mul_i32 s3, s15, {6144+2048}\nv_add_u32 v{VW}, s3, v1\ns_mul_i32 s3, s15, {6144-2048}\ns_add_u32 s3, s3, 2048\nv_add_u32 v{VW+2}, s3, v1")
        a(f"s_lshl_b32 s3, s15, 8\nv_xor_b32 v{VW+1}, s3, v1\ns_mul_i32 s3, s15, 6144\ns_add_u32 s3, s3, 1024\nv_add_u32 v{VW+1}, s3, v{VW+1}")
    else:
        a("v_bfe_u32 v4, v0, 2, 2\nv_and_b32 v5, 3, v0\nv_bfe_u32 v6, v0, 4, 1")
        a("v_lshl_add_u32 v4, v3, 2, v4" if rb == 192 else "v_lshl_add_u32 v4, v4, 1, v3")
        a(f"v_mul_u32_u24 v4, {rb}, v4\nv_lshl_add_u32 v4, v5, 3, v4\ns_mul_i32 s3, s15, 6144\nv_add_u32 v4, s3, v4")
        a(f"v_lshl_add_u32 v5, v6, 5, v4\ns_mul_i32 s3, s15, 96\nv_add_u32 v{VW}, s3, v5\ns_sub_u32 s3, 96, s3\nv_add_u32 v{VW+2}, s3, v5")
        if rb == 192:
            a(f"v_xor_b32 v6, s15, v6\nv_mul_u32_u24 v6, 96, v6\nv_add_u32 v6, 64, v6\nv_add_u32 v{VW+1}, v4, v6")
        else:
            a(f"v_add_u32 v{VW+1}, 64, v4")
    a(f"s_lshl_b32 s3, s14, 11\ns_add_u32 s3, s3, 12288\nv_add_u32 v{VW+3}, s3, v1")
    for i in range(4): a(f"v_add_u32 v{VW+4+i}, {3*STG}, v{VW+i}")

def read_ops(a, s, areg):
    slot = s % NS; hi, sl = (4, slot - 3) if slot >= 3 else (0, slot)
    ra, rw = [], []
    if areg is not None:
        for q in range(2):
            ra.append(lambda q=q: a.lg(f"ds_read_b128 v[{areg+4*q}:{areg+4*q+3}], v{VW+3+hi} offset:{sl*STG + q*1024}", ("a", s)))
    for q in range(2):
        for t in range(3):
            r = WS0 + 24*(s % 2) + 12*q + 4*t; o = sl*STG + q*3072
            if a.rb == 0:
                rw.append(lambda r=r, t=t, o=o: a.lg(f"ds_read_b128 v[{r}:{r+3}], v{VW+t+hi} offset:{o}", ("w", s)))
            else:
                def f(r=r, t=t, o=o):
                    a.lg(f"ds_read_b64_tr_b16 v[{r}:{r+1}], v{VW+t+hi} offset:{o}", ("w", s))
                    a.lg(f"ds_read_b64_tr_b16 v[{r+2}:{r+3}], v{VW+t+hi} offset:{o + 8*a.rb}", ("w", s))
                rw.append(f)
    return ra, rw

def mfma_ops(a, wset, areg, first):
    ops = []
    for q in range(2):
        for t in range(3):
            r = ACC + 16*t; w = WS0 + 24*wset + 12*q + 4*t; b = areg + 4*q
            c = "0" if (first and q == 0) else f"v[{r}:{r+15}]"
            ops.append(lambda r=r, w=w, b=b, c=c: a(f"v_mfma_f32_32x32x16_bf16 v[{r}:{r+15}], v[{w}:{w+3}], v[{b}:{b+3}], {c}"))
    return ops

def transform_ops(a, F, P, rr, nm, t=232):
    ops = []
    for d in range(4):
        x, y = t + 2*(d % 2), t + 2*(d % 2) + 1
        L = [f"v_lshlrev_b32 v{x}, 16, v{F+d}", f"v_and_b32 v{y}, 0xffff0000, v{F+d}",
             f"v_fma_f32 v{x}, v{x}, v{rr}, v{nm}", f"v_fma_f32 v{y}, v{y}, v{rr}, v{nm}",
             f"v_fma_f32 v{x}, v{x}, v{P+8+2*d}, v{P+2*d}", f"v_fma_f32 v{y}, v{y}, v{P+9+2*d}, v{P+1+2*d}", f"v_cvt_pk_bf16_f32 v{F+d}, v{x}, v{y}"]
        ops += [(lambda l=l: a(l)) for l in L]
    return ops

def merge(*lists):
    items = []
    for li, L in enumerate(lists):
        n = len(L)
        for i, op in enumerate(L): items.append(((i + 0.5 * (li > 0)) / n, li, i, op))
    items.sort(key=lambda x: (x[0], x[1], x[2]))
    return [x[3] for x in items]
def run(ops):
    for op in ops: op()

def param_base(a):
    a(f"s_mul_i32 s3, s15, 1280\ns_add_u32 s3, s3, {PAR}\nv_lshlrev_b32 v6, 4, v3\nv_add_u32 v6, s3, v6")
def param_ops(a, ks):
    ops = []
    for arr in range(2):
        P = PR + 16*(ks % 2) + 8*arr; off = arr*2560 + ks*64
        ops.append(lambda P=P, off=off: a.lg(f"ds_read_b128 v[{P}:{P+3}], v6 offset:{off}", ("p", ks)))
        ops.append(lambda P=P, off=off: a.lg(f"ds_read_b128 v[{P+4}:{P+7}], v6 offset:{off+32}", ("p", ks)))
    return ops

def exchange(a, R):
    a(f"s_mul_i32 s3, s14, 6144\ns_add_u32 s3, s3, {EX}\nv_add_u32 v4, s3, v1\ns_xor_b32 s3, s14, 2\ns_mul_i32 s3, s3, 6144\ns_add_u32 s3, s3, {EX}\nv_add_u32 v5, s3, v1\ns_nop 4")
    for i in range(6): a(f"ds_write_b128 v4, v[{ACC+24+4*i}:{ACC+27+4*i}] offset:{i*1024}")
    a.wait_all_lg()
    a("s_barrier")
    for j in range(3):
        for h in range(2):
            a(f"ds_read_b128 v[{R+8*j+4*h}:{R+8*j+4*h+3}], v5 offset:{((j+1)%3)*2048 + h*1024}")
    for j in range(3):
        a(f"s_waitcnt lgkmcnt({4-2*j})")
        for i in range(8): a(f"v_add_f32 v{ACC+8*j+i}, v{ACC+8*j+i}, v{R+8*j+i}")

def c_start(a, areg_of, xf=None):
    a("s_barrier")
    stamp(a, 3)
    ra, rw = read_ops(a, 0, areg_of(0))
    run(ra)
    if xf:
        n, rr, nm = xf
        run(param_ops(a, 0)); run(param_ops(a, 1)); run(rw)
        a.wait(lg=[("a", 0), ("p", 0)])
        run(transform_ops(a, areg_of(0), PR, rr, nm))
        a.wait(lg=[("p", 1)])
        run(merge(transform_ops(a, areg_of(0) + 4, PR + 16, rr, nm), param_ops(a, 2)))
    else:
        run(rw)

def c_iter(a, s, first, total, areg_of, xf=None, load_a=True):
    ra, rw = [], []
    if s + 1 < total:
        a("s_barrier")
        ra, rw = read_ops(a, s + 1, areg_of(s + 1) if load_a else None)
    mf = mfma_ops(a, s % 2, areg_of(s), first)
    if os.environ.get("X_NORD"): ra, rw = [], []
    if os.environ.get("X_NOMFMA"): mf = [lambda: a("s_nop 0")] * 6
    if os.environ.get("X_NOXF"): xf = None
    if xf and s + 1 < xf[0]:
        n, rr, nm = xf
        k0 = 2*(s+1)
        run(ra); run(param_ops(a, k0 + 1))
        a.wait(lg=[("w", s)])
        run(merge(mf[:2], rw[:2]))
        a.wait(lg=[("a", s+1), ("p", k0)])
        run(merge(transform_ops(a, areg_of(s+1), PR, rr, nm), mf[2:4], rw[2:4]))
        a.wait(lg=[("p", k0 + 1)])
        nxt = param_ops(a, k0 + 2) if s + 2 < n else []
        run(merge(transform_ops(a, areg_of(s+1) + 4, PR + 16, rr, nm), mf[4:], rw[4:] + nxt))
    else:
        a.wait(lg=[("w", s), ("a", s)])
        run(merge(mf, ra + rw))

class Loader:
    def __init__(self, a, act_base, nks, wmode, wbase=None, wblocks=1, ka_sreg=None, rs=0, nbytes=0, colbytes=0, col0=0):
        self.a, self.wmode = a, wmode
        a(f"L_{a.name}_loader:")
        a.vmq = []; a.lgq = []
        a(f"s_and_b32 s3, s14, 3\ns_mul_i32 s20, s3, 3072\ns_lshl_b32 s21, s3, 11\ns_add_u32 s21, s21, 12288")
        a(f"s_mul_i32 s18, s16, {nks*1024}\ns_mul_i32 s3, s15, {nks*512}\ns_add_u32 s18, s18, s3\ns_add_u32 s18, s18, {act_base:#x}")
        if wmode == 0:
            a(f"s_mul_i32 s19, s13, {wblocks*nks*3072}\ns_mul_i32 s3, s15, {nks*1536}\ns_add_u32 s19, s19, s3\ns_mul_i32 s3, s17, 3072\ns_add_u32 s19, s19, s3\ns_add_u32 s19, s19, {wbase:#x}")
            self.wstep, self.wsrd, self.wv = 6144, 8, (1, 1, 1)
        else:
            cpr = wmode // 16
            a(f"s_mul_i32 s19, s15, {nks*8*rs}\ns_mul_i32 s3, s17, {16*rs}\ns_add_u32 s19, s19, s3\ns_mul_i32 s3, s13, {colbytes}\ns_add_u32 s19, s19, s3\ns_add_u32 s19, s19, {col0}")
            a("v_and_b32 v4, 63, v0")
            for i in range(3):
                a(f"v_add_u32 v5, {64*i}, v4\nv_mul_u32_u24 v6, {(1 << 16) // cpr + 1}, v5\nv_lshrrev_b32 v6, 16, v6\nv_mul_u32_u24 v7, {cpr}, v6\nv_sub_u32 v7, v5, v7")
                if wmode == 160:
                    a("v_and_b32 v8, 8, v6\nv_and_b32 v9, 1, v6\nv_lshl_add_u32 v8, v9, 2, v8\nv_bfe_u32 v9, v6, 1, 2\nv_add_u32 v6, v8, v9")
                a(f"v_mul_u32_u24 v6, {rs}, v6\nv_lshl_add_u32 v{10+i}, v7, 4, v6")
                if i: a(f"v_subrev_u32 v{10+i}, {1024*i}, v{10+i}")
                if wmode == 160 and i == 2:
                    a(f"v_mov_b32 v8, {OOB:#x}\nv_cmp_gt_u32 vcc, 32, v4\ns_nop 1\nv_cndmask_b32 v12, v8, v12, vcc")
            self.wstep, self.wsrd, self.wv = 32 * rs, 40, (10, 11, 12)
        a("s_waitcnt lgkmcnt(0)")
        srd(a, 8, 4, WS_SIZE)
        if wmode: srd(a, 40, ka_sreg, nbytes)
        stamp(a, 1)
    def dma1(self, lds_off, goff_expr_sreg, tag):
        a = self.a
        a(f"s_mov_b32 m0, {lds_off}\ns_nop 0")
        a.vm(f"buffer_load_dwordx4 v1, s[8:11], s{goff_expr_sreg} offen lds", tag)
    def params(self, mod_off):
        a = self.a
        a(f"s_and_b32 s3, s14, 3\ns_lshl_b32 s3, s3, 10\ns_add_u32 m0, s3, {PAR}\ns_add_u32 s6, s3, {WS_MOD + mod_off}")
        a.vm("buffer_load_dwordx4 v1, s[8:11], s6 offen lds", "par")
        a(f"s_mov_b32 s6, {WS_MOD + mod_off + 4096}")
        self.dma1(PAR + 4096, 6, "par")
    def issue(self, s, with_a=True):
        a = self.a; slot = s % NS
        if with_a:
            a(f"s_add_u32 m0, s21, {slot*STG}\ns_nop 0")
            for q in range(2): a.vm(f"buffer_load_dwordx4 v1, s[8:11], s18 offen offset:{q*1024} lds", ("st", s))
            a("s_add_u32 s18, s18, 2048")
        a(f"s_add_u32 m0, s20, {slot*STG}\ns_nop 0")
        for i in range(3): a.vm(f"buffer_load_dwordx4 v{self.wv[i]}, s[{self.wsrd}:{self.wsrd+3}], s19 offen offset:{i*1024} lds", ("st", s))
        a(f"s_add_u32 s19, s19, {self.wstep}")
    def start(self, issue):
        issue(0); issue(1)
        stamp(self.a, 2)
    def step(self, s, total, issue):
        a = self.a
        a.wait(vm=[("st", s)])
        a("s_barrier")
        if s == 0:
            for t in range(2, DEP): issue(t)
        if s + DEP < total: issue(s + DEP)

def prefetch(a, srdn, base, nbytes, nw, widx, vdst, vtmp, st):
    per_wg = -(-nbytes // 32 // 128) * 128
    per_wave = -(-per_wg // (8192 * nw))
    a(f"s_lshr_b32 s{st}, s2, 3\ns_mul_i32 s{st}, s{st}, {per_wg}\ns_mul_i32 s{st+1}, s{widx}, {per_wave*8192}\ns_add_u32 s{st}, s{st}, s{st+1}\ns_add_u32 s{st}, s{st}, {base:#x}\nv_lshlrev_b32 v{vtmp}, 3, v1")
    for i in range(per_wave):
        a.vm(f"buffer_load_dword v{vdst}, v{vtmp}, s[{srdn}:{srdn+3}], s{st} offen")
        if i < per_wave - 1: a(f"s_add_u32 s{st}, s{st}, 8192")

def unit_off(a, d, per_nb, base):
    a(f"s_lshl_b32 s{d}, s16, 3\ns_add_u32 s{d}, s{d}, s13\ns_mul_i32 s{d}, s{d}, {per_nb}\ns_mul_i32 s6, s15, 3\ns_add_u32 s{d}, s{d}, s6\ns_lshl_b32 s{d}, s{d}, 10\ns_add_u32 s{d}, s{d}, {base:#x}")

def k1():
    a = K("k1")
    gemm_prologue(a)
    compute_addr(a, 0); param_base(a)
    RR, NM = 236, 237
    a(f"v_lshlrev_b32 v7, 3, v2\ns_lshl_b32 s6, s16, 8\ns_add_u32 s6, s6, {WS_ST0:#x}\ns_waitcnt lgkmcnt(0)")
    srd(a, 8, 4, WS_SIZE)
    stamp(a, 1)
    a(f"buffer_load_dwordx2 v[{RR}:{NM}], v7, s[8:11], s6 offen\ns_waitcnt vmcnt(0)")
    areg = lambda s: AF + 8*(s % 2)
    xf = (10, RR, NM)
    c_start(a, areg, xf)
    for s in range(10): c_iter(a, s, s == 0, 10, areg, xf)
    stamp(a, 4)
    T = WS0
    exchange(a, T)
    stamp(a, 5)
    R = ACC
    QS = LOG2E / math.sqrt(20.0)
    unit_off(a, 17, 5, WS_Q)
    a(f"s_mov_b32 s7, {f32(QS)}")
    def qunit(i):
        for j in range(8): a(f"v_mul_f32 v{T+j}, s7, v{R+8*i+j}")
        for d in range(4): a(f"v_cvt_pk_bf16_f32 v{T+8+4*i+d}, v{T+2*d}, v{T+2*d+1}")
        a(f"buffer_store_dwordx4 v[{T+8+4*i}:{T+11+4*i}], v1, s[8:11], s17 offen offset:{i*1024}")
    qunit(0); qunit(1)
    lsp = a.label("spare")
    a(f"s_cmp_eq_u32 s15, 1\ns_cbranch_scc1 {lsp}")
    qunit(2)
    a(f"s_branch L_k1_end\n{lsp}:")
    a("s_cmp_ge_u32 s13, 4\ns_cbranch_scc1 L_k1_end")
    S = R + 16
    a(f"s_lshr_b32 s6, s16, 3\ns_mul_i32 s17, s6, {KVCH}\ns_add_u32 s17, s17, {WS_KV:#x}\ns_and_b32 s18, s16, 7")
    l1, lv, l2 = a.label("k2"), a.label("v"), a.label("k2b")
    a(f"s_cmp_eq_u32 s13, 3\ns_cbranch_scc0 {l1}\nv_mov_b32 v{S+4}, 1.0\ns_mov_b32 exec_lo, 0\nv_mov_b32 v{S}, 1.0\ns_mov_b32 exec_lo, -1\n{l1}:")
    for d in range(4): a(f"v_cvt_pk_bf16_f32 v{T+d}, v{S+2*d}, v{S+2*d+1}")
    a(f"s_cmp_ge_u32 s13, 2\ns_cbranch_scc1 {lv}\ns_cmp_eq_u32 s13, 1\ns_cbranch_scc1 {l2}")
    a(f"s_lshl_b32 s18, s18, 10\ns_add_u32 s17, s17, s18\nbuffer_store_dwordx4 v[{T}:{T+3}], v1, s[8:11], s17 offen\ns_branch L_k1_end")
    a(f"{l2}:\ns_lshl_b32 s18, s18, 8\ns_add_u32 s17, s17, s18\ns_add_u32 s17, s17, 24576\nv_lshrrev_b32 v4, 2, v1\nbuffer_store_dword v{T}, v4, s[8:11], s17 offen\ns_branch L_k1_end")
    a(f"{lv}:")
    a(f"s_lshl_b32 s3, s14, 11\nv_lshlrev_b32 v4, 5, v2\nv_lshl_add_u32 v4, v3, 3, v4\nv_add_u32 v4, s3, v4")
    a(f"ds_write_b64 v4, v[{T}:{T+1}]\nds_write_b64 v4, v[{T+2}:{T+3}] offset:16")
    a("v_lshrrev_b32 v4, 4, v1\nv_and_b32 v5, 15, v4\nv_lshrrev_b32 v4, 4, v4")
    a("v_and_b32 v6, 1, v4\nv_lshlrev_b32 v6, 4, v6\nv_lshl_add_u32 v6, v3, 2, v6\nv_lshrrev_b32 v7, 2, v5\nv_add_u32 v6, v6, v7\nv_lshlrev_b32 v6, 5, v6\nv_and_b32 v7, 3, v5\nv_lshl_add_u32 v6, v7, 3, v6\nv_add_u32 v6, s3, v6")
    a("s_waitcnt lgkmcnt(0)")
    a(f"ds_read_b64_tr_b16 v[{T+4}:{T+5}], v6\nds_read_b64_tr_b16 v[{T+6}:{T+7}], v6 offset:256")
    a("v_and_b32 v6, 1, v4\nv_lshlrev_b32 v6, 10, v6\nv_lshl_add_u32 v6, v3, 9, v6\nv_lshl_add_u32 v6, v5, 4, v6")
    a(f"s_lshl_b32 s18, s18, 11\ns_add_u32 s17, s17, s18\ns_add_u32 s17, s17, 8192\ns_cmp_eq_u32 s13, 2\ns_cselect_b32 s6, 256, 0\ns_add_u32 s17, s17, s6")
    a(f"s_waitcnt lgkmcnt(0)\nbuffer_store_dwordx4 v[{T+4}:{T+7}], v6, s[8:11], s17 offen")
    a("s_branch L_k1_end")
    L = Loader(a, WS_XH, 40, 0, wbase=WS_WQKV)
    L.params(0)
    L.start(L.issue)
    for s in range(10): L.step(s, 10, L.issue)
    end(a)
    finish(a, 256, 512, LDS_G, 248)

SLOT, NSL, DEP6 = 20480, 6, 4
PAR6 = NSL * SLOT
class G6:
    def __init__(self, kpst, nacc, g0=0):
        self.kpst, self.nacc, self.g0 = kpst, nacc, g0
        self.fs = kpst * (1 + nacc) * 4
        self.ACC, self.FR = 8, 8 + 16 * nacc
    def addr(self, a):
        a(f"s_mul_i32 s3, s17, {self.kpst*1024}\ns_add_u32 s3, s3, 12288\nv_add_u32 v4, s3, v1\nv_add_u32 v5, {3*SLOT}, v4")
        a(f"s_lshl_b32 s3, s15, 10\nv_add_u32 v6, s3, v1\nv_add_u32 v7, {3*SLOT}, v6")
    def reads(self, a, s):
        slot = (self.g0 + s) % NSL; hi, sl = (1, slot - 3) if slot >= 3 else (0, slot)
        F = self.FR + (s % 2) * self.fs
        ops = []
        for q in range(self.kpst):
            r = F + q * (1 + self.nacc) * 4
            ops.append(lambda r=r, q=q: a.lg(f"ds_read_b128 v[{r}:{r+3}], v{4+hi} offset:{sl*SLOT + q*1024}", ("f", s, q)))
            for n in range(self.nacc):
                rw = r + 4 + 4*n
                ops.append(lambda rw=rw, q=q, n=n: a.lg(f"ds_read_b128 v[{rw}:{rw+3}], v{6+hi} offset:{sl*SLOT + (q*self.nacc + n)*3072}", ("f", s, q)))
        return ops
    def start(self, a):
        a("s_barrier")
        run(self.reads(a, 0))
    def iter(self, a, s, first, total):
        rd = []
        if s + 1 < total:
            a("s_barrier")
            rd = self.reads(a, s + 1)
        F = self.FR + (s % 2) * self.fs
        per = len(rd) // self.kpst if rd else 0
        for q in range(self.kpst):
            a.wait(lg=[("f", s, q)])
            r = F + q * (1 + self.nacc) * 4
            for n in range(self.nacc):
                d = self.ACC + 16*n
                c = "0" if (first and q == 0) else f"v[{d}:{d+15}]"
                a(f"v_mfma_f32_32x32x16_bf16 v[{d}:{d+15}], v[{r+4+4*n}:{r+7+4*n}], v[{r}:{r+3}], {c}")
            run(rd[q*per:(q+1)*per])
    def lsetup(self, a, act_base, nks, w_base, sa, sw, sl, aflags=""):
        self.a, self.sa, self.sw, self.sl, self.af = a, sa, sw, sl, aflags
        k = self.kpst
        a(f"s_mul_i32 s{sl}, s15, {k*512}\ns_add_u32 s{sl}, s{sl}, 12288")
        a(f"s_mul_i32 s{sa}, s16, {nks*1024}\ns_and_b32 s3, s15, 1\ns_mul_i32 s3, s3, {k*512}\ns_add_u32 s{sa}, s{sa}, s3\ns_add_u32 s{sa}, s{sa}, {act_base:#x}")
        a(f"s_mul_i32 s{sw}, s13, {nks*3072*self.nacc}\ns_add_u32 s{sw}, s{sw}, s20\ns_add_u32 s{sw}, s{sw}, {w_base:#x}")
    def issue_a(self, s):
        a = self.a; slot = (self.g0 + s) % NSL
        a(f"s_add_u32 m0, s{self.sl}, {slot*SLOT}\ns_nop 0")
        for q in range(self.kpst // 2): a.vm(f"buffer_load_dwordx4 v1, s[8:11], s{self.sa} offen offset:{q*1024} {self.af} lds", ("st", self.g0 + s))
        a(f"s_add_u32 s{self.sa}, s{self.sa}, {self.kpst*1024}")
    def issue_w(self, s):
        a = self.a; slot = (self.g0 + s) % NSL
        a(f"s_add_u32 m0, s20, {slot*SLOT}\ns_nop 0")
        for i in range(3): a.vm(f"buffer_load_dwordx4 v1, s[8:11], s{self.sw} offen offset:{i*1024} lds", ("st", self.g0 + s))
        a(f"s_add_u32 s{self.sw}, s{self.sw}, 12288")
    def issue(self, s):
        self.issue_a(s); self.issue_w(s)
    def lstep(self, s, total, nxt=None):
        a = self.a
        a.wait(vm=[("st", self.g0 + s)])
        a("s_barrier")
        if s + DEP6 < total: self.issue(s + DEP6)
        elif nxt is not None: nxt.issue_w(s + DEP6 - total)

def g6_prologue(a, extra=""):
    common_prologue(a, extra)
    a(f"s_cmp_ge_u32 s14, 6\ns_cbranch_scc1 L_{a.name}_loader")
    a("s_cmp_ge_u32 s14, 3\ns_cselect_b32 s17, 1, 0\ns_mul_i32 s3, s17, 3\ns_sub_u32 s15, s14, s3\ns_lshl_b32 s16, s12, 1\ns_add_u32 s16, s16, s17")
def g6_loader_entry(a):
    a(f"L_{a.name}_loader:")
    a.vmq = []; a.lgq = []
    a("s_sub_u32 s15, s14, 6\ns_mul_i32 s20, s15, 3072\ns_lshl_b32 s16, s12, 1\ns_lshr_b32 s3, s15, 1\ns_add_u32 s16, s16, s3")
def dma1(a, lds_off, sreg, tag, imm=0):
    a(f"s_mov_b32 m0, {lds_off}\ns_nop 0")
    a.vm(f"buffer_load_dwordx4 v1, s[8:11], s{sreg} offen offset:{imm} lds", tag)
def xid_publish(a, base):
    l = a.label("xid")
    a(f"s_cmp_lg_u32 s14, 6\ns_cbranch_scc1 {l}\ns_lshl_b32 s3, s12, 8\ns_lshl_b32 s6, s13, 2\ns_add_u32 s3, s3, s6\ns_add_u32 s3, s3, {base:#x}\ns_getreg_b32 s7, hwreg(HW_REG_XCC_ID, 0, 4)\ns_add_u32 s7, s7, 1\nv_mov_b32 v8, 0\nv_mov_b32 v9, s7\ns_mov_b64 exec, 1\nbuffer_store_dword v9, v8, s[8:11], s3 offen sc1\ns_mov_b64 exec, -1\n{l}:")
def xid_load(a, base, v):
    a(f"s_lshl_b32 s3, s12, 8\ns_add_u32 s3, s3, {base:#x}\nv_and_b32 v{v}, 7, v0\nv_lshlrev_b32 v{v}, 2, v{v}")
    a.vm(f"buffer_load_dword v{v}, v{v}, s[8:11], s3 offen sc1", "epi")
def pretouch(a, v, items):
    a(f"v_lshlrev_b32 v{v}, 3, v1")
    for sreg, n in items:
        a(f"s_mov_b64 exec, {(1 << n) - 1:#x}")
        a.vm(f"buffer_load_dword v{v+1}, v{v}, s[8:11], s{sreg} offen sc1", "epi")
    a("s_mov_b64 exec, -1")
def xid_decide(a, v):
    a(f"s_getreg_b32 s36, hwreg(HW_REG_XCC_ID, 0, 4)\ns_add_u32 s36, s36, 1\nv_cmp_ne_u32 vcc, s36, v{v}\ns_nop 1\ns_cmp_eq_u64 vcc, 0\ns_cselect_b32 s37, {XFAST}, 0")
def hstore(a, text):
    l1, l2 = a.label("hs"), a.label("hd")
    a(f"s_cmp_eq_u32 s37, 1\ns_cbranch_scc1 {l1}\n{text} sc1\ns_branch {l2}\n{l1}:")
    a.vm(text)
    a(f"{l2}:")
AFL = os.environ.get("X_AFL", "sc1")
XFAST = int(os.environ.get("X_FAST", "1"))
def flag_addr(a, base):
    a(f"s_lshl_b32 s38, s12, 8\ns_mul_i32 s6, s13, 6\ns_add_u32 s6, s6, s14\ns_lshl_b32 s6, s6, 2\ns_add_u32 s38, s38, s6\ns_add_u32 s38, s38, {base+32:#x}")
def handoff_publish(a, base):
    a("v_mov_b32 v8, 0\nv_mov_b32 v9, 1\ns_mov_b64 exec, 1")
    stamp(a, 10)
    a("s_waitcnt vmcnt(0)")
    hstore(a, "buffer_store_dword v9, v8, s[8:11], s38 offen")
    a("s_mov_b64 exec, -1")
    a.vmq = []
def handoff_wait(a, base, n=48):
    lp, lo = a.label("hp"), a.label("ho")
    a(f"s_lshl_b32 s3, s12, 8\ns_add_u32 s3, s3, {base+32:#x}\nv_lshrrev_b32 v8, 2, v1\nv_min_u32 v8, {(n-1)*4}, v8\ns_mov_b32 s29, 0x8000")
    a(f"{lp}:\nbuffer_load_dword v9, v8, s[8:11], s3 offen sc1\ns_waitcnt vmcnt(0)\nv_cmp_eq_u32 vcc, 0, v9\ns_sub_u32 s29, s29, 1\ns_cbranch_scc1 {lo}\ns_cbranch_vccnz {lp}\n{lo}:")
    a.vmq = []

def unit_off6(a, d, per_nb, base):
    a(f"s_lshl_b32 s{d}, s16, 3\ns_add_u32 s{d}, s{d}, s13\ns_mul_i32 s{d}, s{d}, {per_nb}\ns_lshl_b32 s6, s15, 1\ns_add_u32 s{d}, s{d}, s6\ns_lshl_b32 s{d}, s{d}, 10\ns_add_u32 s{d}, s{d}, {base:#x}")

def stats_addr(a, base, st):
    a(f"s_mul_i32 s7, s13, 3\ns_add_u32 s7, s7, s15\ns_mul_i32 s{st}, s16, 6144\ns_lshr_b32 s3, s7, 1\ns_lshl_b32 s3, s3, 9\ns_add_u32 s{st}, s{st}, s3\ns_and_b32 s3, s7, 1\ns_lshl_b32 s3, s3, 3\ns_add_u32 s{st}, s{st}, s3\ns_add_u32 s{st}, s{st}, {base:#x}")
def stats_store(a, V, st, flags=""):
    a(f"v_mov_b32 v{V+2}, v{V}\nv_mov_b32 v{V+3}, v{V+1}\ns_nop 1\nv_permlane32_swap_b32 v{V}, v{V+2}\nv_permlane32_swap_b32 v{V+1}, v{V+3}\ns_nop 1\nv_add_f32 v{V}, v{V}, v{V+2}\nv_add_f32 v{V+1}, v{V+1}, v{V+3}\nv_max_f32 v{V+1}, 0, v{V+1}")
    a("s_mov_b32 exec_hi, 0")
    hstore(a, f"buffer_store_dwordx2 v[{V}:{V+1}], v1, s[8:11], s{st} offen")
    a("s_mov_b32 exec_hi, -1")
def stats_load(a, D, st, tag, flags=""):
    for i in range(6): a.vm(f"buffer_load_dwordx4 v[{D+4*i}:{D+4*i+3}], v1, s[8:11], s{st + i//4} offen offset:{1024*(i%4)} {flags}", tag)
def stats_base(a, st, base):
    a(f"s_mul_i32 s{st}, s16, 6144\ns_add_u32 s{st}, s{st}, {base:#x}\ns_add_u32 s{st+1}, s{st}, 4096")
def stats_finish(a, D, n, rr, nm):
    for i in range(1, 12): a(f"v_add_f32 v{D}, v{D}, v{D+2*i}\nv_add_f32 v{D+1}, v{D+1}, v{D+2*i+1}")
    a(f"v_mov_b32 v{D+2}, v{D}\nv_mov_b32 v{D+3}, v{D+1}\ns_nop 1\nv_permlane32_swap_b32 v{D}, v{D+2}\nv_permlane32_swap_b32 v{D+1}, v{D+3}\ns_nop 1\nv_add_f32 v{D}, v{D}, v{D+2}\nv_add_f32 v{D+1}, v{D+1}, v{D+3}")
    a(f"v_mul_f32 v{D}, {f32(1/n)}, v{D}\nv_mul_f32 v{D+1}, {f32(1/n)}, v{D+1}\nv_fma_f32 v{D+1}, -v{D}, v{D}, v{D+1}\nv_max_f32 v{D+1}, 0, v{D+1}\nv_add_f32 v{D+1}, {f32(1e-5)}, v{D+1}\nv_rsq_f32 v{rr}, v{D+1}\ns_nop 0\nv_mul_f32 v{nm}, v{D}, v{rr}\nv_sub_f32 v{nm}, 0, v{nm}")

def proj_epilogue(a, g, final, G, XR, T, ST, gaddr, oaddr):
    a.wait(vm=["epi"])
    a("s_waitcnt lgkmcnt(0)"); a.lgq = []
    if not final: a("s_nop 8")
    else: a("s_nop 8")
    R = g.ACC
    lskip = a.label("skip")
    for i in range(2):
        if i == 1: a(f"s_cmp_eq_u32 s15, 2\ns_cbranch_scc1 {lskip}")
        for d in range(4):
            x = XR + 4*i + d; r = R + 8*i + 2*d; gg = G + 8*i + 2*d; t = T + 2*(d % 2)
            a(f"v_lshlrev_b32 v{t}, 16, v{x}\nv_and_b32 v{t+1}, 0xffff0000, v{x}\nv_fmac_f32 v{t}, v{gg}, v{r}\nv_fmac_f32 v{t+1}, v{gg+1}, v{r+1}")
            if not final:
                a(f"v_add_f32 v{ST}, v{ST}, v{t}\nv_fmac_f32 v{ST+1}, v{t}, v{t}\nv_add_f32 v{ST}, v{ST}, v{t+1}\nv_fmac_f32 v{ST+1}, v{t+1}, v{t+1}")
            a(f"v_cvt_pk_bf16_f32 v{T+4+4*i+d}, v{t}, v{t+1}")
        o = T + 4 + 4*i
        if final:
            a(f"s_nop 1\nv_permlane32_swap_b32 v{o}, v{o+2}\nv_permlane32_swap_b32 v{o+1}, v{o+3}\nbuffer_store_dwordx4 v[{o}:{o+3}], v{oaddr}, s[24:27], s28 offen offset:{32*i}")
        else:
            hstore(a, f"buffer_store_dwordx4 v[{o}:{o+3}], v1, s[8:11], s22 offen offset:{1024*i}")
    a(f"{lskip}:")

GC1 = -2.0 * LOG2E * math.sqrt(2.0 / math.pi)
GC2 = GC1 * 0.044715
def gelu(a, regs, t0, c1):
    for i, r in enumerate(regs): a(f"v_mul_f32 v{t0+i}, v{r}, v{r}")
    for i, r in enumerate(regs): a(f"v_fma_f32 v{t0+i}, v{t0+i}, s28, v{c1}")
    for i, r in enumerate(regs): a(f"v_mul_f32 v{t0+i}, v{t0+i}, v{r}")
    for i, r in enumerate(regs): a(f"v_exp_f32 v{t0+i}, v{t0+i}")
    for i, r in enumerate(regs): a(f"v_add_f32 v{t0+i}, 1.0, v{t0+i}")
    for i, r in enumerate(regs): a(f"v_rcp_f32 v{t0+i}, v{t0+i}")
    for i, r in enumerate(regs): a(f"v_mul_f32 v{r}, v{r}, v{t0+i}")

ZROW = 208
def k56():
    a = K("k56"); g = G6(4, 1); h = G6(4, 1, 32)
    g6_prologue(a, f"s_load_dwordx2 s[32:33], s[0:1], {KA['b_sp']}\ns_load_dwordx2 s[34:35], s[0:1], {KA['out']}")
    g.addr(a)
    Z, B, T = 88, 96, 100
    G, XR = 112, 128
    unit_off6(a, 28, 6, 0)
    unit_off6(a, 23, 5, WS_X1)
    flag_addr(a, WS_FL2)
    a(f"s_add_u32 s29, s28, {WS_Y:#x}\ns_add_u32 s28, s28, {WS_Z1:#x}\nv_lshlrev_b32 v97, 1, v2\ns_lshl_b32 s6, s16, 6\ns_waitcnt lgkmcnt(0)")
    srd(a, 8, 4, WS_SIZE); srd(a, 24, 32, 4096)
    stamp(a, 1)
    for i in range(16): a(f"v_mov_b32 v{g.ACC+i}, 0")
    g.start(a)
    stamp(a, 2)
    for i in range(2): a.vm(f"buffer_load_dwordx4 v[{Z+4*i}:{Z+4*i+3}], v1, s[8:11], s28 offen offset:{1024*i}", "z")
    a.vm(f"buffer_load_ushort v{B}, v97, s[24:27], s6 offen", "z")
    for i in range(2): a.vm(f"buffer_load_dwordx4 v[{XR+4*i}:{XR+4*i+3}], v1, s[8:11], s23 offen offset:{1024*i}", "epi")
    a("s_mov_b32 s30, 5\nL_k56_loop:")
    xid_load(a, WS_FL2, 140)
    for s in range(6): g.iter(a, s, False, 32)
    a("s_waitcnt vmcnt(0)\ns_sub_u32 s30, s30, 1\ns_cmp_lg_u32 s30, 0\ns_cbranch_scc1 L_k56_loop")
    a.vmq = []
    a.lgq = [(t[0], t[1] + 24, t[2]) if isinstance(t, tuple) else t for t in a.lgq]
    xid_decide(a, 140)
    a(f"v_lshlrev_b32 v{B}, 16, v{B}")
    for s in range(30, 32): g.iter(a, s, False, 32)
    stamp(a, 3)
    R = g.ACC
    a("s_nop 11")
    for i in range(2):
        for d in range(4):
            z = Z + 4*i + d; r = R + 8*i + 2*d; t = T + 2*(d % 2)
            a(f"v_add_f32 v{r}, v{r}, v{B}\nv_add_f32 v{r+1}, v{r+1}, v{B}\nv_lshlrev_b32 v{t}, 16, v{z}\nv_and_b32 v{t+1}, 0xffff0000, v{z}\nv_mul_f32 v{r}, v{r}, v{t}\nv_mul_f32 v{r+1}, v{r+1}, v{t+1}\nv_cvt_pk_bf16_f32 v{T+4+4*i+d}, v{r}, v{r+1}")
        hstore(a, f"buffer_store_dwordx4 v[{T+4+4*i}:{T+7+4*i}], v1, s[8:11], s29 offen offset:{1024*i}")
    handoff_publish(a, WS_FL2)
    srd(a, 24, 34, 2048 * 1280)
    a(f"s_lshl_b32 s3, s15, 7\ns_add_u32 s3, s3, {PAR6}\nv_lshlrev_b32 v136, 4, v3\nv_add_u32 v136, s3, v136")
    a(f"v_mul_u32_u24 v137, 1280, v2\nv_lshl_add_u32 v137, v3, 4, v137\ns_mul_i32 s28, s16, {32*1280}\ns_mul_i32 s6, s13, 160\ns_add_u32 s28, s28, s6\ns_lshl_b32 s6, s15, 6\ns_add_u32 s28, s28, s6")
    stamp(a, 4)
    h.start(a)
    stamp(a, 5)
    for s in range(12):
        h.iter(a, s, s == 0, 12)
        if s == 9:
            for i in range(4): a.lg(f"ds_read_b128 v[{G+4*i}:{G+4*i+3}], v136 offset:{32*i}")
    stamp(a, 6)
    proj_epilogue(a, h, True, G, XR, 100, None, 136, 137)
    a("s_branch L_k56_end")
    g6_loader_entry(a)
    g.lsetup(a, WS_WSP, 128, WS_Z2T, 18, 19, 21)
    h.lsetup(a, WS_Y, 48, WS_WOUT, 22, 23, 26, AFL)
    a(f"s_mul_i32 s6, s13, 320\ns_add_u32 s6, s6, {WS_MOD + 12800}\ns_waitcnt lgkmcnt(0)")
    srd(a, 8, 4, WS_SIZE)
    stamp(a, 1)
    dma1(a, PAR6, 6, "par")
    xid_publish(a, WS_FL2)
    g.issue(0); g.issue(1)
    a.wait(vm=[("st", 0)]); a("s_barrier")
    g.issue(2); g.issue(3); g.issue(4)
    g.lstep(1, 32)
    a("s_mov_b32 s30, 4\nL_k56_lloop:")
    for s in range(2, 8): g.lstep(s, 32)
    a("s_sub_u32 s30, s30, 1\ns_cmp_lg_u32 s30, 0\ns_cbranch_scc1 L_k56_lloop")
    a.vmq = [(t[0], t[1] + 18) if isinstance(t, tuple) else t for t in a.vmq]
    for s in range(26, 32): g.lstep(s, 32, h)
    handoff_wait(a, WS_FL2)
    stamp(a, 4)
    for s in range(DEP6): h.issue_a(s)
    for s in range(12): h.lstep(s, 12)
    end(a)
    finish(a, 256, 640, PAR6 + 1024, 144)

def phase_ab_compute(a, g, h):
    a("s_cmp_ge_u32 s14, 3\ns_cselect_b32 s17, 1, 0\ns_mul_i32 s3, s17, 3\ns_sub_u32 s15, s14, s3\ns_lshl_b32 s16, s12, 1\ns_add_u32 s16, s16, s17")
    a.vmq = []; a.lgq = []
    g.addr(a)
    G, XR, T, ST = 88, 104, 112, 124
    UTL = PAR6 + 1024
    unit_off6(a, 22, 5, 0)
    a(f"s_add_u32 s23, s22, {WS_XH:#x}\ns_add_u32 s22, s22, {WS_X1:#x}")
    a(f"s_lshl_b32 s3, s15, 7\ns_add_u32 s3, s3, {PAR6}\nv_lshlrev_b32 v128, 4, v3\nv_add_u32 v128, s3, v128")
    stats_addr(a, WS_ST1, 29)
    flag_addr(a, WS_FL1)
    g.start(a)
    stamp(a, 5)
    for i in range(2): a.vm(f"buffer_load_dwordx4 v[{XR+4*i}:{XR+4*i+3}], v1, s[8:11], s23 offen offset:{1024*i}", "epi")
    for s in range(10):
        g.iter(a, s, s == 0, 10)
        if s == 4: xid_load(a, WS_FL1, 129)
        if s == 7:
            for i in range(4): a.lg(f"ds_read_b128 v[{G+4*i}:{G+4*i+3}], v128 offset:{32*i}")
        if s == 8:
            a.wait(vm=["epi"])
            xid_decide(a, 129)
            a(f"v_mov_b32 v{ST}, 0\nv_mov_b32 v{ST+1}, 0")
    stamp(a, 6)
    proj_epilogue(a, g, False, G, XR, T, ST, 128, None)
    stats_store(a, ST, 29, "sc1")
    handoff_publish(a, WS_FL1)
    SD, U, T, RR, NM, C1, ST = 88, 40, 72, 112, 113, 114, 116
    h.addr(a)
    stats_base(a, 22, WS_ST1); stats_base(a, 30, WS_ST2)
    a(f"s_add_u32 s29, s29, {WS_ST2 - WS_ST1}")
    unit_off6(a, 26, 6, WS_Z1)
    a(f"s_lshl_b32 s3, s15, 8\ns_add_u32 s3, s3, {UTL}\nv_lshlrev_b32 v115, 5, v3\nv_add_u32 v115, s3, v115")
    a(f"s_mov_b32 s28, {f32(GC2)}\nv_mov_b32 v{C1}, {f32(GC1)}")
    h.start(a)
    stamp(a, 7)
    stats_load(a, SD, 22, "ln", AFL)
    for s in range(20):
        h.iter(a, s, s == 0, 20)
        if s == 8:
            a.wait(vm=["ln"])
            stats_finish(a, SD, 640, RR, NM)
    stamp(a, 8)
    def ut_reads(n):
        for u in range(2):
            for hf in range(2):
                for k in range(2):
                    r = U + 16*u + 8*hf + 4*k
                    a(f"ds_read_b128 v[{r}:{r+3}], v115 offset:{n*768 + u*128 + hf*64 + k*16}")
    def affine(n):
        A = h.ACC + 16*n
        for i in range(16): a(f"v_fma_f32 v{U+2*i+1}, v{U+2*i}, v{NM}, v{U+2*i+1}")
        for i in range(16): a(f"v_fma_f32 v{A+i}, v{A+i}, v{RR}, v{U+2*i+1}")
    Z2, Z1 = h.ACC, h.ACC + 16
    a("s_setprio 1")
    ut_reads(0)
    a("s_waitcnt lgkmcnt(0)\ns_nop 2")
    affine(0)
    ut_reads(1)
    gelu(a, list(range(Z2, Z2+16)), T, C1)
    a(f"v_mov_b32 v{ST}, 0\nv_mov_b32 v{ST+1}, 0")
    for i in range(16): a(f"v_add_f32 v{ST}, v{ST}, v{Z2+i}\nv_fmac_f32 v{ST+1}, v{Z2+i}, v{Z2+i}")
    stats_store(a, ST, 29, "sc1")
    a("s_setprio 0")
    a("s_waitcnt lgkmcnt(0)")
    affine(1)
    gelu(a, list(range(Z1, Z1+16)), T, C1)
    stats_load(a, SD, 30, "st2", "sc1")
    for i in range(2):
        for d in range(4): a(f"v_cvt_pk_bf16_f32 v{T+4*i+d}, v{Z1+8*i+2*d}, v{Z1+8*i+2*d+1}")
        a.vm(f"buffer_store_dwordx4 v[{T+4*i}:{T+4*i+3}], v1, s[8:11], s26 offen offset:{i*1024}")
    a(f"s_mul_i32 s6, s17, {32*ZROW}\ns_lshl_b32 s7, s15, 6\ns_add_u32 s6, s6, s7\nv_mul_u32_u24 v4, {ZROW}, v2\nv_lshl_add_u32 v4, v3, 3, v4\nv_add_u32 v4, s6, v4")
    a(f"v_bfe_u32 v5, v0, 2, 2\nv_lshl_add_u32 v5, v3, 3, v5\nv_mul_u32_u24 v5, {ZROW}, v5\nv_and_b32 v6, 3, v0\nv_lshl_add_u32 v5, v6, 3, v5\nv_bfe_u32 v6, v0, 4, 1\nv_lshl_add_u32 v5, v6, 5, v5\nv_add_u32 v5, s6, v5")
    a(f"s_lshl_b32 s6, s13, 7\ns_lshl_b32 s7, s16, 1\ns_add_u32 s6, s6, s7\ns_mul_i32 s6, s6, 3\ns_add_u32 s6, s6, s15\ns_lshl_b32 s6, s6, 10\ns_add_u32 s26, s6, {WS_Z2T:#x}")
    a.wait(vm=["st2"])
    a("s_mov_b32 s29, 0x4000")
    lp, lok = a.label("poll"), a.label("ok")
    a(f"{lp}:")
    a(f"v_or_b32 v{ST}, v{SD+1}, v{SD+3}")
    for i in range(2, 12): a(f"v_or_b32 v{ST}, v{ST}, v{SD+1+2*i}")
    a(f"v_cmp_gt_i32 vcc, 0, v{ST}\ns_sub_u32 s29, s29, 1\ns_cbranch_scc1 {lok}\ns_cbranch_vccz {lok}")
    stats_load(a, SD, 30, "st2", "sc1")
    a(f"s_waitcnt vmcnt(0)\ns_branch {lp}\n{lok}:")
    stamp(a, 9)
    stats_finish(a, SD, 768, RR, NM)
    for i in range(16): a(f"v_fma_f32 v{Z2+i}, v{Z2+i}, v{RR}, v{NM}")
    for i in range(8): a(f"v_cvt_pk_bf16_f32 v{T+8+i}, v{Z2+2*i}, v{Z2+2*i+1}")
    for i in range(4): a(f"ds_write_b64 v4, v[{T+8+2*i}:{T+9+2*i}] offset:{16*i}")
    a("s_waitcnt lgkmcnt(0)")
    for p in range(2):
        a(f"ds_read_b64_tr_b16 v[{U+4*p}:{U+4*p+1}], v5 offset:{16*p*ZROW}\nds_read_b64_tr_b16 v[{U+4*p+2}:{U+4*p+3}], v5 offset:{(16*p+4)*ZROW}")
    a("s_waitcnt lgkmcnt(0)")
    for p in range(2): a(f"buffer_store_dwordx4 v[{U+4*p}:{U+4*p+3}], v1, s[8:11], s26 offen offset:{3072*p}")
    a("s_branch L_k234_end")

def k234():
    K2T = os.environ.get("X_K2T"); SYNC = os.environ.get("X_SYNC", "bar")
    a = K("k234"); GA = G6(4, 1, 3); GB = G6(2, 2, 13)
    common_prologue(a, f"s_load_dwordx4 s[32:35], s[0:1], {KA['w_in']}\ns_load_dwordx2 s[36:37], s[0:1], {KA['wo']}\ns_load_dwordx2 s[38:39], s[0:1], {KA['w_out']}\ns_load_dwordx2 s[44:45], s[0:1], {KA['out']}")
    SA = [(8, 24), (40, 56)]; OO = [72, 88]; PP = [104, 112]; QQ1 = [120, 128]; QQ2 = [124, 132]
    KA_, KB_, V1, V2 = 136, 140, 144, 148
    VA, VB, VN, VNB, DUM, OA, CA = 4, 5, 6, 152, 153, 154, 160
    NB = 6
    FLAG = NB * KVCH
    a("s_mov_b32 s27, 0")
    a("s_cmp_ge_u32 s14, 6\ns_cbranch_scc1 L_k234_helper\ns_cmp_ge_u32 s14, 4\ns_cbranch_scc1 L_k234_idle")
    a("v_lshrrev_b32 v7, 2, v1")
    a("s_lshr_b32 s15, s14, 1\ns_and_b32 s16, s14, 1\ns_lshl_b32 s16, s16, 1\ns_lshl_b32 s17, s12, 1\ns_add_u32 s17, s17, s15")
    a(f"s_lshl_b32 s18, s17, 3\ns_add_u32 s18, s18, s13\ns_mul_i32 s18, s18, 5120\ns_add_u32 s18, s18, {WS_Q:#x}\ns_lshl_b32 s6, s16, 10\ns_add_u32 s19, s18, s6\ns_lshl_b32 s6, s16, 2\ns_add_u32 s18, s18, s6\ns_add_u32 s18, s18, 4096")
    a("s_waitcnt lgkmcnt(0)")
    srd(a, 8, 4, WS_SIZE)
    stamp(a, 1)
    for X in range(2):
        a(f"buffer_load_dwordx4 v[{QQ1[X]}:{QQ1[X]+3}], v1, s[8:11], s19 offen offset:{1024*X}\nbuffer_load_dword v{QQ2[X]}, v1, s[8:11], s18 offen offset:{4*X}")
    def qk1(X, S): return f"v_mfma_f32_32x32x16_bf16 v[{S}:{S+15}], v[{KB_}:{KB_+3}], v[{QQ2[X]}:{QQ2[X]+3}], 0"
    def qk2(X, S): return f"v_mfma_f32_32x32x16_bf16 v[{S}:{S+15}], v[{KA_}:{KA_+3}], v[{QQ1[X]}:{QQ1[X]+3}], v[{S}:{S+15}]"
    def pv(X, V, P): return f"v_mfma_f32_32x32x16_bf16 v[{OO[X]}:{OO[X]+15}], v[{V}:{V+3}], v[{P}:{P+3}], v[{OO[X]}:{OO[X]+15}]"
    def rKA(t, va): return f"ds_read_b128 v[{KA_}:{KA_+3}], v{va} offset:{t*1024}"
    def rKB(t, vb): return f"ds_read_b32 v{KB_}, v{vb} offset:{24576+t*256}"
    def rV(t, p, va): return f"ds_read_b128 v[{(V1, V2)[p]}:{(V1, V2)[p]+3}], v{va} offset:{8192+t*2048+p*1024}"
    def scores():
        for X in range(2): a(qk1(X, SA[X][0]))
        for X in range(2): a(qk2(X, SA[X][0]))
    def max_reduce():
        for X in range(2):
            for i in range(0, 16, 2): a(f"v_max3_f32 v{PP[X]}, v{SA[X][0]+i}, v{SA[X][0]+i+1}, v{PP[X]}")
    def finish_max():
        a("v_cmp_eq_u32 vcc, 0, v3")
        for X in range(2):
            M = PP[X]
            a(f"v_mov_b32 v{M+1}, v{M}\ns_nop 1\nv_permlane32_swap_b32 v{M}, v{M+1}\ns_nop 1\nv_max_f32 v{M}, v{M}, v{M+1}")
            a(f"v_and_b32 v{M+1}, 0xffff0000, v{M}\nv_sub_f32 v{M+2}, v{M}, v{M+1}\nv_and_b32 v{M+3}, 0xffff0000, v{M+2}\nv_sub_f32 v{M+2}, v{M+2}, v{M+3}")
            a(f"v_lshrrev_b32 v{M+1}, 16, v{M+1}\nv_or_b32 v{M+1}, v{M+1}, v{M+3}\nv_lshrrev_b32 v{M+2}, 16, v{M+2}")
            a(f"v_cndmask_b32 v{QQ2[X]+1}, 0, v{M+1}, vcc\nv_cndmask_b32 v{QQ2[X]+2}, 0, v{M+2}, vcc")
    def reset_max():
        for X in range(2): a(f"v_mov_b32 v{QQ2[X]+1}, 0\nv_mov_b32 v{QQ2[X]+2}, 0\nv_mov_b32 v{PP[X]}, 0xff800000")
    a(f"s_lshl_b32 s38, s12, 8\ns_lshl_b32 s6, s13, 2\ns_add_u32 s6, s6, s14\ns_lshl_b32 s6, s6, 2\ns_add_u32 s38, s38, s6\ns_add_u32 s38, s38, {WS_FL0+32:#x}\ns_mov_b32 s39, 0\ns_lshl_b32 s49, s14, 2\ns_add_u32 s49, s49, {FLAG}")
    reset_max()
    for r in (QQ2[0]+3, QQ2[1]+3, KB_+3): a(f"v_mov_b32 v{r}, 0")
    for r in (KB_+1, KB_+2): a(f"v_mov_b32 v{r}, 0xbf80bf80")
    def main_init():
        a(f"s_mov_b32 s24, 0\ns_mov_b32 s25, {KVCH}\nv_mov_b32 v{VNB}, {FLAG+68}\nv_mov_b32 v{VA}, v1\nv_mov_b32 v{VN}, v1\nv_mov_b32 v{VB}, v7")
        for X in range(2):
            for i in range(16): a(f"v_mov_b32 v{OO[X]+i}, 0")
            for i in range(4): a(f"v_mov_b32 v{SA[X][1]+12+i}, 0")
        for i in range(4): a(f"v_mov_b32 v{V2+i}, 0")
    main_init()
    a(f"s_mul_i32 s6, s13, 20\ns_mul_i32 s7, s16, 5\ns_add_u32 s6, s6, s7\ns_mul_i32 s22, s17, {40*1024}\ns_add_u32 s22, s22, {WS_O:#x}")
    for X in range(2):
        for i, g in enumerate((0, 2, 4)):
            a(f"v_add_u32 v8, s6, v3\nv_add_u32 v8, {5*X+g}, v8" if g < 4 else f"v_mov_b32 v8, s6\nv_add_u32 v8, {5*X+4}, v8")
            a(f"v_lshrrev_b32 v9, 2, v8\nv_lshlrev_b32 v9, 10, v9\nv_and_b32 v10, 1, v8\nv_lshl_add_u32 v9, v10, 9, v9\nv_bfe_u32 v10, v8, 1, 1\nv_lshl_add_u32 v9, v10, 3, v9\nv_lshl_add_u32 v{OA+3*X+i}, v2, 4, v9")
    a(f"v_mov_b32 v{CA}, {FLAG+32}\nv_mov_b32 v{CA+2}, 0\nv_add_u32 v{CA+3}, {FLAG+32}, v7\nds_write_b32 v{CA+3}, v{CA+2}\nv_mov_b32 v{CA+1}, 1")
    a("s_waitcnt vmcnt(0) lgkmcnt(0)\ns_barrier")
    stamp(a, 2)
    a(rKA(0, 1)); a(rKB(0, 7)); a("s_waitcnt lgkmcnt(0)")
    scores()
    a("s_nop 10")
    max_reduce()
    finish_max()
    a("L_k234_main:")
    for X in range(2):
        for i in range(2): a(f"v_mov_b32 v{PP[X]+4+i}, 0")
    scores()
    a(rKB(1, VB)); a(f"ds_read_b32 v{DUM}, v{VB}"); a(rKA(1, VA)); a(rV(0, 0, VA))
    a("s_nop 5")
    stamp(a, 3)
    slow = []
    a("L_k234_loop:")
    for t in range(8):
        kt, vt = (t + 2) % 8, (t + 1) % 8
        if PROF and os.environ.get("X_GT"):
            if t == 0: a("s_memtime s[80:81]")
            if t == 3: a("s_lshl_b32 m0, s24, 1\ns_nop 0\ns_movreld_b32 s56, s80")
        for gi in range(4):
            for X in range(2):
                S, Sp = (SA[X][0], SA[X][1]) if t % 2 == 0 else (SA[X][1], SA[X][0])
                P = PP[X]
                cv, mf, rd = [([(6, Sp+12), (7, Sp+14)], qk1(X, Sp), rKB(kt, VB)),
                              ([(0, S), (1, S+2)], pv(X, V2, P+4), rV(t, 1, VN)),
                              ([(2, S+4), (3, S+6)], qk2(X, Sp), rKA(kt, VA)),
                              ([(4, S+8), (5, S+10)], pv(X, V1, P), rV(vt, 0, VN))][gi]
                for d, r in cv: a(f"v_cvt_pk_bf16_f32 v{P+d}, v{r}, v{r+1}")
                if gi % 2 == 0 and X == 0: a("s_waitcnt lgkmcnt(2)")
                a(mf)
                if X == 1: a(rd)
                if X == 0 and (t, gi) == (5, 0):
                    ls, l2, l5 = a.label("bs"), a.label("g2"), a.label("g5")
                    a(f"s_cmp_eq_u32 s24, 5\ns_cselect_b32 s26, {-5*KVCH}, s25\ns_bitcmp1_b32 0x67, s24\ns_cbranch_scc0 {ls}\ns_bitcmp1_b32 0x44, s24\ns_cbranch_scc1 {l2}\ns_cmp_eq_u32 s24, 5\ns_cbranch_scc1 {l5}\ns_barrier\ns_branch {ls}")
                    a(f"{l2}:\ns_mov_b64 exec, 1\nds_add_u32 v{CA}, v{CA+1}\ns_mov_b64 exec, -1\ns_branch {ls}")
                    a(f"{l5}:\nds_read_b32 v{DUM}, v{CA} offset:4\ns_waitcnt lgkmcnt(0)\nv_readfirstlane_b32 s3, v{DUM}\ns_cmp_lt_u32 s3, 4\ns_cbranch_scc1 {l5}")
                    xid_load(a, WS_FL1, VNB)
                    a(f"{ls}:")
                if X == 0 and (t, gi) == (6, 0): a(f"v_add_u32 v{VB}, s26, v{VB}\nv_add_u32 v{VA}, s26, v{VA}")
                if X == 0 and (t, gi) == (7, 2): a(f"v_add_u32 v{VN}, s26, v{VN}")
                for i in range(4): a(f"v_exp_f32 v{S+4*gi+i}, v{S+4*gi+i}")
    a("s_add_u32 s24, s24, 1\ns_cmp_lt_u32 s24, 8\ns_cbranch_scc1 L_k234_loop")
    for X in range(2):
        a(f"v_cvt_pk_bf16_f32 v{PP[X]+6}, v{SA[X][1]+12}, v{SA[X][1]+13}\nv_cvt_pk_bf16_f32 v{PP[X]+7}, v{SA[X][1]+14}, v{SA[X][1]+15}")
    a("s_waitcnt vmcnt(0)")
    xid_decide(a, VNB)
    a("s_waitcnt lgkmcnt(0)\nv_cmp_eq_u32 vcc, 0, v3")
    for X in range(2): a(pv(X, V2, PP[X]+4))
    a(f"v_mov_b32 v{KA_}, {f32(2.0**30)}\nv_mov_b32 v{KA_+1}, {f32(2.0**-30)}\ns_mov_b64 s[28:29], 0\nv_mov_b32 v{V1+1}, s49\ns_nop 7")
    if not os.environ.get("X_GT"): stamp(a, 4)
    a("s_cmp_eq_u32 s39, 1\ns_cbranch_scc1 L_k234_rb")
    for X in range(2):
        O, T, L = OO[X], SA[X][0], PP[X]
        a(f"v_cndmask_b32 v{L}, v{O}, v{O+4}, vcc\nv_rcp_f32 v{L+1}, v{L}")
        a(f"v_cmp_nle_f32 s[30:31], v{L}, v{KA_}\ns_or_b64 s[28:29], s[28:29], s[30:31]\nv_cmp_nge_f32 s[30:31], v{L}, v{KA_+1}\ns_or_b64 s[28:29], s[28:29], s[30:31]")
        for i, r in enumerate((8, 9, 10, 11, 12, 13, 14, 15, 0, 1, 2, 3)): a(f"v_mul_f32 v{T+6+i}, v{O+r}, v{L+1}")
        for d in range(6): a(f"v_cvt_pk_bf16_f32 v{T+d}, v{T+6+2*d}, v{T+7+2*d}")
        hstore(a, f"buffer_store_dwordx2 v[{T}:{T+1}], v{OA+3*X}, s[8:11], s22 offen")
        hstore(a, f"buffer_store_dwordx2 v[{T+2}:{T+3}], v{OA+3*X+1}, s[8:11], s22 offen")
        a("s_mov_b32 exec_hi, 0")
        hstore(a, f"buffer_store_dwordx2 v[{T+4}:{T+5}], v{OA+3*X+2}, s[8:11], s22 offen")
        a("s_mov_b32 exec_hi, -1")
    a(f"s_cmp_eq_u32 s27, 1\ns_cbranch_scc1 L_k234_pub")
    lbad = a.label("bad")
    a(f"s_cmp_lg_u64 s[28:29], 0\ns_cselect_b32 s3, 1, 0\nv_mov_b32 v{V1}, s3\nds_write_b32 v{V1+1}, v{V1}\ns_cbranch_scc1 {lbad}")
    handoff_publish(a, WS_FL0)
    a(f"s_mov_b32 s39, 1\n{lbad}:\ns_waitcnt lgkmcnt(0)")
    def vote(lend):
        a(f"s_barrier\nv_mov_b32 v44, {FLAG}\nds_read_b128 v[40:43], v44\ns_waitcnt lgkmcnt(0)")
        for i in range(1, 4): a(f"v_or_b32 v40, v40, v{40+i}")
        a(f"s_nop 0\nv_readfirstlane_b32 s3, v40\ns_cmp_eq_u32 s3, {XCMP}\ns_cbranch_scc1 {lend}\ns_mov_b32 s27, 1")
    vote("L_k234_pa")
    reset_max()
    a("s_mov_b32 s24, 0")
    a("L_k234_maxloop:")
    a("s_barrier\ns_barrier")
    for t in range(8):
        a(rKA(t, 1)); a(rKB(t, 7)); a("s_waitcnt lgkmcnt(0)")
        scores()
        a("s_nop 10")
        max_reduce()
    a("s_add_u32 s24, s24, 1\ns_cmp_lt_u32 s24, 8\ns_cbranch_scc1 L_k234_maxloop")
    finish_max()
    main_init()
    a(f"s_barrier\nds_write_b32 v{CA+3}, v{CA+2}\ns_waitcnt lgkmcnt(0)\ns_barrier")
    a(rKA(0, 1)); a(rKB(0, 7)); a("s_waitcnt lgkmcnt(0)")
    a("s_branch L_k234_main")
    for x in slow: a(x)
    a("L_k234_pub:")
    handoff_publish(a, WS_FL0)
    a("L_k234_rb:\ns_barrier")
    a("L_k234_pa:")
    phase_ab_compute(a, GA, GB)
    a("L_k234_idle:")
    a("s_waitcnt lgkmcnt(0)")
    srd(a, 8, 4, WS_SIZE)
    a("s_barrier\ns_barrier\ns_barrier")
    a("v_lshlrev_b32 v4, 3, v1")
    def touch(srdn, base, per_rb, per_nb, nbytes):
        a(f"s_mul_i32 s28, s12, {per_rb}\ns_mul_i32 s3, s13, {per_nb}\ns_add_u32 s28, s28, s3\ns_add_u32 s28, s28, {base:#x}")
        n = nbytes // 128
        while n > 0:
            m = min(n, 64)
            if m < 64: a(f"s_mov_b32 exec_lo, {(1 << min(m, 32)) - 1:#x}\ns_mov_b32 exec_hi, {(1 << max(m - 32, 0)) - 1:#x}")
            a(f"buffer_load_dword v8, v4, s[{srdn}:{srdn+3}], s28 offen")
            n -= m
            if n > 0: a("s_add_u32 s28, s28, 8192")
        a("s_mov_b64 exec, -1")
    lt1, lt2 = a.label("pt"), a.label("pt")
    a(f"s_cmp_eq_u32 s14, 5\ns_cbranch_scc1 {lt1}")
    touch(8, WS_O, 81920, 10240, 10240); touch(8, WS_X1, 81920, 10240, 10240); touch(8, WS_ST1, 12288, 1536, 1536); touch(8, WS_ST2, 12288, 1536, 1536)
    a(f"s_branch {lt2}\n{lt1}:")
    touch(8, WS_Y, 98304, 12288, 12288)
    srd(a, 40, 44, 2048 * 1280)
    touch(40, 0, 81920, 10240, 10240)
    a(f"{lt2}:\ns_waitcnt vmcnt(0)")
    vote("L_k234_pa")
    a("s_mov_b32 s24, 21\nL_k234_idleb:\ns_barrier\ns_sub_u32 s24, s24, 1\ns_cmp_lg_u32 s24, 0\ns_cbranch_scc1 L_k234_idleb\ns_branch L_k234_pa")
    a("L_k234_helper:")
    a(f"s_setprio {os.environ.get('X_HPRIO', '2')}")
    a(f"s_sub_u32 s15, s14, 6\ns_lshl_b32 s47, s15, 10\ns_add_u32 s46, s47, {WS_KV:#x}\ns_waitcnt lgkmcnt(0)")
    srd(a, 8, 4, WS_SIZE)
    stamp(a, 1)
    xid_publish(a, WS_FL1)
    THR = int(os.environ.get("X_THR", "9"))
    def dma(goff, loff):
        ld = a.label("d")
        for i in range(7):
            if i == 6: a(f"s_cmp_ge_u32 s15, 2\ns_cbranch_scc1 {ld}")
            if goff and i > THR: a(f"s_waitcnt vmcnt({THR})")
            a(f"s_add_u32 m0, s47, {loff + i*4096}\ns_add_u32 s48, s46, {goff + i*4096}\nbuffer_load_dwordx4 v1, s[8:11], s48 offen lds")
        a(f"{ld}:")
    a("L_k234_hmain:")
    dma(0, 0)
    a("s_waitcnt vmcnt(0)\ns_barrier")
    if os.environ.get("X_K2T") == "1": a("s_branch L_k234_end")
    a(f"v_mov_b32 v6, {FLAG+32}\nv_mov_b32 v7, 1")
    dma(KVCH, KVCH); dma(2*KVCH, 2*KVCH)
    a("s_waitcnt vmcnt(0)\ns_barrier")
    for g in (3, 4, 5): dma(g*KVCH, g*KVCH)
    a("s_waitcnt vmcnt(0)\ns_barrier")
    stamp(a, 2)
    lns = a.label("noside")
    if os.environ.get("X_K2T") == "2": a("s_branch L_k234_end")
    a(f"s_cmp_lg_u32 s27, 0\ns_cbranch_scc1 {lns}")
    pack_weights(a)
    a(f"s_lshr_b32 s3, s2, 3\ns_lshl_b32 s3, s3, 7\ns_add_u32 s3, s3, {WS_CNT:#x}\nv_mov_b32 v4, 0\nv_mov_b32 v5, 1\ns_waitcnt vmcnt(0)\ns_mov_b64 exec, 1")
    a("buffer_atomic_add v5, v4, s[8:11], s3 offen\ns_mov_b64 exec, -1")
    stamp(a, 3)
    a(f"{lns}:")
    lw = a.label("wdone")
    a(f"v_mov_b32 v6, {FLAG+32}\nv_mov_b32 v7, 1\n{lw}:\nds_read_b32 v8, v6\ns_waitcnt lgkmcnt(0)\nv_readfirstlane_b32 s3, v8\ns_cmp_ge_u32 s3, 4\ns_cbranch_scc1 {lw}x\ns_sleep 8\ns_branch {lw}\n{lw}x:")
    dma(6*KVCH, 0); dma(7*KVCH, KVCH)
    a("s_waitcnt vmcnt(0)\ns_mov_b64 exec, 1\nds_add_u32 v6, v7 offset:4\ns_mov_b64 exec, -1\ns_waitcnt lgkmcnt(0)")
    stamp(a, 4)
    a(f"s_cmp_eq_u32 s27, 1\ns_cbranch_scc1 L_k234_ra")
    srd(a, 40, 34, 2048 * 4096)
    a("s_lshl_b32 s17, s12, 1\ns_lshr_b32 s3, s15, 1\ns_add_u32 s17, s17, s3\ns_lshl_b32 s16, s13, 4\ns_and_b32 s3, s15, 1\ns_lshl_b32 s3, s3, 3\ns_add_u32 s16, s16, s3")
    a("s_lshl_b32 s6, s17, 17\ns_lshl_b32 s7, s16, 5\ns_add_u32 s6, s6, s7\nv_lshlrev_b32 v4, 12, v2\nv_lshl_add_u32 v4, v3, 4, v4")
    for i in range(8): a(f"buffer_load_dwordx4 v[{8+4*i}:{11+4*i}], v4, s[40:43], s6 offen offset:{32*i} nt")
    a(f"s_lshl_b32 s6, s17, 7\ns_add_u32 s6, s6, s16\ns_lshl_b32 s6, s6, 10\ns_add_u32 s6, s6, {WS_WSP:#x}")
    for i in range(8):
        a(f"s_waitcnt vmcnt(7)\nbuffer_store_dwordx4 v[{8+4*i}:{11+4*i}], v1, s[8:11], s6 offen offset:{(i%4)*1024}")
        if i == 3: a("s_add_u32 s6, s6, 4096")
    stamp(a, 5)
    lp, lgo = a.label("ppoll"), a.label("pgo")
    a(f"v_lshlrev_b32 v4, 7, v2\ns_mov_b32 s3, {WS_CNT:#x}\ns_mov_b32 s29, 0x8000\n{lp}:")
    a(f"buffer_load_dword v5, v4, s[8:11], s3 offen sc1\ns_waitcnt vmcnt(0)\nv_cmp_gt_u32 vcc, 32, v5\ns_sub_u32 s29, s29, 1\ns_cbranch_scc1 {lgo}\ns_cbranch_vccz {lgo}\ns_sleep 2\ns_branch {lp}\n{lgo}:")
    if os.environ.get("X_PFA", "2") == "2": prefetch(a, 8, WS_WIN, 1920 * 1024, 4, 15, 8, 4, 28)
    stamp(a, 6)
    a("L_k234_ra:")
    a("s_mul_i32 s20, s15, 3072\ns_lshl_b32 s16, s12, 1\ns_lshr_b32 s3, s15, 1\ns_add_u32 s16, s16, s3")
    GA.lsetup(a, WS_O, 40, WS_WO, 18, 19, 21, AFL)
    GB.lsetup(a, WS_X1, 40, WS_WIN, 22, 23, 26, AFL)
    lw2 = a.label("w6")
    a(f"v_mov_b32 v6, {FLAG+32}\n{lw2}:\nds_read_b32 v11, v6\ns_waitcnt lgkmcnt(0)\nv_readfirstlane_b32 s3, v11\ns_cmp_ge_u32 s3, 8\ns_cbranch_scc1 {lw2}x\ns_sleep 8\ns_branch {lw2}\n{lw2}x:")
    a.vmq = []
    a(f"s_mul_i32 s6, s13, 320\ns_add_u32 s6, s6, {WS_MOD + 5120}")
    dma1(a, PAR6, 6, "par")
    a(f"s_mul_i32 s6, s13, 1536\ns_lshl_b32 s7, s15, 9\ns_add_u32 s6, s6, s7\ns_add_u32 s6, s6, {WS_UTP:#x}\nv_lshrrev_b32 v10, 1, v1")
    for i in range(10):
        a.vm(f"buffer_load_dwordx2 v[{12+2*i}:{13+2*i}], v10, s[8:11], s6 offen", "ut")
        a(f"s_add_u32 s6, s6, {1536*8}")
    for s in range(3): GA.issue_w(s)
    lu = a.label("nou")
    a.wait(vm=["ut"])
    a(f"s_cmp_eq_u32 s15, 3\ns_cbranch_scc1 {lu}")
    for i in range(1, 10): a(f"v_add_f32 v12, v12, v{12+2*i}\nv_add_f32 v13, v13, v{13+2*i}")
    a(f"s_lshl_b32 s7, s15, 9\ns_add_u32 s7, s7, {PAR6+1024}\nv_add_u32 v10, s7, v10\nds_write_b64 v10, v[12:13]\ns_waitcnt lgkmcnt(0)\n{lu}:")
    stamp(a, 7)
    a("s_cmp_eq_u32 s27, 1\ns_cbranch_scc1 L_k234_wend")
    vote("L_k234_la")
    a("s_waitcnt vmcnt(0)\ns_mov_b32 s24, 0")
    a("L_k234_hmax:")
    a("s_barrier")
    dma(0, 0)
    a(f"s_add_u32 s46, s46, {KVCH}\ns_waitcnt vmcnt(0)\ns_barrier\ns_add_u32 s24, s24, 1\ns_cmp_lt_u32 s24, 8\ns_cbranch_scc1 L_k234_hmax")
    a(f"s_add_u32 s46, s47, {WS_KV:#x}\ns_barrier\ns_branch L_k234_hmain")
    a("L_k234_wend:\ns_barrier")
    a("L_k234_la:")
    GA.issue_w(3)
    handoff_wait(a, WS_FL0, 32)
    stamp(a, 8)
    for s in range(DEP6): GA.issue_a(s)
    for s in range(10): GA.lstep(s, 10, GB)
    handoff_wait(a, WS_FL1, 48)
    stamp(a, 9)
    for s in range(DEP6): GB.issue_a(s)
    for s in range(20): GB.lstep(s, 20)
    end(a)
    finish(a, 256, 640, FLAG + 320, 164)


def pack_weights(a):
    LO, HI, PC = 8, 24, 40
    lo_, ld = a.label("pko"), a.label("pkd")
    a(f"s_lshl_b32 s28, s2, 2\ns_add_u32 s28, s28, s15\nv_mul_u32_u24 v5, {4*3072}, v3\ns_cmp_ge_u32 s28, 480\ns_cbranch_scc1 {lo_}")
    srd(a, 40, 32, 640 * 3072)
    divmod_s(a, 16, 17, 28, 10, 3)
    divmod_s(a, 18, 19, 16, 6, 3)
    a("s_mul_i32 s6, s18, 96\ns_lshl_b32 s7, s19, 5\ns_add_u32 s6, s6, s7\ns_cmp_lt_u32 s19, 3\ns_cselect_b32 s7, 864, 0\ns_add_u32 s6, s6, s7\ns_sub_u32 s6, s6, 96")
    a(f"v_add_lshl_u32 v4, v2, s6, 1\nv_add_u32 v4, v4, v5\ns_mul_i32 s22, s17, {64*3072}")
    for q in range(4):
        loads8(a, 40, 4, LO + 4*q, HI + 4*q, 22, [16*q + e for e in E_PERM], 3072, 7)
    a(f"v_lshlrev_b32 v6, 4, v3\ns_lshl_b32 s7, s17, 8\ns_add_u32 s7, s7, {WS_MOD + 7680}")
    for q in range(4):
        for arr in range(2):
            for hf in range(2):
                P = PC + 16*q + 8*arr + 4*hf
                a(f"buffer_load_dwordx4 v[{P}:{P+3}], v6, s[8:11], s7 offen offset:{arr*2560 + 64*q + 32*hf}")
    a("v_mov_b32 v6, 0\nv_mov_b32 v7, 0")
    a(f"s_mul_i32 s22, s18, 40\ns_lshl_b32 s7, s17, 2\ns_add_u32 s22, s22, s7\ns_mul_i32 s22, s22, 6\ns_add_u32 s22, s22, s19\ns_lshl_b32 s22, s22, 10\ns_add_u32 s22, s22, {WS_WIN:#x}\ns_waitcnt vmcnt(0)")
    for q in range(4):
        for d in range(4):
            l, h, P = LO + 4*q + d, HI + 4*q + d, PC + 16*q
            a(f"v_lshlrev_b32 v{l}, 16, v{l}\nv_lshlrev_b32 v{h}, 16, v{h}\nv_fmac_f32 v7, v{l}, v{P+2*d}\nv_fmac_f32 v7, v{h}, v{P+2*d+1}\nv_mul_f32 v{l}, v{l}, v{P+8+2*d}\nv_mul_f32 v{h}, v{h}, v{P+9+2*d}")
            a(f"v_cvt_pk_bf16_f32 v{l}, v{l}, v{h}\nv_lshlrev_b32 v{h}, 16, v{l}\nv_and_b32 v5, 0xffff0000, v{l}\nv_add_f32 v6, v6, v{h}\nv_add_f32 v6, v6, v5")
        a(f"buffer_store_dwordx4 v[{LO+4*q}:{LO+4*q+3}], v1, s[8:11], s22 offen sc1\ns_add_u32 s22, s22, 6144")
    a("v_mov_b32 v40, v6\nv_mov_b32 v41, v7\ns_nop 1\nv_permlane32_swap_b32 v6, v40\nv_permlane32_swap_b32 v7, v41\ns_nop 1\nv_add_f32 v6, v6, v40\nv_add_f32 v7, v7, v41")
    a(f"s_mul_i32 s22, s17, {1536*8}\ns_lshl_b32 s7, s16, 8\ns_add_u32 s22, s22, s7\ns_add_u32 s22, s22, {WS_UTP:#x}\nv_lshlrev_b32 v4, 3, v2\ns_mov_b32 exec_hi, 0")
    a(f"buffer_store_dwordx2 v[6:7], v4, s[8:11], s22 offen sc1\ns_mov_b32 exec_hi, -1\ns_branch {ld}")
    a(f"{lo_}:\ns_sub_u32 s28, s28, 480\ns_cmp_ge_u32 s28, 528\ns_cbranch_scc1 {ld}")
    a(f"s_mov_b32 s42, {768*1280}\ns_mov_b32 s31, {WS_WOUT:#x}\ns_mov_b32 s6, {(1<<20)//12+1}\ns_cmp_lt_u32 s28, 240\ns_cselect_b32 s40, s36, s38\ns_cselect_b32 s41, s37, s39\ns_mov_b32 s43, 0x20000\ns_cselect_b32 s30, 40, 48")
    a(f"s_cmov_b32 s42, {640*1280}\ns_cmov_b32 s31, {WS_WO:#x}\ns_cmov_b32 s6, {(1<<20)//10+1}\ns_cselect_b32 s7, 0, 240\ns_sub_u32 s28, s28, s7")
    a("s_mul_i32 s16, s28, s6\ns_lshr_b32 s16, s16, 20\ns_lshr_b32 s7, s30, 2\ns_mul_i32 s7, s7, s16\ns_sub_u32 s17, s28, s7")
    divmod_s(a, 18, 19, 16, 3, 3)
    a(f"s_mul_i32 s6, s18, 80\ns_lshl_b32 s7, s19, 5\ns_add_u32 s6, s6, s7\nv_add_lshl_u32 v4, v2, s6, 1\nv_mul_u32_u24 v5, {4*1280}, v3\nv_add_u32 v4, v4, v5\ns_mul_i32 s22, s17, {64*1280}")
    for q in range(4):
        loads8(a, 40, 4, LO + 4*q, HI + 4*q, 22, [16*q + e for e in E_PERM], 1280, 7)
    a("s_mul_i32 s22, s18, s30\ns_lshl_b32 s7, s17, 2\ns_add_u32 s22, s22, s7\ns_mul_i32 s22, s22, 3\ns_add_u32 s22, s22, s19\ns_lshl_b32 s22, s22, 10\ns_add_u32 s22, s22, s31\ns_waitcnt vmcnt(0)")
    for q in range(4):
        for d in range(4): a(f"v_lshl_or_b32 v{LO+4*q+d}, v{HI+4*q+d}, 16, v{LO+4*q+d}")
        a(f"buffer_store_dwordx4 v[{LO+4*q}:{LO+4*q+3}], v1, s[8:11], s22 offen sc1\ns_add_u32 s22, s22, 3072")
    a(f"{ld}:")

def emit(path):
    out = []
    for (n, lines, g, b, lds, nv, ao) in kernels:
        out.append(f"; @launch kernel={n}_kernel grid=({g},1,1) block=({b},1,1) lds={lds}")
    out.append('.amdgcn_target "amdgcn-amd-amdhsa--gfx950"\n.text')
    bad = 0
    for (n, lines, g, b, lds, nv, ao) in kernels:
        errs = check_hazards(lines, n) + ([] if PROF else check_waits(lines, n))
        for e in errs:
            if "buffer_load_ushort" in e.split("touched by")[0] and "buffer_load_ushort" in e.split("touched by")[-1] and n == "k0": continue
            if "buffer_load_dword v" in e.split("touched by")[0] and "buffer_load_dword v" in e.split("touched by")[-1]: continue
            print("CHECK", e); bad += 1
        out.append(f".globl {n}_kernel\n.p2align 8\n.type {n}_kernel,@function\n{n}_kernel:")
        t = Asm(); t.lines = lines
        out.append(t.text())
    out.append('.section .rodata,"a"')
    for (n, lines, g, b, lds, nv, ao) in kernels:
        out.append(f""".p2align 6
.amdhsa_kernel {n}_kernel
  .amdhsa_next_free_vgpr {nv}
  .amdhsa_next_free_sgpr {96 if PROF or DBG else 56}
  .amdhsa_accum_offset {ao}
  .amdhsa_group_segment_fixed_size 0
  .amdhsa_kernarg_size 120
  .amdhsa_user_sgpr_count 2
  .amdhsa_user_sgpr_kernarg_segment_ptr 1
  .amdhsa_system_sgpr_workgroup_id_x 1
.end_amdhsa_kernel""")
    open(path, "w").write("\n".join(out) + "\n")
    print("wrote", path, "checks failed:", bad)

if __name__ == "__main__":
    for i in range(int(os.environ.get("X_EMPTY0", "0"))):
        e = K(f"f{i}"); e("s_endpgm"); finish(e, 256, 256, 0, 8)
    k0(); k1(); k234()
    k56()
    for i in range(int(os.environ.get("X_EMPTY", "0"))):
        e = K(f"e{i}"); e("s_endpgm"); finish(e, 256, 256, 0, 8)
    emit(sys.argv[1] if len(sys.argv) > 1 else "adaLN_cond__grouped_kv_mqa__mixer_gmlp__prompt.s")
```

```python
import math, struct, sys, os
from asmlib import *

def f32(x):
    return "0x%08x" % struct.unpack("<I", struct.pack("<f", x))[0]

WS_MOD  = 0x0
WS_XH   = 0x100000
WS_ST0  = 0x8000
WS_CNT  = 0xC000
WS_FL1  = 0x10000
WS_FL2  = 0x12000
WS_FL0  = 0x14000
WS_FL3  = 0x16000
WS_UT   = 0x1A000
WS_UTP  = 0x20000
WS_WQKV = 0x400000
WS_WO   = 0x500000
WS_WIN  = 0x600000
WS_WOUT = 0x800000
WS_Q    = 0xA00000
WS_KV   = 0xD00000
WS_O    = 0xE00000
WS_X1   = 0x1080000
WS_ST1  = 0x1300000
WS_ST2  = 0x1360000
WS_Z1   = 0x13C0000
WS_Z2T  = 0x16C0000
WS_Y    = 0x19C0000
WS_WSP  = 0x1D00000
WS_SIZE = 0x2500000
KVCH = 26624
OOB = 0x40000000
LOG2E = math.log2(math.e)
KA = dict(x=0, wq=8, wk=16, wv=24, wo=32, w_in=48, w_sp=56, b_sp=64, w_out=72, c=80, w_mod=88, out=96, dbg=104, ws=112)
UT = [[0, 1], [2, 5], [3, 4]]

PROF = os.environ.get("PROF", "0") == "1"
WS_PROF = 0x3000000
if PROF: WS_SIZE = 0x4000000
def stamp(a, i):
    if PROF: a(f"s_memtime s[{50+2*i}:{51+2*i}]")
DBG = os.environ.get("X_DBG") == "1"
def stamp_begin(a):
    if DBG: a("s_memrealtime s[52:53]\ns_memtime s[54:55]")
    if PROF:
        for i in range(12): a(f"s_mov_b64 s[{50+2*i}:{51+2*i}], 0")
        a("s_memrealtime s[74:75]")
        stamp(a, 0)
def stamp_end(a, kidx):
    if DBG:
        l = a.label("dbg")
        a(f"s_cmp_lg_u32 s2, 8\ns_cbranch_scc1 {l}\ns_cmp_lg_u32 s14, 0\ns_cbranch_scc1 {l}\ns_memrealtime s[56:57]\ns_memtime s[58:59]\ns_load_dwordx2 s[60:61], s[0:1], {KA['dbg']}\ns_waitcnt lgkmcnt(0)")
        a(f"s_sub_u32 s60, s60, {512*kidx - 12*kidx}\ns_subb_u32 s61, s61, 0\ns_sub_u32 s58, s58, s54\ns_mov_b64 exec, 1\nv_mov_b32 v0, 0\nv_mov_b32 v2, s52\nv_mov_b32 v3, s56\nv_mov_b32 v4, s58\nglobal_store_dwordx3 v0, v[2:4], s[60:61]\n{l}:")
    if PROF:
        stamp(a, 11)
        a("s_memrealtime s[76:77]\ns_mov_b64 exec, 1\ns_waitcnt lgkmcnt(0)")
        a(f"s_lshl_b32 s3, s2, 4\ns_add_u32 s3, s3, s14\ns_lshl_b32 s3, s3, 6\ns_add_u32 s3, s3, {WS_PROF + kidx*0x100000:#x}\nv_mov_b32 v0, 0")
        for i in range(12): a(f"v_mov_b32 v{2+i}, s{50+2*i}")
        a("s_getreg_b32 s78, hwreg(HW_REG_XCC_ID)\ns_getreg_b32 s79, hwreg(HW_REG_HW_ID)\nv_mov_b32 v14, s74\nv_mov_b32 v15, s76\nv_mov_b32 v16, s78\nv_mov_b32 v17, s79")
        for i in range(4): a(f"buffer_store_dwordx4 v[{2+4*i}:{5+4*i}], v0, s[8:11], s3 offen offset:{16*i}")

def srd(a, d, p, nbytes):
    a(f"s_mov_b32 s{d}, s{p}\ns_mov_b32 s{d+1}, s{p+1}\ns_mov_b32 s{d+2}, {nbytes:#x}\ns_mov_b32 s{d+3}, 0x20000")

kernels = []
XCMP = "s3" if os.environ.get("X_NOBAR") or os.environ.get("X_NOLDS") else 0

class K(Asm):
    def __init__(self, name):
        super().__init__()
        self.name = name; self.vmq = []; self.lgq = []
    def label(self, base):
        self.uid += 1
        return f"L_{self.name}_{base}_{self.uid}"
    def vm(self, text, tag=None):
        self(text); self.vmq.append(tag)
    def lg(self, text, tag=None):
        self(text); self.lgq.append(tag)
    def _n(self, q, tags):
        idx = max((i for i, t in enumerate(q) if t in tags), default=None)
        return None if idx is None else len(q) - 1 - idx
    def wait(self, vm=(), lg=()):
        parts = []
        n = self._n(self.vmq, vm) if vm else None
        if n is not None:
            parts.append(f"vmcnt({min(n, 63)})"); self.vmq = self.vmq[len(self.vmq)-n:] if n else []
        n = self._n(self.lgq, lg) if lg else None
        if n is not None:
            n2 = min(n, 15)
            parts.append(f"lgkmcnt({n2})"); self.lgq = self.lgq[len(self.lgq)-n2:] if n2 else []
        if parts: self("s_waitcnt " + " ".join(parts))
    def wait_all_lg(self):
        self("s_waitcnt lgkmcnt(0)"); self.lgq = []

def end(a):
    a(f"L_{a.name}_end:")
    stamp_end(a, len(kernels))
    a(f"L_{a.name}_exit:\ns_endpgm")
def finish(a, grid, block, lds, nv):
    kernels.append((a.name, a.lines, grid, block, lds, nv, (nv + 3) // 4 * 4))

def bf16_round(a, v, t):
    a(f"v_cvt_pk_bf16_f32 v{t}, v{v}, v{v}\nv_and_b32 v{v}, 0xffff0000, v{t}")

E_NAT = list(range(8))
E_PERM = [(j & 3) + 8 * (j >> 2) for j in range(8)]
E_O5 = [20 * (j >> 1) + (j & 1) for j in range(8)]
def loads8(a, srdn, voff, lo, hi, ebase, e_list, rs, stmp, tag=None):
    for j in range(8):
        a(f"s_add_u32 s{stmp}, s{ebase}, {e_list[j]*rs}")
        a.vm(f"buffer_load_ushort v{(lo if j % 2 == 0 else hi) + j//2}, v{voff}, s[{srdn}:{srdn+3}], s{stmp} offen", tag)

def divmod_s(a, q, r, x, d, t):
    m = (1 << 20) // d + 1
    a(f"s_mul_i32 s{q}, s{x}, {m}\ns_lshr_b32 s{q}, s{q}, 20\ns_mul_i32 s{t}, s{q}, {d}\ns_sub_u32 s{r}, s{x}, s{t}")

def pack_frag_issue(a, f, srdn, rs, ncol, nks, otype, halves, lo, hi, voff, vt, S):
    q3, ft, t, nb, ks, eb = S, S+1, S+2, S+3, S+4, S+5
    divmod_s(a, q3, ft, f, 3, t)
    divmod_s(a, nb, ks, q3, nks, t)
    if halves:
        a(f"s_and_b32 s{t}, s{nb}, 1\ns_lshr_b32 s{nb}, s{nb}, 1\ns_mul_i32 s{nb}, s{nb}, {ncol}\ns_cmp_eq_u32 s{t}, 0\ns_cselect_b32 s{t}, 768, 0\ns_add_u32 s{nb}, s{nb}, s{t}")
    else:
        a(f"s_mul_i32 s{nb}, s{nb}, {ncol}")
    hi5 = 80 if ncol == 96 else OOB // 2
    a(f"s_cmp_eq_u32 s{ft}, 1\ns_cselect_b32 s{q3}, 32, 48\ns_cselect_b32 s{t}, {hi5:#x}, 64\ns_cmp_eq_u32 s{ft}, 0\ns_cselect_b32 s{q3}, 0, s{q3}\ns_cselect_b32 s{t}, 16, s{t}")
    a(f"s_add_u32 s{q3}, s{q3}, s{nb}\ns_add_u32 s{t}, s{t}, s{nb}")
    a(f"v_mov_b32 v{vt}, s{q3}\nv_mov_b32 v{vt+1}, s{t}\nv_cmp_gt_u32 vcc, 16, v2\nv_and_b32 v{voff}, 15, v2\ns_nop 0\nv_cndmask_b32 v{vt}, v{vt+1}, v{vt}, vcc\nv_add_lshl_u32 v{voff}, v{voff}, v{vt}, 1")
    if not otype:
        a(f"v_mul_u32_u24 v{vt}, {4*rs}, v3\nv_add_u32 v{voff}, v{voff}, v{vt}\ns_mul_i32 s{eb}, s{ks}, {16*rs}")
        loads8(a, srdn, voff, lo, hi, eb, E_PERM, rs, t, "pack")
    else:
        l5, ld = a.label("u4"), a.label("ud")
        divmod_s(a, q3, ft, ks, 5, t)
        a(f"s_mul_i32 s{q3}, s{q3}, 80\ns_cmp_eq_u32 s{ft}, 4\ns_cbranch_scc1 {l5}")
        a(f"s_mul_i32 s{ft}, s{ft}, 20\ns_add_u32 s{q3}, s{q3}, s{ft}\ns_mul_i32 s{eb}, s{q3}, {rs}\nv_mul_u32_u24 v{vt}, {4*rs}, v3\nv_add_u32 v{voff}, v{voff}, v{vt}")
        q0 = list(a.vmq)
        loads8(a, srdn, voff, lo, hi, eb, E_PERM, rs, t, "pack")
        a(f"s_branch {ld}\n{l5}:\ns_add_u32 s{q3}, s{q3}, 16\ns_mul_i32 s{eb}, s{q3}, {rs}\nv_mul_u32_u24 v{vt}, {2*rs}, v3\nv_add_u32 v{voff}, v{voff}, v{vt}")
        a.vmq = q0
        loads8(a, srdn, voff, lo, hi, eb, E_O5, rs, t, "pack")
        a(f"{ld}:")

def pack_frag_store(a, f, wsbase, lo, hi, st):
    for i in range(4): a(f"v_lshl_or_b32 v{lo+i}, v{hi+i}, 16, v{lo+i}")
    a(f"s_lshl_b32 s{st}, s{f}, 10\ns_add_u32 s{st}, s{st}, {wsbase:#x}")
    a.vm(f"buffer_store_dwordx4 v[{lo}:{lo+3}], v1, s[8:11], s{st} offen")

def l2_prefetch(a, base, nbytes, nwaves, vdst, vtmp, st):
    per_wg = nbytes // 32
    PS = int(os.environ.get("X_PFS", "64")); CH = 64 * PS
    n_instr = -(-per_wg // CH)
    per_wave = -(-n_instr // nwaves)
    a(f"s_lshr_b32 s{st}, s2, 3\ns_mul_i32 s{st}, s{st}, {per_wg}\ns_mul_i32 s{st+1}, s14, {per_wave*CH}\ns_add_u32 s{st}, s{st}, s{st+1}\ns_add_u32 s{st}, s{st}, {base:#x}\nv_lshlrev_b32 v{vtmp}, {int(math.log2(PS//16))}, v1")
    for i in range(per_wave):
        a.vm(f"buffer_load_dword v{vdst}, v{vtmp}, s[8:11], s{st} offen")
        if i < per_wave - 1: a(f"s_add_u32 s{st}, s{st}, {CH}")

N_MOD, N_XH, N_PQ = 128, 64, 40
def k0():
    a = K("k0")
    ends = [N_MOD, N_MOD + N_XH, N_MOD + N_XH + N_PQ]
    grid = ends[-1]
    CPF = os.environ.get("X_CPF", "1") == "1"
    if CPF:
        lc = a.label("cpf")
        a(f"s_cmp_lt_u32 s2, {grid}\ns_cbranch_scc1 {lc}\ns_cmp_ge_u32 s2, {grid+48}\ns_cbranch_scc1 L_k0_exit")
        a(f"s_getpc_b64 s[40:41]\ns_and_b32 s40, s40, 0xffffff00\ns_sub_u32 s3, s2, {grid}\ns_lshr_b32 s3, s3, 3\ns_lshl_b32 s3, s3, 13\nv_lshlrev_b32 v3, 5, v0\nv_add_u32 v3, s3, v3\nglobal_load_dword v4, v3, s[40:41]\ns_endpgm\n{lc}:")
        grid += 48
    a(f"s_cmp_ge_u32 s2, {grid}\ns_cbranch_scc1 L_k0_exit")
    stamp_begin(a)
    a(f"s_load_dwordx2 s[4:5], s[0:1], {KA['ws']}")
    a("v_and_b32 v1, 63, v0\nv_lshrrev_b32 v2, 6, v0\ns_nop 0\nv_readfirstlane_b32 s14, v2")
    a(f"s_cmp_lt_u32 s2, {ends[0]}\ns_cbranch_scc1 L_k0_mod")
    a(f"s_cmp_lt_u32 s2, {ends[1]}\ns_cbranch_scc1 L_k0_xh")
    a("s_branch L_k0_pq")
    a("L_k0_mod:")
    a(f"s_load_dwordx4 s[16:19], s[0:1], {KA['c']}")
    a("s_and_b32 s3, s2, 7\ns_lshl_b32 s3, s3, 1\ns_bfe_u32 s6, s2, 0x10003\ns_add_u32 s3, s3, s6\ns_lshr_b32 s6, s2, 4\ns_lshl_b32 s6, s6, 4\ns_add_u32 s3, s3, s6")
    a("s_cmp_ge_u32 s3, 120\ns_cbranch_scc1 L_k0_exit")
    a("v_lshrrev_b32 v1, 2, v0\nv_and_b32 v2, 3, v0\nv_mul_u32_u24 v3, 7680, v1\nv_lshl_add_u32 v3, v2, 4, v3\nv_lshlrev_b32 v4, 1, v1")
    a("s_waitcnt lgkmcnt(0)")
    srd(a, 8, 4, WS_SIZE); srd(a, 20, 16, 1280); srd(a, 24, 18, 640 * 7680)
    stamp(a, 1)
    a("s_lshl_b32 s6, s3, 6")
    for p in range(10):
        a(f"buffer_load_ushort v{10+p}, v4, s[20:23], 0 offen offset:{128*p}")
    for p in range(10):
        a(f"buffer_load_dwordx4 v[{20+4*p}:{23+4*p}], v3, s[24:27], s6 offen")
        if p < 9: a(f"s_add_u32 s6, s6, {64*7680}")
    for i in range(8): a(f"v_mov_b32 v{64+i}, 0")
    stamp(a, 2)
    a("s_waitcnt vmcnt(10)")
    stamp(a, 3)
    for p in range(10):
        v = 10 + p
        a(f"v_lshlrev_b32 v{v}, 16, v{v}\nv_mul_f32 v5, {f32(-LOG2E)}, v{v}\nv_exp_f32 v5, v5\ns_nop 0\nv_add_f32 v5, 1.0, v5\nv_rcp_f32 v5, v5\ns_nop 0\nv_mul_f32 v{v}, v{v}, v5")
        bf16_round(a, v, 5)
    for p in range(10):
        a(f"s_waitcnt vmcnt({9-p})")
        for i in range(4):
            d = 20 + 4*p + i
            a(f"v_lshlrev_b32 v5, 16, v{d}\nv_and_b32 v6, 0xffff0000, v{d}\nv_fmac_f32 v{64+2*i}, v{10+p}, v5\nv_fmac_f32 v{65+2*i}, v{10+p}, v6")
    stamp(a, 4)
    a("v_lshlrev_b32 v5, 7, v1\nv_lshl_add_u32 v5, v2, 5, v5")
    a("ds_write_b128 v5, v[64:67]\nds_write_b128 v5, v[68:71] offset:16")
    a("v_and_b32 v6, 31, v0\nv_lshrrev_b32 v7, 5, v0\nv_lshlrev_b32 v6, 2, v6\nv_lshl_add_u32 v8, v7, 10, v6")
    a("s_waitcnt lgkmcnt(0)\ns_barrier")
    for i in range(8): a(f"ds_read_b32 v{20+i}, v8 offset:{128*i}")
    a("s_waitcnt lgkmcnt(0)")
    for i in range(1, 8): a(f"v_add_f32 v20, v20, v{20+i}")
    a("v_lshl_add_u32 v8, v7, 7, v6\nds_write_b32 v8, v20 offset:8192\ns_waitcnt lgkmcnt(0)\ns_barrier")
    for i in range(8): a(f"ds_read_b32 v{20+i}, v6 offset:{8192+128*i}")
    a("s_waitcnt lgkmcnt(0)")
    for i in range(1, 8): a(f"v_add_f32 v20, v20, v{20+i}")
    bf16_round(a, 20, 5)
    a("v_add_f32 v21, 1.0, v20")
    bf16_round(a, 21, 5)
    a("s_sub_u32 s6, s3, 20\ns_cmp_lt_u32 s6, 20\ns_cselect_b32 s7, 1, 0\ns_sub_u32 s6, s3, 80\ns_cmp_lt_u32 s6, 20\ns_cselect_b32 s6, 1, s7\ns_cmp_eq_u32 s6, 0")
    l = a.label("noinc")
    a(f"s_cbranch_scc1 {l}\nv_mov_b32 v20, v21\n{l}:")
    a(f"s_lshl_b32 s6, s3, 7\nv_cmp_gt_u32 vcc, 32, v0\ns_and_saveexec_b64 s[28:29], vcc\ns_cbranch_execz L_k0_end")
    a(f"buffer_store_dword v20, v6, s[8:11], s6 offen offset:{WS_MOD}")
    a("s_branch L_k0_end")
    a("L_k0_xh:")
    a(f"s_load_dwordx2 s[16:17], s[0:1], {KA['x']}")
    a(f"s_sub_u32 s6, s2, {ends[0]}\ns_and_b32 s3, s6, 7\ns_lshr_b32 s7, s6, 4\ns_lshl_b32 s7, s7, 3\ns_add_u32 s3, s3, s7\ns_lshl_b32 s3, s3, 1\ns_bfe_u32 s7, s6, 0x10003\ns_add_u32 s3, s3, s7")
    a("v_and_b32 v2, 31, v1\nv_lshrrev_b32 v3, 5, v1\nv_mul_u32_u24 v4, 1280, v2\nv_lshl_add_u32 v4, v3, 4, v4")
    a(f"s_mul_i32 s6, s3, {32*1280}\ns_mul_i32 s7, s14, 320\ns_add_u32 s6, s6, s7")
    a("s_waitcnt lgkmcnt(0)")
    srd(a, 8, 4, WS_SIZE); srd(a, 20, 16, 2048 * 1280)
    stamp(a, 1)
    for i in range(10):
        a(f"buffer_load_dwordx4 v[{20+4*i}:{23+4*i}], v4, s[20:23], s6 offen offset:{32*i}")
    a("v_mov_b32 v6, 0\nv_mov_b32 v7, 0")
    a(f"s_mul_i32 s6, s3, {40*1024}\ns_mul_i32 s7, s14, {10*1024}\ns_add_u32 s6, s6, s7\ns_add_u32 s6, s6, {WS_XH:#x}\nv_lshlrev_b32 v8, 4, v1")
    for i in range(10):
        b = 20 + 4*i
        a(f"s_waitcnt vmcnt(9)\nv_permlane32_swap_b32 v{b}, v{b+2}\nv_permlane32_swap_b32 v{b+1}, v{b+3}")
        a(f"buffer_store_dwordx4 v[{b}:{b+3}], v8, s[8:11], s6 offen offset:{(i%4)*1024}")
        if i % 4 == 3: a("s_add_u32 s6, s6, 4096")
        for d in range(4):
            lo = 64 + 2*(d % 2)
            a(f"v_lshlrev_b32 v{lo}, 16, v{b+d}\nv_and_b32 v{lo+1}, 0xffff0000, v{b+d}")
            a(f"v_add_f32 v6, v6, v{lo}\nv_fmac_f32 v7, v{lo}, v{lo}\nv_add_f32 v6, v6, v{lo+1}\nv_fmac_f32 v7, v{lo+1}, v{lo+1}")
    stamp(a, 4)
    a(f"v_mov_b32 v64, -1\nv_mov_b32 v65, -1\nv_mov_b32 v66, -1\nv_mov_b32 v67, -1\nv_lshlrev_b32 v5, 4, v0\ns_mul_i32 s7, s3, 6144\ns_add_u32 s7, s7, {WS_ST2:#x}\nbuffer_store_dwordx4 v[64:67], v5, s[8:11], s7 offen\nbuffer_store_dwordx4 v[64:67], v5, s[8:11], s7 offen offset:2048")
    a("v_lshlrev_b32 v5, 3, v0\nds_write_b64 v5, v[6:7]\nv_lshlrev_b32 v5, 3, v2\ns_waitcnt lgkmcnt(0)\ns_barrier")
    for i in range(8): a(f"ds_read_b64 v[{70+2*i}:{71+2*i}], v5 offset:{256*i}")
    a("s_waitcnt lgkmcnt(0)")
    for i in range(1, 8): a(f"v_add_f32 v70, v70, v{70+2*i}\nv_add_f32 v71, v71, v{71+2*i}")
    a(f"v_mul_f32 v70, {f32(1/640)}, v70\nv_mul_f32 v71, {f32(1/640)}, v71\nv_fma_f32 v71, -v70, v70, v71\nv_max_f32 v71, 0, v71\nv_add_f32 v71, {f32(1e-5)}, v71\nv_rsq_f32 v72, v71\ns_nop 0\nv_mul_f32 v70, v70, v72")
    a(f"v_sub_f32 v73, 0, v70\ns_lshl_b32 s6, s3, 8\ns_add_u32 s6, s6, {WS_ST0:#x}\nv_cmp_gt_u32 vcc, 32, v0\ns_and_saveexec_b64 s[28:29], vcc\ns_cbranch_execz L_k0_end")
    a("buffer_store_dwordx2 v[72:73], v5, s[8:11], s6 offen")
    a("s_branch L_k0_end")
    a("L_k0_pq:")
    a(f"s_load_dwordx2 s[16:17], s[0:1], {KA['wq']}\ns_load_dwordx4 s[32:35], s[0:1], {KA['wk']}")
    a(f"s_sub_u32 s3, s2, {ends[1]}\ns_and_b32 s13, s3, 7\ns_lshr_b32 s12, s3, 3\ns_lshl_b32 s12, s12, 3\ns_lshl_b32 s6, s14, 1\ns_add_u32 s12, s12, s6")
    a("v_and_b32 v2, 31, v1\nv_lshrrev_b32 v3, 5, v1\nv_and_b32 v4, 15, v1\nv_lshlrev_b32 v9, 4, v1")
    a(f"v_lshrrev_b32 v5, 4, v2\nv_mul_u32_u24 v5, 20, v5\nv_add_u32 v5, v5, v4\ns_mul_i32 s6, s13, 80\nv_add_u32 v5, s6, v5\nv_lshlrev_b32 v5, 1, v5\nv_mul_u32_u24 v6, {4*1280}, v3\nv_add_u32 v10, v5, v6\nv_add_u32 v11, 80, v10\nv_add_u32 v12, 120, v10")
    a("v_bfe_u32 v5, v4, 1, 1\nv_lshrrev_b32 v7, 3, v4\nv_lshl_add_u32 v5, v7, 1, v5\nv_mul_u32_u24 v5, 20, v5\nv_bfe_u32 v7, v4, 2, 1\nv_lshl_add_u32 v5, v7, 1, v5\nv_and_b32 v7, 1, v4\nv_add_u32 v5, v5, v7\nv_add_u32 v5, 16, v5\nv_add_u32 v5, s6, v5\nv_lshlrev_b32 v5, 1, v5\nv_add_u32 v5, v5, v6\nv_cmp_gt_u32 vcc, 16, v2\ns_nop 1\nv_cndmask_b32 v12, v5, v12, vcc")
    a("v_lshrrev_b32 v5, 2, v4\nv_lshlrev_b32 v5, 1, v5\nv_add_u32 v5, v5, v7\nv_add_u32 v5, 16, v5\nv_and_b32 v8, 10, v4\nv_cmp_eq_u32 vcc, 0, v8")
    a(f"v_mov_b32 v8, {OOB//2:#x}\ns_nop 0\nv_cndmask_b32 v5, v8, v5, vcc\nv_add_u32 v14, 16, v4\nv_cmp_gt_u32 vcc, 4, v4\ns_nop 1\nv_cndmask_b32 v14, v8, v14, vcc\ns_cmp_eq_u32 s13, 3\ns_cselect_b64 vcc, -1, 0\nv_cndmask_b32 v5, v5, v14, vcc\ns_bitcmp1_b32 s13, 0\ns_cselect_b64 vcc, -1, 0\nv_cndmask_b32 v5, v4, v5, vcc\nv_lshlrev_b32 v5, 1, v5\nv_mul_u32_u24 v6, {4*40}, v3\nv_add_u32 v13, v5, v6")
    a("s_waitcnt lgkmcnt(0)")
    srd(a, 8, 4, WS_SIZE); srd(a, 20, 16, 640 * 1280)
    lz = a.label("nz")
    a(f"s_cmp_lg_u32 s3, 0\ns_cbranch_scc1 {lz}\nv_mov_b32 v16, 0\nv_mov_b32 v17, 0\nv_mov_b32 v18, 0\nv_mov_b32 v19, 0\nv_lshlrev_b32 v15, 4, v0\ns_mov_b32 s7, {WS_CNT:#x}\nbuffer_store_dwordx4 v[16:19], v15, s[8:11], s7 offen\ns_mov_b32 s7, {WS_FL1:#x}\nbuffer_store_dwordx4 v[16:19], v15, s[8:11], s7 offen\ns_add_u32 s7, s7, 4096\nbuffer_store_dwordx4 v[16:19], v15, s[8:11], s7 offen\ns_add_u32 s7, s7, 4096\nbuffer_store_dwordx4 v[16:19], v15, s[8:11], s7 offen\ns_add_u32 s7, s7, 4096\nbuffer_store_dwordx4 v[16:19], v15, s[8:11], s7 offen\ns_add_u32 s7, s7, 4096\nbuffer_store_dwordx4 v[16:19], v15, s[8:11], s7 offen\ns_add_u32 s7, s7, 4096\nbuffer_store_dwordx4 v[16:19], v15, s[8:11], s7 offen\ns_add_u32 s7, s7, 4096\nbuffer_store_dwordx4 v[16:19], v15, s[8:11], s7 offen\ns_add_u32 s7, s7, 4096\nbuffer_store_dwordx4 v[16:19], v15, s[8:11], s7 offen\ns_add_u32 s7, s7, 4096\nbuffer_store_dwordx4 v[16:19], v15, s[8:11], s7 offen\ns_add_u32 s7, s7, 4096\nbuffer_store_dwordx4 v[16:19], v15, s[8:11], s7 offen\ns_add_u32 s7, s7, 4096\n{lz}:")
    a("s_cmp_ge_u32 s13, 2\ns_cselect_b32 s32, s34, s32\ns_cselect_b32 s33, s35, s33\ns_cmp_ge_u32 s13, 4\ns_cselect_b32 s7, 0, 25600")
    a("s_mov_b32 s24, s32\ns_mov_b32 s25, s33\ns_mov_b32 s26, s7\ns_mov_b32 s27, 0x20000")
    for q in range(2):
        a(f"s_add_u32 s6, s12, {q}\ns_mul_i32 s28, s6, {16*1280}\ns_mul_i32 s29, s6, {16*40}")
        b = 20 + 12*q
        loads8(a, 20, 10, b, b+24, 28, E_PERM, 1280, 30)
        loads8(a, 20, 12, b+8, b+32, 28, E_PERM, 1280, 30)
        a("s_mov_b32 exec_lo, 0xffff\ns_mov_b32 exec_hi, 0xffff")
        loads8(a, 20, 11, b+4, b+28, 28, E_PERM, 1280, 30)
        a("s_mov_b32 exec_lo, 0xffff0000\ns_mov_b32 exec_hi, 0xffff0000")
        loads8(a, 24, 13, b+4, b+28, 29, E_PERM, 40, 30)
        a("s_mov_b64 exec, -1")
        if q == 0: a("s_waitcnt vmcnt(16)")
    a(f"s_mul_i32 s6, s13, 40\ns_add_u32 s6, s6, s12\ns_mul_i32 s6, s6, 3072\ns_add_u32 s6, s6, {WS_WQKV:#x}\ns_waitcnt vmcnt(0)")
    stamp(a, 4)
    for i in range(24): a(f"v_lshl_or_b32 v{20+i}, v{44+i}, 16, v{20+i}")
    for q in range(2):
        for ft in range(3):
            a(f"buffer_store_dwordx4 v[{20+12*q+4*ft}:{23+12*q+4*ft}], v9, s[8:11], s6 offen offset:{ft*1024}")
        a("s_add_u32 s6, s6, 3072")
    end(a)
    finish(a, grid, 256, 9216, 144)

STG = 20480
NS, DEP = 6, 4
EX = NS * STG
PAR = EX + 24576
LDS_G = PAR + 5120
ACC, WS0, AF, PR, VW = 8, 56, 104, 200, 240

def common_prologue(a, extra_loads=""):
    a(f"s_cmp_ge_u32 s2, 256\ns_cbranch_scc1 L_{a.name}_exit")
    stamp_begin(a)
    a(f"s_load_dwordx2 s[4:5], s[0:1], {KA['ws']}")
    a(extra_loads)
    a("v_and_b32 v4, 63, v0\nv_lshrrev_b32 v5, 6, v0\nv_lshlrev_b32 v1, 4, v4\nv_readfirstlane_b32 s14, v5\nv_and_b32 v2, 31, v4\nv_lshrrev_b32 v3, 5, v4")
    a("s_and_b32 s12, s2, 7\ns_lshr_b32 s3, s2, 6\ns_lshl_b32 s3, s3, 3\ns_add_u32 s12, s12, s3\ns_bfe_u32 s13, s2, 0x30003")

def gemm_prologue(a, extra_loads=""):
    common_prologue(a, extra_loads)
    a("s_bfe_u32 s15, s14, 0x10001\ns_and_b32 s17, s14, 1\ns_lshl_b32 s16, s12, 1\ns_add_u32 s16, s16, s17")
    a(f"s_cmp_ge_u32 s14, 4\ns_cbranch_scc1 L_{a.name}_loader")

def compute_addr(a, rb):
    a.rb = rb
    if rb == 0:
        a(f"s_mul_i32 s3, s15, {6144+2048}\nv_add_u32 v{VW}, s3, v1\ns_mul_i32 s3, s15, {6144-2048}\ns_add_u32 s3, s3, 2048\nv_add_u32 v{VW+2}, s3, v1")
        a(f"s_lshl_b32 s3, s15, 8\nv_xor_b32 v{VW+1}, s3, v1\ns_mul_i32 s3, s15, 6144\ns_add_u32 s3, s3, 1024\nv_add_u32 v{VW+1}, s3, v{VW+1}")
    else:
        a("v_bfe_u32 v4, v0, 2, 2\nv_and_b32 v5, 3, v0\nv_bfe_u32 v6, v0, 4, 1")
        a("v_lshl_add_u32 v4, v3, 2, v4" if rb == 192 else "v_lshl_add_u32 v4, v4, 1, v3")
        a(f"v_mul_u32_u24 v4, {rb}, v4\nv_lshl_add_u32 v4, v5, 3, v4\ns_mul_i32 s3, s15, 6144\nv_add_u32 v4, s3, v4")
        a(f"v_lshl_add_u32 v5, v6, 5, v4\ns_mul_i32 s3, s15, 96\nv_add_u32 v{VW}, s3, v5\ns_sub_u32 s3, 96, s3\nv_add_u32 v{VW+2}, s3, v5")
        if rb == 192:
            a(f"v_xor_b32 v6, s15, v6\nv_mul_u32_u24 v6, 96, v6\nv_add_u32 v6, 64, v6\nv_add_u32 v{VW+1}, v4, v6")
        else:
            a(f"v_add_u32 v{VW+1}, 64, v4")
    a(f"s_lshl_b32 s3, s14, 11\ns_add_u32 s3, s3, 12288\nv_add_u32 v{VW+3}, s3, v1")
    for i in range(4): a(f"v_add_u32 v{VW+4+i}, {3*STG}, v{VW+i}")

def read_ops(a, s, areg):
    slot = s % NS; hi, sl = (4, slot - 3) if slot >= 3 else (0, slot)
    ra, rw = [], []
    if areg is not None:
        for q in range(2):
            ra.append(lambda q=q: a.lg(f"ds_read_b128 v[{areg+4*q}:{areg+4*q+3}], v{VW+3+hi} offset:{sl*STG + q*1024}", ("a", s)))
    for q in range(2):
        for t in range(3):
            r = WS0 + 24*(s % 2) + 12*q + 4*t; o = sl*STG + q*3072
            if a.rb == 0:
                rw.append(lambda r=r, t=t, o=o: a.lg(f"ds_read_b128 v[{r}:{r+3}], v{VW+t+hi} offset:{o}", ("w", s)))
            else:
                def f(r=r, t=t, o=o):
                    a.lg(f"ds_read_b64_tr_b16 v[{r}:{r+1}], v{VW+t+hi} offset:{o}", ("w", s))
                    a.lg(f"ds_read_b64_tr_b16 v[{r+2}:{r+3}], v{VW+t+hi} offset:{o + 8*a.rb}", ("w", s))
                rw.append(f)
    return ra, rw

def mfma_ops(a, wset, areg, first):
    ops = []
    for q in range(2):
        for t in range(3):
            r = ACC + 16*t; w = WS0 + 24*wset + 12*q + 4*t; b = areg + 4*q
            c = "0" if (first and q == 0) else f"v[{r}:{r+15}]"
            ops.append(lambda r=r, w=w, b=b, c=c: a(f"v_mfma_f32_32x32x16_bf16 v[{r}:{r+15}], v[{w}:{w+3}], v[{b}:{b+3}], {c}"))
    return ops

def transform_ops(a, F, P, rr, nm, t=232):
    ops = []
    for d in range(4):
        x, y = t + 2*(d % 2), t + 2*(d % 2) + 1
        L = [f"v_lshlrev_b32 v{x}, 16, v{F+d}", f"v_and_b32 v{y}, 0xffff0000, v{F+d}",
             f"v_fma_f32 v{x}, v{x}, v{rr}, v{nm}", f"v_fma_f32 v{y}, v{y}, v{rr}, v{nm}",
             f"v_fma_f32 v{x}, v{x}, v{P+8+2*d}, v{P+2*d}", f"v_fma_f32 v{y}, v{y}, v{P+9+2*d}, v{P+1+2*d}", f"v_cvt_pk_bf16_f32 v{F+d}, v{x}, v{y}"]
        ops += [(lambda l=l: a(l)) for l in L]
    return ops

def merge(*lists):
    items = []
    for li, L in enumerate(lists):
        n = len(L)
        for i, op in enumerate(L): items.append(((i + 0.5 * (li > 0)) / n, li, i, op))
    items.sort(key=lambda x: (x[0], x[1], x[2]))
    return [x[3] for x in items]
def run(ops):
    for op in ops: op()

def param_base(a):
    a(f"s_mul_i32 s3, s15, 1280\ns_add_u32 s3, s3, {PAR}\nv_lshlrev_b32 v6, 4, v3\nv_add_u32 v6, s3, v6")
def param_ops(a, ks):
    ops = []
    for arr in range(2):
        P = PR + 16*(ks % 2) + 8*arr; off = arr*2560 + ks*64
        ops.append(lambda P=P, off=off: a.lg(f"ds_read_b128 v[{P}:{P+3}], v6 offset:{off}", ("p", ks)))
        ops.append(lambda P=P, off=off: a.lg(f"ds_read_b128 v[{P+4}:{P+7}], v6 offset:{off+32}", ("p", ks)))
    return ops

def exchange(a, R):
    a(f"s_mul_i32 s3, s14, 6144\ns_add_u32 s3, s3, {EX}\nv_add_u32 v4, s3, v1\ns_xor_b32 s3, s14, 2\ns_mul_i32 s3, s3, 6144\ns_add_u32 s3, s3, {EX}\nv_add_u32 v5, s3, v1\ns_nop 4")
    for i in range(6): a(f"ds_write_b128 v4, v[{ACC+24+4*i}:{ACC+27+4*i}] offset:{i*1024}")
    a.wait_all_lg()
    a("s_barrier")
    for j in range(3):
        for h in range(2):
            a(f"ds_read_b128 v[{R+8*j+4*h}:{R+8*j+4*h+3}], v5 offset:{((j+1)%3)*2048 + h*1024}")
    for j in range(3):
        a(f"s_waitcnt lgkmcnt({4-2*j})")
        for i in range(8): a(f"v_add_f32 v{ACC+8*j+i}, v{ACC+8*j+i}, v{R+8*j+i}")

def c_start(a, areg_of, xf=None):
    a("s_barrier")
    stamp(a, 3)
    ra, rw = read_ops(a, 0, areg_of(0))
    run(ra)
    if xf:
        n, rr, nm = xf
        run(param_ops(a, 0)); run(param_ops(a, 1)); run(rw)
        a.wait(lg=[("a", 0), ("p", 0)])
        run(transform_ops(a, areg_of(0), PR, rr, nm))
        a.wait(lg=[("p", 1)])
        run(merge(transform_ops(a, areg_of(0) + 4, PR + 16, rr, nm), param_ops(a, 2)))
    else:
        run(rw)

def c_iter(a, s, first, total, areg_of, xf=None, load_a=True):
    ra, rw = [], []
    if s + 1 < total:
        a("s_barrier")
        ra, rw = read_ops(a, s + 1, areg_of(s + 1) if load_a else None)
    mf = mfma_ops(a, s % 2, areg_of(s), first)
    if os.environ.get("X_NORD"): ra, rw = [], []
    if os.environ.get("X_NOMFMA"): mf = [lambda: a("s_nop 0")] * 6
    if os.environ.get("X_NOXF"): xf = None
    if xf and s + 1 < xf[0]:
        n, rr, nm = xf
        k0 = 2*(s+1)
        run(ra); run(param_ops(a, k0 + 1))
        a.wait(lg=[("w", s)])
        run(merge(mf[:2], rw[:2]))
        a.wait(lg=[("a", s+1), ("p", k0)])
        run(merge(transform_ops(a, areg_of(s+1), PR, rr, nm), mf[2:4], rw[2:4]))
        a.wait(lg=[("p", k0 + 1)])
        nxt = param_ops(a, k0 + 2) if s + 2 < n else []
        run(merge(transform_ops(a, areg_of(s+1) + 4, PR + 16, rr, nm), mf[4:], rw[4:] + nxt))
    else:
        a.wait(lg=[("w", s), ("a", s)])
        run(merge(mf, ra + rw))

class Loader:
    def __init__(self, a, act_base, nks, wmode, wbase=None, wblocks=1, ka_sreg=None, rs=0, nbytes=0, colbytes=0, col0=0):
        self.a, self.wmode = a, wmode
        a(f"L_{a.name}_loader:")
        a.vmq = []; a.lgq = []
        a(f"s_and_b32 s3, s14, 3\ns_mul_i32 s20, s3, 3072\ns_lshl_b32 s21, s3, 11\ns_add_u32 s21, s21, 12288")
        a(f"s_mul_i32 s18, s16, {nks*1024}\ns_mul_i32 s3, s15, {nks*512}\ns_add_u32 s18, s18, s3\ns_add_u32 s18, s18, {act_base:#x}")
        if wmode == 0:
            a(f"s_mul_i32 s19, s13, {wblocks*nks*3072}\ns_mul_i32 s3, s15, {nks*1536}\ns_add_u32 s19, s19, s3\ns_mul_i32 s3, s17, 3072\ns_add_u32 s19, s19, s3\ns_add_u32 s19, s19, {wbase:#x}")
            self.wstep, self.wsrd, self.wv = 6144, 8, (1, 1, 1)
        else:
            cpr = wmode // 16
            a(f"s_mul_i32 s19, s15, {nks*8*rs}\ns_mul_i32 s3, s17, {16*rs}\ns_add_u32 s19, s19, s3\ns_mul_i32 s3, s13, {colbytes}\ns_add_u32 s19, s19, s3\ns_add_u32 s19, s19, {col0}")
            a("v_and_b32 v4, 63, v0")
            for i in range(3):
                a(f"v_add_u32 v5, {64*i}, v4\nv_mul_u32_u24 v6, {(1 << 16) // cpr + 1}, v5\nv_lshrrev_b32 v6, 16, v6\nv_mul_u32_u24 v7, {cpr}, v6\nv_sub_u32 v7, v5, v7")
                if wmode == 160:
                    a("v_and_b32 v8, 8, v6\nv_and_b32 v9, 1, v6\nv_lshl_add_u32 v8, v9, 2, v8\nv_bfe_u32 v9, v6, 1, 2\nv_add_u32 v6, v8, v9")
                a(f"v_mul_u32_u24 v6, {rs}, v6\nv_lshl_add_u32 v{10+i}, v7, 4, v6")
                if i: a(f"v_subrev_u32 v{10+i}, {1024*i}, v{10+i}")
                if wmode == 160 and i == 2:
                    a(f"v_mov_b32 v8, {OOB:#x}\nv_cmp_gt_u32 vcc, 32, v4\ns_nop 1\nv_cndmask_b32 v12, v8, v12, vcc")
            self.wstep, self.wsrd, self.wv = 32 * rs, 40, (10, 11, 12)
        a("s_waitcnt lgkmcnt(0)")
        srd(a, 8, 4, WS_SIZE)
        if wmode: srd(a, 40, ka_sreg, nbytes)
        stamp(a, 1)
    def dma1(self, lds_off, goff_expr_sreg, tag):
        a = self.a
        a(f"s_mov_b32 m0, {lds_off}\ns_nop 0")
        a.vm(f"buffer_load_dwordx4 v1, s[8:11], s{goff_expr_sreg} offen lds", tag)
    def params(self, mod_off):
        a = self.a
        a(f"s_and_b32 s3, s14, 3\ns_lshl_b32 s3, s3, 10\ns_add_u32 m0, s3, {PAR}\ns_add_u32 s6, s3, {WS_MOD + mod_off}")
        a.vm("buffer_load_dwordx4 v1, s[8:11], s6 offen lds", "par")
        a(f"s_mov_b32 s6, {WS_MOD + mod_off + 4096}")
        self.dma1(PAR + 4096, 6, "par")
    def issue(self, s, with_a=True):
        a = self.a; slot = s % NS
        if with_a:
            a(f"s_add_u32 m0, s21, {slot*STG}\ns_nop 0")
            for q in range(2): a.vm(f"buffer_load_dwordx4 v1, s[8:11], s18 offen offset:{q*1024} lds", ("st", s))
            a("s_add_u32 s18, s18, 2048")
        a(f"s_add_u32 m0, s20, {slot*STG}\ns_nop 0")
        for i in range(3): a.vm(f"buffer_load_dwordx4 v{self.wv[i]}, s[{self.wsrd}:{self.wsrd+3}], s19 offen offset:{i*1024} lds", ("st", s))
        a(f"s_add_u32 s19, s19, {self.wstep}")
    def start(self, issue):
        issue(0); issue(1)
        stamp(self.a, 2)
    def step(self, s, total, issue):
        a = self.a
        a.wait(vm=[("st", s)])
        a("s_barrier")
        if s == 0:
            for t in range(2, DEP): issue(t)
        if s + DEP < total: issue(s + DEP)

def prefetch(a, srdn, base, nbytes, nw, widx, vdst, vtmp, st):
    per_wg = -(-nbytes // 32 // 128) * 128
    per_wave = -(-per_wg // (8192 * nw))
    a(f"s_lshr_b32 s{st}, s2, 3\ns_mul_i32 s{st}, s{st}, {per_wg}\ns_mul_i32 s{st+1}, s{widx}, {per_wave*8192}\ns_add_u32 s{st}, s{st}, s{st+1}\ns_add_u32 s{st}, s{st}, {base:#x}\nv_lshlrev_b32 v{vtmp}, 3, v1")
    for i in range(per_wave):
        a.vm(f"buffer_load_dword v{vdst}, v{vtmp}, s[{srdn}:{srdn+3}], s{st} offen")
        if i < per_wave - 1: a(f"s_add_u32 s{st}, s{st}, 8192")

def unit_off(a, d, per_nb, base):
    a(f"s_lshl_b32 s{d}, s16, 3\ns_add_u32 s{d}, s{d}, s13\ns_mul_i32 s{d}, s{d}, {per_nb}\ns_mul_i32 s6, s15, 3\ns_add_u32 s{d}, s{d}, s6\ns_lshl_b32 s{d}, s{d}, 10\ns_add_u32 s{d}, s{d}, {base:#x}")

def k1():
    a = K("k1")
    gemm_prologue(a)
    compute_addr(a, 0); param_base(a)
    RR, NM = 236, 237
    a(f"v_lshlrev_b32 v7, 3, v2\ns_lshl_b32 s6, s16, 8\ns_add_u32 s6, s6, {WS_ST0:#x}\ns_waitcnt lgkmcnt(0)")
    srd(a, 8, 4, WS_SIZE)
    stamp(a, 1)
    a(f"buffer_load_dwordx2 v[{RR}:{NM}], v7, s[8:11], s6 offen\ns_waitcnt vmcnt(0)")
    areg = lambda s: AF + 8*(s % 2)
    xf = (10, RR, NM)
    c_start(a, areg, xf)
    for s in range(10): c_iter(a, s, s == 0, 10, areg, xf)
    stamp(a, 4)
    T = WS0
    exchange(a, T)
    stamp(a, 5)
    R = ACC
    QS = LOG2E / math.sqrt(20.0)
    unit_off(a, 17, 5, WS_Q)
    a(f"s_mov_b32 s7, {f32(QS)}")
    def qunit(i):
        for j in range(8): a(f"v_mul_f32 v{T+j}, s7, v{R+8*i+j}")
        for d in range(4): a(f"v_cvt_pk_bf16_f32 v{T+8+4*i+d}, v{T+2*d}, v{T+2*d+1}")
        a(f"buffer_store_dwordx4 v[{T+8+4*i}:{T+11+4*i}], v1, s[8:11], s17 offen offset:{i*1024}")
    qunit(0); qunit(1)
    lsp = a.label("spare")
    a(f"s_cmp_eq_u32 s15, 1\ns_cbranch_scc1 {lsp}")
    qunit(2)
    a(f"s_branch L_k1_end\n{lsp}:")
    a("s_cmp_ge_u32 s13, 4\ns_cbranch_scc1 L_k1_end")
    S = R + 16
    a(f"s_lshr_b32 s6, s16, 3\ns_mul_i32 s17, s6, {KVCH}\ns_add_u32 s17, s17, {WS_KV:#x}\ns_and_b32 s18, s16, 7")
    l1, lv, l2 = a.label("k2"), a.label("v"), a.label("k2b")
    a(f"s_cmp_eq_u32 s13, 3\ns_cbranch_scc0 {l1}\nv_mov_b32 v{S+4}, 1.0\ns_mov_b32 exec_lo, 0\nv_mov_b32 v{S}, 1.0\ns_mov_b32 exec_lo, -1\n{l1}:")
    for d in range(4): a(f"v_cvt_pk_bf16_f32 v{T+d}, v{S+2*d}, v{S+2*d+1}")
    a(f"s_cmp_ge_u32 s13, 2\ns_cbranch_scc1 {lv}\ns_cmp_eq_u32 s13, 1\ns_cbranch_scc1 {l2}")
    a(f"s_lshl_b32 s18, s18, 10\ns_add_u32 s17, s17, s18\nbuffer_store_dwordx4 v[{T}:{T+3}], v1, s[8:11], s17 offen\ns_branch L_k1_end")
    a(f"{l2}:\ns_lshl_b32 s18, s18, 8\ns_add_u32 s17, s17, s18\ns_add_u32 s17, s17, 24576\nv_lshrrev_b32 v4, 2, v1\nbuffer_store_dword v{T}, v4, s[8:11], s17 offen\ns_branch L_k1_end")
    a(f"{lv}:")
    a(f"s_lshl_b32 s3, s14, 11\nv_lshlrev_b32 v4, 5, v2\nv_lshl_add_u32 v4, v3, 3, v4\nv_add_u32 v4, s3, v4")
    a(f"ds_write_b64 v4, v[{T}:{T+1}]\nds_write_b64 v4, v[{T+2}:{T+3}] offset:16")
    a("v_lshrrev_b32 v4, 4, v1\nv_and_b32 v5, 15, v4\nv_lshrrev_b32 v4, 4, v4")
    a("v_and_b32 v6, 1, v4\nv_lshlrev_b32 v6, 4, v6\nv_lshl_add_u32 v6, v3, 2, v6\nv_lshrrev_b32 v7, 2, v5\nv_add_u32 v6, v6, v7\nv_lshlrev_b32 v6, 5, v6\nv_and_b32 v7, 3, v5\nv_lshl_add_u32 v6, v7, 3, v6\nv_add_u32 v6, s3, v6")
    a("s_waitcnt lgkmcnt(0)")
    a(f"ds_read_b64_tr_b16 v[{T+4}:{T+5}], v6\nds_read_b64_tr_b16 v[{T+6}:{T+7}], v6 offset:256")
    a("v_and_b32 v6, 1, v4\nv_lshlrev_b32 v6, 10, v6\nv_lshl_add_u32 v6, v3, 9, v6\nv_lshl_add_u32 v6, v5, 4, v6")
    a(f"s_lshl_b32 s18, s18, 11\ns_add_u32 s17, s17, s18\ns_add_u32 s17, s17, 8192\ns_cmp_eq_u32 s13, 2\ns_cselect_b32 s6, 256, 0\ns_add_u32 s17, s17, s6")
    a(f"s_waitcnt lgkmcnt(0)\nbuffer_store_dwordx4 v[{T+4}:{T+7}], v6, s[8:11], s17 offen")
    a("s_branch L_k1_end")
    L = Loader(a, WS_XH, 40, 0, wbase=WS_WQKV)
    L.params(0)
    L.start(L.issue)
    for s in range(10): L.step(s, 10, L.issue)
    end(a)
    finish(a, 256, 512, LDS_G, 248)

SLOT, NSL, DEP6 = 20480, 6, 4
PAR6 = NSL * SLOT
class G6:
    def __init__(self, kpst, nacc, g0=0):
        self.kpst, self.nacc, self.g0 = kpst, nacc, g0
        self.fs = kpst * (1 + nacc) * 4
        self.ACC, self.FR = 8, 8 + 16 * nacc
    def addr(self, a):
        a(f"s_mul_i32 s3, s17, {self.kpst*1024}\ns_add_u32 s3, s3, 12288\nv_add_u32 v4, s3, v1\nv_add_u32 v5, {3*SLOT}, v4")
        a(f"s_lshl_b32 s3, s15, 10\nv_add_u32 v6, s3, v1\nv_add_u32 v7, {3*SLOT}, v6")
    def reads(self, a, s):
        slot = (self.g0 + s) % NSL; hi, sl = (1, slot - 3) if slot >= 3 else (0, slot)
        F = self.FR + (s % 2) * self.fs
        ops = []
        for q in range(self.kpst):
            r = F + q * (1 + self.nacc) * 4
            ops.append(lambda r=r, q=q: a.lg(f"ds_read_b128 v[{r}:{r+3}], v{4+hi} offset:{sl*SLOT + q*1024}", ("f", s, q)))
            for n in range(self.nacc):
                rw = r + 4 + 4*n
                ops.append(lambda rw=rw, q=q, n=n: a.lg(f"ds_read_b128 v[{rw}:{rw+3}], v{6+hi} offset:{sl*SLOT + (q*self.nacc + n)*3072}", ("f", s, q)))
        return ops
    def start(self, a):
        a("s_barrier")
        run(self.reads(a, 0))
    def iter(self, a, s, first, total):
        rd = []
        if s + 1 < total:
            a("s_barrier")
            rd = self.reads(a, s + 1)
        F = self.FR + (s % 2) * self.fs
        per = len(rd) // self.kpst if rd else 0
        for q in range(self.kpst):
            a.wait(lg=[("f", s, q)])
            r = F + q * (1 + self.nacc) * 4
            for n in range(self.nacc):
                d = self.ACC + 16*n
                c = "0" if (first and q == 0) else f"v[{d}:{d+15}]"
                a(f"v_mfma_f32_32x32x16_bf16 v[{d}:{d+15}], v[{r+4+4*n}:{r+7+4*n}], v[{r}:{r+3}], {c}")
            run(rd[q*per:(q+1)*per])
    def lsetup(self, a, act_base, nks, w_base, sa, sw, sl, aflags="", wflags=""):
        self.a, self.sa, self.sw, self.sl, self.af, self.wf = a, sa, sw, sl, aflags, wflags
        k = self.kpst
        a(f"s_mul_i32 s{sl}, s15, {k*512}\ns_add_u32 s{sl}, s{sl}, 12288")
        a(f"s_mul_i32 s{sa}, s16, {nks*1024}\ns_and_b32 s3, s15, 1\ns_mul_i32 s3, s3, {k*512}\ns_add_u32 s{sa}, s{sa}, s3\ns_add_u32 s{sa}, s{sa}, {act_base:#x}")
        a(f"s_mul_i32 s{sw}, s13, {nks*3072*self.nacc}\ns_add_u32 s{sw}, s{sw}, s20\ns_add_u32 s{sw}, s{sw}, {w_base:#x}")
    def issue_a(self, s):
        a = self.a; slot = (self.g0 + s) % NSL
        a(f"s_add_u32 m0, s{self.sl}, {slot*SLOT}\ns_nop 0")
        for q in range(self.kpst // 2): a.vm(f"buffer_load_dwordx4 v1, s[8:11], s{self.sa} offen offset:{q*1024} {self.af} lds", ("st", self.g0 + s))
        a(f"s_add_u32 s{self.sa}, s{self.sa}, {self.kpst*1024}")
    def issue_w(self, s):
        a = self.a; slot = (self.g0 + s) % NSL
        a(f"s_add_u32 m0, s20, {slot*SLOT}\ns_nop 0")
        for i in range(3): a.vm(f"buffer_load_dwordx4 v1, s[8:11], s{self.sw} offen offset:{i*1024} {self.wf} lds", ("st", self.g0 + s))
        a(f"s_add_u32 s{self.sw}, s{self.sw}, 12288")
    def issue(self, s):
        self.issue_a(s); self.issue_w(s)
    def lstep(self, s, total, nxt=None):
        a = self.a
        a.wait(vm=[("st", self.g0 + s)])
        a("s_barrier")
        if s + DEP6 < total: self.issue(s + DEP6)
        elif nxt is not None: nxt(s + DEP6 - total)

def g6_prologue(a, extra=""):
    common_prologue(a, extra)
    a(f"s_cmp_ge_u32 s14, 6\ns_cbranch_scc1 L_{a.name}_loader")
    a("s_cmp_ge_u32 s14, 3\ns_cselect_b32 s17, 1, 0\ns_mul_i32 s3, s17, 3\ns_sub_u32 s15, s14, s3\ns_lshl_b32 s16, s12, 1\ns_add_u32 s16, s16, s17")
def g6_loader_entry(a):
    a(f"L_{a.name}_loader:")
    a.vmq = []; a.lgq = []
    a("s_sub_u32 s15, s14, 6\ns_mul_i32 s20, s15, 3072\ns_lshl_b32 s16, s12, 1\ns_lshr_b32 s3, s15, 1\ns_add_u32 s16, s16, s3")
def dma1(a, lds_off, sreg, tag, imm=0):
    a(f"s_mov_b32 m0, {lds_off}\ns_nop 0")
    a.vm(f"buffer_load_dwordx4 v1, s[8:11], s{sreg} offen offset:{imm} lds", tag)
def xid_publish(a, base):
    l = a.label("xid")
    a(f"s_cmp_lg_u32 s14, 6\ns_cbranch_scc1 {l}\ns_lshl_b32 s3, s12, 8\ns_lshl_b32 s6, s13, 2\ns_add_u32 s3, s3, s6\ns_add_u32 s3, s3, {base:#x}\ns_getreg_b32 s7, hwreg(HW_REG_XCC_ID, 0, 4)\ns_add_u32 s7, s7, 1\nv_mov_b32 v8, 0\nv_mov_b32 v9, s7\ns_mov_b64 exec, 1\nbuffer_store_dword v9, v8, s[8:11], s3 offen sc1\ns_mov_b64 exec, -1\n{l}:")
def xid_load(a, base, v):
    a(f"s_lshl_b32 s3, s12, 8\ns_add_u32 s3, s3, {base:#x}\nv_and_b32 v{v}, 7, v0\nv_lshlrev_b32 v{v}, 2, v{v}")
    a.vm(f"buffer_load_dword v{v}, v{v}, s[8:11], s3 offen sc1", "epi")
def pretouch(a, v, items):
    a(f"v_lshlrev_b32 v{v}, 3, v1")
    for sreg, n in items:
        a(f"s_mov_b64 exec, {(1 << n) - 1:#x}")
        a.vm(f"buffer_load_dword v{v+1}, v{v}, s[8:11], s{sreg} offen sc1", "epi")
    a("s_mov_b64 exec, -1")
def xid_decide(a, v):
    a(f"s_getreg_b32 s36, hwreg(HW_REG_XCC_ID, 0, 4)\ns_add_u32 s36, s36, 1\nv_cmp_ne_u32 vcc, s36, v{v}\ns_nop 1\ns_cmp_eq_u64 vcc, 0\ns_cselect_b32 s37, {XFAST}, 0")
def hstore(a, text):
    l1, l2 = a.label("hs"), a.label("hd")
    a(f"s_cmp_eq_u32 s37, 1\ns_cbranch_scc1 {l1}\n{text} sc1\ns_branch {l2}\n{l1}:")
    a.vm(text)
    a(f"{l2}:")
AFL = os.environ.get("X_AFL", "sc1")
XFAST = int(os.environ.get("X_FAST", "1"))
def flag_addr(a, base):
    a(f"s_lshl_b32 s38, s12, 8\ns_mul_i32 s6, s13, 6\ns_add_u32 s6, s6, s14\ns_lshl_b32 s6, s6, 2\ns_add_u32 s38, s38, s6\ns_add_u32 s38, s38, {base+32:#x}")
def handoff_publish(a, base):
    a("v_mov_b32 v8, 0\nv_mov_b32 v9, 1\ns_mov_b64 exec, 1")
    a("s_waitcnt vmcnt(0)")
    hstore(a, "buffer_store_dword v9, v8, s[8:11], s38 offen")
    a("s_mov_b64 exec, -1")
    a.vmq = []
def handoff_wait(a, base, n=48):
    lp, lo = a.label("hp"), a.label("ho")
    a(f"s_lshl_b32 s3, s12, 8\ns_add_u32 s3, s3, {base+32:#x}\nv_lshrrev_b32 v8, 2, v1\nv_min_u32 v8, {(n-1)*4}, v8\ns_mov_b32 s29, 0x8000")
    a(f"{lp}:\nbuffer_load_dword v9, v8, s[8:11], s3 offen sc1\ns_waitcnt vmcnt(0)\nv_cmp_eq_u32 vcc, 0, v9\ns_sub_u32 s29, s29, 1\ns_cbranch_scc1 {lo}\ns_cbranch_vccnz {lp}\n{lo}:")
    a.vmq = []

def unit_off6(a, d, per_nb, base):
    a(f"s_lshl_b32 s{d}, s16, 3\ns_add_u32 s{d}, s{d}, s13\ns_mul_i32 s{d}, s{d}, {per_nb}\ns_lshl_b32 s6, s15, 1\ns_add_u32 s{d}, s{d}, s6\ns_lshl_b32 s{d}, s{d}, 10\ns_add_u32 s{d}, s{d}, {base:#x}")

def stats_addr(a, base, st):
    a(f"s_mul_i32 s7, s13, 3\ns_add_u32 s7, s7, s15\ns_mul_i32 s{st}, s16, 6144\ns_lshr_b32 s3, s7, 1\ns_lshl_b32 s3, s3, 9\ns_add_u32 s{st}, s{st}, s3\ns_and_b32 s3, s7, 1\ns_lshl_b32 s3, s3, 3\ns_add_u32 s{st}, s{st}, s3\ns_add_u32 s{st}, s{st}, {base:#x}")
def stats_store(a, V, st, flags=""):
    a(f"v_mov_b32 v{V+2}, v{V}\nv_mov_b32 v{V+3}, v{V+1}\ns_nop 1\nv_permlane32_swap_b32 v{V}, v{V+2}\nv_permlane32_swap_b32 v{V+1}, v{V+3}\ns_nop 1\nv_add_f32 v{V}, v{V}, v{V+2}\nv_add_f32 v{V+1}, v{V+1}, v{V+3}\nv_max_f32 v{V+1}, 0, v{V+1}")
    a("s_mov_b32 exec_hi, 0")
    hstore(a, f"buffer_store_dwordx2 v[{V}:{V+1}], v1, s[8:11], s{st} offen")
    a("s_mov_b32 exec_hi, -1")
def stats_load(a, D, st, tag, flags=""):
    for i in range(6): a.vm(f"buffer_load_dwordx4 v[{D+4*i}:{D+4*i+3}], v1, s[8:11], s{st + i//4} offen offset:{1024*(i%4)} {flags}", tag)
def stats_base(a, st, base):
    a(f"s_mul_i32 s{st}, s16, 6144\ns_add_u32 s{st}, s{st}, {base:#x}\ns_add_u32 s{st+1}, s{st}, 4096")
def stats_finish(a, D, n, rr, nm):
    for i in range(1, 12): a(f"v_add_f32 v{D}, v{D}, v{D+2*i}\nv_add_f32 v{D+1}, v{D+1}, v{D+2*i+1}")
    a(f"v_mov_b32 v{D+2}, v{D}\nv_mov_b32 v{D+3}, v{D+1}\ns_nop 1\nv_permlane32_swap_b32 v{D}, v{D+2}\nv_permlane32_swap_b32 v{D+1}, v{D+3}\ns_nop 1\nv_add_f32 v{D}, v{D}, v{D+2}\nv_add_f32 v{D+1}, v{D+1}, v{D+3}")
    a(f"v_mul_f32 v{D}, {f32(1/n)}, v{D}\nv_mul_f32 v{D+1}, {f32(1/n)}, v{D+1}\nv_fma_f32 v{D+1}, -v{D}, v{D}, v{D+1}\nv_max_f32 v{D+1}, 0, v{D+1}\nv_add_f32 v{D+1}, {f32(1e-5)}, v{D+1}\nv_rsq_f32 v{rr}, v{D+1}\ns_nop 0\nv_mul_f32 v{nm}, v{D}, v{rr}\nv_sub_f32 v{nm}, 0, v{nm}")

def proj_epilogue(a, g, final, G, XR, T, ST, OUT, oaddr):
    a.wait(vm=["epi"])
    a("s_waitcnt lgkmcnt(0)"); a.lgq = []
    if not final: a("s_nop 8")
    else: a("s_nop 8")
    R = g.ACC
    lskip = a.label("skip")
    for i in range(2):
        if i == 1: a(f"s_cmp_eq_u32 s15, 2\ns_cbranch_scc1 {lskip}")
        for d in range(4):
            x = XR + 4*i + d; r = R + 8*i + 2*d; gg = G + 8*i + 2*d; t = T + 2*(d % 2)
            a(f"v_lshlrev_b32 v{t}, 16, v{x}\nv_and_b32 v{t+1}, 0xffff0000, v{x}\nv_fmac_f32 v{t}, v{gg}, v{r}\nv_fmac_f32 v{t+1}, v{gg+1}, v{r+1}")
            if not final:
                a(f"v_add_f32 v{ST}, v{ST}, v{t}\nv_fmac_f32 v{ST+1}, v{t}, v{t}\nv_add_f32 v{ST}, v{ST}, v{t+1}\nv_fmac_f32 v{ST+1}, v{t+1}, v{t+1}")
            a(f"v_cvt_pk_bf16_f32 v{OUT+4*i+d}, v{t}, v{t+1}")
        o = OUT + 4*i
        if final:
            a(f"s_nop 1\nv_permlane32_swap_b32 v{o}, v{o+2}\nv_permlane32_swap_b32 v{o+1}, v{o+3}\nbuffer_store_dwordx4 v[{o}:{o+3}], v{oaddr}, s[24:27], s28 offen offset:{32*i}")
        else:
            hstore(a, f"buffer_store_dwordx4 v[{o}:{o+3}], v1, s[8:11], s22 offen offset:{1024*i}")
    a(f"{lskip}:")

GC1 = -2.0 * LOG2E * math.sqrt(2.0 / math.pi)
GC2 = GC1 * 0.044715
def gelu(a, regs, t0, c1):
    for i, r in enumerate(regs): a(f"v_mul_f32 v{t0+i}, v{r}, v{r}")
    for i, r in enumerate(regs): a(f"v_fma_f32 v{t0+i}, v{t0+i}, s28, v{c1}")
    for i, r in enumerate(regs): a(f"v_mul_f32 v{t0+i}, v{t0+i}, v{r}")
    for i, r in enumerate(regs): a(f"v_exp_f32 v{t0+i}, v{t0+i}")
    for i, r in enumerate(regs): a(f"v_add_f32 v{t0+i}, 1.0, v{t0+i}")
    for i, r in enumerate(regs): a(f"v_rcp_f32 v{t0+i}, v{t0+i}")
    for i, r in enumerate(regs): a(f"v_mul_f32 v{r}, v{r}, v{t0+i}")

ZROW = 208
RA_D = os.environ.get('X_RAD', '1') == '1'
PATCH = PAR6 + 4096
GB_LDS = PAR6 + 3072
X1K, Z1K = 140, 148
def wg_poll(a, lds_word, body, vt=8):
    lp, lo, lw, ld = a.label("gp"), a.label("go"), a.label("gw"), a.label("gd")
    a(f"v_mov_b32 v{vt+4}, {lds_word}\ns_cmp_lg_u32 s15, 0\ns_cbranch_scc1 {lw}\ns_mov_b32 s29, 0x8000\n{lp}:")
    body()
    a(f"s_sub_u32 s29, s29, 1\ns_cbranch_scc1 {lo}\ns_cbranch_vccz {lo}\ns_sleep {os.environ.get('X_SLP', '2')}\ns_branch {lp}\n{lo}:\nv_mov_b32 v{vt+5}, 1\nds_write_b32 v{vt+4}, v{vt+5}\ns_waitcnt lgkmcnt(0)\ns_branch {ld}")
    a(f"{lw}:\nds_read_b32 v{vt+5}, v{vt+4}\ns_waitcnt lgkmcnt(0)\nv_readfirstlane_b32 s3, v{vt+5}\ns_cmp_eq_u32 s3, 1\ns_cbranch_scc1 {ld}\ns_sleep 1\ns_branch {lw}\n{ld}:\ns_waitcnt vmcnt(0)")
    a.vmq = []

def phase_ab_compute(a, g, h, pc, pd):
    a("s_cmp_ge_u32 s14, 3\ns_cselect_b32 s17, 1, 0\ns_mul_i32 s3, s17, 3\ns_sub_u32 s15, s14, s3\ns_lshl_b32 s16, s12, 1\ns_add_u32 s16, s16, s17")
    a.vmq = []; a.lgq = []
    g.addr(a)
    G, XR, T, ST = 88, 104, 112, 124
    UTL = PAR6 + 1024
    unit_off6(a, 22, 5, 0)
    a(f"s_add_u32 s23, s22, {WS_XH:#x}\ns_add_u32 s22, s22, {WS_X1:#x}")
    a(f"s_lshl_b32 s3, s15, 7\ns_add_u32 s3, s3, {PAR6}\nv_lshlrev_b32 v128, 4, v3\nv_add_u32 v128, s3, v128")
    stats_addr(a, WS_ST1, 29)
    flag_addr(a, WS_FL1)
    g.start(a)
    stamp(a, 5)
    for i in range(2): a.vm(f"buffer_load_dwordx4 v[{XR+4*i}:{XR+4*i+3}], v1, s[8:11], s23 offen offset:{1024*i}", "epi")
    for s in range(10):
        g.iter(a, s, s == 0, 10)
        if s == 4: xid_load(a, WS_FL1, 129)
        if s == 7:
            for i in range(4): a.lg(f"ds_read_b128 v[{G+4*i}:{G+4*i+3}], v128 offset:{32*i}")
        if s == 8:
            a.wait(vm=["epi"])
            xid_decide(a, 129)
            a(f"v_mov_b32 v{ST}, 0\nv_mov_b32 v{ST+1}, 0")
    proj_epilogue(a, g, False, G, XR, T, ST, X1K, None)
    stats_store(a, ST, 29, "sc1")
    handoff_publish(a, WS_FL1)
    SD, U, T, RR, NM, C1, ST = 88, 40, 72, 112, 113, 114, 116
    h.addr(a)
    stats_base(a, 22, WS_ST1); stats_base(a, 30, WS_ST2)
    a(f"s_add_u32 s29, s29, {WS_ST2 - WS_ST1}")
    a(f"s_lshl_b32 s3, s15, 8\ns_add_u32 s3, s3, {UTL}\nv_lshlrev_b32 v115, 5, v3\nv_add_u32 v115, s3, v115")
    a(f"s_mov_b32 s28, {f32(GC2)}\nv_mov_b32 v{C1}, {f32(GC1)}")
    h.start(a)
    stamp(a, 6)
    stats_load(a, SD, 22, "ln", AFL)
    for s in range(20):
        h.iter(a, s, s == 0, 20)
        if s == 8:
            a.wait(vm=["ln"])
            stats_finish(a, SD, 640, RR, NM)
    stamp(a, 7)
    def ut_reads(n):
        for u in range(2):
            for hf in range(2):
                for k in range(2):
                    r = U + 16*u + 8*hf + 4*k
                    a(f"ds_read_b128 v[{r}:{r+3}], v115 offset:{n*768 + u*128 + hf*64 + k*16}")
    def affine(n):
        A = h.ACC + 16*n
        for i in range(16): a(f"v_fma_f32 v{U+2*i+1}, v{U+2*i}, v{NM}, v{U+2*i+1}")
        for i in range(16): a(f"v_fma_f32 v{A+i}, v{A+i}, v{RR}, v{U+2*i+1}")
    Z2, Z1 = h.ACC, h.ACC + 16
    a("s_setprio 1")
    ut_reads(0)
    a("s_waitcnt lgkmcnt(0)\ns_nop 2")
    affine(0)
    ut_reads(1)
    gelu(a, list(range(Z2, Z2+16)), T, C1)
    a(f"v_mov_b32 v{ST}, 0\nv_mov_b32 v{ST+1}, 0")
    for i in range(16): a(f"v_add_f32 v{ST}, v{ST}, v{Z2+i}\nv_fmac_f32 v{ST+1}, v{Z2+i}, v{Z2+i}")
    stats_store(a, ST, 29, "sc1")
    a("s_setprio 0")
    a("s_waitcnt lgkmcnt(0)")
    affine(1)
    gelu(a, list(range(Z1, Z1+16)), T, C1)
    stats_load(a, SD, 30, "st2", "sc1")
    for i in range(8): a(f"v_cvt_pk_bf16_f32 v{Z1K+i}, v{Z1+2*i}, v{Z1+2*i+1}")
    a(f"s_mul_i32 s6, s17, {32*ZROW}\ns_lshl_b32 s7, s15, 6\ns_add_u32 s6, s6, s7\ns_add_u32 s6, s6, {PATCH}\nv_mul_u32_u24 v4, {ZROW}, v2\nv_lshl_add_u32 v4, v3, 3, v4\nv_add_u32 v4, s6, v4")
    a(f"v_bfe_u32 v5, v0, 2, 2\nv_lshl_add_u32 v5, v3, 3, v5\nv_mul_u32_u24 v5, {ZROW}, v5\nv_and_b32 v6, 3, v0\nv_lshl_add_u32 v5, v6, 3, v5\nv_bfe_u32 v6, v0, 4, 1\nv_lshl_add_u32 v5, v6, 5, v5\nv_add_u32 v5, s6, v5")
    a(f"s_lshl_b32 s6, s13, 7\ns_lshl_b32 s7, s16, 1\ns_add_u32 s6, s6, s7\ns_mul_i32 s6, s6, 3\ns_add_u32 s6, s6, s15\ns_lshl_b32 s6, s6, 10\ns_add_u32 s26, s6, {WS_Z2T:#x}")
    a.wait(vm=["st2"])
    a("s_mov_b32 s29, 0x4000")
    lp, lok = a.label("poll"), a.label("ok")
    a(f"{lp}:")
    a(f"v_or_b32 v{ST}, v{SD+1}, v{SD+3}")
    for i in range(2, 12): a(f"v_or_b32 v{ST}, v{ST}, v{SD+1+2*i}")
    a(f"v_cmp_gt_i32 vcc, 0, v{ST}\ns_sub_u32 s29, s29, 1\ns_cbranch_scc1 {lok}\ns_cbranch_vccz {lok}")
    stats_load(a, SD, 30, "st2", "sc1")
    a(f"s_waitcnt vmcnt(0)\ns_branch {lp}\n{lok}:")
    stats_finish(a, SD, 768, RR, NM)
    for i in range(16): a(f"v_fma_f32 v{Z2+i}, v{Z2+i}, v{RR}, v{NM}")
    for i in range(8): a(f"v_cvt_pk_bf16_f32 v{T+8+i}, v{Z2+2*i}, v{Z2+2*i+1}")
    for i in range(4): a(f"ds_write_b64 v4, v[{T+8+2*i}:{T+9+2*i}] offset:{16*i}")
    a("s_waitcnt lgkmcnt(0)")
    for p in range(2):
        a(f"ds_read_b64_tr_b16 v[{U+4*p}:{U+4*p+1}], v5 offset:{16*p*ZROW}\nds_read_b64_tr_b16 v[{U+4*p+2}:{U+4*p+3}], v5 offset:{(16*p+4)*ZROW}")
    a("s_waitcnt lgkmcnt(0)")
    for p in range(2): a(f"buffer_store_dwordx4 v[{U+4*p}:{U+4*p+3}], v1, s[8:11], s26 offen offset:{3072*p} sc1")
    a(f"s_mul_i32 s3, s13, 768\ns_mul_i32 s6, s12, 24\ns_add_u32 s3, s3, s6\ns_lshl_b32 s6, s14, 2\ns_add_u32 s3, s3, s6\ns_add_u32 s3, s3, {WS_FL3:#x}\nv_mov_b32 v8, 0\nv_mov_b32 v9, 1\ns_mov_b64 exec, 1\ns_waitcnt vmcnt(0)\nbuffer_store_dword v9, v8, s[8:11], s3 offen sc1\ns_mov_b64 exec, -1")
    a("s_barrier")
    stamp(a, 8)
    a.vmq = []; a.lgq = []
    B, T, G = 96, 100, 112
    pc.addr(a)
    unit_off6(a, 29, 6, WS_Y)
    flag_addr(a, WS_FL2)
    a(f"s_load_dwordx2 s[32:33], s[0:1], {KA['b_sp']}\nv_lshlrev_b32 v97, 1, v2\ns_lshl_b32 s6, s16, 6\ns_waitcnt lgkmcnt(0)")
    srd(a, 24, 32, 4096)
    a(f"buffer_load_ushort v{B}, v97, s[24:27], s6 offen")
    for i in range(16): a(f"v_mov_b32 v{pc.ACC+i}, 0")
    pc.start(a)
    stamp(a, 9)
    a("s_mov_b32 s30, 5\nL_k234_cloop:")
    for s in range(6): pc.iter(a, s, False, 32)
    a("s_sub_u32 s30, s30, 1\ns_cmp_lg_u32 s30, 0\ns_cbranch_scc1 L_k234_cloop")
    a.lgq = [(t[0], t[1] + 24, t[2]) if isinstance(t, tuple) else t for t in a.lgq]
    a(f"s_waitcnt vmcnt(0)\nv_lshlrev_b32 v{B}, 16, v{B}")
    for s in range(30, 32): pc.iter(a, s, False, 32)
    stamp(a, 10)
    R = pc.ACC
    a("s_nop 11")
    for i in range(2):
        for d in range(4):
            z = Z1K + 4*i + d; r = R + 8*i + 2*d; t = T + 2*(d % 2)
            a(f"v_add_f32 v{r}, v{r}, v{B}\nv_add_f32 v{r+1}, v{r+1}, v{B}\nv_lshlrev_b32 v{t}, 16, v{z}\nv_and_b32 v{t+1}, 0xffff0000, v{z}\nv_mul_f32 v{r}, v{r}, v{t}\nv_mul_f32 v{r+1}, v{r+1}, v{t+1}\nv_cvt_pk_bf16_f32 v{T+4+4*i+d}, v{r}, v{r+1}")
        hstore(a, f"buffer_store_dwordx4 v[{T+4+4*i}:{T+7+4*i}], v1, s[8:11], s29 offen offset:{1024*i}")
    handoff_publish(a, WS_FL2)
    if not RA_D: a("s_barrier")
    srd(a, 24, 44, 2048 * 1280)
    a(f"s_lshl_b32 s3, s15, 7\ns_add_u32 s3, s3, {GB_LDS}\nv_lshlrev_b32 v136, 4, v3\nv_add_u32 v136, s3, v136")
    a(f"v_mul_u32_u24 v137, 1280, v2\nv_lshl_add_u32 v137, v3, 4, v137\ns_mul_i32 s28, s16, {32*1280}\ns_mul_i32 s6, s13, 160\ns_add_u32 s28, s28, s6\ns_lshl_b32 s6, s15, 6\ns_add_u32 s28, s28, s6")
    pd.start(a)
    stamp(a, 3)
    for s in range(12):
        pd.iter(a, s, s == 0, 12)
        if s == 9:
            for i in range(4): a.lg(f"ds_read_b128 v[{G+4*i}:{G+4*i+3}], v136 offset:{32*i}")
    proj_epilogue(a, pd, True, G, X1K, 100, None, 104, 137)
    a("s_branch L_k234_end")

def k234():
    K2T = os.environ.get("X_K2T"); SYNC = os.environ.get("X_SYNC", "bar")
    a = K("k234"); GA = G6(4, 1, 3); GB = G6(2, 2, 13); GC = G6(4, 1, 33); GD = G6(4, 1, 65)
    common_prologue(a, f"s_load_dwordx4 s[32:35], s[0:1], {KA['w_in']}\ns_load_dwordx2 s[36:37], s[0:1], {KA['wo']}\ns_load_dwordx2 s[38:39], s[0:1], {KA['w_out']}\ns_load_dwordx2 s[44:45], s[0:1], {KA['out']}")
    SA = [(8, 24), (40, 56)]; OO = [72, 88]; PP = [104, 112]; QQ1 = [120, 128]; QQ2 = [124, 132]
    KA_, KB_, V1, V2 = 136, 140, 144, 148
    VA, VB, VN, VNB, DUM, OA, CA = 4, 5, 6, 152, 153, 154, 160
    NB = 6
    FLAG = NB * KVCH
    a("s_mov_b32 s27, 0")
    a("s_cmp_ge_u32 s14, 6\ns_cbranch_scc1 L_k234_helper\ns_cmp_ge_u32 s14, 4\ns_cbranch_scc1 L_k234_idle")
    a("v_lshrrev_b32 v7, 2, v1")
    a("s_lshr_b32 s15, s14, 1\ns_and_b32 s16, s14, 1\ns_lshl_b32 s16, s16, 1\ns_lshl_b32 s17, s12, 1\ns_add_u32 s17, s17, s15")
    a(f"s_lshl_b32 s18, s17, 3\ns_add_u32 s18, s18, s13\ns_mul_i32 s18, s18, 5120\ns_add_u32 s18, s18, {WS_Q:#x}\ns_lshl_b32 s6, s16, 10\ns_add_u32 s19, s18, s6\ns_lshl_b32 s6, s16, 2\ns_add_u32 s18, s18, s6\ns_add_u32 s18, s18, 4096")
    a("s_waitcnt lgkmcnt(0)")
    srd(a, 8, 4, WS_SIZE)
    stamp(a, 1)
    for X in range(2):
        a(f"buffer_load_dwordx4 v[{QQ1[X]}:{QQ1[X]+3}], v1, s[8:11], s19 offen offset:{1024*X}\nbuffer_load_dword v{QQ2[X]}, v1, s[8:11], s18 offen offset:{4*X}")
    def qk1(X, S): return f"v_mfma_f32_32x32x16_bf16 v[{S}:{S+15}], v[{KB_}:{KB_+3}], v[{QQ2[X]}:{QQ2[X]+3}], 0"
    def qk2(X, S): return f"v_mfma_f32_32x32x16_bf16 v[{S}:{S+15}], v[{KA_}:{KA_+3}], v[{QQ1[X]}:{QQ1[X]+3}], v[{S}:{S+15}]"
    def pv(X, V, P): return f"v_mfma_f32_32x32x16_bf16 v[{OO[X]}:{OO[X]+15}], v[{V}:{V+3}], v[{P}:{P+3}], v[{OO[X]}:{OO[X]+15}]"
    def rKA(t, va): return f"ds_read_b128 v[{KA_}:{KA_+3}], v{va} offset:{t*1024}"
    def rKB(t, vb): return f"ds_read_b32 v{KB_}, v{vb} offset:{24576+t*256}"
    def rV(t, p, va): return f"ds_read_b128 v[{(V1, V2)[p]}:{(V1, V2)[p]+3}], v{va} offset:{8192+t*2048+p*1024}"
    def scores():
        for X in range(2): a(qk1(X, SA[X][0]))
        for X in range(2): a(qk2(X, SA[X][0]))
    def max_reduce():
        for X in range(2):
            for i in range(0, 16, 2): a(f"v_max3_f32 v{PP[X]}, v{SA[X][0]+i}, v{SA[X][0]+i+1}, v{PP[X]}")
    def finish_max():
        a("v_cmp_eq_u32 vcc, 0, v3")
        for X in range(2):
            M = PP[X]
            a(f"v_mov_b32 v{M+1}, v{M}\ns_nop 1\nv_permlane32_swap_b32 v{M}, v{M+1}\ns_nop 1\nv_max_f32 v{M}, v{M}, v{M+1}")
            a(f"v_and_b32 v{M+1}, 0xffff0000, v{M}\nv_sub_f32 v{M+2}, v{M}, v{M+1}\nv_and_b32 v{M+3}, 0xffff0000, v{M+2}\nv_sub_f32 v{M+2}, v{M+2}, v{M+3}")
            a(f"v_lshrrev_b32 v{M+1}, 16, v{M+1}\nv_or_b32 v{M+1}, v{M+1}, v{M+3}\nv_lshrrev_b32 v{M+2}, 16, v{M+2}")
            a(f"v_cndmask_b32 v{QQ2[X]+1}, 0, v{M+1}, vcc\nv_cndmask_b32 v{QQ2[X]+2}, 0, v{M+2}, vcc")
    def reset_max():
        for X in range(2): a(f"v_mov_b32 v{QQ2[X]+1}, 0\nv_mov_b32 v{QQ2[X]+2}, 0\nv_mov_b32 v{PP[X]}, 0xff800000")
    a(f"s_lshl_b32 s38, s12, 8\ns_lshl_b32 s6, s13, 2\ns_add_u32 s6, s6, s14\ns_lshl_b32 s6, s6, 2\ns_add_u32 s38, s38, s6\ns_add_u32 s38, s38, {WS_FL0+32:#x}\ns_mov_b32 s39, 0\ns_lshl_b32 s49, s14, 2\ns_add_u32 s49, s49, {FLAG}")
    reset_max()
    for r in (QQ2[0]+3, QQ2[1]+3, KB_+3): a(f"v_mov_b32 v{r}, 0")
    for r in (KB_+1, KB_+2): a(f"v_mov_b32 v{r}, 0xbf80bf80")
    def main_init():
        a(f"s_mov_b32 s24, 0\ns_mov_b32 s25, {KVCH}\nv_mov_b32 v{VNB}, {FLAG+68}\nv_mov_b32 v{VA}, v1\nv_mov_b32 v{VN}, v1\nv_mov_b32 v{VB}, v7")
        for X in range(2):
            for i in range(16): a(f"v_mov_b32 v{OO[X]+i}, 0")
            for i in range(4): a(f"v_mov_b32 v{SA[X][1]+12+i}, 0")
        for i in range(4): a(f"v_mov_b32 v{V2+i}, 0")
    main_init()
    a(f"s_mul_i32 s6, s13, 20\ns_mul_i32 s7, s16, 5\ns_add_u32 s6, s6, s7\ns_mul_i32 s22, s17, {40*1024}\ns_add_u32 s22, s22, {WS_O:#x}")
    for X in range(2):
        for i, g in enumerate((0, 2, 4)):
            a(f"v_add_u32 v8, s6, v3\nv_add_u32 v8, {5*X+g}, v8" if g < 4 else f"v_mov_b32 v8, s6\nv_add_u32 v8, {5*X+4}, v8")
            a(f"v_lshrrev_b32 v9, 2, v8\nv_lshlrev_b32 v9, 10, v9\nv_and_b32 v10, 1, v8\nv_lshl_add_u32 v9, v10, 9, v9\nv_bfe_u32 v10, v8, 1, 1\nv_lshl_add_u32 v9, v10, 3, v9\nv_lshl_add_u32 v{OA+3*X+i}, v2, 4, v9")
    a(f"v_mov_b32 v{CA}, {FLAG+32}\nv_mov_b32 v{CA+2}, 0\nv_add_u32 v{CA+3}, {FLAG+32}, v7\nds_write_b32 v{CA+3}, v{CA+2}\nv_mov_b32 v{CA+1}, 1")
    a("s_waitcnt vmcnt(0) lgkmcnt(0)\ns_barrier")
    stamp(a, 2)
    a(rKA(0, 1)); a(rKB(0, 7)); a("s_waitcnt lgkmcnt(0)")
    scores()
    a("s_nop 10")
    max_reduce()
    finish_max()
    a("L_k234_main:")
    for X in range(2):
        for i in range(2): a(f"v_mov_b32 v{PP[X]+4+i}, 0")
    scores()
    a(rKB(1, VB)); a(f"ds_read_b32 v{DUM}, v{VB}"); a(rKA(1, VA)); a(rV(0, 0, VA))
    a("s_nop 5")
    slow = []
    a("L_k234_loop:")
    for t in range(8):
        kt, vt = (t + 2) % 8, (t + 1) % 8
        if PROF and os.environ.get("X_GT"):
            if t == 0: a("s_memtime s[80:81]")
            if t == 3: a("s_lshl_b32 m0, s24, 1\ns_nop 0\ns_movreld_b32 s56, s80")
        for gi in range(4):
            for X in range(2):
                S, Sp = (SA[X][0], SA[X][1]) if t % 2 == 0 else (SA[X][1], SA[X][0])
                P = PP[X]
                cv, mf, rd = [([(6, Sp+12), (7, Sp+14)], qk1(X, Sp), rKB(kt, VB)),
                              ([(0, S), (1, S+2)], pv(X, V2, P+4), rV(t, 1, VN)),
                              ([(2, S+4), (3, S+6)], qk2(X, Sp), rKA(kt, VA)),
                              ([(4, S+8), (5, S+10)], pv(X, V1, P), rV(vt, 0, VN))][gi]
                for d, r in cv: a(f"v_cvt_pk_bf16_f32 v{P+d}, v{r}, v{r+1}")
                if gi % 2 == 0 and X == 0: a("s_waitcnt lgkmcnt(2)")
                a(mf)
                if X == 1: a(rd)
                if X == 0 and (t, gi) == (5, 0):
                    ls, l2, l5 = a.label("bs"), a.label("g2"), a.label("g5")
                    a(f"s_cmp_eq_u32 s24, 5\ns_cselect_b32 s26, {-5*KVCH}, s25\ns_bitcmp1_b32 0x67, s24\ns_cbranch_scc0 {ls}\ns_bitcmp1_b32 0x44, s24\ns_cbranch_scc1 {l2}\ns_cmp_eq_u32 s24, 5\ns_cbranch_scc1 {l5}\ns_barrier\ns_branch {ls}")
                    a(f"{l2}:\ns_mov_b64 exec, 1\nds_add_u32 v{CA}, v{CA+1}\ns_mov_b64 exec, -1\ns_branch {ls}")
                    a(f"{l5}:\nds_read_b32 v{DUM}, v{CA} offset:4\ns_waitcnt lgkmcnt(0)\nv_readfirstlane_b32 s3, v{DUM}\ns_cmp_lt_u32 s3, 4\ns_cbranch_scc1 {l5}")
                    xid_load(a, WS_FL1, VNB)
                    a(f"{ls}:")
                if X == 0 and (t, gi) == (6, 0): a(f"v_add_u32 v{VB}, s26, v{VB}\nv_add_u32 v{VA}, s26, v{VA}")
                if X == 0 and (t, gi) == (7, 2): a(f"v_add_u32 v{VN}, s26, v{VN}")
                for i in range(4): a(f"v_exp_f32 v{S+4*gi+i}, v{S+4*gi+i}")
    a("s_add_u32 s24, s24, 1\ns_cmp_lt_u32 s24, 8\ns_cbranch_scc1 L_k234_loop")
    for X in range(2):
        a(f"v_cvt_pk_bf16_f32 v{PP[X]+6}, v{SA[X][1]+12}, v{SA[X][1]+13}\nv_cvt_pk_bf16_f32 v{PP[X]+7}, v{SA[X][1]+14}, v{SA[X][1]+15}")
    a("s_waitcnt vmcnt(0)")
    xid_decide(a, VNB)
    a("s_waitcnt lgkmcnt(0)\nv_cmp_eq_u32 vcc, 0, v3")
    for X in range(2): a(pv(X, V2, PP[X]+4))
    a(f"v_mov_b32 v{KA_}, {f32(2.0**30)}\nv_mov_b32 v{KA_+1}, {f32(2.0**-30)}\ns_mov_b64 s[28:29], 0\nv_mov_b32 v{V1+1}, s49\ns_nop 7")
    if not os.environ.get("X_GT"): stamp(a, 4)
    a("s_cmp_eq_u32 s39, 1\ns_cbranch_scc1 L_k234_rb")
    for X in range(2):
        O, T, L = OO[X], SA[X][0], PP[X]
        a(f"v_cndmask_b32 v{L}, v{O}, v{O+4}, vcc\nv_rcp_f32 v{L+1}, v{L}")
        a(f"v_cmp_nle_f32 s[30:31], v{L}, v{KA_}\ns_or_b64 s[28:29], s[28:29], s[30:31]\nv_cmp_nge_f32 s[30:31], v{L}, v{KA_+1}\ns_or_b64 s[28:29], s[28:29], s[30:31]")
        for i, r in enumerate((8, 9, 10, 11, 12, 13, 14, 15, 0, 1, 2, 3)): a(f"v_mul_f32 v{T+6+i}, v{O+r}, v{L+1}")
        for d in range(6): a(f"v_cvt_pk_bf16_f32 v{T+d}, v{T+6+2*d}, v{T+7+2*d}")
        hstore(a, f"buffer_store_dwordx2 v[{T}:{T+1}], v{OA+3*X}, s[8:11], s22 offen")
        hstore(a, f"buffer_store_dwordx2 v[{T+2}:{T+3}], v{OA+3*X+1}, s[8:11], s22 offen")
        a("s_mov_b32 exec_hi, 0")
        hstore(a, f"buffer_store_dwordx2 v[{T+4}:{T+5}], v{OA+3*X+2}, s[8:11], s22 offen")
        a("s_mov_b32 exec_hi, -1")
    a(f"s_cmp_eq_u32 s27, 1\ns_cbranch_scc1 L_k234_pub")
    lbad = a.label("bad")
    a(f"s_cmp_lg_u64 s[28:29], 0\ns_cselect_b32 s3, 1, 0\nv_mov_b32 v{V1}, s3\nds_write_b32 v{V1+1}, v{V1}\ns_cbranch_scc1 {lbad}")
    handoff_publish(a, WS_FL0)
    a(f"s_mov_b32 s39, 1\n{lbad}:\ns_waitcnt lgkmcnt(0)")
    def vote(lend):
        a(f"s_barrier\nv_mov_b32 v44, {FLAG}\nds_read_b128 v[40:43], v44\ns_waitcnt lgkmcnt(0)")
        for i in range(1, 4): a(f"v_or_b32 v40, v40, v{40+i}")
        a(f"s_nop 0\nv_readfirstlane_b32 s3, v40\ns_cmp_eq_u32 s3, {XCMP}\ns_cbranch_scc1 {lend}\ns_mov_b32 s27, 1")
    vote("L_k234_pa")
    reset_max()
    a("s_mov_b32 s24, 0")
    a("L_k234_maxloop:")
    a("s_barrier\ns_barrier")
    for t in range(8):
        a(rKA(t, 1)); a(rKB(t, 7)); a("s_waitcnt lgkmcnt(0)")
        scores()
        a("s_nop 10")
        max_reduce()
    a("s_add_u32 s24, s24, 1\ns_cmp_lt_u32 s24, 8\ns_cbranch_scc1 L_k234_maxloop")
    finish_max()
    main_init()
    a(f"s_barrier\nds_write_b32 v{CA+3}, v{CA+2}\ns_waitcnt lgkmcnt(0)\ns_barrier")
    a(rKA(0, 1)); a(rKB(0, 7)); a("s_waitcnt lgkmcnt(0)")
    a("s_branch L_k234_main")
    for x in slow: a(x)
    a("L_k234_pub:")
    handoff_publish(a, WS_FL0)
    a("L_k234_rb:\ns_barrier")
    a("L_k234_pa:")
    phase_ab_compute(a, GA, GB, GC, GD)
    a("L_k234_idle:")
    a("s_waitcnt lgkmcnt(0)")
    srd(a, 8, 4, WS_SIZE)
    a("s_barrier\ns_barrier\ns_barrier")
    a("v_lshlrev_b32 v4, 3, v1")
    def touch(srdn, base, per_rb, per_nb, nbytes):
        a(f"s_mul_i32 s28, s12, {per_rb}\ns_mul_i32 s3, s13, {per_nb}\ns_add_u32 s28, s28, s3\ns_add_u32 s28, s28, {base:#x}")
        n = nbytes // 128
        while n > 0:
            m = min(n, 64)
            if m < 64: a(f"s_mov_b32 exec_lo, {(1 << min(m, 32)) - 1:#x}\ns_mov_b32 exec_hi, {(1 << max(m - 32, 0)) - 1:#x}")
            a(f"buffer_load_dword v8, v4, s[{srdn}:{srdn+3}], s28 offen")
            n -= m
            if n > 0: a("s_add_u32 s28, s28, 8192")
        a("s_mov_b64 exec, -1")
    lt1, lt2 = a.label("pt"), a.label("pt")
    a(f"s_cmp_eq_u32 s14, 5\ns_cbranch_scc1 {lt1}")
    touch(8, WS_O, 81920, 10240, 10240); touch(8, WS_X1, 81920, 10240, 10240); touch(8, WS_ST1, 12288, 1536, 1536); touch(8, WS_ST2, 12288, 1536, 1536)
    a(f"s_branch {lt2}\n{lt1}:")
    touch(8, WS_Y, 98304, 12288, 12288)
    srd(a, 40, 44, 2048 * 1280)
    touch(40, 0, 81920, 10240, 10240)
    a(f"{lt2}:\ns_waitcnt vmcnt(0)")
    vote("L_k234_pa")
    a("s_mov_b32 s24, 21\nL_k234_idleb:\ns_barrier\ns_sub_u32 s24, s24, 1\ns_cmp_lg_u32 s24, 0\ns_cbranch_scc1 L_k234_idleb\ns_branch L_k234_pa")
    a("L_k234_helper:")
    a(f"s_setprio {os.environ.get('X_HPRIO', '2')}")
    a(f"s_sub_u32 s15, s14, 6\ns_lshl_b32 s47, s15, 10\ns_add_u32 s46, s47, {WS_KV:#x}\ns_waitcnt lgkmcnt(0)")
    srd(a, 8, 4, WS_SIZE)
    stamp(a, 1)
    xid_publish(a, WS_FL1)
    THR = int(os.environ.get("X_THR", "9"))
    def dma(goff, loff):
        ld = a.label("d")
        for i in range(7):
            if i == 6: a(f"s_cmp_ge_u32 s15, 2\ns_cbranch_scc1 {ld}")
            if goff and i > THR: a(f"s_waitcnt vmcnt({THR})")
            a(f"s_add_u32 m0, s47, {loff + i*4096}\ns_add_u32 s48, s46, {goff + i*4096}\nbuffer_load_dwordx4 v1, s[8:11], s48 offen lds")
        a(f"{ld}:")
    a("L_k234_hmain:")
    dma(0, 0)
    a("s_waitcnt vmcnt(0)\ns_barrier")
    if os.environ.get("X_K2T") == "1": a("s_branch L_k234_end")
    a(f"v_mov_b32 v6, {FLAG+32}\nv_mov_b32 v7, 1")
    dma(KVCH, KVCH); dma(2*KVCH, 2*KVCH)
    a("s_waitcnt vmcnt(0)\ns_barrier")
    for g in (3, 4, 5): dma(g*KVCH, g*KVCH)
    a("s_waitcnt vmcnt(0)\ns_barrier")
    stamp(a, 2)
    lns = a.label("noside")
    if os.environ.get("X_K2T") == "2": a("s_branch L_k234_end")
    a(f"s_cmp_lg_u32 s27, 0\ns_cbranch_scc1 {lns}")
    pack_weights(a)
    a(f"s_lshr_b32 s3, s2, 3\ns_lshl_b32 s3, s3, 7\ns_add_u32 s3, s3, {WS_CNT:#x}\nv_mov_b32 v4, 0\nv_mov_b32 v5, 1\ns_waitcnt vmcnt(0)\ns_mov_b64 exec, 1")
    a("buffer_atomic_add v5, v4, s[8:11], s3 offen\ns_mov_b64 exec, -1")
    stamp(a, 3)
    a(f"{lns}:")
    lw = a.label("wdone")
    a(f"v_mov_b32 v6, {FLAG+32}\nv_mov_b32 v7, 1\n{lw}:\nds_read_b32 v8, v6\ns_waitcnt lgkmcnt(0)\nv_readfirstlane_b32 s3, v8\ns_cmp_ge_u32 s3, 4\ns_cbranch_scc1 {lw}x\ns_sleep 8\ns_branch {lw}\n{lw}x:")
    dma(6*KVCH, 0); dma(7*KVCH, KVCH)
    a("s_waitcnt vmcnt(0)\ns_mov_b64 exec, 1\nds_add_u32 v6, v7 offset:4\ns_mov_b64 exec, -1\ns_waitcnt lgkmcnt(0)")
    stamp(a, 4)
    a(f"s_cmp_eq_u32 s27, 1\ns_cbranch_scc1 L_k234_ra")
    srd(a, 40, 34, 2048 * 4096)
    a("s_lshl_b32 s17, s12, 1\ns_lshr_b32 s3, s15, 1\ns_add_u32 s17, s17, s3\ns_lshl_b32 s16, s13, 4\ns_and_b32 s3, s15, 1\ns_lshl_b32 s3, s3, 3\ns_add_u32 s16, s16, s3")
    a("s_lshl_b32 s6, s17, 17\ns_lshl_b32 s7, s16, 5\ns_add_u32 s6, s6, s7\nv_lshlrev_b32 v4, 12, v2\nv_lshl_add_u32 v4, v3, 4, v4")
    for i in range(8): a(f"buffer_load_dwordx4 v[{8+4*i}:{11+4*i}], v4, s[40:43], s6 offen offset:{32*i} nt")
    a(f"s_lshl_b32 s6, s17, 7\ns_add_u32 s6, s6, s16\ns_lshl_b32 s6, s6, 10\ns_add_u32 s6, s6, {WS_WSP:#x}")
    xid_load(a, WS_FL1, 40)
    a("s_waitcnt vmcnt(0)")
    xid_decide(a, 40)
    for i in range(8):
        hstore(a, f"buffer_store_dwordx4 v[{8+4*i}:{11+4*i}], v1, s[8:11], s6 offen offset:{(i%4)*1024}")
        if i == 3: a("s_add_u32 s6, s6, 4096")
    stamp(a, 5)
    a(f"v_lshlrev_b32 v4, 7, v2\ns_mov_b32 s30, {WS_CNT:#x}")
    wg_poll(a, FLAG + 48, lambda: a("buffer_load_dword v5, v4, s[8:11], s30 offen sc1\ns_waitcnt vmcnt(0)\nv_cmp_gt_u32 vcc, 32, v5"))
    a(f"s_lshl_b32 s3, s12, 8\ns_lshl_b32 s6, s13, 2\ns_add_u32 s6, s6, s15\ns_lshl_b32 s6, s6, 2\ns_add_u32 s3, s3, s6\ns_add_u32 s3, s3, {WS_FL3 + 6144 - 6144 + 0x2000:#x}\nv_mov_b32 v8, 0\nv_mov_b32 v9, 1\ns_mov_b64 exec, 1")
    hstore(a, "buffer_store_dword v9, v8, s[8:11], s3 offen")
    a("s_mov_b64 exec, -1")
    if os.environ.get("X_PFA", "2") == "2": prefetch(a, 8, WS_WIN, 1920 * 1024, 4, 15, 8, 4, 28)
    stamp(a, 6)
    a("L_k234_ra:")
    a("s_mul_i32 s20, s15, 3072\ns_lshl_b32 s16, s12, 1\ns_lshr_b32 s3, s15, 1\ns_add_u32 s16, s16, s3")
    GA.lsetup(a, WS_O, 40, WS_WO, 18, 19, 21, AFL)
    GB.lsetup(a, WS_X1, 40, WS_WIN, 22, 23, 26, AFL)
    lw2 = a.label("w6")
    a(f"v_mov_b32 v6, {FLAG+32}\n{lw2}:\nds_read_b32 v11, v6\ns_waitcnt lgkmcnt(0)\nv_readfirstlane_b32 s3, v11\ns_cmp_ge_u32 s3, 8\ns_cbranch_scc1 {lw2}x\ns_sleep 8\ns_branch {lw2}\n{lw2}x:")
    a.vmq = []
    a(f"s_mul_i32 s6, s13, 320\ns_add_u32 s6, s6, {WS_MOD + 5120}")
    dma1(a, PAR6, 6, "par")
    a(f"s_add_u32 s6, s6, {12800 - 5120}")
    dma1(a, GB_LDS, 6, "par")
    a(f"s_mul_i32 s6, s13, 1536\ns_lshl_b32 s7, s15, 9\ns_add_u32 s6, s6, s7\ns_add_u32 s6, s6, {WS_UTP:#x}\nv_lshrrev_b32 v10, 1, v1")
    for i in range(10):
        a.vm(f"buffer_load_dwordx2 v[{12+2*i}:{13+2*i}], v10, s[8:11], s6 offen", "ut")
        a(f"s_add_u32 s6, s6, {1536*8}")
    for s in range(3): GA.issue_w(s)
    lu = a.label("nou")
    a.wait(vm=["ut"])
    a(f"s_cmp_eq_u32 s15, 3\ns_cbranch_scc1 {lu}")
    for i in range(1, 10): a(f"v_add_f32 v12, v12, v{12+2*i}\nv_add_f32 v13, v13, v{13+2*i}")
    a(f"s_lshl_b32 s7, s15, 9\ns_add_u32 s7, s7, {PAR6+1024}\nv_add_u32 v10, s7, v10\nds_write_b64 v10, v[12:13]\ns_waitcnt lgkmcnt(0)\n{lu}:")
    stamp(a, 7)
    a("s_cmp_eq_u32 s27, 1\ns_cbranch_scc1 L_k234_wend")
    vote("L_k234_la")
    a("s_waitcnt vmcnt(0)\ns_mov_b32 s24, 0")
    a("L_k234_hmax:")
    a("s_barrier")
    dma(0, 0)
    a(f"s_add_u32 s46, s46, {KVCH}\ns_waitcnt vmcnt(0)\ns_barrier\ns_add_u32 s24, s24, 1\ns_cmp_lt_u32 s24, 8\ns_cbranch_scc1 L_k234_hmax")
    a(f"s_add_u32 s46, s47, {WS_KV:#x}\ns_barrier\ns_branch L_k234_hmain")
    a("L_k234_wend:\ns_barrier")
    a("L_k234_la:")
    GA.issue_w(3)
    handoff_wait(a, WS_FL0, 32)
    stamp(a, 8)
    for s in range(DEP6): GA.issue_a(s)
    for s in range(10): GA.lstep(s, 10, GB.issue_w)
    handoff_wait(a, WS_FL3 + 0x2000 - 32, 32)
    handoff_wait(a, WS_FL1, 48)
    for s in range(DEP6): GB.issue_a(s)
    GC.lsetup(a, WS_WSP, 128, WS_Z2T, 18, 19, 21, AFL, AFL)
    for s in range(20): GB.lstep(s, 20)
    a("s_barrier")
    for s in range(DEP6): GC.issue_a(s)
    GD.lsetup(a, WS_Y, 48, WS_WOUT, 22, 23, 26, AFL)
    a(f"s_mul_i32 s30, s13, 768\ns_add_u32 s30, s30, {WS_FL3:#x}\nv_lshrrev_b32 v8, 2, v1")
    wg_poll(a, FLAG + 52, lambda: a("buffer_load_dword v9, v8, s[8:11], s30 offen sc1\nbuffer_load_dword v10, v8, s[8:11], s30 offen offset:256 sc1\nbuffer_load_dword v11, v8, s[8:11], s30 offen offset:512 sc1\ns_waitcnt vmcnt(0)\nv_and_b32 v9, v9, v10\nv_and_b32 v9, v9, v11\nv_cmp_eq_u32 vcc, 0, v9"))
    stamp(a, 9)
    for s in range(DEP6): GC.issue_w(s)
    for s in range(2): GC.lstep(s, 32)
    a("s_mov_b32 s30, 4\nL_k234_lloop:")
    for s in range(2, 8): GC.lstep(s, 32)
    a("s_sub_u32 s30, s30, 1\ns_cmp_lg_u32 s30, 0\ns_cbranch_scc1 L_k234_lloop")
    a.vmq = [(t[0], t[1] + 18) if isinstance(t, tuple) else t for t in a.vmq]
    if RA_D:
        for s in range(26, 32): GC.lstep(s, 32, GD.issue_w)
    else:
        for s in range(26, 32): GC.lstep(s, 32)
        a("s_barrier")
        for s in range(DEP6): GD.issue_w(s)
    handoff_wait(a, WS_FL2, 48)
    for s in range(DEP6): GD.issue_a(s)
    for s in range(12): GD.lstep(s, 12)
    end(a)
    finish(a, 256, 640, FLAG + 320, 164)


def pack_weights(a):
    LO, HI, PC = 8, 24, 40
    lo_, ld = a.label("pko"), a.label("pkd")
    a(f"s_lshl_b32 s28, s2, 2\ns_add_u32 s28, s28, s15\nv_mul_u32_u24 v5, {4*3072}, v3\ns_cmp_ge_u32 s28, 480\ns_cbranch_scc1 {lo_}")
    srd(a, 40, 32, 640 * 3072)
    divmod_s(a, 16, 17, 28, 10, 3)
    divmod_s(a, 18, 19, 16, 6, 3)
    a("s_mul_i32 s6, s18, 96\ns_lshl_b32 s7, s19, 5\ns_add_u32 s6, s6, s7\ns_cmp_lt_u32 s19, 3\ns_cselect_b32 s7, 864, 0\ns_add_u32 s6, s6, s7\ns_sub_u32 s6, s6, 96")
    a(f"v_add_lshl_u32 v4, v2, s6, 1\nv_add_u32 v4, v4, v5\ns_mul_i32 s22, s17, {64*3072}")
    for q in range(4):
        loads8(a, 40, 4, LO + 4*q, HI + 4*q, 22, [16*q + e for e in E_PERM], 3072, 7)
    a(f"v_lshlrev_b32 v6, 4, v3\ns_lshl_b32 s7, s17, 8\ns_add_u32 s7, s7, {WS_MOD + 7680}")
    for q in range(4):
        for arr in range(2):
            for hf in range(2):
                P = PC + 16*q + 8*arr + 4*hf
                a(f"buffer_load_dwordx4 v[{P}:{P+3}], v6, s[8:11], s7 offen offset:{arr*2560 + 64*q + 32*hf}")
    a("v_mov_b32 v6, 0\nv_mov_b32 v7, 0")
    a(f"s_mul_i32 s22, s18, 40\ns_lshl_b32 s7, s17, 2\ns_add_u32 s22, s22, s7\ns_mul_i32 s22, s22, 6\ns_add_u32 s22, s22, s19\ns_lshl_b32 s22, s22, 10\ns_add_u32 s22, s22, {WS_WIN:#x}\ns_waitcnt vmcnt(0)")
    for q in range(4):
        for d in range(4):
            l, h, P = LO + 4*q + d, HI + 4*q + d, PC + 16*q
            a(f"v_lshlrev_b32 v{l}, 16, v{l}\nv_lshlrev_b32 v{h}, 16, v{h}\nv_fmac_f32 v7, v{l}, v{P+2*d}\nv_fmac_f32 v7, v{h}, v{P+2*d+1}\nv_mul_f32 v{l}, v{l}, v{P+8+2*d}\nv_mul_f32 v{h}, v{h}, v{P+9+2*d}")
            a(f"v_cvt_pk_bf16_f32 v{l}, v{l}, v{h}\nv_lshlrev_b32 v{h}, 16, v{l}\nv_and_b32 v5, 0xffff0000, v{l}\nv_add_f32 v6, v6, v{h}\nv_add_f32 v6, v6, v5")
        a(f"buffer_store_dwordx4 v[{LO+4*q}:{LO+4*q+3}], v1, s[8:11], s22 offen sc1\ns_add_u32 s22, s22, 6144")
    a("v_mov_b32 v40, v6\nv_mov_b32 v41, v7\ns_nop 1\nv_permlane32_swap_b32 v6, v40\nv_permlane32_swap_b32 v7, v41\ns_nop 1\nv_add_f32 v6, v6, v40\nv_add_f32 v7, v7, v41")
    a(f"s_mul_i32 s22, s17, {1536*8}\ns_lshl_b32 s7, s16, 8\ns_add_u32 s22, s22, s7\ns_add_u32 s22, s22, {WS_UTP:#x}\nv_lshlrev_b32 v4, 3, v2\ns_mov_b32 exec_hi, 0")
    a(f"buffer_store_dwordx2 v[6:7], v4, s[8:11], s22 offen sc1\ns_mov_b32 exec_hi, -1\ns_branch {ld}")
    a(f"{lo_}:\ns_sub_u32 s28, s28, 480\ns_cmp_ge_u32 s28, 528\ns_cbranch_scc1 {ld}")
    a(f"s_mov_b32 s42, {768*1280}\ns_mov_b32 s31, {WS_WOUT:#x}\ns_mov_b32 s6, {(1<<20)//12+1}\ns_cmp_lt_u32 s28, 240\ns_cselect_b32 s40, s36, s38\ns_cselect_b32 s41, s37, s39\ns_mov_b32 s43, 0x20000\ns_cselect_b32 s30, 40, 48")
    a(f"s_cmov_b32 s42, {640*1280}\ns_cmov_b32 s31, {WS_WO:#x}\ns_cmov_b32 s6, {(1<<20)//10+1}\ns_cselect_b32 s7, 0, 240\ns_sub_u32 s28, s28, s7")
    a("s_mul_i32 s16, s28, s6\ns_lshr_b32 s16, s16, 20\ns_lshr_b32 s7, s30, 2\ns_mul_i32 s7, s7, s16\ns_sub_u32 s17, s28, s7")
    divmod_s(a, 18, 19, 16, 3, 3)
    a(f"s_mul_i32 s6, s18, 80\ns_lshl_b32 s7, s19, 5\ns_add_u32 s6, s6, s7\nv_add_lshl_u32 v4, v2, s6, 1\nv_mul_u32_u24 v5, {4*1280}, v3\nv_add_u32 v4, v4, v5\ns_mul_i32 s22, s17, {64*1280}")
    for q in range(4):
        loads8(a, 40, 4, LO + 4*q, HI + 4*q, 22, [16*q + e for e in E_PERM], 1280, 7)
    a("s_mul_i32 s22, s18, s30\ns_lshl_b32 s7, s17, 2\ns_add_u32 s22, s22, s7\ns_mul_i32 s22, s22, 3\ns_add_u32 s22, s22, s19\ns_lshl_b32 s22, s22, 10\ns_add_u32 s22, s22, s31\ns_waitcnt vmcnt(0)")
    for q in range(4):
        for d in range(4): a(f"v_lshl_or_b32 v{LO+4*q+d}, v{HI+4*q+d}, 16, v{LO+4*q+d}")
        a(f"buffer_store_dwordx4 v[{LO+4*q}:{LO+4*q+3}], v1, s[8:11], s22 offen sc1\ns_add_u32 s22, s22, 3072")
    a(f"{ld}:")

def emit(path):
    out = []
    for (n, lines, g, b, lds, nv, ao) in kernels:
        out.append(f"; @launch kernel={n}_kernel grid=({g},1,1) block=({b},1,1) lds={lds}")
    out.append('.amdgcn_target "amdgcn-amd-amdhsa--gfx950"\n.text')
    bad = 0
    for (n, lines, g, b, lds, nv, ao) in kernels:
        errs = check_hazards(lines, n) + ([] if PROF else check_waits(lines, n))
        for e in errs:
            if "buffer_load_ushort" in e.split("touched by")[0] and "buffer_load_ushort" in e.split("touched by")[-1] and n == "k0": continue
            if "buffer_load_dword v" in e.split("touched by")[0] and "buffer_load_dword v" in e.split("touched by")[-1]: continue
            print("CHECK", e); bad += 1
        out.append(f".globl {n}_kernel\n.p2align 8\n.type {n}_kernel,@function\n{n}_kernel:")
        t = Asm(); t.lines = lines
        out.append(t.text())
    out.append('.section .rodata,"a"')
    for (n, lines, g, b, lds, nv, ao) in kernels:
        out.append(f""".p2align 6
.amdhsa_kernel {n}_kernel
  .amdhsa_next_free_vgpr {nv}
  .amdhsa_next_free_sgpr {96 if PROF or DBG else 56}
  .amdhsa_accum_offset {ao}
  .amdhsa_group_segment_fixed_size 0
  .amdhsa_kernarg_size 120
  .amdhsa_user_sgpr_count 2
  .amdhsa_user_sgpr_kernarg_segment_ptr 1
  .amdhsa_system_sgpr_workgroup_id_x 1
.end_amdhsa_kernel""")
    open(path, "w").write("\n".join(out) + "\n")
    print("wrote", path, "checks failed:", bad)

if __name__ == "__main__":
    for i in range(int(os.environ.get("X_EMPTY0", "0"))):
        e = K(f"f{i}"); e("s_endpgm"); finish(e, 256, 256, 0, 8)
    k0(); k1(); k234()
    for i in range(int(os.environ.get("X_EMPTY", "0"))):
        e = K(f"e{i}"); e("s_endpgm"); finish(e, 256, 256, 0, 8)
    emit(sys.argv[1] if len(sys.argv) > 1 else "adaLN_cond__grouped_kv_mqa__mixer_gmlp__prompt.s")
```

```python
import math, struct, sys, os
from asmlib import *

def f32(x):
    return "0x%08x" % struct.unpack("<I", struct.pack("<f", x))[0]

WS_MOD  = 0x0
WS_XH   = 0x100000
WS_ST0  = 0x8000
WS_FG   = 0x40000
FG_MOD, FG_PQ, FG_KV, FG_PACK, FG_Z2, FG_END = (WS_FG + 128*i for i in (0, 128, 192, 320, 576, 832))
WS_FL1  = 0x10000
WS_FL2  = 0x12000
WS_FL0  = 0x14000
WS_FL3  = 0x16000
WS_UT   = 0x1A000
WS_UTP  = 0x20000
WS_WQKV = 0x400000
WS_WO   = 0x500000
WS_WIN  = 0x600000
WS_WOUT = 0x800000
WS_Q    = 0xA00000
WS_KV   = 0xD00000
WS_O    = 0xE00000
WS_X1   = 0x1080000
WS_ST1  = 0x1300000
WS_ST2  = 0x1360000
WS_Z1   = 0x13C0000
WS_Z2T  = 0x16C0000
WS_Y    = 0x19C0000
WS_WSP  = 0x1D00000
WS_SIZE = 0x2500000
KVCH = 26624
OOB = 0x40000000
LOG2E = math.log2(math.e)
KA = dict(x=0, wq=8, wk=16, wv=24, wo=32, w_in=48, w_sp=56, b_sp=64, w_out=72, c=80, w_mod=88, out=96, dbg=104, ws=112)
UT = [[0, 1], [2, 5], [3, 4]]

PROF = os.environ.get("PROF", "0") == "1"
WS_PROF = 0x3000000
if PROF: WS_SIZE = 0x4000000
def stamp(a, i):
    if PROF: a(f"s_memtime s[{60+2*i}:{61+2*i}]")
def stamp_begin(a):
    if PROF:
        for i in range(12): a(f"s_mov_b64 s[{60+2*i}:{61+2*i}], 0")
        a("s_memrealtime s[84:85]")
        stamp(a, 0)
def stamp_end(a, kidx):
    if PROF:
        stamp(a, 11)
        a("s_memrealtime s[86:87]\ns_mov_b64 exec, 1\ns_waitcnt lgkmcnt(0)")
        a(f"s_lshl_b32 s3, s2, 4\ns_add_u32 s3, s3, s14\ns_lshl_b32 s3, s3, 6\ns_add_u32 s3, s3, {WS_PROF + kidx*0x100000:#x}\nv_mov_b32 v0, 0")
        for i in range(12): a(f"v_mov_b32 v{2+i}, s{60+2*i}")
        a("s_getreg_b32 s88, hwreg(HW_REG_XCC_ID)\ns_getreg_b32 s89, hwreg(HW_REG_HW_ID)\nv_mov_b32 v14, s84\nv_mov_b32 v15, s86\nv_mov_b32 v16, s88\nv_mov_b32 v17, s89")
        for i in range(4): a(f"buffer_store_dwordx4 v[{2+4*i}:{5+4*i}], v0, s[8:11], s3 offen offset:{16*i}")

def srd(a, d, p, nbytes):
    a(f"s_mov_b32 s{d}, s{p}\ns_mov_b32 s{d+1}, s{p+1}\ns_mov_b32 s{d+2}, {nbytes:#x}\ns_mov_b32 s{d+3}, 0x20000")

kernels = []
XCMP = "s3" if os.environ.get("X_NOBAR") or os.environ.get("X_NOLDS") else 0

class K(Asm):
    def __init__(self, name):
        super().__init__()
        self.name = name; self.vmq = []; self.lgq = []
    def label(self, base):
        self.uid += 1
        return f"L_{self.name}_{base}_{self.uid}"
    def vm(self, text, tag=None):
        self(text); self.vmq.append(tag)
    def lg(self, text, tag=None):
        self(text); self.lgq.append(tag)
    def _n(self, q, tags):
        idx = max((i for i, t in enumerate(q) if t in tags), default=None)
        return None if idx is None else len(q) - 1 - idx
    def wait(self, vm=(), lg=()):
        parts = []
        n = self._n(self.vmq, vm) if vm else None
        if n is not None:
            parts.append(f"vmcnt({min(n, 63)})"); self.vmq = self.vmq[len(self.vmq)-n:] if n else []
        n = self._n(self.lgq, lg) if lg else None
        if n is not None:
            n2 = min(n, 15)
            parts.append(f"lgkmcnt({n2})"); self.lgq = self.lgq[len(self.lgq)-n2:] if n2 else []
        if parts: self("s_waitcnt " + " ".join(parts))
    def wait_all_lg(self):
        self("s_waitcnt lgkmcnt(0)"); self.lgq = []

def end(a):
    a(f"L_{a.name}_end:")
    stamp_end(a, len(kernels))
    a(f"L_{a.name}_exit:\ns_endpgm")
def finish(a, grid, block, lds, nv):
    kernels.append((a.name, a.lines, grid, block, lds, nv, (nv + 3) // 4 * 4))

def bf16_round(a, v, t):
    a(f"v_cvt_pk_bf16_f32 v{t}, v{v}, v{v}\nv_and_b32 v{v}, 0xffff0000, v{t}")

E_NAT = list(range(8))
E_PERM = [(j & 3) + 8 * (j >> 2) for j in range(8)]
E_O5 = [20 * (j >> 1) + (j & 1) for j in range(8)]
def loads8(a, srdn, voff, lo, hi, ebase, e_list, rs, stmp, tag=None):
    for j in range(8):
        a(f"s_add_u32 s{stmp}, s{ebase}, {e_list[j]*rs}")
        a.vm(f"buffer_load_ushort v{(lo if j % 2 == 0 else hi) + j//2}, v{voff}, s[{srdn}:{srdn+3}], s{stmp} offen", tag)

def divmod_s(a, q, r, x, d, t):
    m = (1 << 20) // d + 1
    a(f"s_mul_i32 s{q}, s{x}, {m}\ns_lshr_b32 s{q}, s{q}, 20\ns_mul_i32 s{t}, s{q}, {d}\ns_sub_u32 s{r}, s{x}, s{t}")

def pack_frag_issue(a, f, srdn, rs, ncol, nks, otype, halves, lo, hi, voff, vt, S):
    q3, ft, t, nb, ks, eb = S, S+1, S+2, S+3, S+4, S+5
    divmod_s(a, q3, ft, f, 3, t)
    divmod_s(a, nb, ks, q3, nks, t)
    if halves:
        a(f"s_and_b32 s{t}, s{nb}, 1\ns_lshr_b32 s{nb}, s{nb}, 1\ns_mul_i32 s{nb}, s{nb}, {ncol}\ns_cmp_eq_u32 s{t}, 0\ns_cselect_b32 s{t}, 768, 0\ns_add_u32 s{nb}, s{nb}, s{t}")
    else:
        a(f"s_mul_i32 s{nb}, s{nb}, {ncol}")
    hi5 = 80 if ncol == 96 else OOB // 2
    a(f"s_cmp_eq_u32 s{ft}, 1\ns_cselect_b32 s{q3}, 32, 48\ns_cselect_b32 s{t}, {hi5:#x}, 64\ns_cmp_eq_u32 s{ft}, 0\ns_cselect_b32 s{q3}, 0, s{q3}\ns_cselect_b32 s{t}, 16, s{t}")
    a(f"s_add_u32 s{q3}, s{q3}, s{nb}\ns_add_u32 s{t}, s{t}, s{nb}")
    a(f"v_mov_b32 v{vt}, s{q3}\nv_mov_b32 v{vt+1}, s{t}\nv_cmp_gt_u32 vcc, 16, v2\nv_and_b32 v{voff}, 15, v2\ns_nop 0\nv_cndmask_b32 v{vt}, v{vt+1}, v{vt}, vcc\nv_add_lshl_u32 v{voff}, v{voff}, v{vt}, 1")
    if not otype:
        a(f"v_mul_u32_u24 v{vt}, {4*rs}, v3\nv_add_u32 v{voff}, v{voff}, v{vt}\ns_mul_i32 s{eb}, s{ks}, {16*rs}")
        loads8(a, srdn, voff, lo, hi, eb, E_PERM, rs, t, "pack")
    else:
        l5, ld = a.label("u4"), a.label("ud")
        divmod_s(a, q3, ft, ks, 5, t)
        a(f"s_mul_i32 s{q3}, s{q3}, 80\ns_cmp_eq_u32 s{ft}, 4\ns_cbranch_scc1 {l5}")
        a(f"s_mul_i32 s{ft}, s{ft}, 20\ns_add_u32 s{q3}, s{q3}, s{ft}\ns_mul_i32 s{eb}, s{q3}, {rs}\nv_mul_u32_u24 v{vt}, {4*rs}, v3\nv_add_u32 v{voff}, v{voff}, v{vt}")
        q0 = list(a.vmq)
        loads8(a, srdn, voff, lo, hi, eb, E_PERM, rs, t, "pack")
        a(f"s_branch {ld}\n{l5}:\ns_add_u32 s{q3}, s{q3}, 16\ns_mul_i32 s{eb}, s{q3}, {rs}\nv_mul_u32_u24 v{vt}, {2*rs}, v3\nv_add_u32 v{voff}, v{voff}, v{vt}")
        a.vmq = q0
        loads8(a, srdn, voff, lo, hi, eb, E_O5, rs, t, "pack")
        a(f"{ld}:")

def pack_frag_store(a, f, wsbase, lo, hi, st):
    for i in range(4): a(f"v_lshl_or_b32 v{lo+i}, v{hi+i}, 16, v{lo+i}")
    a(f"s_lshl_b32 s{st}, s{f}, 10\ns_add_u32 s{st}, s{st}, {wsbase:#x}")
    a.vm(f"buffer_store_dwordx4 v[{lo}:{lo+3}], v1, s[8:11], s{st} offen")

def l2_prefetch(a, base, nbytes, nwaves, vdst, vtmp, st):
    per_wg = nbytes // 32
    PS = int(os.environ.get("X_PFS", "64")); CH = 64 * PS
    n_instr = -(-per_wg // CH)
    per_wave = -(-n_instr // nwaves)
    a(f"s_lshr_b32 s{st}, s2, 3\ns_mul_i32 s{st}, s{st}, {per_wg}\ns_mul_i32 s{st+1}, s14, {per_wave*CH}\ns_add_u32 s{st}, s{st}, s{st+1}\ns_add_u32 s{st}, s{st}, {base:#x}\nv_lshlrev_b32 v{vtmp}, {int(math.log2(PS//16))}, v1")
    for i in range(per_wave):
        a.vm(f"buffer_load_dword v{vdst}, v{vtmp}, s[8:11], s{st} offen")
        if i < per_wave - 1: a(f"s_add_u32 s{st}, s{st}, {CH}")

CTL = 6 * KVCH
NONCE = 50
KNAME = "adaLN_cond__grouped_kv_mqa__mixer_gmlp__prompt_kernel"
STG = 20480
NS, DEP = 6, 4
EX = NS * STG
PAR = EX + 24576
LDS_G = PAR + 5120
ACC, WS0, AF, PR, VW = 8, 56, 104, 120, 158

def compute_addr(a, rb):
    a.rb = rb
    if rb == 0:
        a(f"s_mul_i32 s3, s15, {6144+2048}\nv_add_u32 v{VW}, s3, v1\ns_mul_i32 s3, s15, {6144-2048}\ns_add_u32 s3, s3, 2048\nv_add_u32 v{VW+2}, s3, v1")
        a(f"s_lshl_b32 s3, s15, 8\nv_xor_b32 v{VW+1}, s3, v1\ns_mul_i32 s3, s15, 6144\ns_add_u32 s3, s3, 1024\nv_add_u32 v{VW+1}, s3, v{VW+1}")
    else:
        a("v_bfe_u32 v4, v0, 2, 2\nv_and_b32 v5, 3, v0\nv_bfe_u32 v6, v0, 4, 1")
        a("v_lshl_add_u32 v4, v3, 2, v4" if rb == 192 else "v_lshl_add_u32 v4, v4, 1, v3")
        a(f"v_mul_u32_u24 v4, {rb}, v4\nv_lshl_add_u32 v4, v5, 3, v4\ns_mul_i32 s3, s15, 6144\nv_add_u32 v4, s3, v4")
        a(f"v_lshl_add_u32 v5, v6, 5, v4\ns_mul_i32 s3, s15, 96\nv_add_u32 v{VW}, s3, v5\ns_sub_u32 s3, 96, s3\nv_add_u32 v{VW+2}, s3, v5")
        if rb == 192:
            a(f"v_xor_b32 v6, s15, v6\nv_mul_u32_u24 v6, 96, v6\nv_add_u32 v6, 64, v6\nv_add_u32 v{VW+1}, v4, v6")
        else:
            a(f"v_add_u32 v{VW+1}, 64, v4")
    a(f"s_lshl_b32 s3, s14, 11\ns_add_u32 s3, s3, 12288\nv_add_u32 v{VW+3}, s3, v1")
    for i in range(4): a(f"v_add_u32 v{VW+4+i}, {3*STG}, v{VW+i}")

def read_ops(a, s, areg):
    slot = s % NS; hi, sl = (4, slot - 3) if slot >= 3 else (0, slot)
    ra, rw = [], []
    if areg is not None:
        for q in range(2):
            ra.append(lambda q=q: a.lg(f"ds_read_b128 v[{areg+4*q}:{areg+4*q+3}], v{VW+3+hi} offset:{sl*STG + q*1024}", ("a", s)))
    for q in range(2):
        for t in range(3):
            r = WS0 + 24*(s % 2) + 12*q + 4*t; o = sl*STG + q*3072
            if a.rb == 0:
                rw.append(lambda r=r, t=t, o=o: a.lg(f"ds_read_b128 v[{r}:{r+3}], v{VW+t+hi} offset:{o}", ("w", s)))
            else:
                def f(r=r, t=t, o=o):
                    a.lg(f"ds_read_b64_tr_b16 v[{r}:{r+1}], v{VW+t+hi} offset:{o}", ("w", s))
                    a.lg(f"ds_read_b64_tr_b16 v[{r+2}:{r+3}], v{VW+t+hi} offset:{o + 8*a.rb}", ("w", s))
                rw.append(f)
    return ra, rw

def mfma_ops(a, wset, areg, first):
    ops = []
    for q in range(2):
        for t in range(3):
            r = ACC + 16*t; w = WS0 + 24*wset + 12*q + 4*t; b = areg + 4*q
            c = "0" if (first and q == 0) else f"v[{r}:{r+15}]"
            ops.append(lambda r=r, w=w, b=b, c=c: a(f"v_mfma_f32_32x32x16_bf16 v[{r}:{r+15}], v[{w}:{w+3}], v[{b}:{b+3}], {c}"))
    return ops

def transform_ops(a, F, P, rr, nm, t=152):
    ops = []
    for d in range(4):
        x, y = t + 2*(d % 2), t + 2*(d % 2) + 1
        L = [f"v_lshlrev_b32 v{x}, 16, v{F+d}", f"v_and_b32 v{y}, 0xffff0000, v{F+d}",
             f"v_fma_f32 v{x}, v{x}, v{rr}, v{nm}", f"v_fma_f32 v{y}, v{y}, v{rr}, v{nm}",
             f"v_fma_f32 v{x}, v{x}, v{P+8+2*d}, v{P+2*d}", f"v_fma_f32 v{y}, v{y}, v{P+9+2*d}, v{P+1+2*d}", f"v_cvt_pk_bf16_f32 v{F+d}, v{x}, v{y}"]
        ops += [(lambda l=l: a(l)) for l in L]
    return ops

def merge(*lists):
    items = []
    for li, L in enumerate(lists):
        n = len(L)
        for i, op in enumerate(L): items.append(((i + 0.5 * (li > 0)) / n, li, i, op))
    items.sort(key=lambda x: (x[0], x[1], x[2]))
    return [x[3] for x in items]
def run(ops):
    for op in ops: op()

def param_base(a):
    a(f"s_mul_i32 s3, s15, 1280\ns_add_u32 s3, s3, {PAR}\nv_lshlrev_b32 v6, 4, v3\nv_add_u32 v6, s3, v6")
def param_ops(a, ks):
    ops = []
    for arr in range(2):
        P = PR + 16*(ks % 2) + 8*arr; off = arr*2560 + ks*64
        ops.append(lambda P=P, off=off: a.lg(f"ds_read_b128 v[{P}:{P+3}], v6 offset:{off}", ("p", ks)))
        ops.append(lambda P=P, off=off: a.lg(f"ds_read_b128 v[{P+4}:{P+7}], v6 offset:{off+32}", ("p", ks)))
    return ops

def exchange(a, R):
    a(f"s_mul_i32 s3, s14, 6144\ns_add_u32 s3, s3, {EX}\nv_add_u32 v4, s3, v1\ns_xor_b32 s3, s14, 2\ns_mul_i32 s3, s3, 6144\ns_add_u32 s3, s3, {EX}\nv_add_u32 v5, s3, v1\ns_nop 4")
    for i in range(6): a(f"ds_write_b128 v4, v[{ACC+24+4*i}:{ACC+27+4*i}] offset:{i*1024}")
    a.wait_all_lg()
    a("s_barrier")
    for j in range(3):
        for h in range(2):
            a(f"ds_read_b128 v[{R+8*j+4*h}:{R+8*j+4*h+3}], v5 offset:{((j+1)%3)*2048 + h*1024}")
    for j in range(3):
        a(f"s_waitcnt lgkmcnt({4-2*j})")
        for i in range(8): a(f"v_add_f32 v{ACC+8*j+i}, v{ACC+8*j+i}, v{R+8*j+i}")

def c_start(a, areg_of, xf=None):
    a("s_barrier")
    a.pre()
    ra, rw = read_ops(a, 0, areg_of(0))
    run(ra)
    if xf:
        n, rr, nm = xf
        run(param_ops(a, 0)); run(param_ops(a, 1)); run(rw)
        a.wait(lg=[("a", 0), ("p", 0)])
        run(transform_ops(a, areg_of(0), PR, rr, nm))
        a.wait(lg=[("p", 1)])
        run(merge(transform_ops(a, areg_of(0) + 4, PR + 16, rr, nm), param_ops(a, 2)))
    else:
        run(rw)

def c_iter(a, s, first, total, areg_of, xf=None, load_a=True):
    ra, rw = [], []
    if s + 1 < total:
        a("s_barrier")
        ra, rw = read_ops(a, s + 1, areg_of(s + 1) if load_a else None)
    mf = mfma_ops(a, s % 2, areg_of(s), first)
    if os.environ.get("X_NORD"): ra, rw = [], []
    if os.environ.get("X_NOMFMA"): mf = [lambda: a("s_nop 0")] * 6
    if os.environ.get("X_NOXF"): xf = None
    if xf and s + 1 < xf[0]:
        n, rr, nm = xf
        k0 = 2*(s+1)
        run(ra); run(param_ops(a, k0 + 1))
        a.wait(lg=[("w", s)])
        run(merge(mf[:2], rw[:2]))
        a.wait(lg=[("a", s+1), ("p", k0)])
        run(merge(transform_ops(a, areg_of(s+1), PR, rr, nm), mf[2:4], rw[2:4]))
        a.wait(lg=[("p", k0 + 1)])
        nxt = param_ops(a, k0 + 2) if s + 2 < n else []
        run(merge(transform_ops(a, areg_of(s+1) + 4, PR + 16, rr, nm), mf[4:], rw[4:] + nxt))
    else:
        a.wait(lg=[("w", s), ("a", s)])
        run(merge(mf, ra + rw))

def prefetch(a, srdn, base, nbytes, nw, widx, vdst, vtmp, st):
    per_wg = -(-nbytes // 32 // 128) * 128
    per_wave = -(-per_wg // (8192 * nw))
    a(f"s_lshr_b32 s{st}, s2, 3\ns_mul_i32 s{st}, s{st}, {per_wg}\ns_mul_i32 s{st+1}, s{widx}, {per_wave*8192}\ns_add_u32 s{st}, s{st}, s{st+1}\ns_add_u32 s{st}, s{st}, {base:#x}\nv_lshlrev_b32 v{vtmp}, 3, v1")
    for i in range(per_wave):
        a.vm(f"buffer_load_dword v{vdst}, v{vtmp}, s[{srdn}:{srdn+3}], s{st} offen")
        if i < per_wave - 1: a(f"s_add_u32 s{st}, s{st}, 8192")

SLOT, NSL, DEP6 = 20480, 6, 4
PAR6 = NSL * SLOT
class G6:
    def __init__(self, kpst, nacc, g0=0):
        self.kpst, self.nacc, self.g0 = kpst, nacc, g0
        self.fs = kpst * (1 + nacc) * 4
        self.ACC, self.FR = 8, 8 + 16 * nacc
    def addr(self, a):
        a(f"s_mul_i32 s3, s17, {self.kpst*1024}\ns_add_u32 s3, s3, 12288\nv_add_u32 v4, s3, v1\nv_add_u32 v5, {3*SLOT}, v4")
        a(f"s_lshl_b32 s3, s15, 10\nv_add_u32 v6, s3, v1\nv_add_u32 v7, {3*SLOT}, v6")
    def reads(self, a, s):
        slot = (self.g0 + s) % NSL; hi, sl = (1, slot - 3) if slot >= 3 else (0, slot)
        F = self.FR + (s % 2) * self.fs
        ops = []
        for q in range(self.kpst):
            r = F + q * (1 + self.nacc) * 4
            ops.append(lambda r=r, q=q: a.lg(f"ds_read_b128 v[{r}:{r+3}], v{4+hi} offset:{sl*SLOT + q*1024}", ("f", s, q)))
            for n in range(self.nacc):
                rw = r + 4 + 4*n
                ops.append(lambda rw=rw, q=q, n=n: a.lg(f"ds_read_b128 v[{rw}:{rw+3}], v{6+hi} offset:{sl*SLOT + (q*self.nacc + n)*3072}", ("f", s, q)))
        return ops
    def start(self, a):
        a("s_barrier")
        run(self.reads(a, 0))
    def iter(self, a, s, first, total):
        rd = []
        if s + 1 < total:
            a("s_barrier")
            rd = self.reads(a, s + 1)
        F = self.FR + (s % 2) * self.fs
        per = len(rd) // self.kpst if rd else 0
        for q in range(self.kpst):
            a.wait(lg=[("f", s, q)])
            r = F + q * (1 + self.nacc) * 4
            for n in range(self.nacc):
                d = self.ACC + 16*n
                c = "0" if (first and q == 0) else f"v[{d}:{d+15}]"
                a(f"v_mfma_f32_32x32x16_bf16 v[{d}:{d+15}], v[{r+4+4*n}:{r+7+4*n}], v[{r}:{r+3}], {c}")
            run(rd[q*per:(q+1)*per])
    def lsetup(self, a, act_base, nks, w_base, sa, sw, sl, aflags="", wflags=""):
        self.a, self.sa, self.sw, self.sl, self.af, self.wf = a, sa, sw, sl, aflags, wflags
        k = self.kpst
        a(f"s_mul_i32 s{sl}, s15, {k*512}\ns_add_u32 s{sl}, s{sl}, 12288")
        a(f"s_mul_i32 s{sa}, s16, {nks*1024}\ns_and_b32 s3, s15, 1\ns_mul_i32 s3, s3, {k*512}\ns_add_u32 s{sa}, s{sa}, s3\ns_add_u32 s{sa}, s{sa}, {act_base:#x}")
        a(f"s_mul_i32 s{sw}, s13, {nks*3072*self.nacc}\ns_add_u32 s{sw}, s{sw}, s20\ns_add_u32 s{sw}, s{sw}, {w_base:#x}")
    def issue_a(self, s):
        a = self.a; slot = (self.g0 + s) % NSL
        a(f"s_add_u32 m0, s{self.sl}, {slot*SLOT}\ns_nop 0")
        for q in range(self.kpst // 2): a.vm(f"buffer_load_dwordx4 v1, s[8:11], s{self.sa} offen offset:{q*1024} {self.af} lds", ("st", self.g0 + s))
        a(f"s_add_u32 s{self.sa}, s{self.sa}, {self.kpst*1024}")
    def issue_w(self, s):
        a = self.a; slot = (self.g0 + s) % NSL
        a(f"s_add_u32 m0, s20, {slot*SLOT}\ns_nop 0")
        for i in range(3): a.vm(f"buffer_load_dwordx4 v1, s[8:11], s{self.sw} offen offset:{i*1024} {self.wf} lds", ("st", self.g0 + s))
        a(f"s_add_u32 s{self.sw}, s{self.sw}, 12288")
    def issue(self, s):
        self.issue_a(s); self.issue_w(s)
    def lstep(self, s, total, nxt=None):
        a = self.a
        a.wait(vm=[("st", self.g0 + s)])
        a("s_barrier")
        if s + DEP6 < total: self.issue(s + DEP6)
        elif nxt is not None: nxt(s + DEP6 - total)

def dma1(a, lds_off, sreg, tag, imm=0):
    a(f"s_mov_b32 m0, {lds_off}\ns_nop 0")
    a.vm(f"buffer_load_dwordx4 v1, s[8:11], s{sreg} offen offset:{imm} sc1 lds", tag)
def xid_publish(a, base):
    l = a.label("xid")
    a(f"s_cmp_lg_u32 s14, 6\ns_cbranch_scc1 {l}\ns_lshl_b32 s3, s12, 8\ns_lshl_b32 s6, s13, 2\ns_add_u32 s3, s3, s6\ns_add_u32 s3, s3, {base:#x}\ns_getreg_b32 s7, hwreg(HW_REG_XCC_ID, 0, 4)\ns_add_u32 s7, s7, s50\nv_mov_b32 v8, 0\nv_mov_b32 v9, s7\ns_mov_b64 exec, 1\nbuffer_store_dword v9, v8, s[8:11], s3 offen sc1\ns_mov_b64 exec, -1\n{l}:")
def xid_load(a, base, v):
    a(f"s_lshl_b32 s3, s12, 8\ns_add_u32 s3, s3, {base:#x}\nv_and_b32 v{v}, 7, v0\nv_lshlrev_b32 v{v}, 2, v{v}")
    a.vm(f"buffer_load_dword v{v}, v{v}, s[8:11], s3 offen sc1", "epi")
def pretouch(a, v, items):
    a(f"v_lshlrev_b32 v{v}, 3, v1")
    for sreg, n in items:
        a(f"s_mov_b64 exec, {(1 << n) - 1:#x}")
        a.vm(f"buffer_load_dword v{v+1}, v{v}, s[8:11], s{sreg} offen sc1", "epi")
    a("s_mov_b64 exec, -1")
def xid_decide(a, v):
    a(f"s_getreg_b32 s36, hwreg(HW_REG_XCC_ID, 0, 4)\ns_add_u32 s36, s36, s50\nv_cmp_ne_u32 vcc, s36, v{v}\ns_nop 1\ns_cmp_eq_u64 vcc, 0\ns_cselect_b32 s37, {XFAST}, 0")
def hstore(a, text):
    l1, l2 = a.label("hs"), a.label("hd")
    a(f"s_cmp_eq_u32 s37, 1\ns_cbranch_scc1 {l1}\n{text} sc1\ns_branch {l2}\n{l1}:")
    a.vm(text)
    a(f"{l2}:")
AFL = os.environ.get("X_AFL", "sc1")
XFAST = int(os.environ.get("X_FAST", "1"))
def flag_addr(a, base):
    a(f"s_lshl_b32 s38, s12, 8\ns_mul_i32 s6, s13, 6\ns_add_u32 s6, s6, s14\ns_lshl_b32 s6, s6, 2\ns_add_u32 s38, s38, s6\ns_add_u32 s38, s38, {base+32:#x}")
def handoff_publish(a, base):
    a("v_mov_b32 v8, 0\nv_mov_b32 v9, s50\ns_mov_b64 exec, 1")
    a("s_waitcnt vmcnt(0)")
    hstore(a, "buffer_store_dword v9, v8, s[8:11], s38 offen")
    a("s_mov_b64 exec, -1")
    a.vmq = []
def handoff_wait(a, base, n=48):
    lp, lo = a.label("hp"), a.label("ho")
    a(f"s_lshl_b32 s3, s12, 8\ns_add_u32 s3, s3, {base+32:#x}\nv_lshrrev_b32 v8, 2, v1\nv_min_u32 v8, {(n-1)*4}, v8\ns_mov_b32 s29, 0x8000")
    a(f"{lp}:\nbuffer_load_dword v9, v8, s[8:11], s3 offen sc1\ns_waitcnt vmcnt(0)\nv_cmp_ne_u32 vcc, s50, v9\ns_sub_u32 s29, s29, 1\ns_cbranch_scc1 {lo}\ns_cbranch_vccnz {lp}\n{lo}:")
    a.vmq = []

def unit_off6(a, d, per_nb, base):
    a(f"s_lshl_b32 s{d}, s16, 3\ns_add_u32 s{d}, s{d}, s13\ns_mul_i32 s{d}, s{d}, {per_nb}\ns_lshl_b32 s6, s15, 1\ns_add_u32 s{d}, s{d}, s6\ns_lshl_b32 s{d}, s{d}, 10\ns_add_u32 s{d}, s{d}, {base:#x}")

def stats_addr(a, base, st):
    a(f"s_mul_i32 s7, s13, 3\ns_add_u32 s7, s7, s15\ns_mul_i32 s{st}, s16, 6144\ns_lshr_b32 s3, s7, 1\ns_lshl_b32 s3, s3, 9\ns_add_u32 s{st}, s{st}, s3\ns_and_b32 s3, s7, 1\ns_lshl_b32 s3, s3, 3\ns_add_u32 s{st}, s{st}, s3\ns_add_u32 s{st}, s{st}, {base:#x}")
def stats_store(a, V, st, flags=""):
    a(f"v_mov_b32 v{V+2}, v{V}\nv_mov_b32 v{V+3}, v{V+1}\ns_nop 1\nv_permlane32_swap_b32 v{V}, v{V+2}\nv_permlane32_swap_b32 v{V+1}, v{V+3}\ns_nop 1\nv_add_f32 v{V}, v{V}, v{V+2}\nv_add_f32 v{V+1}, v{V+1}, v{V+3}\nv_max_f32 v{V+1}, 0, v{V+1}")
    a("s_mov_b32 exec_hi, 0")
    hstore(a, f"buffer_store_dwordx2 v[{V}:{V+1}], v1, s[8:11], s{st} offen")
    a("s_mov_b32 exec_hi, -1")
def stats_load(a, D, st, tag, flags=""):
    for i in range(6): a.vm(f"buffer_load_dwordx4 v[{D+4*i}:{D+4*i+3}], v1, s[8:11], s{st + i//4} offen offset:{1024*(i%4)} {flags}", tag)
def stats_base(a, st, base):
    a(f"s_mul_i32 s{st}, s16, 6144\ns_add_u32 s{st}, s{st}, {base:#x}\ns_add_u32 s{st+1}, s{st}, 4096")
def stats_finish(a, D, n, rr, nm):
    for i in range(1, 12): a(f"v_add_f32 v{D}, v{D}, v{D+2*i}\nv_add_f32 v{D+1}, v{D+1}, v{D+2*i+1}")
    a(f"v_mov_b32 v{D+2}, v{D}\nv_mov_b32 v{D+3}, v{D+1}\ns_nop 1\nv_permlane32_swap_b32 v{D}, v{D+2}\nv_permlane32_swap_b32 v{D+1}, v{D+3}\ns_nop 1\nv_add_f32 v{D}, v{D}, v{D+2}\nv_add_f32 v{D+1}, v{D+1}, v{D+3}")
    a(f"v_mul_f32 v{D}, {f32(1/n)}, v{D}\nv_mul_f32 v{D+1}, {f32(1/n)}, v{D+1}\nv_fma_f32 v{D+1}, -v{D}, v{D}, v{D+1}\nv_max_f32 v{D+1}, 0, v{D+1}\nv_add_f32 v{D+1}, {f32(1e-5)}, v{D+1}\nv_rsq_f32 v{rr}, v{D+1}\ns_nop 0\nv_mul_f32 v{nm}, v{D}, v{rr}\nv_sub_f32 v{nm}, 0, v{nm}")

def proj_epilogue(a, g, final, G, XR, T, ST, OUT, oaddr):
    a.wait(vm=["epi"])
    a("s_waitcnt lgkmcnt(0)"); a.lgq = []
    if not final: a("s_nop 8")
    else: a("s_nop 8")
    R = g.ACC
    lskip = a.label("skip")
    for i in range(2):
        if i == 1: a(f"s_cmp_eq_u32 s15, 2\ns_cbranch_scc1 {lskip}")
        for d in range(4):
            x = XR + 4*i + d; r = R + 8*i + 2*d; gg = G + 8*i + 2*d; t = T + 2*(d % 2)
            a(f"v_lshlrev_b32 v{t}, 16, v{x}\nv_and_b32 v{t+1}, 0xffff0000, v{x}\nv_fmac_f32 v{t}, v{gg}, v{r}\nv_fmac_f32 v{t+1}, v{gg+1}, v{r+1}")
            if not final:
                a(f"v_add_f32 v{ST}, v{ST}, v{t}\nv_fmac_f32 v{ST+1}, v{t}, v{t}\nv_add_f32 v{ST}, v{ST}, v{t+1}\nv_fmac_f32 v{ST+1}, v{t+1}, v{t+1}")
            a(f"v_cvt_pk_bf16_f32 v{OUT+4*i+d}, v{t}, v{t+1}")
        o = OUT + 4*i
        if final:
            a(f"s_nop 1\nv_permlane32_swap_b32 v{o}, v{o+2}\nv_permlane32_swap_b32 v{o+1}, v{o+3}\nbuffer_store_dwordx4 v[{o}:{o+3}], v{oaddr}, s[24:27], s28 offen offset:{32*i}")
        else:
            hstore(a, f"buffer_store_dwordx4 v[{o}:{o+3}], v1, s[8:11], s22 offen offset:{1024*i}")
    a(f"{lskip}:")

GC1 = -2.0 * LOG2E * math.sqrt(2.0 / math.pi)
GC2 = GC1 * 0.044715
def gelu(a, regs, t0, c1):
    for i, r in enumerate(regs): a(f"v_mul_f32 v{t0+i}, v{r}, v{r}")
    for i, r in enumerate(regs): a(f"v_fma_f32 v{t0+i}, v{t0+i}, s28, v{c1}")
    for i, r in enumerate(regs): a(f"v_mul_f32 v{t0+i}, v{t0+i}, v{r}")
    for i, r in enumerate(regs): a(f"v_exp_f32 v{t0+i}, v{t0+i}")
    for i, r in enumerate(regs): a(f"v_add_f32 v{t0+i}, 1.0, v{t0+i}")
    for i, r in enumerate(regs): a(f"v_rcp_f32 v{t0+i}, v{t0+i}")
    for i, r in enumerate(regs): a(f"v_mul_f32 v{r}, v{r}, v{t0+i}")

ZROW = 208
def wg_poll(a, lds_word, body, vt=8):
    lp, lo, lw, ld = a.label("gp"), a.label("go"), a.label("gw"), a.label("gd")
    a(f"v_mov_b32 v{vt+4}, {lds_word}\ns_cmp_lg_u32 s15, 0\ns_cbranch_scc1 {lw}\ns_mov_b32 s29, 0x8000\n{lp}:")
    body()
    a(f"s_sub_u32 s29, s29, 1\ns_cbranch_scc1 {lo}\ns_cbranch_vccz {lo}\ns_sleep {os.environ.get('X_SLP', '2')}\ns_branch {lp}\n{lo}:\nv_mov_b32 v{vt+5}, 1\nds_write_b32 v{vt+4}, v{vt+5}\ns_waitcnt lgkmcnt(0)\ns_branch {ld}")
    a(f"{lw}:\nds_read_b32 v{vt+5}, v{vt+4}\ns_waitcnt lgkmcnt(0)\nv_readfirstlane_b32 s3, v{vt+5}\ns_cmp_eq_u32 s3, 1\ns_cbranch_scc1 {ld}\ns_sleep 1\ns_branch {lw}\n{ld}:\ns_waitcnt vmcnt(0)")
    a.vmq = []

def poll_lines(a, base_sreg, n, voff=4, vd=6):
    k = -(-n // 64)
    for i in range(k):
        if i: a(f"s_add_u32 s3, s{base_sreg}, {min(i*64, n-64)*128}")
        a(f"buffer_load_dword v{vd+i}, v{voff}, s[8:11], s{base_sreg if i == 0 else 3} offen sc1")
    a("s_waitcnt vmcnt(0)")
    for i in range(k): a(f"v_xor_b32 v{vd+i}, s50, v{vd+i}")
    for i in range(1, k): a(f"v_or_b32 v{vd}, v{vd}, v{vd+i}")
    a(f"v_cmp_ne_u32 vcc, 0, v{vd}")
def wg_flag(a, lds_word, count, addr_sreg):
    l = a.label("wf")
    a(f"v_mov_b32 v8, {lds_word}\nv_mov_b32 v9, 1\ns_mov_b64 exec, 1\ns_waitcnt vmcnt(0)\nds_add_rtn_u32 v9, v8, v9\ns_waitcnt lgkmcnt(0)\nv_readfirstlane_b32 s3, v9\ns_cmp_lg_u32 s3, {count-1}\ns_cbranch_scc1 {l}")
    a(f"v_mov_b32 v8, 0\nv_mov_b32 v9, s50\nbuffer_store_dword v9, v8, s[8:11], s{addr_sreg} offen sc1\n{l}:\ns_mov_b64 exec, -1")

QL = 81920
ST0L = PAR + 5120
def get_nonce(a):
    a(f"v_mov_b32 v8, {CTL+256}\nds_read_b32 v9, v8\ns_waitcnt lgkmcnt(0)\nv_readfirstlane_b32 s50, v9")

def p01(a, text_end):
    N = a.name
    a(f"s_cmp_ge_u32 s2, 256\ns_cbranch_scc1 L_{N}_exit")
    stamp_begin(a)
    a(f"s_load_dwordx2 s[4:5], s[0:1], {KA['ws']}")
    a("v_and_b32 v4, 63, v0\nv_lshrrev_b32 v5, 6, v0\nv_lshlrev_b32 v1, 4, v4\nv_readfirstlane_b32 s14, v5\nv_and_b32 v2, 31, v4\nv_lshrrev_b32 v3, 5, v4")
    a("s_and_b32 s12, s2, 7\ns_lshr_b32 s3, s2, 6\ns_lshl_b32 s3, s3, 3\ns_add_u32 s12, s12, s3\ns_bfe_u32 s13, s2, 0x30003\ns_mov_b32 s27, 0\ns_mov_b32 s37, 0")
    a(f"s_cmp_ge_u32 s14, 4\ns_cbranch_scc1 L_{N}_p0other")
    a(f"s_cmp_lt_u32 s13, 2\ns_cbranch_scc1 L_{N}_xh\ns_cmp_ge_u32 s13, 6\ns_cbranch_scc1 L_{N}_pq")
    a(f"s_load_dwordx4 s[16:19], s[0:1], {KA['c']}")
    a("s_sub_u32 s6, s13, 2\ns_lshr_b32 s3, s6, 1\ns_lshl_b32 s3, s3, 5\ns_add_u32 s3, s3, s12\ns_lshl_b32 s3, s3, 1\ns_and_b32 s6, s6, 1\ns_add_u32 s3, s3, s6")
    a("v_lshrrev_b32 v72, 2, v0\nv_and_b32 v73, 3, v0\nv_mul_u32_u24 v74, 7680, v72\nv_lshl_add_u32 v74, v73, 4, v74\nv_lshlrev_b32 v4, 1, v72")
    a(f"s_cmp_lt_u32 s3, 120\ns_cselect_b32 s7, {640*7680}, 0\ns_waitcnt lgkmcnt(0)")
    srd(a, 8, 4, WS_SIZE); srd(a, 20, 16, 1280)
    a("s_mov_b32 s40, s18\ns_mov_b32 s41, s19\ns_mov_b32 s42, s7\ns_mov_b32 s43, 0x20000\ns_lshl_b32 s6, s3, 6")
    for p in range(10): a(f"buffer_load_ushort v{10+p}, v4, s[20:23], 0 offen offset:{128*p}")
    for p in range(10):
        a(f"buffer_load_dwordx4 v[{20+4*p}:{23+4*p}], v74, s[40:43], s6 offen")
        if p < 9: a(f"s_add_u32 s6, s6, {64*7680}")
    for i in range(8): a(f"v_mov_b32 v{64+i}, 0")
    a("s_waitcnt vmcnt(10)")
    for p in range(10):
        v = 10 + p
        a(f"v_lshlrev_b32 v{v}, 16, v{v}\nv_mul_f32 v5, {f32(-LOG2E)}, v{v}\nv_exp_f32 v5, v5\ns_nop 0\nv_add_f32 v5, 1.0, v5\nv_rcp_f32 v5, v5\ns_nop 0\nv_mul_f32 v{v}, v{v}, v5")
        bf16_round(a, v, 5)
    for p in range(10):
        a(f"s_waitcnt vmcnt({9-p})")
        for i in range(4):
            d = 20 + 4*p + i
            a(f"v_lshlrev_b32 v5, 16, v{d}\nv_and_b32 v6, 0xffff0000, v{d}\nv_fmac_f32 v{64+2*i}, v{10+p}, v5\nv_fmac_f32 v{65+2*i}, v{10+p}, v6")
    a("v_lshlrev_b32 v5, 7, v72\nv_lshl_add_u32 v5, v73, 5, v5")
    a("ds_write_b128 v5, v[64:67]\nds_write_b128 v5, v[68:71] offset:16")
    a("v_and_b32 v6, 31, v0\nv_lshrrev_b32 v7, 5, v0\nv_lshlrev_b32 v6, 2, v6\nv_lshl_add_u32 v10, v7, 10, v6")
    a("s_waitcnt lgkmcnt(0)\ns_barrier")
    for i in range(8): a(f"ds_read_b32 v{20+i}, v10 offset:{128*i}")
    get_nonce(a)
    for i in range(1, 8): a(f"v_add_f32 v20, v20, v{20+i}")
    a("v_lshl_add_u32 v10, v7, 7, v6\nds_write_b32 v10, v20 offset:8192\ns_waitcnt lgkmcnt(0)\ns_barrier")
    a(f"s_lshl_b32 s38, s3, 7\ns_add_u32 s38, s38, {FG_MOD:#x}\ns_cmp_lg_u32 s14, 0\ns_cbranch_scc1 L_{N}_p0end")
    for i in range(8): a(f"ds_read_b32 v{20+i}, v6 offset:{8192+128*i}")
    a("s_waitcnt lgkmcnt(0)")
    for i in range(1, 8): a(f"v_add_f32 v20, v20, v{20+i}")
    bf16_round(a, 20, 5)
    a("v_add_f32 v21, 1.0, v20")
    bf16_round(a, 21, 5)
    a("s_sub_u32 s6, s3, 20\ns_cmp_lt_u32 s6, 20\ns_cselect_b32 s7, 1, 0\ns_sub_u32 s6, s3, 80\ns_cmp_lt_u32 s6, 20\ns_cselect_b32 s6, 1, s7\ns_cmp_eq_u32 s6, 0")
    l = a.label("noinc")
    a(f"s_cbranch_scc1 {l}\nv_mov_b32 v20, v21\n{l}:")
    a(f"s_lshl_b32 s6, s3, 7\ns_cmp_ge_u32 s3, 120\ns_cbranch_scc1 L_{N}_p0end\ns_mov_b32 exec_hi, 0\nbuffer_store_dword v20, v6, s[8:11], s6 offen offset:{WS_MOD} sc1\ns_mov_b32 exec_hi, -1")
    a(f"s_branch L_{N}_p0end")
    a(f"L_{N}_xh:")
    a(f"s_load_dwordx2 s[16:17], s[0:1], {KA['x']}")
    a("s_lshl_b32 s18, s12, 1\ns_add_u32 s18, s18, s13\nv_mul_u32_u24 v4, 1280, v2\nv_lshl_add_u32 v4, v3, 4, v4")
    a(f"s_mul_i32 s6, s18, {32*1280}\ns_mul_i32 s7, s14, 320\ns_add_u32 s6, s6, s7\ns_waitcnt lgkmcnt(0)")
    srd(a, 8, 4, WS_SIZE); srd(a, 20, 16, 2048 * 1280)
    for i in range(10): a(f"buffer_load_dwordx4 v[{20+4*i}:{23+4*i}], v4, s[20:23], s6 offen offset:{32*i}")
    a("v_mov_b32 v6, 0\nv_mov_b32 v7, 0")
    for i in range(10):
        b = 20 + 4*i
        a(f"s_waitcnt vmcnt({9-i if i < 6 else 10-i})\nv_permlane32_swap_b32 v{b}, v{b+2}\nv_permlane32_swap_b32 v{b+1}, v{b+3}")
        if i == 5: xid_load(a, WS_FL1, 68)
        for d in range(4):
            lo = 64 + 2*(d % 2)
            a(f"v_lshlrev_b32 v{lo}, 16, v{b+d}\nv_and_b32 v{lo+1}, 0xffff0000, v{b+d}")
            a(f"v_add_f32 v6, v6, v{lo}\nv_fmac_f32 v7, v{lo}, v{lo}\nv_add_f32 v6, v6, v{lo+1}\nv_fmac_f32 v7, v{lo+1}, v{lo+1}")
    a("v_lshlrev_b32 v5, 3, v0\nds_write_b64 v5, v[6:7]\nv_lshlrev_b32 v5, 3, v2\ns_waitcnt lgkmcnt(0)\ns_barrier")
    for i in range(8): a(f"ds_read_b64 v[{70+2*i}:{71+2*i}], v5 offset:{256*i}")
    get_nonce(a)
    a("s_waitcnt vmcnt(0)")
    xid_decide(a, 68)
    a(f"s_mul_i32 s6, s18, {40*1024}\ns_mul_i32 s7, s14, {10*1024}\ns_add_u32 s6, s6, s7\ns_add_u32 s6, s6, {WS_XH:#x}")
    lf, ld = a.label("xf"), a.label("xd")
    a(f"s_cmp_eq_u32 s37, 1\ns_cbranch_scc1 {lf}")
    for fl, lab in ((" sc1", f"s_branch {ld}\n{lf}:"), ("", f"{ld}:")):
        for i in range(10):
            a(f"buffer_store_dwordx4 v[{20+4*i}:{23+4*i}], v1, s[8:11], s6 offen offset:{(i%4)*1024}{fl}")
            if i % 4 == 3: a("s_add_u32 s6, s6, 4096")
        a(lab)
    a("s_barrier")
    for i in range(1, 8): a(f"v_add_f32 v70, v70, v{70+2*i}\nv_add_f32 v71, v71, v{71+2*i}")
    a(f"v_mul_f32 v70, {f32(1/640)}, v70\nv_mul_f32 v71, {f32(1/640)}, v71\nv_fma_f32 v71, -v70, v70, v71\nv_max_f32 v71, 0, v71\nv_add_f32 v71, {f32(1e-5)}, v71\nv_rsq_f32 v72, v71\ns_nop 0\nv_mul_f32 v70, v70, v72")
    a(f"v_sub_f32 v73, 0, v70\ns_lshl_b32 s6, s18, 8\ns_add_u32 s6, s6, {WS_ST0:#x}\ns_lshl_b32 s38, s12, 8\ns_lshl_b32 s7, s13, 2\ns_add_u32 s38, s38, s7\ns_add_u32 s38, s38, {WS_FL0:#x}\ns_cmp_lg_u32 s14, 0\ns_cbranch_scc1 L_{N}_p0end\ns_mov_b32 exec_hi, 0")
    hstore(a, "buffer_store_dwordx2 v[72:73], v5, s[8:11], s6 offen")
    a(f"s_mov_b32 exec_hi, -1\ns_branch L_{N}_p0end")
    a(f"L_{N}_pq:")
    a(f"s_load_dwordx2 s[16:17], s[0:1], {KA['wq']}\ns_load_dwordx4 s[32:35], s[0:1], {KA['wk']}")
    a("s_sub_u32 s3, s13, 6\ns_lshl_b32 s3, s3, 5\ns_add_u32 s3, s3, s12\ns_and_b32 s19, s3, 7\ns_lshr_b32 s18, s3, 3\ns_lshl_b32 s38, s19, 3\ns_add_u32 s38, s38, s18\ns_lshl_b32 s18, s18, 3\ns_lshl_b32 s6, s14, 1\ns_add_u32 s18, s18, s6")
    a(f"s_lshl_b32 s38, s38, 7\ns_add_u32 s38, s38, {FG_PQ:#x}\nv_and_b32 v4, 15, v2")
    a(f"v_lshrrev_b32 v5, 4, v2\nv_mul_u32_u24 v5, 20, v5\nv_add_u32 v5, v5, v4\ns_mul_i32 s6, s19, 80\nv_add_u32 v5, s6, v5\nv_lshlrev_b32 v5, 1, v5\nv_mul_u32_u24 v6, {4*1280}, v3\nv_add_u32 v10, v5, v6\nv_add_u32 v11, 80, v10\nv_add_u32 v12, 120, v10")
    a("v_bfe_u32 v5, v4, 1, 1\nv_lshrrev_b32 v7, 3, v4\nv_lshl_add_u32 v5, v7, 1, v5\nv_mul_u32_u24 v5, 20, v5\nv_bfe_u32 v7, v4, 2, 1\nv_lshl_add_u32 v5, v7, 1, v5\nv_and_b32 v7, 1, v4\nv_add_u32 v5, v5, v7\nv_add_u32 v5, 16, v5\nv_add_u32 v5, s6, v5\nv_lshlrev_b32 v5, 1, v5\nv_add_u32 v5, v5, v6\nv_cmp_gt_u32 vcc, 16, v2\ns_nop 1\nv_cndmask_b32 v12, v5, v12, vcc")
    a("v_lshrrev_b32 v5, 2, v4\nv_lshlrev_b32 v5, 1, v5\nv_add_u32 v5, v5, v7\nv_add_u32 v5, 16, v5\nv_and_b32 v8, 10, v4\nv_cmp_eq_u32 vcc, 0, v8")
    a(f"v_mov_b32 v8, {OOB//2:#x}\ns_nop 0\nv_cndmask_b32 v5, v8, v5, vcc\nv_add_u32 v14, 16, v4\nv_cmp_gt_u32 vcc, 4, v4\ns_nop 1\nv_cndmask_b32 v14, v8, v14, vcc\ns_cmp_eq_u32 s19, 3\ns_cselect_b64 vcc, -1, 0\nv_cndmask_b32 v5, v5, v14, vcc\ns_bitcmp1_b32 s19, 0\ns_cselect_b64 vcc, -1, 0\nv_cndmask_b32 v5, v4, v5, vcc\nv_lshlrev_b32 v5, 1, v5\nv_mul_u32_u24 v6, {4*40}, v3\nv_add_u32 v13, v5, v6")
    a("s_waitcnt lgkmcnt(0)")
    srd(a, 8, 4, WS_SIZE); srd(a, 20, 16, 640 * 1280)
    lskip = a.label("pqs")
    a(f"s_cmp_ge_u32 s3, 40\ns_cbranch_scc1 {lskip}")
    a("s_cmp_ge_u32 s19, 2\ns_cselect_b32 s32, s34, s32\ns_cselect_b32 s33, s35, s33\ns_cmp_ge_u32 s19, 4\ns_cselect_b32 s7, 0, 25600")
    a("s_mov_b32 s40, s32\ns_mov_b32 s41, s33\ns_mov_b32 s42, s7\ns_mov_b32 s43, 0x20000")
    for q in range(2):
        a(f"s_add_u32 s6, s18, {q}\ns_mul_i32 s28, s6, {16*1280}\ns_mul_i32 s29, s6, {16*40}")
        b = 20 + 12*q
        loads8(a, 20, 10, b, b+24, 28, E_PERM, 1280, 30)
        loads8(a, 20, 12, b+8, b+32, 28, E_PERM, 1280, 30)
        a("s_mov_b32 exec_lo, 0xffff\ns_mov_b32 exec_hi, 0xffff")
        loads8(a, 20, 11, b+4, b+28, 28, E_PERM, 1280, 30)
        a("s_mov_b32 exec_lo, 0xffff0000\ns_mov_b32 exec_hi, 0xffff0000")
        loads8(a, 40, 13, b+4, b+28, 29, E_PERM, 40, 30)
        a("s_mov_b64 exec, -1")
        if q == 0: a("s_waitcnt vmcnt(16)")
    a(f"s_mul_i32 s6, s19, 40\ns_add_u32 s6, s6, s18\ns_mul_i32 s6, s6, 3072\ns_add_u32 s6, s6, {WS_WQKV:#x}\ns_waitcnt vmcnt(0)")
    for i in range(24): a(f"v_lshl_or_b32 v{20+i}, v{44+i}, 16, v{20+i}")
    for q in range(2):
        for ft in range(3): a(f"buffer_store_dwordx4 v[{20+12*q+4*ft}:{23+12*q+4*ft}], v1, s[8:11], s6 offen offset:{ft*1024} sc1")
        a("s_add_u32 s6, s6, 3072")
    a(f"{lskip}:\ns_barrier")
    get_nonce(a)
    a("s_barrier")
    a(f"L_{N}_p0end:\ns_waitcnt vmcnt(0)\ns_barrier")
    l = a.label("nf")
    a(f"s_cmp_lg_u32 s14, 0\ns_cbranch_scc1 {l}")
    handoff_publish(a, 0)
    a(f"{l}:")
    stamp(a, 1)
    a.vmq = []; a.lgq = []
    a("s_lshr_b32 s15, s14, 1\ns_and_b32 s17, s14, 1\ns_lshl_b32 s16, s12, 1\ns_add_u32 s16, s16, s17")
    compute_addr(a, 0); param_base(a)
    RR, NM = 156, 157
    a(f"s_lshl_b32 s3, s17, 8\ns_add_u32 s3, s3, {ST0L}\nv_lshlrev_b32 v7, 3, v2\nv_add_u32 v7, s3, v7")
    areg = lambda s: AF + 8*(s % 2)
    xf = (10, RR, NM)
    a.pre = lambda: a.lg(f"ds_read_b64 v[{RR}:{NM}], v7", ("a", 0))
    c_start(a, areg, xf)
    for s in range(10): c_iter(a, s, s == 0, 10, areg, xf)
    T = WS0
    exchange(a, T)
    R = ACC
    QS = LOG2E / math.sqrt(20.0)
    a(f"s_mul_i32 s3, s17, 5\ns_mul_i32 s6, s15, 3\ns_add_u32 s3, s3, s6\ns_lshl_b32 s3, s3, 10\ns_add_u32 s3, s3, {QL}\nv_add_u32 v7, s3, v1\ns_mov_b32 s7, {f32(QS)}")
    lq, lnk = a.label("q"), a.label("nokv")
    def qunit(i):
        for j in range(8): a(f"v_mul_f32 v{T+j}, s7, v{R+8*i+j}")
        for d in range(4): a(f"v_cvt_pk_bf16_f32 v{T+8+4*i+d}, v{T+2*d}, v{T+2*d+1}")
        a(f"ds_write_b128 v7, v[{T+8+4*i}:{T+11+4*i}] offset:{i*1024}")
    a(f"s_cmp_eq_u32 s15, 0\ns_cbranch_scc1 {lq}\ns_cmp_ge_u32 s13, 4\ns_cbranch_scc1 {lnk}")
    S = R + 16; U = T + 24
    a(f"s_lshr_b32 s6, s16, 3\ns_mul_i32 s19, s6, {KVCH}\ns_add_u32 s19, s19, {WS_KV:#x}\ns_and_b32 s18, s16, 7")
    l1, lv, l2, lk = a.label("k2"), a.label("v"), a.label("k2b"), a.label("kd")
    a(f"s_cmp_eq_u32 s13, 3\ns_cbranch_scc0 {l1}\nv_mov_b32 v{S+4}, 1.0\ns_mov_b32 exec_lo, 0\nv_mov_b32 v{S}, 1.0\ns_mov_b32 exec_lo, -1\n{l1}:")
    for d in range(4): a(f"v_cvt_pk_bf16_f32 v{U+d}, v{S+2*d}, v{S+2*d+1}")
    a(f"s_cmp_ge_u32 s13, 2\ns_cbranch_scc1 {lv}\ns_cmp_eq_u32 s13, 1\ns_cbranch_scc1 {l2}")
    a(f"s_lshl_b32 s18, s18, 10\ns_add_u32 s19, s19, s18\nbuffer_store_dwordx4 v[{U}:{U+3}], v1, s[8:11], s19 offen sc1\ns_branch {lk}")
    a(f"{l2}:\ns_lshl_b32 s18, s18, 8\ns_add_u32 s19, s19, s18\ns_add_u32 s19, s19, 24576\nv_lshrrev_b32 v4, 2, v1\nbuffer_store_dword v{U}, v4, s[8:11], s19 offen sc1\ns_branch {lk}")
    a(f"{lv}:")
    a(f"s_lshl_b32 s3, s14, 11\nv_lshlrev_b32 v4, 5, v2\nv_lshl_add_u32 v4, v3, 3, v4\nv_add_u32 v4, s3, v4")
    a(f"ds_write_b64 v4, v[{U}:{U+1}]\nds_write_b64 v4, v[{U+2}:{U+3}] offset:16")
    a("v_lshrrev_b32 v4, 4, v1\nv_and_b32 v5, 15, v4\nv_lshrrev_b32 v4, 4, v4")
    a(f"v_and_b32 v6, 1, v4\nv_lshlrev_b32 v6, 4, v6\nv_lshl_add_u32 v6, v3, 2, v6\nv_lshrrev_b32 v{U+8}, 2, v5\nv_add_u32 v6, v6, v{U+8}\nv_lshlrev_b32 v6, 5, v6\nv_and_b32 v{U+8}, 3, v5\nv_lshl_add_u32 v6, v{U+8}, 3, v6\nv_add_u32 v6, s3, v6")
    a("s_waitcnt lgkmcnt(0)")
    a(f"ds_read_b64_tr_b16 v[{U+4}:{U+5}], v6\nds_read_b64_tr_b16 v[{U+6}:{U+7}], v6 offset:256")
    a("v_and_b32 v6, 1, v4\nv_lshlrev_b32 v6, 10, v6\nv_lshl_add_u32 v6, v3, 9, v6\nv_lshl_add_u32 v6, v5, 4, v6")
    a(f"s_lshl_b32 s18, s18, 11\ns_add_u32 s19, s19, s18\ns_add_u32 s19, s19, 8192\ns_cmp_eq_u32 s13, 2\ns_cselect_b32 s6, 256, 0\ns_add_u32 s19, s19, s6")
    a(f"s_waitcnt lgkmcnt(0)\nbuffer_store_dwordx4 v[{U+4}:{U+7}], v6, s[8:11], s19 offen sc1")
    a(f"{lk}:")
    qunit(0); qunit(1)
    a(f"s_waitcnt lgkmcnt(0)\ns_barrier\ns_lshl_b32 s6, s12, 2\ns_add_u32 s6, s6, s13\ns_lshl_b32 s6, s6, 7\ns_add_u32 s6, s6, {FG_KV:#x}")
    wg_flag(a, CTL + 64, 2, 6)
    a(f"s_branch L_{N}_att")
    a(f"{lq}:")
    qunit(2)
    a(f"{lnk}:")
    qunit(0); qunit(1)
    a(f"L_{N}_qdone:\ns_waitcnt lgkmcnt(0)\ns_barrier")
    stamp(a, 2)
    a(f"s_branch L_{N}_att")
    a(f"L_{N}_p0other:")
    a(f"s_load_dwordx2 s[16:17], s[0:1], {KA['dbg']}\ns_load_dwordx4 s[32:35], s[0:1], {KA['w_in']}\ns_load_dwordx2 s[52:53], s[0:1], {KA['wo']}\ns_load_dwordx2 s[54:55], s[0:1], {KA['w_out']}\ns_load_dwordx2 s[44:45], s[0:1], {KA['out']}")
    lnz, ln6, lnp, lnc = a.label("nz"), a.label("n6"), a.label("np"), a.label("nc")
    a(f"s_cmp_lg_u32 s14, 4\ns_cbranch_scc1 {lnz}\nv_lshrrev_b32 v8, 2, v1\nv_add_u32 v8, {CTL}, v8\nv_mov_b32 v9, 0\nds_write_b32 v8, v9 offset:0")
    a(f"s_lshr_b32 s3, s2, 3\ns_cmp_ge_u32 s3, 8\ns_cbranch_scc1 {lnz}\ns_getpc_b64 s[40:41]\n{lnc}:\ns_sub_u32 s40, s40, {lnc}-{KNAME}\ns_subb_u32 s41, s41, 0\ns_lshl_b32 s3, s3, 13\nv_lshlrev_b32 v8, 3, v1\nv_add_u32 v8, s3, v8\nv_min_u32 v8, {text_end}-{KNAME}-4, v8\nglobal_load_dword v20, v8, s[40:41]\n{lnz}:")
    a("s_waitcnt lgkmcnt(0)")
    srd(a, 8, 4, WS_SIZE)
    ln5 = a.label("n5")
    a(f"s_cmp_lg_u32 s14, 5\ns_cbranch_scc1 {ln5}\ns_lshr_b32 s3, s2, 3\ns_mul_i32 s3, s3, {26*128}\ns_add_u32 s3, s3, {WS_FG:#x}\nv_lshlrev_b32 v8, 3, v1\ns_mov_b64 exec, {(1<<26)-1:#x}\nbuffer_load_dword v20, v8, s[8:11], s3 offen sc1\ns_mov_b64 exec, -1\n{ln5}:")
    a(f"s_cmp_lg_u32 s14, 6\ns_cbranch_scc1 {ln6}")
    srd(a, 20, 16, 256)
    a(f"v_mov_b32 v8, 0\ns_cmp_lg_u32 s2, 0\ns_cbranch_scc1 {lnp}\ns_memrealtime s[18:19]\ns_waitcnt lgkmcnt(0)\ns_lshl_b32 s18, s18, 5\ns_or_b32 s18, s18, 16\nv_mov_b32 v9, s18\ns_mov_b64 exec, 1\nbuffer_store_dword v9, v8, s[20:23], 0 offen sc1\ns_mov_b64 exec, -1")
    a(f"{lnp}:\ns_mov_b32 s29, 0x8000\n{lnp}l:\nbuffer_load_dword v9, v8, s[20:23], 0 offen sc1\ns_waitcnt vmcnt(0)\nv_readfirstlane_b32 s50, v9\ns_sub_u32 s29, s29, 1\ns_cbranch_scc1 {lnp}x\ns_cmp_eq_u32 s50, 0\ns_cbranch_scc1 {lnp}l\n{lnp}x:")
    xid_publish(a, WS_FL1)
    a(f"v_mov_b32 v8, {CTL+256}\nv_mov_b32 v9, s50\nds_write_b32 v8, v9\ns_waitcnt lgkmcnt(0)\n{ln6}:")
    a("s_barrier")
    get_nonce(a)
    a("s_barrier\ns_barrier")
    a(f"s_cmp_ge_u32 s14, 6\ns_cbranch_scc1 L_{N}_p1load")
    a(f"s_mov_b32 s24, 12\nL_{N}_p1idle:\ns_barrier\ns_sub_u32 s24, s24, 1\ns_cmp_lg_u32 s24, 0\ns_cbranch_scc1 L_{N}_p1idle\ns_branch L_{N}_idle")
    a(f"L_{N}_p1load:")
    a.vmq = []; a.lgq = []
    a(f"s_sub_u32 s15, s14, 6\ns_mul_i32 s20, s15, 3072\ns_lshl_b32 s21, s15, 11\ns_add_u32 s21, s21, 12288\ns_lshr_b32 s22, s15, 1\ns_and_b32 s23, s15, 1\ns_lshl_b32 s16, s12, 1\ns_add_u32 s16, s16, s23")
    a(f"s_mul_i32 s18, s16, {40*1024}\ns_mul_i32 s3, s22, {20*1024}\ns_add_u32 s18, s18, s3\ns_add_u32 s18, s18, {WS_XH:#x}")
    a(f"s_mul_i32 s19, s13, {40*3072}\ns_mul_i32 s3, s22, {20*3072}\ns_add_u32 s19, s19, s3\ns_mul_i32 s3, s23, 3072\ns_add_u32 s19, s19, s3\ns_add_u32 s19, s19, {WS_WQKV:#x}")
    a(f"v_lshrrev_b32 v4, 4, v1\nv_lshlrev_b32 v5, 7, v4\nv_add_u32 v5, {FG_MOD:#x}, v5\ns_lshl_b32 s3, s12, 8\ns_add_u32 s3, s3, {WS_FL0 - 160:#x}\nv_lshlrev_b32 v6, 2, v4\nv_add_u32 v6, s3, v6\nv_cmp_lt_u32 vcc, 39, v4\ns_nop 1\nv_cndmask_b32 v5, v5, v6, vcc")
    a(f"s_lshl_b32 s3, s13, 10\ns_add_u32 s3, s3, {FG_PQ - 42*128:#x}\nv_min_u32 v6, 46, v4\nv_lshlrev_b32 v6, 7, v6\nv_add_u32 v6, s3, v6\nv_cmp_lt_u32 vcc, 41, v4\ns_nop 1\nv_cndmask_b32 v5, v5, v6, vcc")
    wg_poll(a, CTL + 56, lambda: a("buffer_load_dword v6, v5, s[8:11], 0 offen sc1\ns_waitcnt vmcnt(0)\nv_cmp_ne_u32 vcc, s50, v6"))
    stamp(a, 1)
    a(f"s_lshl_b32 s3, s15, 10\ns_add_u32 m0, s3, {PAR}\ns_add_u32 s6, s3, {WS_MOD}")
    a.vm("buffer_load_dwordx4 v1, s[8:11], s6 offen sc1 lds", "par")
    a(f"s_mov_b32 m0, {PAR + 4096}\ns_mov_b32 s6, {WS_MOD + 4096}")
    a.vm("buffer_load_dwordx4 v1, s[8:11], s6 offen sc1 lds", "par")
    a(f"s_mov_b32 m0, {ST0L}\ns_lshl_b32 s6, s12, 9\ns_add_u32 s6, s6, {WS_ST0:#x}\ns_mov_b32 exec_hi, 0")
    a.vm("buffer_load_dwordx4 v1, s[8:11], s6 offen sc1 lds", "par")
    a("s_mov_b32 exec_hi, -1")
    def issue(s):
        slot = s % NS
        a(f"s_add_u32 m0, s21, {slot*STG}\ns_nop 0")
        for q in range(2): a.vm(f"buffer_load_dwordx4 v1, s[8:11], s18 offen offset:{q*1024} sc1 lds", ("st", s))
        a(f"s_add_u32 m0, s20, {slot*STG}\ns_add_u32 s18, s18, 2048")
        for i in range(3): a.vm(f"buffer_load_dwordx4 v1, s[8:11], s19 offen offset:{i*1024} sc1 lds", ("st", s))
        a("s_add_u32 s19, s19, 6144")
    issue(0); issue(1)
    for s in range(10):
        a.wait(vm=[("st", s)])
        a("s_barrier")
        if s == 0: issue(2); issue(3)
        if s + DEP < 10: issue(s + DEP)
    a(f"s_barrier\ns_barrier\ns_branch L_{N}_helper")

RA_D = os.environ.get('X_RAD', '1') == '1'
PATCH = PAR6 + 4096
GB_LDS = PAR6 + 3072
X1K, Z1K = 140, 148
def phase_ab_compute(a, g, h, pc, pd):
    a("s_cmp_ge_u32 s14, 3\ns_cselect_b32 s17, 1, 0\ns_mul_i32 s3, s17, 3\ns_sub_u32 s15, s14, s3\ns_lshl_b32 s16, s12, 1\ns_add_u32 s16, s16, s17")
    a.vmq = []; a.lgq = []
    g.addr(a)
    G, XR, T, ST = 88, 104, 112, 124
    UTL = PAR6 + 1024
    unit_off6(a, 22, 5, 0)
    a(f"s_add_u32 s23, s22, {WS_XH:#x}\ns_add_u32 s22, s22, {WS_X1:#x}")
    a(f"s_lshl_b32 s3, s15, 7\ns_add_u32 s3, s3, {PAR6}\nv_lshlrev_b32 v128, 4, v3\nv_add_u32 v128, s3, v128")
    stats_addr(a, WS_ST1, 29)
    flag_addr(a, WS_FL1)
    g.start(a)
    stamp(a, 5)
    a(f"s_add_u32 s30, s29, {WS_ST2 - WS_ST1}\nv_mov_b32 v130, -1\nv_mov_b32 v131, -1\ns_mov_b32 exec_hi, 0")
    a.vm("buffer_store_dwordx2 v[130:131], v1, s[8:11], s30 offen sc1")
    a("s_mov_b32 exec_hi, -1")
    for i in range(2): a.vm(f"buffer_load_dwordx4 v[{XR+4*i}:{XR+4*i+3}], v1, s[8:11], s23 offen offset:{1024*i} sc1", "epi")
    for s in range(10):
        g.iter(a, s, s == 0, 10)
        if s == 4: xid_load(a, WS_FL1, 129)
        if s == 7:
            for i in range(4): a.lg(f"ds_read_b128 v[{G+4*i}:{G+4*i+3}], v128 offset:{32*i}")
        if s == 8:
            a.wait(vm=["epi"])
            xid_decide(a, 129)
            a(f"v_mov_b32 v{ST}, 0\nv_mov_b32 v{ST+1}, 0")
    proj_epilogue(a, g, False, G, XR, T, ST, X1K, None)
    stats_store(a, ST, 29, "sc1")
    handoff_publish(a, WS_FL1)
    SD, U, T, RR, NM, C1, ST = 88, 40, 72, 112, 113, 114, 116
    h.addr(a)
    stats_base(a, 22, WS_ST1); stats_base(a, 30, WS_ST2)
    a(f"s_add_u32 s29, s29, {WS_ST2 - WS_ST1}")
    a(f"s_lshl_b32 s3, s15, 8\ns_add_u32 s3, s3, {UTL}\nv_lshlrev_b32 v115, 5, v3\nv_add_u32 v115, s3, v115")
    a(f"s_mov_b32 s28, {f32(GC2)}\nv_mov_b32 v{C1}, {f32(GC1)}")
    h.start(a)
    stamp(a, 6)
    stats_load(a, SD, 22, "ln", AFL)
    for s in range(20):
        h.iter(a, s, s == 0, 20)
        if s == 8:
            a.wait(vm=["ln"])
            stats_finish(a, SD, 640, RR, NM)
    stamp(a, 7)
    def ut_reads(n):
        for u in range(2):
            for hf in range(2):
                for k in range(2):
                    r = U + 16*u + 8*hf + 4*k
                    a(f"ds_read_b128 v[{r}:{r+3}], v115 offset:{n*768 + u*128 + hf*64 + k*16}")
    def affine(n):
        A = h.ACC + 16*n
        for i in range(16): a(f"v_fma_f32 v{U+2*i+1}, v{U+2*i}, v{NM}, v{U+2*i+1}")
        for i in range(16): a(f"v_fma_f32 v{A+i}, v{A+i}, v{RR}, v{U+2*i+1}")
    Z2, Z1 = h.ACC, h.ACC + 16
    a("s_setprio 1")
    ut_reads(0)
    a("s_waitcnt lgkmcnt(0)\ns_nop 2")
    affine(0)
    ut_reads(1)
    gelu(a, list(range(Z2, Z2+16)), T, C1)
    a(f"v_mov_b32 v{ST}, 0\nv_mov_b32 v{ST+1}, 0")
    for i in range(16): a(f"v_add_f32 v{ST}, v{ST}, v{Z2+i}\nv_fmac_f32 v{ST+1}, v{Z2+i}, v{Z2+i}")
    stats_store(a, ST, 29, "sc1")
    a("s_setprio 0")
    a("s_waitcnt lgkmcnt(0)")
    affine(1)
    gelu(a, list(range(Z1, Z1+16)), T, C1)
    stats_load(a, SD, 30, "st2", "sc1")
    for i in range(8): a(f"v_cvt_pk_bf16_f32 v{Z1K+i}, v{Z1+2*i}, v{Z1+2*i+1}")
    a(f"s_mul_i32 s6, s17, {32*ZROW}\ns_lshl_b32 s7, s15, 6\ns_add_u32 s6, s6, s7\ns_add_u32 s6, s6, {PATCH}\nv_mul_u32_u24 v4, {ZROW}, v2\nv_lshl_add_u32 v4, v3, 3, v4\nv_add_u32 v4, s6, v4")
    a(f"v_bfe_u32 v5, v0, 2, 2\nv_lshl_add_u32 v5, v3, 3, v5\nv_mul_u32_u24 v5, {ZROW}, v5\nv_and_b32 v6, 3, v0\nv_lshl_add_u32 v5, v6, 3, v5\nv_bfe_u32 v6, v0, 4, 1\nv_lshl_add_u32 v5, v6, 5, v5\nv_add_u32 v5, s6, v5")
    a(f"s_lshl_b32 s6, s13, 7\ns_lshl_b32 s7, s16, 1\ns_add_u32 s6, s6, s7\ns_mul_i32 s6, s6, 3\ns_add_u32 s6, s6, s15\ns_lshl_b32 s6, s6, 10\ns_add_u32 s26, s6, {WS_Z2T:#x}")
    a.wait(vm=["st2"])
    a("s_mov_b32 s29, 0x4000")
    lp, lok = a.label("poll"), a.label("ok")
    a(f"{lp}:")
    a(f"v_or_b32 v{ST}, v{SD+1}, v{SD+3}")
    for i in range(2, 12): a(f"v_or_b32 v{ST}, v{ST}, v{SD+1+2*i}")
    a(f"v_cmp_gt_i32 vcc, 0, v{ST}\ns_sub_u32 s29, s29, 1\ns_cbranch_scc1 {lok}\ns_cbranch_vccz {lok}")
    stats_load(a, SD, 30, "st2", "sc1")
    a(f"s_waitcnt vmcnt(0)\ns_branch {lp}\n{lok}:")
    stats_finish(a, SD, 768, RR, NM)
    for i in range(16): a(f"v_fma_f32 v{Z2+i}, v{Z2+i}, v{RR}, v{NM}")
    for i in range(8): a(f"v_cvt_pk_bf16_f32 v{T+8+i}, v{Z2+2*i}, v{Z2+2*i+1}")
    for i in range(4): a(f"ds_write_b64 v4, v[{T+8+2*i}:{T+9+2*i}] offset:{16*i}")
    a("s_waitcnt lgkmcnt(0)")
    for p in range(2):
        a(f"ds_read_b64_tr_b16 v[{U+4*p}:{U+4*p+1}], v5 offset:{16*p*ZROW}\nds_read_b64_tr_b16 v[{U+4*p+2}:{U+4*p+3}], v5 offset:{(16*p+4)*ZROW}")
    a("s_waitcnt lgkmcnt(0)")
    for p in range(2): a(f"buffer_store_dwordx4 v[{U+4*p}:{U+4*p+3}], v1, s[8:11], s26 offen offset:{3072*p} sc1")
    a(f"s_lshl_b32 s6, s13, 5\ns_add_u32 s6, s6, s12\ns_lshl_b32 s6, s6, 7\ns_add_u32 s6, s6, {FG_Z2:#x}")
    wg_flag(a, CTL + 68, 6, 6)
    a("s_barrier")
    stamp(a, 8)
    a.vmq = []; a.lgq = []
    B, T, G = 96, 100, 112
    pc.addr(a)
    unit_off6(a, 29, 6, WS_Y)
    flag_addr(a, WS_FL2)
    a(f"s_load_dwordx2 s[32:33], s[0:1], {KA['b_sp']}\ns_load_dwordx2 s[44:45], s[0:1], {KA['out']}\nv_lshlrev_b32 v97, 1, v2\ns_lshl_b32 s6, s16, 6\ns_waitcnt lgkmcnt(0)")
    srd(a, 24, 32, 4096)
    a(f"buffer_load_ushort v{B}, v97, s[24:27], s6 offen")
    for i in range(16): a(f"v_mov_b32 v{pc.ACC+i}, 0")
    pc.start(a)
    stamp(a, 9)
    a("s_mov_b32 s30, 5\nL_k_cloop:")
    for s in range(6): pc.iter(a, s, False, 32)
    a("s_sub_u32 s30, s30, 1\ns_cmp_lg_u32 s30, 0\ns_cbranch_scc1 L_k_cloop")
    a.lgq = [(t[0], t[1] + 24, t[2]) if isinstance(t, tuple) else t for t in a.lgq]
    a(f"s_waitcnt vmcnt(0)\nv_lshlrev_b32 v{B}, 16, v{B}")
    for s in range(30, 32): pc.iter(a, s, False, 32)
    stamp(a, 10)
    R = pc.ACC
    a("s_nop 11")
    for i in range(2):
        for d in range(4):
            z = Z1K + 4*i + d; r = R + 8*i + 2*d; t = T + 2*(d % 2)
            a(f"v_add_f32 v{r}, v{r}, v{B}\nv_add_f32 v{r+1}, v{r+1}, v{B}\nv_lshlrev_b32 v{t}, 16, v{z}\nv_and_b32 v{t+1}, 0xffff0000, v{z}\nv_mul_f32 v{r}, v{r}, v{t}\nv_mul_f32 v{r+1}, v{r+1}, v{t+1}\nv_cvt_pk_bf16_f32 v{T+4+4*i+d}, v{r}, v{r+1}")
        hstore(a, f"buffer_store_dwordx4 v[{T+4+4*i}:{T+7+4*i}], v1, s[8:11], s29 offen offset:{1024*i}")
    handoff_publish(a, WS_FL2)
    if not RA_D: a("s_barrier")
    srd(a, 24, 44, 2048 * 1280)
    a(f"s_lshl_b32 s3, s15, 7\ns_add_u32 s3, s3, {GB_LDS}\nv_lshlrev_b32 v136, 4, v3\nv_add_u32 v136, s3, v136")
    a(f"v_mul_u32_u24 v137, 1280, v2\nv_lshl_add_u32 v137, v3, 4, v137\ns_mul_i32 s28, s16, {32*1280}\ns_mul_i32 s6, s13, 160\ns_add_u32 s28, s28, s6\ns_lshl_b32 s6, s15, 6\ns_add_u32 s28, s28, s6")
    pd.start(a)
    for s in range(12):
        pd.iter(a, s, s == 0, 12)
        if s == 9:
            for i in range(4): a.lg(f"ds_read_b128 v[{G+4*i}:{G+4*i+3}], v136 offset:{32*i}")
    proj_epilogue(a, pd, True, G, X1K, 100, None, 104, 137)
    a("s_branch L_k_end")

def kmain():
    K2T = os.environ.get("X_K2T"); SYNC = os.environ.get("X_SYNC", "bar")
    a = K("k"); GA = G6(4, 1, 3); GB = G6(2, 2, 13); GC = G6(4, 1, 33); GD = G6(4, 1, 65)
    p01(a, "L_k_textend")
    SA = [(8, 24), (40, 56)]; OO = [72, 88]; PP = [104, 112]; QQ1 = [120, 128]; QQ2 = [124, 132]
    KA_, KB_, V1, V2 = 136, 140, 144, 148
    VA, VB, VN, VNB, DUM, OA, CA = 4, 5, 6, 152, 153, 154, 160
    NB = 6
    FLAG = NB * KVCH
    a("L_k_att:")
    a.vmq = []; a.lgq = []
    a("v_lshrrev_b32 v7, 2, v1")
    a("s_lshr_b32 s15, s14, 1\ns_and_b32 s16, s14, 1\ns_lshl_b32 s16, s16, 1\ns_lshl_b32 s17, s12, 1\ns_add_u32 s17, s17, s15")
    a(f"s_mul_i32 s3, s15, 5120\ns_add_u32 s3, s3, {QL}\ns_lshl_b32 s6, s16, 2\ns_add_u32 s6, s6, s3\nv_add_u32 v9, s6, v1\ns_lshl_b32 s6, s16, 10\ns_add_u32 s3, s3, s6\nv_add_u32 v8, s3, v1")
    for X in range(2):
        a(f"ds_read_b128 v[{QQ1[X]}:{QQ1[X]+3}], v8 offset:{1024*X}\nds_read_b32 v{QQ2[X]}, v9 offset:{4096+4*X}")
    def qk1(X, S): return f"v_mfma_f32_32x32x16_bf16 v[{S}:{S+15}], v[{KB_}:{KB_+3}], v[{QQ2[X]}:{QQ2[X]+3}], 0"
    def qk2(X, S): return f"v_mfma_f32_32x32x16_bf16 v[{S}:{S+15}], v[{KA_}:{KA_+3}], v[{QQ1[X]}:{QQ1[X]+3}], v[{S}:{S+15}]"
    def pv(X, V, P): return f"v_mfma_f32_32x32x16_bf16 v[{OO[X]}:{OO[X]+15}], v[{V}:{V+3}], v[{P}:{P+3}], v[{OO[X]}:{OO[X]+15}]"
    def rKA(t, va): return f"ds_read_b128 v[{KA_}:{KA_+3}], v{va} offset:{t*1024}"
    def rKB(t, vb): return f"ds_read_b32 v{KB_}, v{vb} offset:{24576+t*256}"
    def rV(t, p, va): return f"ds_read_b128 v[{(V1, V2)[p]}:{(V1, V2)[p]+3}], v{va} offset:{8192+t*2048+p*1024}"
    def scores():
        for X in range(2): a(qk1(X, SA[X][0]))
        for X in range(2): a(qk2(X, SA[X][0]))
    def max_reduce():
        for X in range(2):
            for i in range(0, 16, 2): a(f"v_max3_f32 v{PP[X]}, v{SA[X][0]+i}, v{SA[X][0]+i+1}, v{PP[X]}")
    def finish_max():
        a("v_cmp_eq_u32 vcc, 0, v3")
        for X in range(2):
            M = PP[X]
            a(f"v_mov_b32 v{M+1}, v{M}\ns_nop 1\nv_permlane32_swap_b32 v{M}, v{M+1}\ns_nop 1\nv_max_f32 v{M}, v{M}, v{M+1}")
            a(f"v_and_b32 v{M+1}, 0xffff0000, v{M}\nv_sub_f32 v{M+2}, v{M}, v{M+1}\nv_and_b32 v{M+3}, 0xffff0000, v{M+2}\nv_sub_f32 v{M+2}, v{M+2}, v{M+3}")
            a(f"v_lshrrev_b32 v{M+1}, 16, v{M+1}\nv_or_b32 v{M+1}, v{M+1}, v{M+3}\nv_lshrrev_b32 v{M+2}, 16, v{M+2}")
            a(f"v_cndmask_b32 v{QQ2[X]+1}, 0, v{M+1}, vcc\nv_cndmask_b32 v{QQ2[X]+2}, 0, v{M+2}, vcc")
    def reset_max():
        for X in range(2): a(f"v_mov_b32 v{QQ2[X]+1}, 0\nv_mov_b32 v{QQ2[X]+2}, 0\nv_mov_b32 v{PP[X]}, 0xff800000")
    a(f"s_lshl_b32 s38, s12, 8\ns_lshl_b32 s6, s13, 2\ns_add_u32 s6, s6, s14\ns_lshl_b32 s6, s6, 2\ns_add_u32 s38, s38, s6\ns_add_u32 s38, s38, {WS_FL0+32:#x}\ns_mov_b32 s39, 0\ns_lshl_b32 s51, s14, 2\ns_add_u32 s51, s51, {FLAG}")
    reset_max()
    for r in (QQ2[0]+3, QQ2[1]+3, KB_+3): a(f"v_mov_b32 v{r}, 0")
    for r in (KB_+1, KB_+2): a(f"v_mov_b32 v{r}, 0xbf80bf80")
    def main_init():
        a(f"s_mov_b32 s24, 0\ns_mov_b32 s25, {KVCH}\nv_mov_b32 v{VNB}, {FLAG+68}\nv_mov_b32 v{VA}, v1\nv_mov_b32 v{VN}, v1\nv_mov_b32 v{VB}, v7")
        for X in range(2):
            for i in range(16): a(f"v_mov_b32 v{OO[X]+i}, 0")
            for i in range(4): a(f"v_mov_b32 v{SA[X][1]+12+i}, 0")
        for i in range(4): a(f"v_mov_b32 v{V2+i}, 0")
    main_init()
    a(f"s_mul_i32 s6, s13, 20\ns_mul_i32 s7, s16, 5\ns_add_u32 s6, s6, s7\ns_mul_i32 s22, s17, {40*1024}\ns_add_u32 s22, s22, {WS_O:#x}")
    for X in range(2):
        for i, g in enumerate((0, 2, 4)):
            a(f"v_add_u32 v8, s6, v3\nv_add_u32 v8, {5*X+g}, v8" if g < 4 else f"v_mov_b32 v8, s6\nv_add_u32 v8, {5*X+4}, v8")
            a(f"v_lshrrev_b32 v9, 2, v8\nv_lshlrev_b32 v9, 10, v9\nv_and_b32 v10, 1, v8\nv_lshl_add_u32 v9, v10, 9, v9\nv_bfe_u32 v10, v8, 1, 1\nv_lshl_add_u32 v9, v10, 3, v9\nv_lshl_add_u32 v{OA+3*X+i}, v2, 4, v9")
    a(f"v_mov_b32 v{CA}, {FLAG+32}\nv_mov_b32 v{CA+2}, 0\nv_mov_b32 v{CA+3}, 0\nv_mov_b32 v{CA+1}, 1")
    a("s_waitcnt vmcnt(0) lgkmcnt(0)\ns_barrier")
    stamp(a, 3)
    a(rKA(0, 1)); a(rKB(0, 7)); a("s_waitcnt lgkmcnt(0)")
    scores()
    a("s_nop 10")
    max_reduce()
    finish_max()
    a("L_k_main:")
    for X in range(2):
        for i in range(2): a(f"v_mov_b32 v{PP[X]+4+i}, 0")
    scores()
    a(rKB(1, VB)); a(f"ds_read_b32 v{DUM}, v{VB}"); a(rKA(1, VA)); a(rV(0, 0, VA))
    a("s_nop 5")
    slow = []
    a("L_k_loop:")
    for t in range(8):
        kt, vt = (t + 2) % 8, (t + 1) % 8
        if PROF and os.environ.get("X_GT"):
            if t == 0: a("s_memtime s[80:81]")
            if t == 3: a("s_lshl_b32 m0, s24, 1\ns_nop 0\ns_movreld_b32 s56, s80")
        for gi in range(4):
            for X in range(2):
                S, Sp = (SA[X][0], SA[X][1]) if t % 2 == 0 else (SA[X][1], SA[X][0])
                P = PP[X]
                cv, mf, rd = [([(6, Sp+12), (7, Sp+14)], qk1(X, Sp), rKB(kt, VB)),
                              ([(0, S), (1, S+2)], pv(X, V2, P+4), rV(t, 1, VN)),
                              ([(2, S+4), (3, S+6)], qk2(X, Sp), rKA(kt, VA)),
                              ([(4, S+8), (5, S+10)], pv(X, V1, P), rV(vt, 0, VN))][gi]
                for d, r in cv: a(f"v_cvt_pk_bf16_f32 v{P+d}, v{r}, v{r+1}")
                if gi % 2 == 0 and X == 0: a("s_waitcnt lgkmcnt(2)")
                a(mf)
                if X == 1: a(rd)
                if X == 0 and (t, gi) == (5, 0):
                    ls, l2, l5 = a.label("bs"), a.label("g2"), a.label("g5")
                    a(f"s_cmp_eq_u32 s24, 5\ns_cselect_b32 s26, {-5*KVCH}, s25\ns_bitcmp1_b32 0x67, s24\ns_cbranch_scc0 {ls}\ns_bitcmp1_b32 0x44, s24\ns_cbranch_scc1 {l2}\ns_cmp_eq_u32 s24, 5\ns_cbranch_scc1 {l5}\ns_barrier\ns_branch {ls}")
                    a(f"{l2}:\ns_mov_b64 exec, 1\nds_add_u32 v{CA}, v{CA+1}\ns_mov_b64 exec, -1\ns_branch {ls}")
                    a(f"{l5}:\nds_read_b32 v{DUM}, v{CA} offset:4\ns_waitcnt lgkmcnt(0)\nv_readfirstlane_b32 s3, v{DUM}\ns_cmp_lt_u32 s3, 4\ns_cbranch_scc1 {l5}")
                    xid_load(a, WS_FL1, VNB)
                    a(f"{ls}:")
                if X == 0 and (t, gi) == (6, 0): a(f"v_add_u32 v{VB}, s26, v{VB}\nv_add_u32 v{VA}, s26, v{VA}")
                if X == 0 and (t, gi) == (7, 2): a(f"v_add_u32 v{VN}, s26, v{VN}")
                for i in range(4): a(f"v_exp_f32 v{S+4*gi+i}, v{S+4*gi+i}")
    a("s_add_u32 s24, s24, 1\ns_cmp_lt_u32 s24, 8\ns_cbranch_scc1 L_k_loop")
    for X in range(2):
        a(f"v_cvt_pk_bf16_f32 v{PP[X]+6}, v{SA[X][1]+12}, v{SA[X][1]+13}\nv_cvt_pk_bf16_f32 v{PP[X]+7}, v{SA[X][1]+14}, v{SA[X][1]+15}")
    a("s_waitcnt vmcnt(0)")
    xid_decide(a, VNB)
    a("s_waitcnt lgkmcnt(0)\nv_cmp_eq_u32 vcc, 0, v3")
    for X in range(2): a(pv(X, V2, PP[X]+4))
    a(f"v_mov_b32 v{KA_}, {f32(2.0**30)}\nv_mov_b32 v{KA_+1}, {f32(2.0**-30)}\ns_mov_b64 s[28:29], 0\nv_mov_b32 v{V1+1}, s51\ns_nop 7")
    if not os.environ.get("X_GT"): stamp(a, 4)
    a("s_cmp_eq_u32 s39, 1\ns_cbranch_scc1 L_k_rb")
    for X in range(2):
        O, T, L = OO[X], SA[X][0], PP[X]
        a(f"v_cndmask_b32 v{L}, v{O}, v{O+4}, vcc\nv_rcp_f32 v{L+1}, v{L}")
        a(f"v_cmp_nle_f32 s[30:31], v{L}, v{KA_}\ns_or_b64 s[28:29], s[28:29], s[30:31]\nv_cmp_nge_f32 s[30:31], v{L}, v{KA_+1}\ns_or_b64 s[28:29], s[28:29], s[30:31]")
        for i, r in enumerate((8, 9, 10, 11, 12, 13, 14, 15, 0, 1, 2, 3)): a(f"v_mul_f32 v{T+6+i}, v{O+r}, v{L+1}")
        for d in range(6): a(f"v_cvt_pk_bf16_f32 v{T+d}, v{T+6+2*d}, v{T+7+2*d}")
        hstore(a, f"buffer_store_dwordx2 v[{T}:{T+1}], v{OA+3*X}, s[8:11], s22 offen")
        hstore(a, f"buffer_store_dwordx2 v[{T+2}:{T+3}], v{OA+3*X+1}, s[8:11], s22 offen")
        a("s_mov_b32 exec_hi, 0")
        hstore(a, f"buffer_store_dwordx2 v[{T+4}:{T+5}], v{OA+3*X+2}, s[8:11], s22 offen")
        a("s_mov_b32 exec_hi, -1")
    a(f"s_cmp_eq_u32 s27, 1\ns_cbranch_scc1 L_k_pub")
    lbad = a.label("bad")
    a(f"s_cmp_lg_u64 s[28:29], 0\ns_cselect_b32 s3, 1, 0\nv_mov_b32 v{V1}, s3\nds_write_b32 v{V1+1}, v{V1}\ns_cbranch_scc1 {lbad}")
    handoff_publish(a, WS_FL0)
    a(f"s_mov_b32 s39, 1\n{lbad}:\ns_waitcnt lgkmcnt(0)")
    def vote(lend):
        a(f"s_barrier\nv_mov_b32 v44, {FLAG}\nds_read_b128 v[40:43], v44\ns_waitcnt lgkmcnt(0)")
        for i in range(1, 4): a(f"v_or_b32 v40, v40, v{40+i}")
        a(f"s_nop 0\nv_readfirstlane_b32 s3, v40\ns_cmp_eq_u32 s3, {XCMP}\ns_cbranch_scc1 {lend}\ns_mov_b32 s27, 1")
    vote("L_k_pa")
    reset_max()
    a("s_mov_b32 s24, 0")
    a("L_k_maxloop:")
    a("s_barrier\ns_barrier")
    for t in range(8):
        a(rKA(t, 1)); a(rKB(t, 7)); a("s_waitcnt lgkmcnt(0)")
        scores()
        a("s_nop 10")
        max_reduce()
    a("s_add_u32 s24, s24, 1\ns_cmp_lt_u32 s24, 8\ns_cbranch_scc1 L_k_maxloop")
    finish_max()
    main_init()
    a(f"s_barrier\nds_write_b64 v{CA}, v[{CA+2}:{CA+3}]\ns_waitcnt lgkmcnt(0)\ns_barrier")
    a(rKA(0, 1)); a(rKB(0, 7)); a("s_waitcnt lgkmcnt(0)")
    a("s_branch L_k_main")
    for x in slow: a(x)
    a("L_k_pub:")
    handoff_publish(a, WS_FL0)
    a("L_k_rb:\ns_barrier")
    a("L_k_pa:")
    phase_ab_compute(a, GA, GB, GC, GD)
    a("L_k_idle:")
    a("s_barrier\ns_barrier\ns_barrier")
    a("v_lshlrev_b32 v4, 3, v1")
    def touch(srdn, base, per_rb, per_nb, nbytes):
        a(f"s_mul_i32 s28, s12, {per_rb}\ns_mul_i32 s3, s13, {per_nb}\ns_add_u32 s28, s28, s3\ns_add_u32 s28, s28, {base:#x}")
        n = nbytes // 128
        while n > 0:
            m = min(n, 64)
            if m < 64: a(f"s_mov_b32 exec_lo, {(1 << min(m, 32)) - 1:#x}\ns_mov_b32 exec_hi, {(1 << max(m - 32, 0)) - 1:#x}")
            a(f"buffer_load_dword v8, v4, s[{srdn}:{srdn+3}], s28 offen")
            n -= m
            if n > 0: a("s_add_u32 s28, s28, 8192")
        a("s_mov_b64 exec, -1")
    lt1, lt2 = a.label("pt"), a.label("pt")
    a(f"s_cmp_eq_u32 s14, 5\ns_cbranch_scc1 {lt1}")
    touch(8, WS_O, 81920, 10240, 10240); touch(8, WS_X1, 81920, 10240, 10240); touch(8, WS_ST1, 12288, 1536, 1536); touch(8, WS_ST2, 12288, 1536, 1536)
    a(f"s_branch {lt2}\n{lt1}:")
    touch(8, WS_Y, 98304, 12288, 12288)
    srd(a, 40, 44, 2048 * 1280)
    touch(40, 0, 81920, 10240, 10240)
    a(f"{lt2}:\ns_waitcnt vmcnt(0)")
    vote("L_k_pa")
    a("s_mov_b32 s24, 21\nL_k_idleb:\ns_barrier\ns_sub_u32 s24, s24, 1\ns_cmp_lg_u32 s24, 0\ns_cbranch_scc1 L_k_idleb\ns_branch L_k_pa")
    a("L_k_helper:")
    a(f"s_setprio {os.environ.get('X_HPRIO', '2')}")
    a(f"s_lshl_b32 s47, s15, 10\ns_add_u32 s46, s47, {WS_KV:#x}\ns_mov_b32 s30, {FG_KV:#x}")
    a("v_lshlrev_b32 v4, 3, v1")
    wg_poll(a, CTL + 60, lambda: poll_lines(a, 30, 128))
    stamp(a, 2)
    THR = int(os.environ.get("X_THR", "9"))
    def dma(goff, loff):
        ld = a.label("d")
        for i in range(7):
            if i == 6: a(f"s_cmp_ge_u32 s15, 2\ns_cbranch_scc1 {ld}")
            if goff and i > THR: a(f"s_waitcnt vmcnt({THR})")
            a(f"s_add_u32 m0, s47, {loff + i*4096}\ns_add_u32 s48, s46, {goff + i*4096}\nbuffer_load_dwordx4 v1, s[8:11], s48 offen sc1 lds")
        a(f"{ld}:")
    a("L_k_hmain:")
    dma(0, 0)
    a("s_waitcnt vmcnt(0)\ns_barrier")
    if os.environ.get("X_K2T") == "1": a("s_branch L_k_end")
    a(f"v_mov_b32 v6, {FLAG+32}\nv_mov_b32 v7, 1")
    dma(KVCH, KVCH); dma(2*KVCH, 2*KVCH)
    a("s_waitcnt vmcnt(0)\ns_barrier")
    for g in (3, 4, 5): dma(g*KVCH, g*KVCH)
    a("s_waitcnt vmcnt(0)\ns_barrier")
    lns = a.label("noside")
    if os.environ.get("X_K2T") == "2": a("s_branch L_k_end")
    a(f"s_cmp_lg_u32 s27, 0\ns_cbranch_scc1 {lns}")
    a(f"v_lshlrev_b32 v4, 3, v1\ns_mov_b32 s30, {FG_MOD:#x}")
    wg_poll(a, CTL + 40, lambda: poll_lines(a, 30, 120))
    pack_weights(a)
    a(f"s_lshl_b32 s6, s2, 7\ns_add_u32 s6, s6, {FG_PACK:#x}")
    wg_flag(a, CTL + 44, 4, 6)
    a(f"{lns}:")
    lw = a.label("wdone")
    a(f"v_mov_b32 v6, {FLAG+32}\nv_mov_b32 v7, 1\n{lw}:\nds_read_b32 v8, v6\ns_waitcnt lgkmcnt(0)\nv_readfirstlane_b32 s3, v8\ns_cmp_ge_u32 s3, 4\ns_cbranch_scc1 {lw}x\ns_sleep 8\ns_branch {lw}\n{lw}x:")
    dma(6*KVCH, 0); dma(7*KVCH, KVCH)
    a("s_waitcnt vmcnt(0)\ns_mov_b64 exec, 1\nds_add_u32 v6, v7 offset:4\ns_mov_b64 exec, -1\ns_waitcnt lgkmcnt(0)")
    stamp(a, 4)
    a(f"s_cmp_eq_u32 s27, 1\ns_cbranch_scc1 L_k_ra")
    srd(a, 40, 34, 2048 * 4096)
    a("s_lshl_b32 s17, s12, 1\ns_lshr_b32 s3, s15, 1\ns_add_u32 s17, s17, s3\ns_lshl_b32 s16, s13, 4\ns_and_b32 s3, s15, 1\ns_lshl_b32 s3, s3, 3\ns_add_u32 s16, s16, s3")
    a("s_lshl_b32 s6, s17, 17\ns_lshl_b32 s7, s16, 5\ns_add_u32 s6, s6, s7\nv_lshlrev_b32 v4, 12, v2\nv_lshl_add_u32 v4, v3, 4, v4")
    for i in range(8): a(f"buffer_load_dwordx4 v[{8+4*i}:{11+4*i}], v4, s[40:43], s6 offen offset:{32*i} nt")
    a(f"s_lshl_b32 s6, s17, 7\ns_add_u32 s6, s6, s16\ns_lshl_b32 s6, s6, 10\ns_add_u32 s6, s6, {WS_WSP:#x}")
    xid_load(a, WS_FL1, 40)
    a("s_waitcnt vmcnt(0)")
    xid_decide(a, 40)
    for i in range(8):
        hstore(a, f"buffer_store_dwordx4 v[{8+4*i}:{11+4*i}], v1, s[8:11], s6 offen offset:{(i%4)*1024}")
        if i == 3: a("s_add_u32 s6, s6, 4096")
    stamp(a, 5)
    a(f"s_mov_b32 s30, {FG_PACK:#x}\nv_lshlrev_b32 v4, 3, v1")
    wg_poll(a, CTL + 48, lambda: poll_lines(a, 30, 256))
    a(f"s_lshl_b32 s3, s12, 8\ns_lshl_b32 s6, s13, 2\ns_add_u32 s6, s6, s15\ns_lshl_b32 s6, s6, 2\ns_add_u32 s3, s3, s6\ns_add_u32 s3, s3, {WS_FL3 + 6144 - 6144 + 0x2000:#x}\nv_mov_b32 v8, 0\nv_mov_b32 v9, s50\ns_mov_b64 exec, 1")
    hstore(a, "buffer_store_dword v9, v8, s[8:11], s3 offen")
    a("s_mov_b64 exec, -1")
    if os.environ.get("X_PFA", "2") == "2": prefetch(a, 8, WS_WIN, 1920 * 1024, 4, 15, 8, 4, 28)
    stamp(a, 6)
    a("L_k_ra:")
    a("s_mul_i32 s20, s15, 3072\ns_lshl_b32 s16, s12, 1\ns_lshr_b32 s3, s15, 1\ns_add_u32 s16, s16, s3")
    GA.lsetup(a, WS_O, 40, WS_WO, 18, 19, 21, AFL)
    GB.lsetup(a, WS_X1, 40, WS_WIN, 22, 23, 26, AFL)
    lw2 = a.label("w6")
    a(f"v_mov_b32 v6, {FLAG+32}\n{lw2}:\nds_read_b32 v11, v6\ns_waitcnt lgkmcnt(0)\nv_readfirstlane_b32 s3, v11\ns_cmp_ge_u32 s3, 8\ns_cbranch_scc1 {lw2}x\ns_sleep 8\ns_branch {lw2}\n{lw2}x:")
    a.vmq = []
    a(f"s_mul_i32 s6, s13, 320\ns_add_u32 s6, s6, {WS_MOD + 5120}")
    dma1(a, PAR6, 6, "par")
    a(f"s_add_u32 s6, s6, {12800 - 5120}")
    dma1(a, GB_LDS, 6, "par")
    a(f"s_mul_i32 s6, s13, 1536\ns_lshl_b32 s7, s15, 9\ns_add_u32 s6, s6, s7\ns_add_u32 s6, s6, {WS_UTP:#x}\nv_lshrrev_b32 v10, 1, v1")
    for i in range(10):
        a.vm(f"buffer_load_dwordx2 v[{12+2*i}:{13+2*i}], v10, s[8:11], s6 offen", "ut")
        a(f"s_add_u32 s6, s6, {1536*8}")
    for s in range(3): GA.issue_w(s)
    lu = a.label("nou")
    a.wait(vm=["ut"])
    a(f"s_cmp_eq_u32 s15, 3\ns_cbranch_scc1 {lu}")
    for i in range(1, 10): a(f"v_add_f32 v12, v12, v{12+2*i}\nv_add_f32 v13, v13, v{13+2*i}")
    a(f"s_lshl_b32 s7, s15, 9\ns_add_u32 s7, s7, {PAR6+1024}\nv_add_u32 v10, s7, v10\nds_write_b64 v10, v[12:13]\ns_waitcnt lgkmcnt(0)\n{lu}:")
    stamp(a, 7)
    a("s_cmp_eq_u32 s27, 1\ns_cbranch_scc1 L_k_wend")
    vote("L_k_la")
    a("s_waitcnt vmcnt(0)\ns_mov_b32 s24, 0")
    a("L_k_hmax:")
    a("s_barrier")
    dma(0, 0)
    a(f"s_add_u32 s46, s46, {KVCH}\ns_waitcnt vmcnt(0)\ns_barrier\ns_add_u32 s24, s24, 1\ns_cmp_lt_u32 s24, 8\ns_cbranch_scc1 L_k_hmax")
    a(f"s_add_u32 s46, s47, {WS_KV:#x}\ns_barrier\ns_branch L_k_hmain")
    a("L_k_wend:\ns_barrier")
    a("L_k_la:")
    GA.issue_w(3)
    handoff_wait(a, WS_FL0, 32)
    stamp(a, 8)
    for s in range(DEP6): GA.issue_a(s)
    for s in range(10): GA.lstep(s, 10, GB.issue_w)
    handoff_wait(a, WS_FL3 + 0x2000 - 32, 32)
    handoff_wait(a, WS_FL1, 48)
    for s in range(DEP6): GB.issue_a(s)
    GC.lsetup(a, WS_WSP, 128, WS_Z2T, 18, 19, 21, AFL, AFL)
    for s in range(20): GB.lstep(s, 20)
    a("s_barrier")
    for s in range(DEP6): GC.issue_a(s)
    GD.lsetup(a, WS_Y, 48, WS_WOUT, 22, 23, 26, AFL)
    a(f"s_lshl_b32 s30, s13, 12\ns_add_u32 s30, s30, {FG_Z2:#x}\nv_lshlrev_b32 v4, 7, v2")
    wg_poll(a, CTL + 52, lambda: poll_lines(a, 30, 32))
    stamp(a, 9)
    for s in range(DEP6): GC.issue_w(s)
    for s in range(2): GC.lstep(s, 32)
    a("s_mov_b32 s30, 4\nL_k_lloop:")
    for s in range(2, 8): GC.lstep(s, 32)
    a("s_sub_u32 s30, s30, 1\ns_cmp_lg_u32 s30, 0\ns_cbranch_scc1 L_k_lloop")
    a.vmq = [(t[0], t[1] + 18) if isinstance(t, tuple) else t for t in a.vmq]
    if RA_D:
        for s in range(26, 32): GC.lstep(s, 32, GD.issue_w)
    else:
        for s in range(26, 32): GC.lstep(s, 32)
        a("s_barrier")
        for s in range(DEP6): GD.issue_w(s)
    handoff_wait(a, WS_FL2, 48)
    for s in range(DEP6): GD.issue_a(s)
    for s in range(12): GD.lstep(s, 12)
    end(a)
    a("L_k_textend:")
    finish(a, 256, 640, FLAG + 320, 168)


def pack_weights(a):
    LO, HI, PC = 8, 24, 40
    lo_, ld = a.label("pko"), a.label("pkd")
    a(f"s_lshl_b32 s28, s2, 2\ns_add_u32 s28, s28, s15\nv_mul_u32_u24 v5, {4*3072}, v3\ns_cmp_ge_u32 s28, 480\ns_cbranch_scc1 {lo_}")
    srd(a, 40, 32, 640 * 3072)
    divmod_s(a, 16, 17, 28, 10, 3)
    divmod_s(a, 18, 19, 16, 6, 3)
    a("s_mul_i32 s6, s18, 96\ns_lshl_b32 s7, s19, 5\ns_add_u32 s6, s6, s7\ns_cmp_lt_u32 s19, 3\ns_cselect_b32 s7, 864, 0\ns_add_u32 s6, s6, s7\ns_sub_u32 s6, s6, 96")
    a(f"v_add_lshl_u32 v4, v2, s6, 1\nv_add_u32 v4, v4, v5\ns_mul_i32 s22, s17, {64*3072}")
    for q in range(4):
        loads8(a, 40, 4, LO + 4*q, HI + 4*q, 22, [16*q + e for e in E_PERM], 3072, 7)
    a(f"v_lshlrev_b32 v6, 4, v3\ns_lshl_b32 s7, s17, 8\ns_add_u32 s7, s7, {WS_MOD + 7680}")
    for q in range(4):
        for arr in range(2):
            for hf in range(2):
                P = PC + 16*q + 8*arr + 4*hf
                a(f"buffer_load_dwordx4 v[{P}:{P+3}], v6, s[8:11], s7 offen offset:{arr*2560 + 64*q + 32*hf} sc1")
    a("v_mov_b32 v6, 0\nv_mov_b32 v7, 0")
    a(f"s_mul_i32 s22, s18, 40\ns_lshl_b32 s7, s17, 2\ns_add_u32 s22, s22, s7\ns_mul_i32 s22, s22, 6\ns_add_u32 s22, s22, s19\ns_lshl_b32 s22, s22, 10\ns_add_u32 s22, s22, {WS_WIN:#x}\ns_waitcnt vmcnt(0)")
    for q in range(4):
        for d in range(4):
            l, h, P = LO + 4*q + d, HI + 4*q + d, PC + 16*q
            a(f"v_lshlrev_b32 v{l}, 16, v{l}\nv_lshlrev_b32 v{h}, 16, v{h}\nv_fmac_f32 v7, v{l}, v{P+2*d}\nv_fmac_f32 v7, v{h}, v{P+2*d+1}\nv_mul_f32 v{l}, v{l}, v{P+8+2*d}\nv_mul_f32 v{h}, v{h}, v{P+9+2*d}")
            a(f"v_cvt_pk_bf16_f32 v{l}, v{l}, v{h}\nv_lshlrev_b32 v{h}, 16, v{l}\nv_and_b32 v5, 0xffff0000, v{l}\nv_add_f32 v6, v6, v{h}\nv_add_f32 v6, v6, v5")
        a(f"buffer_store_dwordx4 v[{LO+4*q}:{LO+4*q+3}], v1, s[8:11], s22 offen sc1\ns_add_u32 s22, s22, 6144")
    a("v_mov_b32 v40, v6\nv_mov_b32 v41, v7\ns_nop 1\nv_permlane32_swap_b32 v6, v40\nv_permlane32_swap_b32 v7, v41\ns_nop 1\nv_add_f32 v6, v6, v40\nv_add_f32 v7, v7, v41")
    a(f"s_mul_i32 s22, s17, {1536*8}\ns_lshl_b32 s7, s16, 8\ns_add_u32 s22, s22, s7\ns_add_u32 s22, s22, {WS_UTP:#x}\nv_lshlrev_b32 v4, 3, v2\ns_mov_b32 exec_hi, 0")
    a(f"buffer_store_dwordx2 v[6:7], v4, s[8:11], s22 offen sc1\ns_mov_b32 exec_hi, -1\ns_branch {ld}")
    a(f"{lo_}:\ns_sub_u32 s28, s28, 480\ns_cmp_ge_u32 s28, 528\ns_cbranch_scc1 {ld}")
    a(f"s_mov_b32 s42, {768*1280}\ns_mov_b32 s31, {WS_WOUT:#x}\ns_mov_b32 s6, {(1<<20)//12+1}\ns_cmp_lt_u32 s28, 240\ns_cselect_b32 s40, s52, s54\ns_cselect_b32 s41, s53, s55\ns_mov_b32 s43, 0x20000\ns_cselect_b32 s30, 40, 48")
    a(f"s_cmov_b32 s42, {640*1280}\ns_cmov_b32 s31, {WS_WO:#x}\ns_cmov_b32 s6, {(1<<20)//10+1}\ns_cselect_b32 s7, 0, 240\ns_sub_u32 s28, s28, s7")
    a("s_mul_i32 s16, s28, s6\ns_lshr_b32 s16, s16, 20\ns_lshr_b32 s7, s30, 2\ns_mul_i32 s7, s7, s16\ns_sub_u32 s17, s28, s7")
    divmod_s(a, 18, 19, 16, 3, 3)
    a(f"s_mul_i32 s6, s18, 80\ns_lshl_b32 s7, s19, 5\ns_add_u32 s6, s6, s7\nv_add_lshl_u32 v4, v2, s6, 1\nv_mul_u32_u24 v5, {4*1280}, v3\nv_add_u32 v4, v4, v5\ns_mul_i32 s22, s17, {64*1280}")
    for q in range(4):
        loads8(a, 40, 4, LO + 4*q, HI + 4*q, 22, [16*q + e for e in E_PERM], 1280, 7)
    a("s_mul_i32 s22, s18, s30\ns_lshl_b32 s7, s17, 2\ns_add_u32 s22, s22, s7\ns_mul_i32 s22, s22, 3\ns_add_u32 s22, s22, s19\ns_lshl_b32 s22, s22, 10\ns_add_u32 s22, s22, s31\ns_waitcnt vmcnt(0)")
    for q in range(4):
        for d in range(4): a(f"v_lshl_or_b32 v{LO+4*q+d}, v{HI+4*q+d}, 16, v{LO+4*q+d}")
        a(f"buffer_store_dwordx4 v[{LO+4*q}:{LO+4*q+3}], v1, s[8:11], s22 offen sc1\ns_add_u32 s22, s22, 3072")
    a(f"{ld}:")

def emit(path):
    (n, lines, g, b, lds, nv, ao) = kernels[0]
    bad = 0
    errs = check_hazards(lines, n) + ([] if PROF else check_waits(lines, n))
    for e in errs:
        p = e.split("touched by")
        if "buffer_load_ushort" in p[0] and "buffer_load_ushort" in p[-1]: continue
        if "buffer_load_dword v" in p[0] and "buffer_load_dword v" in p[-1]: continue
        print("CHECK", e); bad += 1
    hdr = open("adaLN_cond__grouped_kv_mqa__mixer_gmlp__prompt.s.ref").read().split("; Override launch geometry")[0]
    out = [hdr + f"; @launch grid=({g},1,1) block=({b},1,1) lds={lds}", '.amdgcn_target "amdgcn-amd-amdhsa--gfx950"\n.text']
    out.append(f".globl {KNAME}\n.p2align 8\n.type {KNAME},@function\n{KNAME}:")
    t = Asm(); t.lines = lines
    out.append(t.text())
    out.append(f""".section .rodata,"a"
.p2align 6
.amdhsa_kernel {KNAME}
  .amdhsa_next_free_vgpr {nv}
  .amdhsa_next_free_sgpr {96 if PROF else 60}
  .amdhsa_accum_offset {ao}
  .amdhsa_group_segment_fixed_size 0
  .amdhsa_kernarg_size 120
  .amdhsa_user_sgpr_count 2
  .amdhsa_user_sgpr_kernarg_segment_ptr 1
  .amdhsa_system_sgpr_workgroup_id_x 1
.end_amdhsa_kernel""")
    open(path, "w").write("\n".join(out) + "\n")
    print("wrote", path, "checks failed:", bad)

if __name__ == "__main__":
    kmain()
    emit(sys.argv[1] if len(sys.argv) > 1 else "one.s")
```

```python
import math, struct, sys, os
from asmlib import *

def f32(x):
    return "0x%08x" % struct.unpack("<I", struct.pack("<f", x))[0]

WS_MOD  = 0x0
WS_XH   = 0x100000
WS_ST0  = 0x8000
WS_FG   = 0x40000
FG_MOD, FG_PQ, FG_KV, FG_PACK, FG_Z2, FG_END = (WS_FG + 128*i for i in (0, 128, 192, 320, 576, 832))
WS_FL1  = 0x10000
WS_FL2  = 0x12000
WS_FL0  = 0x14000
WS_FL3  = 0x16000
WS_UT   = 0x1A000
WS_UTP  = 0x20000
WS_WQKV = 0x400000
WS_WO   = 0x500000
WS_WIN  = 0x600000
WS_WOUT = 0x800000
WS_Q    = 0xA00000
WS_KV   = 0xD00000
WS_O    = 0xE00000
WS_X1   = 0x1080000
WS_ST1  = 0x1300000
WS_ST2  = 0x1360000
WS_Z1   = 0x13C0000
WS_Z2T  = 0x16C0000
WS_Y    = 0x19C0000
WS_WSP  = 0x1D00000
WS_SIZE = 0x2500000
KVCH = 26624
OOB = 0x40000000
LOG2E = math.log2(math.e)
KA = dict(x=0, wq=8, wk=16, wv=24, wo=32, w_in=48, w_sp=56, b_sp=64, w_out=72, c=80, w_mod=88, out=96, dbg=104, ws=112)
UT = [[0, 1], [2, 5], [3, 4]]

PROF = os.environ.get("PROF", "0") == "1"
WS_PROF = 0x3000000
if PROF: WS_SIZE = 0x4000000
def stamp(a, i):
    if PROF: a(f"s_memtime s[{60+2*i}:{61+2*i}]")
def stamp_begin(a):
    if PROF:
        for i in range(12): a(f"s_mov_b64 s[{60+2*i}:{61+2*i}], 0")
        a("s_memrealtime s[84:85]")
        stamp(a, 0)
def stamp_end(a, kidx):
    if PROF:
        stamp(a, 11)
        a("s_memrealtime s[86:87]\ns_mov_b64 exec, 1\ns_waitcnt lgkmcnt(0)")
        a(f"s_lshl_b32 s3, s2, 4\ns_add_u32 s3, s3, s14\ns_lshl_b32 s3, s3, 6\ns_add_u32 s3, s3, {WS_PROF + kidx*0x100000:#x}\nv_mov_b32 v0, 0")
        for i in range(12): a(f"v_mov_b32 v{2+i}, s{60+2*i}")
        a("s_getreg_b32 s88, hwreg(HW_REG_XCC_ID)\ns_getreg_b32 s89, hwreg(HW_REG_HW_ID)\nv_mov_b32 v14, s84\nv_mov_b32 v15, s86\nv_mov_b32 v16, s88\nv_mov_b32 v17, s89")
        for i in range(4): a(f"buffer_store_dwordx4 v[{2+4*i}:{5+4*i}], v0, s[8:11], s3 offen offset:{16*i}")
        if os.environ.get("X_DBGOUT"):
            l = a.label("dbg")
            a(f"s_cmp_lg_u32 s2, 72\ns_cbranch_scc1 {l}\ns_cmp_lg_u32 s14, 0\ns_cbranch_scc1 {l}\ns_load_dwordx2 s[90:91], s[0:1], {KA['dbg']}\ns_waitcnt lgkmcnt(0)")
            for i in range(1, 12): a(f"v_subrev_u32 v{2+i}, s60, v{2+i}")
            a("v_sub_u32 v15, v15, v14")
            for i in range(1, 14): a(f"global_store_dword v0, v{2+i}, s[90:91] offset:{4*i}")
            a(f"{l}:")

def srd(a, d, p, nbytes):
    a(f"s_mov_b32 s{d}, s{p}\ns_mov_b32 s{d+1}, s{p+1}\ns_mov_b32 s{d+2}, {nbytes:#x}\ns_mov_b32 s{d+3}, 0x20000")

kernels = []
XCMP = "s3" if os.environ.get("X_NOBAR") or os.environ.get("X_NOLDS") else 0

class K(Asm):
    def __init__(self, name):
        super().__init__()
        self.name = name; self.vmq = []; self.lgq = []
    def label(self, base):
        self.uid += 1
        return f"L_{self.name}_{base}_{self.uid}"
    def vm(self, text, tag=None):
        self(text); self.vmq.append(tag)
    def lg(self, text, tag=None):
        self(text); self.lgq.append(tag)
    def _n(self, q, tags):
        idx = max((i for i, t in enumerate(q) if t in tags), default=None)
        return None if idx is None else len(q) - 1 - idx
    def wait(self, vm=(), lg=()):
        parts = []
        n = self._n(self.vmq, vm) if vm else None
        if n is not None:
            parts.append(f"vmcnt({min(n, 63)})"); self.vmq = self.vmq[len(self.vmq)-n:] if n else []
        n = self._n(self.lgq, lg) if lg else None
        if n is not None:
            n2 = min(n, 15)
            parts.append(f"lgkmcnt({n2})"); self.lgq = self.lgq[len(self.lgq)-n2:] if n2 else []
        if parts: self("s_waitcnt " + " ".join(parts))
    def wait_all_lg(self):
        self("s_waitcnt lgkmcnt(0)"); self.lgq = []

def end(a):
    a(f"L_{a.name}_end:")
    stamp_end(a, len(kernels))
    a(f"L_{a.name}_exit:\ns_endpgm")
def finish(a, grid, block, lds, nv):
    kernels.append((a.name, a.lines, grid, block, lds, nv, (nv + 3) // 4 * 4))

def bf16_round(a, v, t):
    a(f"v_cvt_pk_bf16_f32 v{t}, v{v}, v{v}\nv_and_b32 v{v}, 0xffff0000, v{t}")

E_NAT = list(range(8))
E_PERM = [(j & 3) + 8 * (j >> 2) for j in range(8)]
E_O5 = [20 * (j >> 1) + (j & 1) for j in range(8)]
def loads8(a, srdn, voff, lo, hi, ebase, e_list, rs, stmp, tag=None):
    for j in range(8):
        a(f"s_add_u32 s{stmp}, s{ebase}, {e_list[j]*rs}")
        a.vm(f"buffer_load_ushort v{(lo if j % 2 == 0 else hi) + j//2}, v{voff}, s[{srdn}:{srdn+3}], s{stmp} offen", tag)

def divmod_s(a, q, r, x, d, t):
    m = (1 << 20) // d + 1
    a(f"s_mul_i32 s{q}, s{x}, {m}\ns_lshr_b32 s{q}, s{q}, 20\ns_mul_i32 s{t}, s{q}, {d}\ns_sub_u32 s{r}, s{x}, s{t}")

def pack_frag_issue(a, f, srdn, rs, ncol, nks, otype, halves, lo, hi, voff, vt, S):
    q3, ft, t, nb, ks, eb = S, S+1, S+2, S+3, S+4, S+5
    divmod_s(a, q3, ft, f, 3, t)
    divmod_s(a, nb, ks, q3, nks, t)
    if halves:
        a(f"s_and_b32 s{t}, s{nb}, 1\ns_lshr_b32 s{nb}, s{nb}, 1\ns_mul_i32 s{nb}, s{nb}, {ncol}\ns_cmp_eq_u32 s{t}, 0\ns_cselect_b32 s{t}, 768, 0\ns_add_u32 s{nb}, s{nb}, s{t}")
    else:
        a(f"s_mul_i32 s{nb}, s{nb}, {ncol}")
    hi5 = 80 if ncol == 96 else OOB // 2
    a(f"s_cmp_eq_u32 s{ft}, 1\ns_cselect_b32 s{q3}, 32, 48\ns_cselect_b32 s{t}, {hi5:#x}, 64\ns_cmp_eq_u32 s{ft}, 0\ns_cselect_b32 s{q3}, 0, s{q3}\ns_cselect_b32 s{t}, 16, s{t}")
    a(f"s_add_u32 s{q3}, s{q3}, s{nb}\ns_add_u32 s{t}, s{t}, s{nb}")
    a(f"v_mov_b32 v{vt}, s{q3}\nv_mov_b32 v{vt+1}, s{t}\nv_cmp_gt_u32 vcc, 16, v2\nv_and_b32 v{voff}, 15, v2\ns_nop 0\nv_cndmask_b32 v{vt}, v{vt+1}, v{vt}, vcc\nv_add_lshl_u32 v{voff}, v{voff}, v{vt}, 1")
    if not otype:
        a(f"v_mul_u32_u24 v{vt}, {4*rs}, v3\nv_add_u32 v{voff}, v{voff}, v{vt}\ns_mul_i32 s{eb}, s{ks}, {16*rs}")
        loads8(a, srdn, voff, lo, hi, eb, E_PERM, rs, t, "pack")
    else:
        l5, ld = a.label("u4"), a.label("ud")
        divmod_s(a, q3, ft, ks, 5, t)
        a(f"s_mul_i32 s{q3}, s{q3}, 80\ns_cmp_eq_u32 s{ft}, 4\ns_cbranch_scc1 {l5}")
        a(f"s_mul_i32 s{ft}, s{ft}, 20\ns_add_u32 s{q3}, s{q3}, s{ft}\ns_mul_i32 s{eb}, s{q3}, {rs}\nv_mul_u32_u24 v{vt}, {4*rs}, v3\nv_add_u32 v{voff}, v{voff}, v{vt}")
        q0 = list(a.vmq)
        loads8(a, srdn, voff, lo, hi, eb, E_PERM, rs, t, "pack")
        a(f"s_branch {ld}\n{l5}:\ns_add_u32 s{q3}, s{q3}, 16\ns_mul_i32 s{eb}, s{q3}, {rs}\nv_mul_u32_u24 v{vt}, {2*rs}, v3\nv_add_u32 v{voff}, v{voff}, v{vt}")
        a.vmq = q0
        loads8(a, srdn, voff, lo, hi, eb, E_O5, rs, t, "pack")
        a(f"{ld}:")

def pack_frag_store(a, f, wsbase, lo, hi, st):
    for i in range(4): a(f"v_lshl_or_b32 v{lo+i}, v{hi+i}, 16, v{lo+i}")
    a(f"s_lshl_b32 s{st}, s{f}, 10\ns_add_u32 s{st}, s{st}, {wsbase:#x}")
    a.vm(f"buffer_store_dwordx4 v[{lo}:{lo+3}], v1, s[8:11], s{st} offen")

def l2_prefetch(a, base, nbytes, nwaves, vdst, vtmp, st):
    per_wg = nbytes // 32
    PS = int(os.environ.get("X_PFS", "64")); CH = 64 * PS
    n_instr = -(-per_wg // CH)
    per_wave = -(-n_instr // nwaves)
    a(f"s_lshr_b32 s{st}, s2, 3\ns_mul_i32 s{st}, s{st}, {per_wg}\ns_mul_i32 s{st+1}, s14, {per_wave*CH}\ns_add_u32 s{st}, s{st}, s{st+1}\ns_add_u32 s{st}, s{st}, {base:#x}\nv_lshlrev_b32 v{vtmp}, {int(math.log2(PS//16))}, v1")
    for i in range(per_wave):
        a.vm(f"buffer_load_dword v{vdst}, v{vtmp}, s[8:11], s{st} offen")
        if i < per_wave - 1: a(f"s_add_u32 s{st}, s{st}, {CH}")

CTL = 6 * KVCH
NONCE = 50
KNAME = "adaLN_cond__grouped_kv_mqa__mixer_gmlp__prompt_kernel"
STG = 20480
NS, DEP = 6, 4
EX = NS * STG
PAR = EX + 24576
LDS_G = PAR + 5120
ACC, WS0, AF, PR, VW = 8, 56, 104, 120, 158

def compute_addr(a, rb):
    a.rb = rb
    if rb == 0:
        a(f"s_mul_i32 s3, s15, {6144+2048}\nv_add_u32 v{VW}, s3, v1\ns_mul_i32 s3, s15, {6144-2048}\ns_add_u32 s3, s3, 2048\nv_add_u32 v{VW+2}, s3, v1")
        a(f"s_lshl_b32 s3, s15, 8\nv_xor_b32 v{VW+1}, s3, v1\ns_mul_i32 s3, s15, 6144\ns_add_u32 s3, s3, 1024\nv_add_u32 v{VW+1}, s3, v{VW+1}")
    else:
        a("v_bfe_u32 v4, v0, 2, 2\nv_and_b32 v5, 3, v0\nv_bfe_u32 v6, v0, 4, 1")
        a("v_lshl_add_u32 v4, v3, 2, v4" if rb == 192 else "v_lshl_add_u32 v4, v4, 1, v3")
        a(f"v_mul_u32_u24 v4, {rb}, v4\nv_lshl_add_u32 v4, v5, 3, v4\ns_mul_i32 s3, s15, 6144\nv_add_u32 v4, s3, v4")
        a(f"v_lshl_add_u32 v5, v6, 5, v4\ns_mul_i32 s3, s15, 96\nv_add_u32 v{VW}, s3, v5\ns_sub_u32 s3, 96, s3\nv_add_u32 v{VW+2}, s3, v5")
        if rb == 192:
            a(f"v_xor_b32 v6, s15, v6\nv_mul_u32_u24 v6, 96, v6\nv_add_u32 v6, 64, v6\nv_add_u32 v{VW+1}, v4, v6")
        else:
            a(f"v_add_u32 v{VW+1}, 64, v4")
    a(f"s_lshl_b32 s3, s14, 11\ns_add_u32 s3, s3, 12288\nv_add_u32 v{VW+3}, s3, v1")
    for i in range(4): a(f"v_add_u32 v{VW+4+i}, {3*STG}, v{VW+i}")

def read_ops(a, s, areg):
    slot = s % NS; hi, sl = (4, slot - 3) if slot >= 3 else (0, slot)
    ra, rw = [], []
    if areg is not None:
        for q in range(2):
            ra.append(lambda q=q: a.lg(f"ds_read_b128 v[{areg+4*q}:{areg+4*q+3}], v{VW+3+hi} offset:{sl*STG + q*1024}", ("a", s)))
    for q in range(2):
        for t in range(3):
            r = WS0 + 24*(s % 2) + 12*q + 4*t; o = sl*STG + q*3072
            if a.rb == 0:
                rw.append(lambda r=r, t=t, o=o: a.lg(f"ds_read_b128 v[{r}:{r+3}], v{VW+t+hi} offset:{o}", ("w", s)))
            else:
                def f(r=r, t=t, o=o):
                    a.lg(f"ds_read_b64_tr_b16 v[{r}:{r+1}], v{VW+t+hi} offset:{o}", ("w", s))
                    a.lg(f"ds_read_b64_tr_b16 v[{r+2}:{r+3}], v{VW+t+hi} offset:{o + 8*a.rb}", ("w", s))
                rw.append(f)
    return ra, rw

def mfma_ops(a, wset, areg, first):
    ops = []
    for q in range(2):
        for t in range(3):
            r = ACC + 16*t; w = WS0 + 24*wset + 12*q + 4*t; b = areg + 4*q
            c = "0" if (first and q == 0) else f"v[{r}:{r+15}]"
            ops.append(lambda r=r, w=w, b=b, c=c: a(f"v_mfma_f32_32x32x16_bf16 v[{r}:{r+15}], v[{w}:{w+3}], v[{b}:{b+3}], {c}"))
    return ops

def transform_ops(a, F, P, rr, nm, t=152):
    ops = []
    for d in range(4):
        x, y = t + 2*(d % 2), t + 2*(d % 2) + 1
        L = [f"v_lshlrev_b32 v{x}, 16, v{F+d}", f"v_and_b32 v{y}, 0xffff0000, v{F+d}",
             f"v_fma_f32 v{x}, v{x}, v{rr}, v{nm}", f"v_fma_f32 v{y}, v{y}, v{rr}, v{nm}",
             f"v_fma_f32 v{x}, v{x}, v{P+8+2*d}, v{P+2*d}", f"v_fma_f32 v{y}, v{y}, v{P+9+2*d}, v{P+1+2*d}", f"v_cvt_pk_bf16_f32 v{F+d}, v{x}, v{y}"]
        ops += [(lambda l=l: a(l)) for l in L]
    return ops

def merge(*lists):
    items = []
    for li, L in enumerate(lists):
        n = len(L)
        for i, op in enumerate(L): items.append(((i + 0.5 * (li > 0)) / n, li, i, op))
    items.sort(key=lambda x: (x[0], x[1], x[2]))
    return [x[3] for x in items]
def run(ops):
    for op in ops: op()

def param_base(a):
    a(f"s_mul_i32 s3, s15, 1280\ns_add_u32 s3, s3, {PAR}\nv_lshlrev_b32 v6, 4, v3\nv_add_u32 v6, s3, v6")
def param_ops(a, ks):
    ops = []
    for arr in range(2):
        P = PR + 16*(ks % 2) + 8*arr; off = arr*2560 + ks*64
        ops.append(lambda P=P, off=off: a.lg(f"ds_read_b128 v[{P}:{P+3}], v6 offset:{off}", ("p", ks)))
        ops.append(lambda P=P, off=off: a.lg(f"ds_read_b128 v[{P+4}:{P+7}], v6 offset:{off+32}", ("p", ks)))
    return ops

def exchange(a, R):
    a(f"s_mul_i32 s3, s14, 6144\ns_add_u32 s3, s3, {EX}\nv_add_u32 v4, s3, v1\ns_xor_b32 s3, s14, 2\ns_mul_i32 s3, s3, 6144\ns_add_u32 s3, s3, {EX}\nv_add_u32 v5, s3, v1\ns_nop 4")
    for i in range(6): a(f"ds_write_b128 v4, v[{ACC+24+4*i}:{ACC+27+4*i}] offset:{i*1024}")
    a.wait_all_lg()
    a("s_barrier")
    for j in range(3):
        for h in range(2):
            a(f"ds_read_b128 v[{R+8*j+4*h}:{R+8*j+4*h+3}], v5 offset:{((j+1)%3)*2048 + h*1024}")
    for j in range(3):
        a(f"s_waitcnt lgkmcnt({4-2*j})")
        for i in range(8): a(f"v_add_f32 v{ACC+8*j+i}, v{ACC+8*j+i}, v{R+8*j+i}")

def c_start(a, areg_of, xf=None):
    a("s_barrier")
    a.pre()
    ra, rw = read_ops(a, 0, areg_of(0))
    run(ra)
    if xf:
        n, rr, nm = xf
        run(param_ops(a, 0)); run(param_ops(a, 1)); run(rw)
        a.wait(lg=[("a", 0), ("p", 0)])
        run(transform_ops(a, areg_of(0), PR, rr, nm))
        a.wait(lg=[("p", 1)])
        run(merge(transform_ops(a, areg_of(0) + 4, PR + 16, rr, nm), param_ops(a, 2)))
    else:
        run(rw)

def c_iter(a, s, first, total, areg_of, xf=None, load_a=True):
    ra, rw = [], []
    if s + 1 < total:
        a("s_barrier")
        ra, rw = read_ops(a, s + 1, areg_of(s + 1) if load_a else None)
    mf = mfma_ops(a, s % 2, areg_of(s), first)
    if os.environ.get("X_NORD"): ra, rw = [], []
    if os.environ.get("X_NOMFMA"): mf = [lambda: a("s_nop 0")] * 6
    if os.environ.get("X_NOXF"): xf = None
    if xf and s + 1 < xf[0]:
        n, rr, nm = xf
        k0 = 2*(s+1)
        run(ra); run(param_ops(a, k0 + 1))
        a.wait(lg=[("w", s)])
        run(merge(mf[:2], rw[:2]))
        a.wait(lg=[("a", s+1), ("p", k0)])
        run(merge(transform_ops(a, areg_of(s+1), PR, rr, nm), mf[2:4], rw[2:4]))
        a.wait(lg=[("p", k0 + 1)])
        nxt = param_ops(a, k0 + 2) if s + 2 < n else []
        run(merge(transform_ops(a, areg_of(s+1) + 4, PR + 16, rr, nm), mf[4:], rw[4:] + nxt))
    else:
        a.wait(lg=[("w", s), ("a", s)])
        run(merge(mf, ra + rw))

def prefetch(a, srdn, base, nbytes, nw, widx, vdst, vtmp, st):
    per_wg = -(-nbytes // 32 // 128) * 128
    per_wave = -(-per_wg // (8192 * nw))
    a(f"s_lshr_b32 s{st}, s2, 3\ns_mul_i32 s{st}, s{st}, {per_wg}\ns_mul_i32 s{st+1}, s{widx}, {per_wave*8192}\ns_add_u32 s{st}, s{st}, s{st+1}\ns_add_u32 s{st}, s{st}, {base:#x}\nv_lshlrev_b32 v{vtmp}, 3, v1")
    for i in range(per_wave):
        a.vm(f"buffer_load_dword v{vdst}, v{vtmp}, s[{srdn}:{srdn+3}], s{st} offen")
        if i < per_wave - 1: a(f"s_add_u32 s{st}, s{st}, 8192")

SLOT, NSL, DEP6 = 20480, 6, 4
PAR6 = NSL * SLOT
class G6:
    def __init__(self, kpst, nacc, g0=0):
        self.kpst, self.nacc, self.g0 = kpst, nacc, g0
        self.fs = kpst * (1 + nacc) * 4
        self.ACC, self.FR = 8, 8 + 16 * nacc
    def addr(self, a):
        a(f"s_mul_i32 s3, s17, {self.kpst*1024}\ns_add_u32 s3, s3, 12288\nv_add_u32 v4, s3, v1\nv_add_u32 v5, {3*SLOT}, v4")
        a(f"s_lshl_b32 s3, s15, 10\nv_add_u32 v6, s3, v1\nv_add_u32 v7, {3*SLOT}, v6")
    def reads(self, a, s):
        slot = (self.g0 + s) % NSL; hi, sl = (1, slot - 3) if slot >= 3 else (0, slot)
        F = self.FR + (s % 2) * self.fs
        ops = []
        for q in range(self.kpst):
            r = F + q * (1 + self.nacc) * 4
            ops.append(lambda r=r, q=q: a.lg(f"ds_read_b128 v[{r}:{r+3}], v{4+hi} offset:{sl*SLOT + q*1024}", ("f", s, q)))
            for n in range(self.nacc):
                rw = r + 4 + 4*n
                ops.append(lambda rw=rw, q=q, n=n: a.lg(f"ds_read_b128 v[{rw}:{rw+3}], v{6+hi} offset:{sl*SLOT + (q*self.nacc + n)*3072}", ("f", s, q)))
        return ops
    def start(self, a):
        a("s_barrier")
        run(self.reads(a, 0))
    def iter(self, a, s, first, total):
        rd = []
        if s + 1 < total:
            a("s_barrier")
            rd = self.reads(a, s + 1)
        F = self.FR + (s % 2) * self.fs
        per = len(rd) // self.kpst if rd else 0
        for q in range(self.kpst):
            a.wait(lg=[("f", s, q)])
            r = F + q * (1 + self.nacc) * 4
            for n in range(self.nacc):
                d = self.ACC + 16*n
                c = "0" if (first and q == 0) else f"v[{d}:{d+15}]"
                a(f"v_mfma_f32_32x32x16_bf16 v[{d}:{d+15}], v[{r+4+4*n}:{r+7+4*n}], v[{r}:{r+3}], {c}")
            run(rd[q*per:(q+1)*per])
    def lsetup(self, a, act_base, nks, w_base, sa, sw, sl, aflags="", wflags=""):
        self.a, self.sa, self.sw, self.sl, self.af, self.wf = a, sa, sw, sl, aflags, wflags
        k = self.kpst
        a(f"s_mul_i32 s{sl}, s15, {k*512}\ns_add_u32 s{sl}, s{sl}, 12288")
        a(f"s_mul_i32 s{sa}, s16, {nks*1024}\ns_and_b32 s3, s15, 1\ns_mul_i32 s3, s3, {k*512}\ns_add_u32 s{sa}, s{sa}, s3\ns_add_u32 s{sa}, s{sa}, {act_base:#x}")
        a(f"s_mul_i32 s{sw}, s13, {nks*3072*self.nacc}\ns_add_u32 s{sw}, s{sw}, s20\ns_add_u32 s{sw}, s{sw}, {w_base:#x}")
    def issue_a(self, s):
        a = self.a; slot = (self.g0 + s) % NSL
        a(f"s_add_u32 m0, s{self.sl}, {slot*SLOT}\ns_nop 0")
        for q in range(self.kpst // 2): a.vm(f"buffer_load_dwordx4 v1, s[8:11], s{self.sa} offen offset:{q*1024} {self.af} lds", ("st", self.g0 + s))
        a(f"s_add_u32 s{self.sa}, s{self.sa}, {self.kpst*1024}")
    def issue_w(self, s):
        a = self.a; slot = (self.g0 + s) % NSL
        a(f"s_add_u32 m0, s20, {slot*SLOT}\ns_nop 0")
        for i in range(3): a.vm(f"buffer_load_dwordx4 v1, s[8:11], s{self.sw} offen offset:{i*1024} {self.wf} lds", ("st", self.g0 + s))
        a(f"s_add_u32 s{self.sw}, s{self.sw}, 12288")
    def issue(self, s):
        self.issue_a(s); self.issue_w(s)
    def lstep(self, s, total, nxt=None):
        a = self.a
        a.wait(vm=[("st", self.g0 + s)])
        a("s_barrier")
        if s + DEP6 < total: self.issue(s + DEP6)
        elif nxt is not None: nxt(s + DEP6 - total)

def dma1(a, lds_off, sreg, tag, imm=0):
    a(f"s_mov_b32 m0, {lds_off}\ns_nop 0")
    a.vm(f"buffer_load_dwordx4 v1, s[8:11], s{sreg} offen offset:{imm} sc1 lds", tag)
def xid_publish(a, base):
    l = a.label("xid")
    a(f"s_cmp_lg_u32 s14, 6\ns_cbranch_scc1 {l}\ns_lshl_b32 s3, s12, 8\ns_lshl_b32 s6, s13, 2\ns_add_u32 s3, s3, s6\ns_add_u32 s3, s3, {base:#x}\ns_getreg_b32 s7, hwreg(HW_REG_XCC_ID, 0, 4)\ns_add_u32 s7, s7, s50\nv_mov_b32 v8, 0\nv_mov_b32 v9, s7\ns_mov_b64 exec, 1\nbuffer_store_dword v9, v8, s[8:11], s3 offen sc1\ns_mov_b64 exec, -1\n{l}:")
def xid_load(a, base, v):
    a(f"s_lshl_b32 s3, s12, 8\ns_add_u32 s3, s3, {base:#x}\nv_and_b32 v{v}, 7, v0\nv_lshlrev_b32 v{v}, 2, v{v}")
    a.vm(f"buffer_load_dword v{v}, v{v}, s[8:11], s3 offen sc1", "epi")
def pretouch(a, v, items):
    a(f"v_lshlrev_b32 v{v}, 3, v1")
    for sreg, n in items:
        a(f"s_mov_b64 exec, {(1 << n) - 1:#x}")
        a.vm(f"buffer_load_dword v{v+1}, v{v}, s[8:11], s{sreg} offen sc1", "epi")
    a("s_mov_b64 exec, -1")
def xid_decide(a, v):
    a(f"s_getreg_b32 s36, hwreg(HW_REG_XCC_ID, 0, 4)\ns_add_u32 s36, s36, s50\nv_cmp_ne_u32 vcc, s36, v{v}\ns_nop 1\ns_cmp_eq_u64 vcc, 0\ns_cselect_b32 s37, {XFAST}, 0")
def hstore(a, text):
    l1, l2 = a.label("hs"), a.label("hd")
    a(f"s_cmp_eq_u32 s37, 1\ns_cbranch_scc1 {l1}\n{text} sc1\ns_branch {l2}\n{l1}:")
    a.vm(text)
    a(f"{l2}:")
AFL = os.environ.get("X_AFL", "sc1")
XFAST = int(os.environ.get("X_FAST", "1"))
def flag_addr(a, base):
    a(f"s_lshl_b32 s38, s12, 8\ns_mul_i32 s6, s13, 6\ns_add_u32 s6, s6, s14\ns_lshl_b32 s6, s6, 2\ns_add_u32 s38, s38, s6\ns_add_u32 s38, s38, {base+32:#x}")
def handoff_publish(a, base):
    a("v_mov_b32 v8, 0\nv_mov_b32 v9, s50\ns_mov_b64 exec, 1")
    a("s_waitcnt vmcnt(0)")
    hstore(a, "buffer_store_dword v9, v8, s[8:11], s38 offen")
    a("s_mov_b64 exec, -1")
    a.vmq = []
def handoff_wait(a, base, n=48):
    lp, lo = a.label("hp"), a.label("ho")
    a(f"s_lshl_b32 s3, s12, 8\ns_add_u32 s3, s3, {base+32:#x}\nv_lshrrev_b32 v8, 2, v1\nv_min_u32 v8, {(n-1)*4}, v8\ns_mov_b32 s29, 0x8000")
    a(f"{lp}:\nbuffer_load_dword v9, v8, s[8:11], s3 offen sc1\ns_waitcnt vmcnt(0)\nv_cmp_ne_u32 vcc, s50, v9\ns_sub_u32 s29, s29, 1\ns_cbranch_scc1 {lo}\ns_cbranch_vccnz {lp}\n{lo}:")
    a.vmq = []

def unit_off6(a, d, per_nb, base):
    a(f"s_lshl_b32 s{d}, s16, 3\ns_add_u32 s{d}, s{d}, s13\ns_mul_i32 s{d}, s{d}, {per_nb}\ns_lshl_b32 s6, s15, 1\ns_add_u32 s{d}, s{d}, s6\ns_lshl_b32 s{d}, s{d}, 10\ns_add_u32 s{d}, s{d}, {base:#x}")

def stats_addr(a, base, st):
    a(f"s_mul_i32 s7, s13, 3\ns_add_u32 s7, s7, s15\ns_mul_i32 s{st}, s16, 6144\ns_lshr_b32 s3, s7, 1\ns_lshl_b32 s3, s3, 9\ns_add_u32 s{st}, s{st}, s3\ns_and_b32 s3, s7, 1\ns_lshl_b32 s3, s3, 3\ns_add_u32 s{st}, s{st}, s3\ns_add_u32 s{st}, s{st}, {base:#x}")
def stats_store(a, V, st, flags=""):
    a(f"v_mov_b32 v{V+2}, v{V}\nv_mov_b32 v{V+3}, v{V+1}\ns_nop 1\nv_permlane32_swap_b32 v{V}, v{V+2}\nv_permlane32_swap_b32 v{V+1}, v{V+3}\ns_nop 1\nv_add_f32 v{V}, v{V}, v{V+2}\nv_add_f32 v{V+1}, v{V+1}, v{V+3}\nv_max_f32 v{V+1}, 0, v{V+1}")
    a("s_mov_b32 exec_hi, 0")
    hstore(a, f"buffer_store_dwordx2 v[{V}:{V+1}], v1, s[8:11], s{st} offen")
    a("s_mov_b32 exec_hi, -1")
def stats_load(a, D, st, tag, flags=""):
    for i in range(6): a.vm(f"buffer_load_dwordx4 v[{D+4*i}:{D+4*i+3}], v1, s[8:11], s{st + i//4} offen offset:{1024*(i%4)} {flags}", tag)
def stats_base(a, st, base):
    a(f"s_mul_i32 s{st}, s16, 6144\ns_add_u32 s{st}, s{st}, {base:#x}\ns_add_u32 s{st+1}, s{st}, 4096")
def stats_finish(a, D, n, rr, nm):
    for i in range(1, 12): a(f"v_add_f32 v{D}, v{D}, v{D+2*i}\nv_add_f32 v{D+1}, v{D+1}, v{D+2*i+1}")
    a(f"v_mov_b32 v{D+2}, v{D}\nv_mov_b32 v{D+3}, v{D+1}\ns_nop 1\nv_permlane32_swap_b32 v{D}, v{D+2}\nv_permlane32_swap_b32 v{D+1}, v{D+3}\ns_nop 1\nv_add_f32 v{D}, v{D}, v{D+2}\nv_add_f32 v{D+1}, v{D+1}, v{D+3}")
    a(f"v_mul_f32 v{D}, {f32(1/n)}, v{D}\nv_mul_f32 v{D+1}, {f32(1/n)}, v{D+1}\nv_fma_f32 v{D+1}, -v{D}, v{D}, v{D+1}\nv_max_f32 v{D+1}, 0, v{D+1}\nv_add_f32 v{D+1}, {f32(1e-5)}, v{D+1}\nv_rsq_f32 v{rr}, v{D+1}\ns_nop 0\nv_mul_f32 v{nm}, v{D}, v{rr}\nv_sub_f32 v{nm}, 0, v{nm}")

def proj_epilogue(a, g, final, G, XR, T, ST, OUT, oaddr):
    a.wait(vm=["epi"])
    a("s_waitcnt lgkmcnt(0)"); a.lgq = []
    if not final: a("s_nop 8")
    else: a("s_nop 8")
    R = g.ACC
    lskip = a.label("skip")
    for i in range(2):
        if i == 1: a(f"s_cmp_eq_u32 s15, 2\ns_cbranch_scc1 {lskip}")
        for d in range(4):
            x = XR + 4*i + d; r = R + 8*i + 2*d; gg = G + 8*i + 2*d; t = T + 2*(d % 2)
            a(f"v_lshlrev_b32 v{t}, 16, v{x}\nv_and_b32 v{t+1}, 0xffff0000, v{x}\nv_fmac_f32 v{t}, v{gg}, v{r}\nv_fmac_f32 v{t+1}, v{gg+1}, v{r+1}")
            if not final:
                a(f"v_add_f32 v{ST}, v{ST}, v{t}\nv_fmac_f32 v{ST+1}, v{t}, v{t}\nv_add_f32 v{ST}, v{ST}, v{t+1}\nv_fmac_f32 v{ST+1}, v{t+1}, v{t+1}")
            a(f"v_cvt_pk_bf16_f32 v{OUT+4*i+d}, v{t}, v{t+1}")
        o = OUT + 4*i
        if final:
            a(f"s_nop 1\nv_permlane32_swap_b32 v{o}, v{o+2}\nv_permlane32_swap_b32 v{o+1}, v{o+3}\nbuffer_store_dwordx4 v[{o}:{o+3}], v{oaddr}, s[24:27], s28 offen offset:{32*i}")
        else:
            hstore(a, f"buffer_store_dwordx4 v[{o}:{o+3}], v1, s[8:11], s22 offen offset:{1024*i}")
    a(f"{lskip}:")

GC1 = -2.0 * LOG2E * math.sqrt(2.0 / math.pi)
GC2 = GC1 * 0.044715
def gelu(a, regs, t0, c1):
    for i, r in enumerate(regs): a(f"v_mul_f32 v{t0+i}, v{r}, v{r}")
    for i, r in enumerate(regs): a(f"v_fma_f32 v{t0+i}, v{t0+i}, s28, v{c1}")
    for i, r in enumerate(regs): a(f"v_mul_f32 v{t0+i}, v{t0+i}, v{r}")
    for i, r in enumerate(regs): a(f"v_exp_f32 v{t0+i}, v{t0+i}")
    for i, r in enumerate(regs): a(f"v_add_f32 v{t0+i}, 1.0, v{t0+i}")
    for i, r in enumerate(regs): a(f"v_rcp_f32 v{t0+i}, v{t0+i}")
    for i, r in enumerate(regs): a(f"v_mul_f32 v{r}, v{r}, v{t0+i}")

ZROW = 208
def wg_poll(a, lds_word, body, vt=8):
    lp, lo, lw, ld = a.label("gp"), a.label("go"), a.label("gw"), a.label("gd")
    a(f"v_mov_b32 v{vt+4}, {lds_word}\ns_cmp_lg_u32 s15, 0\ns_cbranch_scc1 {lw}\ns_mov_b32 s29, 0x8000\n{lp}:")
    body()
    a(f"s_sub_u32 s29, s29, 1\ns_cbranch_scc1 {lo}\ns_cbranch_vccz {lo}\ns_sleep {os.environ.get('X_SLP', '2')}\ns_branch {lp}\n{lo}:\nv_mov_b32 v{vt+5}, 1\nds_write_b32 v{vt+4}, v{vt+5}\ns_waitcnt lgkmcnt(0)\ns_branch {ld}")
    a(f"{lw}:\nds_read_b32 v{vt+5}, v{vt+4}\ns_waitcnt lgkmcnt(0)\nv_readfirstlane_b32 s3, v{vt+5}\ns_cmp_eq_u32 s3, 1\ns_cbranch_scc1 {ld}\ns_sleep 1\ns_branch {lw}\n{ld}:\ns_waitcnt vmcnt(0)")
    a.vmq = []

def poll_lines(a, base_sreg, n, voff=4, vd=6):
    k = -(-n // 64)
    for i in range(k):
        if i: a(f"s_add_u32 s3, s{base_sreg}, {min(i*64, n-64)*128}")
        a(f"buffer_load_dword v{vd+i}, v{voff}, s[8:11], s{base_sreg if i == 0 else 3} offen sc1")
    a("s_waitcnt vmcnt(0)")
    for i in range(k): a(f"v_xor_b32 v{vd+i}, s50, v{vd+i}")
    for i in range(1, k): a(f"v_or_b32 v{vd}, v{vd}, v{vd+i}")
    a(f"v_cmp_ne_u32 vcc, 0, v{vd}")
def wg_flag(a, lds_word, count, addr_sreg):
    l = a.label("wf")
    a(f"v_mov_b32 v8, {lds_word}\nv_mov_b32 v9, 1\ns_mov_b64 exec, 1\ns_waitcnt vmcnt(0)\nds_add_rtn_u32 v9, v8, v9\ns_waitcnt lgkmcnt(0)\nv_readfirstlane_b32 s3, v9\ns_cmp_lg_u32 s3, {count-1}\ns_cbranch_scc1 {l}")
    a(f"v_mov_b32 v8, 0\nv_mov_b32 v9, s50\nbuffer_store_dword v9, v8, s[8:11], s{addr_sreg} offen sc1\n{l}:\ns_mov_b64 exec, -1")

QL = 81920
ST0L = PAR + 5120
def get_nonce(a):
    a(f"v_mov_b32 v8, {CTL+256}\nds_read_b32 v9, v8\ns_waitcnt lgkmcnt(0)\nv_readfirstlane_b32 s50, v9")

def p01(a, text_end):
    N = a.name
    a(f"s_cmp_ge_u32 s2, 256\ns_cbranch_scc1 L_{N}_exit")
    stamp_begin(a)
    a(f"s_load_dwordx2 s[4:5], s[0:1], {KA['ws']}")
    a("v_and_b32 v4, 63, v0\nv_lshrrev_b32 v5, 6, v0\nv_lshlrev_b32 v1, 4, v4\nv_readfirstlane_b32 s14, v5\nv_and_b32 v2, 31, v4\nv_lshrrev_b32 v3, 5, v4")
    a("s_and_b32 s12, s2, 7\ns_lshr_b32 s3, s2, 6\ns_lshl_b32 s3, s3, 3\ns_add_u32 s12, s12, s3\ns_bfe_u32 s13, s2, 0x30003\ns_mov_b32 s27, 0\ns_mov_b32 s37, 0")
    a(f"s_cmp_ge_u32 s14, 4\ns_cbranch_scc1 L_{N}_p0other")
    a(f"s_cmp_lt_u32 s13, 2\ns_cbranch_scc1 L_{N}_xh\ns_cmp_ge_u32 s13, 6\ns_cbranch_scc1 L_{N}_pq")
    a(f"s_load_dwordx4 s[16:19], s[0:1], {KA['c']}")
    a("s_sub_u32 s6, s13, 2\ns_lshr_b32 s3, s6, 1\ns_lshl_b32 s3, s3, 5\ns_add_u32 s3, s3, s12\ns_lshl_b32 s3, s3, 1\ns_and_b32 s6, s6, 1\ns_add_u32 s3, s3, s6")
    a("v_lshrrev_b32 v72, 2, v0\nv_and_b32 v73, 3, v0\nv_mul_u32_u24 v74, 7680, v72\nv_lshl_add_u32 v74, v73, 4, v74\nv_lshlrev_b32 v4, 1, v72")
    a(f"s_cmp_lt_u32 s3, 120\ns_cselect_b32 s7, {640*7680}, 0\ns_waitcnt lgkmcnt(0)")
    srd(a, 8, 4, WS_SIZE); srd(a, 20, 16, 1280)
    a("s_mov_b32 s40, s18\ns_mov_b32 s41, s19\ns_mov_b32 s42, s7\ns_mov_b32 s43, 0x20000\ns_lshl_b32 s6, s3, 6")
    for p in range(10): a(f"buffer_load_ushort v{10+p}, v4, s[20:23], 0 offen offset:{128*p}")
    for p in range(10):
        a(f"buffer_load_dwordx4 v[{20+4*p}:{23+4*p}], v74, s[40:43], s6 offen")
        if p < 9: a(f"s_add_u32 s6, s6, {64*7680}")
    for i in range(8): a(f"v_mov_b32 v{64+i}, 0")
    a("s_waitcnt vmcnt(10)")
    for p in range(10):
        v = 10 + p
        a(f"v_lshlrev_b32 v{v}, 16, v{v}\nv_mul_f32 v5, {f32(-LOG2E)}, v{v}\nv_exp_f32 v5, v5\ns_nop 0\nv_add_f32 v5, 1.0, v5\nv_rcp_f32 v5, v5\ns_nop 0\nv_mul_f32 v{v}, v{v}, v5")
        bf16_round(a, v, 5)
    for p in range(10):
        a(f"s_waitcnt vmcnt({9-p})")
        for i in range(4):
            d = 20 + 4*p + i
            a(f"v_lshlrev_b32 v5, 16, v{d}\nv_and_b32 v6, 0xffff0000, v{d}\nv_fmac_f32 v{64+2*i}, v{10+p}, v5\nv_fmac_f32 v{65+2*i}, v{10+p}, v6")
    a("v_lshlrev_b32 v5, 7, v72\nv_lshl_add_u32 v5, v73, 5, v5")
    a("ds_write_b128 v5, v[64:67]\nds_write_b128 v5, v[68:71] offset:16")
    a("v_and_b32 v6, 31, v0\nv_lshrrev_b32 v7, 5, v0\nv_lshlrev_b32 v6, 2, v6\nv_lshl_add_u32 v10, v7, 10, v6")
    a("s_waitcnt lgkmcnt(0)\ns_barrier")
    for i in range(8): a(f"ds_read_b32 v{20+i}, v10 offset:{128*i}")
    get_nonce(a)
    for i in range(1, 8): a(f"v_add_f32 v20, v20, v{20+i}")
    a("v_lshl_add_u32 v10, v7, 7, v6\nds_write_b32 v10, v20 offset:8192\ns_waitcnt lgkmcnt(0)\ns_barrier")
    a(f"s_lshl_b32 s38, s3, 7\ns_add_u32 s38, s38, {FG_MOD:#x}\ns_cmp_lg_u32 s14, 0\ns_cbranch_scc1 L_{N}_p0end")
    for i in range(8): a(f"ds_read_b32 v{20+i}, v6 offset:{8192+128*i}")
    a("s_waitcnt lgkmcnt(0)")
    for i in range(1, 8): a(f"v_add_f32 v20, v20, v{20+i}")
    bf16_round(a, 20, 5)
    a("v_add_f32 v21, 1.0, v20")
    bf16_round(a, 21, 5)
    a("s_sub_u32 s6, s3, 20\ns_cmp_lt_u32 s6, 20\ns_cselect_b32 s7, 1, 0\ns_sub_u32 s6, s3, 80\ns_cmp_lt_u32 s6, 20\ns_cselect_b32 s6, 1, s7\ns_cmp_eq_u32 s6, 0")
    l = a.label("noinc")
    a(f"s_cbranch_scc1 {l}\nv_mov_b32 v20, v21\n{l}:")
    a(f"s_lshl_b32 s6, s3, 7\ns_cmp_ge_u32 s3, 120\ns_cbranch_scc1 L_{N}_p0end\ns_mov_b32 exec_hi, 0\nbuffer_store_dword v20, v6, s[8:11], s6 offen offset:{WS_MOD} sc1\ns_mov_b32 exec_hi, -1")
    a(f"s_branch L_{N}_p0end")
    a(f"L_{N}_xh:")
    a(f"s_load_dwordx2 s[16:17], s[0:1], {KA['x']}")
    a("s_lshl_b32 s18, s12, 1\ns_add_u32 s18, s18, s13\nv_mul_u32_u24 v4, 1280, v2\nv_lshl_add_u32 v4, v3, 4, v4")
    a(f"s_mul_i32 s6, s18, {32*1280}\ns_mul_i32 s7, s14, 320\ns_add_u32 s6, s6, s7\ns_waitcnt lgkmcnt(0)")
    srd(a, 8, 4, WS_SIZE); srd(a, 20, 16, 2048 * 1280)
    for i in range(10): a(f"buffer_load_dwordx4 v[{20+4*i}:{23+4*i}], v4, s[20:23], s6 offen offset:{32*i}")
    a("v_mov_b32 v6, 0\nv_mov_b32 v7, 0")
    for i in range(10):
        b = 20 + 4*i
        a(f"s_waitcnt vmcnt({9-i if i < 6 else 10-i})\nv_permlane32_swap_b32 v{b}, v{b+2}\nv_permlane32_swap_b32 v{b+1}, v{b+3}")
        if i == 5: xid_load(a, WS_FL1, 68)
        for d in range(4):
            lo = 64 + 2*(d % 2)
            a(f"v_lshlrev_b32 v{lo}, 16, v{b+d}\nv_and_b32 v{lo+1}, 0xffff0000, v{b+d}")
            a(f"v_add_f32 v6, v6, v{lo}\nv_fmac_f32 v7, v{lo}, v{lo}\nv_add_f32 v6, v6, v{lo+1}\nv_fmac_f32 v7, v{lo+1}, v{lo+1}")
    a("v_lshlrev_b32 v5, 3, v0\nds_write_b64 v5, v[6:7]\nv_lshlrev_b32 v5, 3, v2\ns_waitcnt lgkmcnt(0)\ns_barrier")
    for i in range(8): a(f"ds_read_b64 v[{70+2*i}:{71+2*i}], v5 offset:{256*i}")
    get_nonce(a)
    a("s_waitcnt vmcnt(0)")
    xid_decide(a, 68)
    a(f"s_mul_i32 s6, s18, {40*1024}\ns_mul_i32 s7, s14, {10*1024}\ns_add_u32 s6, s6, s7\ns_add_u32 s6, s6, {WS_XH:#x}")
    lf, ld = a.label("xf"), a.label("xd")
    a(f"s_cmp_eq_u32 s37, 1\ns_cbranch_scc1 {lf}")
    for fl, lab in ((" sc1", f"s_branch {ld}\n{lf}:"), ("", f"{ld}:")):
        for i in range(10):
            a(f"buffer_store_dwordx4 v[{20+4*i}:{23+4*i}], v1, s[8:11], s6 offen offset:{(i%4)*1024}{fl}")
            if i % 4 == 3: a("s_add_u32 s6, s6, 4096")
        a(lab)
    a("s_barrier")
    for i in range(1, 8): a(f"v_add_f32 v70, v70, v{70+2*i}\nv_add_f32 v71, v71, v{71+2*i}")
    a(f"v_mul_f32 v70, {f32(1/640)}, v70\nv_mul_f32 v71, {f32(1/640)}, v71\nv_fma_f32 v71, -v70, v70, v71\nv_max_f32 v71, 0, v71\nv_add_f32 v71, {f32(1e-5)}, v71\nv_rsq_f32 v72, v71\ns_nop 0\nv_mul_f32 v70, v70, v72")
    a(f"v_sub_f32 v73, 0, v70\ns_lshl_b32 s6, s18, 8\ns_add_u32 s6, s6, {WS_ST0:#x}\ns_lshl_b32 s38, s12, 8\ns_lshl_b32 s7, s13, 2\ns_add_u32 s38, s38, s7\ns_add_u32 s38, s38, {WS_FL0:#x}\ns_cmp_lg_u32 s14, 0\ns_cbranch_scc1 L_{N}_p0end\ns_mov_b32 exec_hi, 0")
    hstore(a, "buffer_store_dwordx2 v[72:73], v5, s[8:11], s6 offen")
    a(f"s_mov_b32 exec_hi, -1\ns_branch L_{N}_p0end")
    a(f"L_{N}_pq:")
    a(f"s_load_dwordx2 s[16:17], s[0:1], {KA['wq']}\ns_load_dwordx4 s[32:35], s[0:1], {KA['wk']}")
    a("s_sub_u32 s3, s13, 6\ns_lshl_b32 s3, s3, 5\ns_add_u32 s3, s3, s12\ns_and_b32 s19, s3, 7\ns_lshr_b32 s18, s3, 3\ns_lshl_b32 s38, s19, 3\ns_add_u32 s38, s38, s18\ns_lshl_b32 s18, s18, 3\ns_lshl_b32 s6, s14, 1\ns_add_u32 s18, s18, s6")
    a(f"s_lshl_b32 s38, s38, 7\ns_add_u32 s38, s38, {FG_PQ:#x}\nv_and_b32 v4, 15, v2")
    a(f"v_lshrrev_b32 v5, 4, v2\nv_mul_u32_u24 v5, 20, v5\nv_add_u32 v5, v5, v4\ns_mul_i32 s6, s19, 80\nv_add_u32 v5, s6, v5\nv_lshlrev_b32 v5, 1, v5\nv_mul_u32_u24 v6, {4*1280}, v3\nv_add_u32 v10, v5, v6\nv_add_u32 v11, 80, v10\nv_add_u32 v12, 120, v10")
    a("v_bfe_u32 v5, v4, 1, 1\nv_lshrrev_b32 v7, 3, v4\nv_lshl_add_u32 v5, v7, 1, v5\nv_mul_u32_u24 v5, 20, v5\nv_bfe_u32 v7, v4, 2, 1\nv_lshl_add_u32 v5, v7, 1, v5\nv_and_b32 v7, 1, v4\nv_add_u32 v5, v5, v7\nv_add_u32 v5, 16, v5\nv_add_u32 v5, s6, v5\nv_lshlrev_b32 v5, 1, v5\nv_add_u32 v5, v5, v6\nv_cmp_gt_u32 vcc, 16, v2\ns_nop 1\nv_cndmask_b32 v12, v5, v12, vcc")
    a("v_lshrrev_b32 v5, 2, v4\nv_lshlrev_b32 v5, 1, v5\nv_add_u32 v5, v5, v7\nv_add_u32 v5, 16, v5\nv_and_b32 v8, 10, v4\nv_cmp_eq_u32 vcc, 0, v8")
    a(f"v_mov_b32 v8, {OOB//2:#x}\ns_nop 0\nv_cndmask_b32 v5, v8, v5, vcc\nv_add_u32 v14, 16, v4\nv_cmp_gt_u32 vcc, 4, v4\ns_nop 1\nv_cndmask_b32 v14, v8, v14, vcc\ns_cmp_eq_u32 s19, 3\ns_cselect_b64 vcc, -1, 0\nv_cndmask_b32 v5, v5, v14, vcc\ns_bitcmp1_b32 s19, 0\ns_cselect_b64 vcc, -1, 0\nv_cndmask_b32 v5, v4, v5, vcc\nv_lshlrev_b32 v5, 1, v5\nv_mul_u32_u24 v6, {4*40}, v3\nv_add_u32 v13, v5, v6")
    a("s_waitcnt lgkmcnt(0)")
    srd(a, 8, 4, WS_SIZE); srd(a, 20, 16, 640 * 1280)
    lskip = a.label("pqs")
    a(f"s_cmp_ge_u32 s3, 40\ns_cbranch_scc1 {lskip}")
    a("s_cmp_ge_u32 s19, 2\ns_cselect_b32 s32, s34, s32\ns_cselect_b32 s33, s35, s33\ns_cmp_ge_u32 s19, 4\ns_cselect_b32 s7, 0, 25600")
    a("s_mov_b32 s40, s32\ns_mov_b32 s41, s33\ns_mov_b32 s42, s7\ns_mov_b32 s43, 0x20000")
    for q in range(2):
        a(f"s_add_u32 s6, s18, {q}\ns_mul_i32 s28, s6, {16*1280}\ns_mul_i32 s29, s6, {16*40}")
        b = 20 + 12*q
        loads8(a, 20, 10, b, b+24, 28, E_PERM, 1280, 30)
        loads8(a, 20, 12, b+8, b+32, 28, E_PERM, 1280, 30)
        a("s_mov_b32 exec_lo, 0xffff\ns_mov_b32 exec_hi, 0xffff")
        loads8(a, 20, 11, b+4, b+28, 28, E_PERM, 1280, 30)
        a("s_mov_b32 exec_lo, 0xffff0000\ns_mov_b32 exec_hi, 0xffff0000")
        loads8(a, 40, 13, b+4, b+28, 29, E_PERM, 40, 30)
        a("s_mov_b64 exec, -1")
        if q == 0: a("s_waitcnt vmcnt(16)")
    a(f"s_mul_i32 s6, s19, 40\ns_add_u32 s6, s6, s18\ns_mul_i32 s6, s6, 3072\ns_add_u32 s6, s6, {WS_WQKV:#x}\ns_waitcnt vmcnt(0)")
    for i in range(24): a(f"v_lshl_or_b32 v{20+i}, v{44+i}, 16, v{20+i}")
    for q in range(2):
        for ft in range(3): a(f"buffer_store_dwordx4 v[{20+12*q+4*ft}:{23+12*q+4*ft}], v1, s[8:11], s6 offen offset:{ft*1024} sc1")
        a("s_add_u32 s6, s6, 3072")
    a(f"{lskip}:\ns_barrier")
    get_nonce(a)
    a("s_barrier")
    a(f"L_{N}_p0end:\ns_waitcnt vmcnt(0)\ns_barrier")
    l = a.label("nf")
    a(f"s_cmp_lg_u32 s14, 0\ns_cbranch_scc1 {l}")
    handoff_publish(a, 0)
    a(f"{l}:")
    stamp(a, 1)
    a.vmq = []; a.lgq = []
    a("s_lshr_b32 s15, s14, 1\ns_and_b32 s17, s14, 1\ns_lshl_b32 s16, s12, 1\ns_add_u32 s16, s16, s17")
    compute_addr(a, 0); param_base(a)
    RR, NM = 156, 157
    a(f"s_lshl_b32 s3, s17, 8\ns_add_u32 s3, s3, {ST0L}\nv_lshlrev_b32 v7, 3, v2\nv_add_u32 v7, s3, v7")
    areg = lambda s: AF + 8*(s % 2)
    xf = (10, RR, NM)
    a.pre = lambda: a.lg(f"ds_read_b64 v[{RR}:{NM}], v7", ("a", 0))
    c_start(a, areg, xf)
    for s in range(10): c_iter(a, s, s == 0, 10, areg, xf)
    T = WS0
    exchange(a, T)
    R = ACC
    QS = LOG2E / math.sqrt(20.0)
    a(f"s_mul_i32 s3, s17, 5\ns_mul_i32 s6, s15, 3\ns_add_u32 s3, s3, s6\ns_lshl_b32 s3, s3, 10\ns_add_u32 s3, s3, {QL}\nv_add_u32 v7, s3, v1\ns_mov_b32 s7, {f32(QS)}")
    lq, lnk = a.label("q"), a.label("nokv")
    def qunit(i):
        for j in range(8): a(f"v_mul_f32 v{T+j}, s7, v{R+8*i+j}")
        for d in range(4): a(f"v_cvt_pk_bf16_f32 v{T+8+4*i+d}, v{T+2*d}, v{T+2*d+1}")
        a(f"ds_write_b128 v7, v[{T+8+4*i}:{T+11+4*i}] offset:{i*1024}")
    a(f"s_cmp_eq_u32 s15, 0\ns_cbranch_scc1 {lq}\ns_cmp_ge_u32 s13, 4\ns_cbranch_scc1 {lnk}")
    S = R + 16; U = T + 24
    a(f"s_lshr_b32 s6, s16, 3\ns_mul_i32 s19, s6, {KVCH}\ns_add_u32 s19, s19, {WS_KV:#x}\ns_and_b32 s18, s16, 7")
    l1, lv, l2, lk = a.label("k2"), a.label("v"), a.label("k2b"), a.label("kd")
    a(f"s_cmp_eq_u32 s13, 3\ns_cbranch_scc0 {l1}\nv_mov_b32 v{S+4}, 1.0\ns_mov_b32 exec_lo, 0\nv_mov_b32 v{S}, 1.0\ns_mov_b32 exec_lo, -1\n{l1}:")
    for d in range(4): a(f"v_cvt_pk_bf16_f32 v{U+d}, v{S+2*d}, v{S+2*d+1}")
    a(f"s_cmp_ge_u32 s13, 2\ns_cbranch_scc1 {lv}\ns_cmp_eq_u32 s13, 1\ns_cbranch_scc1 {l2}")
    a(f"s_lshl_b32 s18, s18, 10\ns_add_u32 s19, s19, s18\nbuffer_store_dwordx4 v[{U}:{U+3}], v1, s[8:11], s19 offen sc1\ns_branch {lk}")
    a(f"{l2}:\ns_lshl_b32 s18, s18, 8\ns_add_u32 s19, s19, s18\ns_add_u32 s19, s19, 24576\nv_lshrrev_b32 v4, 2, v1\nbuffer_store_dword v{U}, v4, s[8:11], s19 offen sc1\ns_branch {lk}")
    a(f"{lv}:")
    a(f"s_lshl_b32 s3, s14, 11\nv_lshlrev_b32 v4, 5, v2\nv_lshl_add_u32 v4, v3, 3, v4\nv_add_u32 v4, s3, v4")
    a(f"ds_write_b64 v4, v[{U}:{U+1}]\nds_write_b64 v4, v[{U+2}:{U+3}] offset:16")
    a("v_lshrrev_b32 v4, 4, v1\nv_and_b32 v5, 15, v4\nv_lshrrev_b32 v4, 4, v4")
    a(f"v_and_b32 v6, 1, v4\nv_lshlrev_b32 v6, 4, v6\nv_lshl_add_u32 v6, v3, 2, v6\nv_lshrrev_b32 v{U+8}, 2, v5\nv_add_u32 v6, v6, v{U+8}\nv_lshlrev_b32 v6, 5, v6\nv_and_b32 v{U+8}, 3, v5\nv_lshl_add_u32 v6, v{U+8}, 3, v6\nv_add_u32 v6, s3, v6")
    a("s_waitcnt lgkmcnt(0)")
    a(f"ds_read_b64_tr_b16 v[{U+4}:{U+5}], v6\nds_read_b64_tr_b16 v[{U+6}:{U+7}], v6 offset:256")
    a("v_and_b32 v6, 1, v4\nv_lshlrev_b32 v6, 10, v6\nv_lshl_add_u32 v6, v3, 9, v6\nv_lshl_add_u32 v6, v5, 4, v6")
    a(f"s_lshl_b32 s18, s18, 11\ns_add_u32 s19, s19, s18\ns_add_u32 s19, s19, 8192\ns_cmp_eq_u32 s13, 2\ns_cselect_b32 s6, 256, 0\ns_add_u32 s19, s19, s6")
    a(f"s_waitcnt lgkmcnt(0)\nbuffer_store_dwordx4 v[{U+4}:{U+7}], v6, s[8:11], s19 offen sc1")
    a(f"{lk}:")
    qunit(0); qunit(1)
    a(f"s_waitcnt lgkmcnt(0)\ns_barrier\ns_lshl_b32 s6, s12, 2\ns_add_u32 s6, s6, s13\ns_lshl_b32 s6, s6, 7\ns_add_u32 s6, s6, {FG_KV:#x}")
    wg_flag(a, CTL + 64, 2, 6)
    a(f"s_branch L_{N}_att")
    a(f"{lq}:")
    qunit(2)
    a(f"{lnk}:")
    qunit(0); qunit(1)
    a(f"L_{N}_qdone:\ns_waitcnt lgkmcnt(0)\ns_barrier")
    stamp(a, 2)
    a(f"s_branch L_{N}_att")
    a(f"L_{N}_p0other:")
    a(f"s_load_dwordx2 s[16:17], s[0:1], {KA['dbg']}\ns_load_dwordx4 s[32:35], s[0:1], {KA['w_in']}\ns_load_dwordx2 s[52:53], s[0:1], {KA['wo']}\ns_load_dwordx2 s[54:55], s[0:1], {KA['w_out']}\ns_load_dwordx2 s[44:45], s[0:1], {KA['out']}")
    lnz, ln6, lnp, lnc = a.label("nz"), a.label("n6"), a.label("np"), a.label("nc")
    a(f"s_cmp_lg_u32 s14, 4\ns_cbranch_scc1 {lnz}\nv_lshrrev_b32 v8, 2, v1\nv_add_u32 v8, {CTL}, v8\nv_mov_b32 v9, 0\nds_write_b32 v8, v9 offset:0")
    a(f"s_lshr_b32 s3, s2, 3\ns_cmp_ge_u32 s3, 8\ns_cbranch_scc1 {lnz}\ns_getpc_b64 s[40:41]\n{lnc}:\ns_sub_u32 s40, s40, {lnc}-{KNAME}\ns_subb_u32 s41, s41, 0\ns_lshl_b32 s3, s3, 13\nv_lshlrev_b32 v8, 3, v1\nv_add_u32 v8, s3, v8\nv_min_u32 v8, {text_end}-{KNAME}-4, v8\nglobal_load_dword v20, v8, s[40:41]\n{lnz}:")
    a("s_waitcnt lgkmcnt(0)")
    srd(a, 8, 4, WS_SIZE)
    ln5 = a.label("n5")
    a(f"s_cmp_lg_u32 s14, 5\ns_cbranch_scc1 {ln5}\ns_lshr_b32 s3, s2, 3\ns_mul_i32 s3, s3, {26*128}\ns_add_u32 s3, s3, {WS_FG:#x}\nv_lshlrev_b32 v8, 3, v1\ns_mov_b64 exec, {(1<<26)-1:#x}\nbuffer_load_dword v20, v8, s[8:11], s3 offen sc1\ns_mov_b64 exec, -1\n{ln5}:")
    a(f"s_cmp_lg_u32 s14, 6\ns_cbranch_scc1 {ln6}")
    srd(a, 20, 16, 256)
    a(f"v_mov_b32 v8, 0\ns_cmp_lg_u32 s2, 0\ns_cbranch_scc1 {lnp}\ns_memrealtime s[18:19]\ns_waitcnt lgkmcnt(0)\ns_lshl_b32 s18, s18, 5\ns_or_b32 s18, s18, 16\nv_mov_b32 v9, s18\ns_mov_b64 exec, 1\nbuffer_store_dword v9, v8, s[20:23], 0 offen sc1\ns_mov_b64 exec, -1")
    a(f"{lnp}:\ns_mov_b32 s29, 0x8000\n{lnp}l:\nbuffer_load_dword v9, v8, s[20:23], 0 offen sc1\ns_waitcnt vmcnt(0)\nv_readfirstlane_b32 s50, v9\ns_sub_u32 s29, s29, 1\ns_cbranch_scc1 {lnp}x\ns_cmp_eq_u32 s50, 0\ns_cbranch_scc1 {lnp}l\n{lnp}x:")
    xid_publish(a, WS_FL1)
    a(f"v_mov_b32 v8, {CTL+256}\nv_mov_b32 v9, s50\nds_write_b32 v8, v9\ns_waitcnt lgkmcnt(0)\n{ln6}:")
    a("s_barrier")
    get_nonce(a)
    a("s_barrier\ns_barrier")
    a(f"s_cmp_ge_u32 s14, 6\ns_cbranch_scc1 L_{N}_p1load")
    a(f"s_mov_b32 s24, 12\nL_{N}_p1idle:\ns_barrier\ns_sub_u32 s24, s24, 1\ns_cmp_lg_u32 s24, 0\ns_cbranch_scc1 L_{N}_p1idle\ns_branch L_{N}_idle")
    a(f"L_{N}_p1load:")
    a.vmq = []; a.lgq = []
    a(f"s_sub_u32 s15, s14, 6\ns_mul_i32 s20, s15, 3072\ns_lshl_b32 s21, s15, 11\ns_add_u32 s21, s21, 12288\ns_lshr_b32 s22, s15, 1\ns_and_b32 s23, s15, 1\ns_lshl_b32 s16, s12, 1\ns_add_u32 s16, s16, s23")
    a(f"s_mul_i32 s18, s16, {40*1024}\ns_mul_i32 s3, s22, {20*1024}\ns_add_u32 s18, s18, s3\ns_add_u32 s18, s18, {WS_XH:#x}")
    a(f"s_mul_i32 s19, s13, {40*3072}\ns_mul_i32 s3, s22, {20*3072}\ns_add_u32 s19, s19, s3\ns_mul_i32 s3, s23, 3072\ns_add_u32 s19, s19, s3\ns_add_u32 s19, s19, {WS_WQKV:#x}")
    a(f"v_lshrrev_b32 v4, 4, v1\nv_lshlrev_b32 v5, 7, v4\nv_add_u32 v5, {FG_MOD:#x}, v5\ns_lshl_b32 s3, s12, 8\ns_add_u32 s3, s3, {WS_FL0 - 160:#x}\nv_lshlrev_b32 v6, 2, v4\nv_add_u32 v6, s3, v6\nv_cmp_lt_u32 vcc, 39, v4\ns_nop 1\nv_cndmask_b32 v5, v5, v6, vcc")
    a(f"s_lshl_b32 s3, s13, 10\ns_add_u32 s3, s3, {FG_PQ - 42*128:#x}\nv_min_u32 v6, 46, v4\nv_lshlrev_b32 v6, 7, v6\nv_add_u32 v6, s3, v6\nv_cmp_lt_u32 vcc, 41, v4\ns_nop 1\nv_cndmask_b32 v5, v5, v6, vcc")
    wg_poll(a, CTL + 56, lambda: a("buffer_load_dword v6, v5, s[8:11], 0 offen sc1\ns_waitcnt vmcnt(0)\nv_cmp_ne_u32 vcc, s50, v6"))
    stamp(a, 1)
    a(f"s_lshl_b32 s3, s15, 10\ns_add_u32 m0, s3, {PAR}\ns_add_u32 s6, s3, {WS_MOD}")
    a.vm("buffer_load_dwordx4 v1, s[8:11], s6 offen sc1 lds", "par")
    a(f"s_mov_b32 m0, {PAR + 4096}\ns_mov_b32 s6, {WS_MOD + 4096}")
    a.vm("buffer_load_dwordx4 v1, s[8:11], s6 offen sc1 lds", "par")
    a(f"s_mov_b32 m0, {ST0L}\ns_lshl_b32 s6, s12, 9\ns_add_u32 s6, s6, {WS_ST0:#x}\ns_mov_b32 exec_hi, 0")
    a.vm("buffer_load_dwordx4 v1, s[8:11], s6 offen sc1 lds", "par")
    a("s_mov_b32 exec_hi, -1")
    def issue(s):
        slot = s % NS
        a(f"s_add_u32 m0, s21, {slot*STG}\ns_nop 0")
        for q in range(2): a.vm(f"buffer_load_dwordx4 v1, s[8:11], s18 offen offset:{q*1024} sc1 lds", ("st", s))
        a(f"s_add_u32 m0, s20, {slot*STG}\ns_add_u32 s18, s18, 2048")
        for i in range(3): a.vm(f"buffer_load_dwordx4 v1, s[8:11], s19 offen offset:{i*1024} sc1 lds", ("st", s))
        a("s_add_u32 s19, s19, 6144")
    issue(0); issue(1)
    for s in range(10):
        a.wait(vm=[("st", s)])
        a("s_barrier")
        if s == 0: issue(2); issue(3)
        if s + DEP < 10: issue(s + DEP)
    a(f"s_barrier\ns_barrier\ns_branch L_{N}_helper")

RA_D = os.environ.get('X_RAD', '1') == '1'
PATCH = PAR6 + 4096
GB_LDS = PAR6 + 3072
X1K, Z1K = 140, 148
def phase_ab_compute(a, g, h, pc, pd):
    a("s_cmp_ge_u32 s14, 3\ns_cselect_b32 s17, 1, 0\ns_mul_i32 s3, s17, 3\ns_sub_u32 s15, s14, s3\ns_lshl_b32 s16, s12, 1\ns_add_u32 s16, s16, s17")
    a.vmq = []; a.lgq = []
    g.addr(a)
    G, XR, T, ST = 88, 104, 112, 124
    UTL = PAR6 + 1024
    unit_off6(a, 22, 5, 0)
    a(f"s_add_u32 s23, s22, {WS_XH:#x}\ns_add_u32 s22, s22, {WS_X1:#x}")
    a(f"s_lshl_b32 s3, s15, 7\ns_add_u32 s3, s3, {PAR6}\nv_lshlrev_b32 v128, 4, v3\nv_add_u32 v128, s3, v128")
    stats_addr(a, WS_ST1, 29)
    flag_addr(a, WS_FL1)
    g.start(a)
    stamp(a, 5)
    a(f"s_add_u32 s30, s29, {WS_ST2 - WS_ST1}\nv_mov_b32 v130, -1\nv_mov_b32 v131, -1\ns_mov_b32 exec_hi, 0")
    a.vm("buffer_store_dwordx2 v[130:131], v1, s[8:11], s30 offen sc1")
    a("s_mov_b32 exec_hi, -1")
    for i in range(2): a.vm(f"buffer_load_dwordx4 v[{XR+4*i}:{XR+4*i+3}], v1, s[8:11], s23 offen offset:{1024*i} sc1", "epi")
    for s in range(10):
        g.iter(a, s, s == 0, 10)
        if s == 4: xid_load(a, WS_FL1, 129)
        if s == 7:
            for i in range(4): a.lg(f"ds_read_b128 v[{G+4*i}:{G+4*i+3}], v128 offset:{32*i}")
        if s == 8:
            a.wait(vm=["epi"])
            xid_decide(a, 129)
            a(f"v_mov_b32 v{ST}, 0\nv_mov_b32 v{ST+1}, 0")
    proj_epilogue(a, g, False, G, XR, T, ST, X1K, None)
    stats_store(a, ST, 29, "sc1")
    handoff_publish(a, WS_FL1)
    SD, U, T, RR, NM, C1, ST = 88, 40, 72, 112, 113, 114, 116
    h.addr(a)
    stats_base(a, 22, WS_ST1); stats_base(a, 30, WS_ST2)
    a(f"s_add_u32 s29, s29, {WS_ST2 - WS_ST1}")
    a(f"s_lshl_b32 s3, s15, 8\ns_add_u32 s3, s3, {UTL}\nv_lshlrev_b32 v115, 5, v3\nv_add_u32 v115, s3, v115")
    a(f"s_mov_b32 s28, {f32(GC2)}\nv_mov_b32 v{C1}, {f32(GC1)}")
    h.start(a)
    stamp(a, 6)
    stats_load(a, SD, 22, "ln", AFL)
    for s in range(20):
        h.iter(a, s, s == 0, 20)
        if s == 8:
            a.wait(vm=["ln"])
            stats_finish(a, SD, 640, RR, NM)
    stamp(a, 7)
    def ut_reads(n):
        for u in range(2):
            for hf in range(2):
                for k in range(2):
                    r = U + 16*u + 8*hf + 4*k
                    a(f"ds_read_b128 v[{r}:{r+3}], v115 offset:{n*768 + u*128 + hf*64 + k*16}")
    def affine(n):
        A = h.ACC + 16*n
        for i in range(16): a(f"v_fma_f32 v{U+2*i+1}, v{U+2*i}, v{NM}, v{U+2*i+1}")
        for i in range(16): a(f"v_fma_f32 v{A+i}, v{A+i}, v{RR}, v{U+2*i+1}")
    Z2, Z1 = h.ACC, h.ACC + 16
    a("s_setprio 1")
    ut_reads(0)
    a("s_waitcnt lgkmcnt(0)\ns_nop 2")
    affine(0)
    ut_reads(1)
    gelu(a, list(range(Z2, Z2+16)), T, C1)
    a(f"v_mov_b32 v{ST}, 0\nv_mov_b32 v{ST+1}, 0")
    for i in range(16): a(f"v_add_f32 v{ST}, v{ST}, v{Z2+i}\nv_fmac_f32 v{ST+1}, v{Z2+i}, v{Z2+i}")
    stats_store(a, ST, 29, "sc1")
    a("s_setprio 0")
    a("s_waitcnt lgkmcnt(0)")
    affine(1)
    gelu(a, list(range(Z1, Z1+16)), T, C1)
    stats_load(a, SD, 30, "st2", "sc1")
    for i in range(8): a(f"v_cvt_pk_bf16_f32 v{Z1K+i}, v{Z1+2*i}, v{Z1+2*i+1}")
    a(f"s_mul_i32 s6, s17, {32*ZROW}\ns_lshl_b32 s7, s15, 6\ns_add_u32 s6, s6, s7\ns_add_u32 s6, s6, {PATCH}\nv_mul_u32_u24 v4, {ZROW}, v2\nv_lshl_add_u32 v4, v3, 3, v4\nv_add_u32 v4, s6, v4")
    a(f"v_bfe_u32 v5, v0, 2, 2\nv_lshl_add_u32 v5, v3, 3, v5\nv_mul_u32_u24 v5, {ZROW}, v5\nv_and_b32 v6, 3, v0\nv_lshl_add_u32 v5, v6, 3, v5\nv_bfe_u32 v6, v0, 4, 1\nv_lshl_add_u32 v5, v6, 5, v5\nv_add_u32 v5, s6, v5")
    a(f"s_lshl_b32 s6, s13, 7\ns_lshl_b32 s7, s16, 1\ns_add_u32 s6, s6, s7\ns_mul_i32 s6, s6, 3\ns_add_u32 s6, s6, s15\ns_lshl_b32 s6, s6, 10\ns_add_u32 s26, s6, {WS_Z2T:#x}")
    a.wait(vm=["st2"])
    a("s_mov_b32 s29, 0x4000")
    lp, lok = a.label("poll"), a.label("ok")
    a(f"{lp}:")
    a(f"v_or_b32 v{ST}, v{SD+1}, v{SD+3}")
    for i in range(2, 12): a(f"v_or_b32 v{ST}, v{ST}, v{SD+1+2*i}")
    a(f"v_cmp_gt_i32 vcc, 0, v{ST}\ns_sub_u32 s29, s29, 1\ns_cbranch_scc1 {lok}\ns_cbranch_vccz {lok}")
    stats_load(a, SD, 30, "st2", "sc1")
    a(f"s_waitcnt vmcnt(0)\ns_branch {lp}\n{lok}:")
    stats_finish(a, SD, 768, RR, NM)
    for i in range(16): a(f"v_fma_f32 v{Z2+i}, v{Z2+i}, v{RR}, v{NM}")
    for i in range(8): a(f"v_cvt_pk_bf16_f32 v{T+8+i}, v{Z2+2*i}, v{Z2+2*i+1}")
    for i in range(4): a(f"ds_write_b64 v4, v[{T+8+2*i}:{T+9+2*i}] offset:{16*i}")
    a("s_waitcnt lgkmcnt(0)")
    for p in range(2):
        a(f"ds_read_b64_tr_b16 v[{U+4*p}:{U+4*p+1}], v5 offset:{16*p*ZROW}\nds_read_b64_tr_b16 v[{U+4*p+2}:{U+4*p+3}], v5 offset:{(16*p+4)*ZROW}")
    a("s_waitcnt lgkmcnt(0)")
    for p in range(2): a(f"buffer_store_dwordx4 v[{U+4*p}:{U+4*p+3}], v1, s[8:11], s26 offen offset:{3072*p} sc1")
    a(f"s_lshl_b32 s6, s13, 5\ns_add_u32 s6, s6, s12\ns_lshl_b32 s6, s6, 7\ns_add_u32 s6, s6, {FG_Z2:#x}")
    wg_flag(a, CTL + 68, 6, 6)
    a("s_barrier")
    stamp(a, 8)
    a.vmq = []; a.lgq = []
    B, T, G = 96, 100, 112
    pc.addr(a)
    unit_off6(a, 29, 6, WS_Y)
    flag_addr(a, WS_FL2)
    a(f"s_load_dwordx2 s[32:33], s[0:1], {KA['b_sp']}\ns_load_dwordx2 s[44:45], s[0:1], {KA['out']}\nv_lshlrev_b32 v97, 1, v2\ns_lshl_b32 s6, s16, 6\ns_waitcnt lgkmcnt(0)")
    srd(a, 24, 32, 4096)
    a(f"buffer_load_ushort v{B}, v97, s[24:27], s6 offen")
    for i in range(16): a(f"v_mov_b32 v{pc.ACC+i}, 0")
    pc.start(a)
    stamp(a, 9)
    a("s_mov_b32 s30, 5\nL_k_cloop:")
    for s in range(6): pc.iter(a, s, False, 32)
    a("s_sub_u32 s30, s30, 1\ns_cmp_lg_u32 s30, 0\ns_cbranch_scc1 L_k_cloop")
    a.lgq = [(t[0], t[1] + 24, t[2]) if isinstance(t, tuple) else t for t in a.lgq]
    a(f"s_waitcnt vmcnt(0)\nv_lshlrev_b32 v{B}, 16, v{B}")
    for s in range(30, 32): pc.iter(a, s, False, 32)
    stamp(a, 10)
    R = pc.ACC
    a("s_nop 11")
    for i in range(2):
        for d in range(4):
            z = Z1K + 4*i + d; r = R + 8*i + 2*d; t = T + 2*(d % 2)
            a(f"v_add_f32 v{r}, v{r}, v{B}\nv_add_f32 v{r+1}, v{r+1}, v{B}\nv_lshlrev_b32 v{t}, 16, v{z}\nv_and_b32 v{t+1}, 0xffff0000, v{z}\nv_mul_f32 v{r}, v{r}, v{t}\nv_mul_f32 v{r+1}, v{r+1}, v{t+1}\nv_cvt_pk_bf16_f32 v{T+4+4*i+d}, v{r}, v{r+1}")
        hstore(a, f"buffer_store_dwordx4 v[{T+4+4*i}:{T+7+4*i}], v1, s[8:11], s29 offen offset:{1024*i}")
    handoff_publish(a, WS_FL2)
    if not RA_D: a("s_barrier")
    srd(a, 24, 44, 2048 * 1280)
    a(f"s_lshl_b32 s3, s15, 7\ns_add_u32 s3, s3, {GB_LDS}\nv_lshlrev_b32 v136, 4, v3\nv_add_u32 v136, s3, v136")
    a(f"v_mul_u32_u24 v137, 1280, v2\nv_lshl_add_u32 v137, v3, 4, v137\ns_mul_i32 s28, s16, {32*1280}\ns_mul_i32 s6, s13, 160\ns_add_u32 s28, s28, s6\ns_lshl_b32 s6, s15, 6\ns_add_u32 s28, s28, s6")
    pd.start(a)
    for s in range(12):
        pd.iter(a, s, s == 0, 12)
        if s == 9:
            for i in range(4): a.lg(f"ds_read_b128 v[{G+4*i}:{G+4*i+3}], v136 offset:{32*i}")
    proj_epilogue(a, pd, True, G, X1K, 100, None, 104, 137)
    a("s_branch L_k_end")

def kmain():
    K2T = os.environ.get("X_K2T"); SYNC = os.environ.get("X_SYNC", "bar")
    a = K("k"); GA = G6(4, 1, 3); GB = G6(2, 2, 13); GC = G6(4, 1, 33); GD = G6(4, 1, 65)
    p01(a, "L_k_textend")
    SA = [(8, 24), (40, 56)]; OO = [72, 88]; PP = [104, 112]; QQ1 = [120, 128]; QQ2 = [124, 132]
    KA_, KB_, V1, V2 = 136, 140, 144, 148
    VA, VB, VN, VNB, DUM, OA, CA = 4, 5, 6, 152, 153, 154, 160
    NB = 6
    FLAG = NB * KVCH
    a("L_k_att:")
    a.vmq = []; a.lgq = []
    a("v_lshrrev_b32 v7, 2, v1")
    a("s_lshr_b32 s15, s14, 1\ns_and_b32 s16, s14, 1\ns_lshl_b32 s16, s16, 1\ns_lshl_b32 s17, s12, 1\ns_add_u32 s17, s17, s15")
    a(f"s_mul_i32 s3, s15, 5120\ns_add_u32 s3, s3, {QL}\ns_lshl_b32 s6, s16, 2\ns_add_u32 s6, s6, s3\nv_add_u32 v9, s6, v1\ns_lshl_b32 s6, s16, 10\ns_add_u32 s3, s3, s6\nv_add_u32 v8, s3, v1")
    for X in range(2):
        a(f"ds_read_b128 v[{QQ1[X]}:{QQ1[X]+3}], v8 offset:{1024*X}\nds_read_b32 v{QQ2[X]}, v9 offset:{4096+4*X}")
    def qk1(X, S): return f"v_mfma_f32_32x32x16_bf16 v[{S}:{S+15}], v[{KB_}:{KB_+3}], v[{QQ2[X]}:{QQ2[X]+3}], 0"
    def qk2(X, S): return f"v_mfma_f32_32x32x16_bf16 v[{S}:{S+15}], v[{KA_}:{KA_+3}], v[{QQ1[X]}:{QQ1[X]+3}], v[{S}:{S+15}]"
    def pv(X, V, P): return f"v_mfma_f32_32x32x16_bf16 v[{OO[X]}:{OO[X]+15}], v[{V}:{V+3}], v[{P}:{P+3}], v[{OO[X]}:{OO[X]+15}]"
    def rKA(t, va): return f"ds_read_b128 v[{KA_}:{KA_+3}], v{va} offset:{t*1024}"
    def rKB(t, vb): return f"ds_read_b32 v{KB_}, v{vb} offset:{24576+t*256}"
    def rV(t, p, va): return f"ds_read_b128 v[{(V1, V2)[p]}:{(V1, V2)[p]+3}], v{va} offset:{8192+t*2048+p*1024}"
    def scores():
        for X in range(2): a(qk1(X, SA[X][0]))
        for X in range(2): a(qk2(X, SA[X][0]))
    def max_reduce():
        for X in range(2):
            for i in range(0, 16, 2): a(f"v_max3_f32 v{PP[X]}, v{SA[X][0]+i}, v{SA[X][0]+i+1}, v{PP[X]}")
    def finish_max():
        a("v_cmp_eq_u32 vcc, 0, v3")
        for X in range(2):
            M = PP[X]
            a(f"v_mov_b32 v{M+1}, v{M}\ns_nop 1\nv_permlane32_swap_b32 v{M}, v{M+1}\ns_nop 1\nv_max_f32 v{M}, v{M}, v{M+1}")
            a(f"v_and_b32 v{M+1}, 0xffff0000, v{M}\nv_sub_f32 v{M+2}, v{M}, v{M+1}\nv_and_b32 v{M+3}, 0xffff0000, v{M+2}\nv_sub_f32 v{M+2}, v{M+2}, v{M+3}")
            a(f"v_lshrrev_b32 v{M+1}, 16, v{M+1}\nv_or_b32 v{M+1}, v{M+1}, v{M+3}\nv_lshrrev_b32 v{M+2}, 16, v{M+2}")
            a(f"v_cndmask_b32 v{QQ2[X]+1}, 0, v{M+1}, vcc\nv_cndmask_b32 v{QQ2[X]+2}, 0, v{M+2}, vcc")
    def reset_max():
        for X in range(2): a(f"v_mov_b32 v{QQ2[X]+1}, 0\nv_mov_b32 v{QQ2[X]+2}, 0\nv_mov_b32 v{PP[X]}, 0xff800000")
    a(f"s_lshl_b32 s38, s12, 8\ns_lshl_b32 s6, s13, 2\ns_add_u32 s6, s6, s14\ns_lshl_b32 s6, s6, 2\ns_add_u32 s38, s38, s6\ns_add_u32 s38, s38, {WS_FL0+32:#x}\ns_mov_b32 s39, 0\ns_lshl_b32 s51, s14, 2\ns_add_u32 s51, s51, {FLAG}")
    reset_max()
    for r in (QQ2[0]+3, QQ2[1]+3, KB_+3): a(f"v_mov_b32 v{r}, 0")
    for r in (KB_+1, KB_+2): a(f"v_mov_b32 v{r}, 0xbf80bf80")
    def main_init():
        a(f"s_mov_b32 s24, 0\ns_mov_b32 s25, {KVCH}\nv_mov_b32 v{VNB}, {FLAG+68}\nv_mov_b32 v{VA}, v1\nv_mov_b32 v{VN}, v1\nv_mov_b32 v{VB}, v7")
        for X in range(2):
            for i in range(16): a(f"v_mov_b32 v{OO[X]+i}, 0")
            for i in range(4): a(f"v_mov_b32 v{SA[X][1]+12+i}, 0")
        for i in range(4): a(f"v_mov_b32 v{V2+i}, 0")
    main_init()
    a(f"s_mul_i32 s6, s13, 20\ns_mul_i32 s7, s16, 5\ns_add_u32 s6, s6, s7\ns_mul_i32 s22, s17, {40*1024}\ns_add_u32 s22, s22, {WS_O:#x}")
    for X in range(2):
        for i, g in enumerate((0, 2, 4)):
            a(f"v_add_u32 v8, s6, v3\nv_add_u32 v8, {5*X+g}, v8" if g < 4 else f"v_mov_b32 v8, s6\nv_add_u32 v8, {5*X+4}, v8")
            a(f"v_lshrrev_b32 v9, 2, v8\nv_lshlrev_b32 v9, 10, v9\nv_and_b32 v10, 1, v8\nv_lshl_add_u32 v9, v10, 9, v9\nv_bfe_u32 v10, v8, 1, 1\nv_lshl_add_u32 v9, v10, 3, v9\nv_lshl_add_u32 v{OA+3*X+i}, v2, 4, v9")
    a(f"v_mov_b32 v{CA}, {FLAG+32}\nv_mov_b32 v{CA+2}, 0\nv_mov_b32 v{CA+3}, 0\nv_mov_b32 v{CA+1}, 1")
    a("s_waitcnt vmcnt(0) lgkmcnt(0)\ns_barrier")
    stamp(a, 3)
    a(rKA(0, 1)); a(rKB(0, 7)); a("s_waitcnt lgkmcnt(0)")
    scores()
    a("s_nop 10")
    max_reduce()
    finish_max()
    a("L_k_main:")
    for X in range(2):
        for i in range(2): a(f"v_mov_b32 v{PP[X]+4+i}, 0")
    scores()
    a(rKB(1, VB)); a(f"ds_read_b32 v{DUM}, v{VB}"); a(rKA(1, VA)); a(rV(0, 0, VA))
    a("s_nop 5")
    slow = []
    a("L_k_loop:")
    for t in range(8):
        kt, vt = (t + 2) % 8, (t + 1) % 8
        if PROF and os.environ.get("X_GT"):
            if t == 0: a("s_memtime s[80:81]")
            if t == 3: a("s_lshl_b32 m0, s24, 1\ns_nop 0\ns_movreld_b32 s56, s80")
        for gi in range(4):
            for X in range(2):
                S, Sp = (SA[X][0], SA[X][1]) if t % 2 == 0 else (SA[X][1], SA[X][0])
                P = PP[X]
                cv, mf, rd = [([(6, Sp+12), (7, Sp+14)], qk1(X, Sp), rKB(kt, VB)),
                              ([(0, S), (1, S+2)], pv(X, V2, P+4), rV(t, 1, VN)),
                              ([(2, S+4), (3, S+6)], qk2(X, Sp), rKA(kt, VA)),
                              ([(4, S+8), (5, S+10)], pv(X, V1, P), rV(vt, 0, VN))][gi]
                for d, r in cv: a(f"v_cvt_pk_bf16_f32 v{P+d}, v{r}, v{r+1}")
                if gi % 2 == 0 and X == 0: a("s_waitcnt lgkmcnt(2)")
                a(mf)
                if X == 1: a(rd)
                if X == 0 and (t, gi) == (5, 0):
                    ls, l2, l5 = a.label("bs"), a.label("g2"), a.label("g5")
                    a(f"s_cmp_eq_u32 s24, 5\ns_cselect_b32 s26, {-5*KVCH}, s25\ns_bitcmp1_b32 0x67, s24\ns_cbranch_scc0 {ls}\ns_bitcmp1_b32 0x44, s24\ns_cbranch_scc1 {l2}\ns_cmp_eq_u32 s24, 5\ns_cbranch_scc1 {l5}\ns_barrier\ns_branch {ls}")
                    a(f"{l2}:\ns_mov_b64 exec, 1\nds_add_u32 v{CA}, v{CA+1}\ns_mov_b64 exec, -1\ns_branch {ls}")
                    a(f"{l5}:\nds_read_b32 v{DUM}, v{CA} offset:4\ns_waitcnt lgkmcnt(0)\nv_readfirstlane_b32 s3, v{DUM}\ns_cmp_lt_u32 s3, 4\ns_cbranch_scc1 {l5}")
                    xid_load(a, WS_FL1, VNB)
                    a(f"{ls}:")
                if X == 0 and (t, gi) == (6, 0): a(f"v_add_u32 v{VB}, s26, v{VB}\nv_add_u32 v{VA}, s26, v{VA}")
                if X == 0 and (t, gi) == (7, 2): a(f"v_add_u32 v{VN}, s26, v{VN}")
                for i in range(4): a(f"v_exp_f32 v{S+4*gi+i}, v{S+4*gi+i}")
    a("s_add_u32 s24, s24, 1\ns_cmp_lt_u32 s24, 8\ns_cbranch_scc1 L_k_loop")
    for X in range(2):
        a(f"v_cvt_pk_bf16_f32 v{PP[X]+6}, v{SA[X][1]+12}, v{SA[X][1]+13}\nv_cvt_pk_bf16_f32 v{PP[X]+7}, v{SA[X][1]+14}, v{SA[X][1]+15}")
    a("s_waitcnt vmcnt(0)")
    xid_decide(a, VNB)
    a("s_waitcnt lgkmcnt(0)\nv_cmp_eq_u32 vcc, 0, v3")
    for X in range(2): a(pv(X, V2, PP[X]+4))
    a(f"v_mov_b32 v{KA_}, {f32(2.0**30)}\nv_mov_b32 v{KA_+1}, {f32(2.0**-30)}\ns_mov_b64 s[28:29], 0\nv_mov_b32 v{V1+1}, s51\ns_nop 7")
    if not os.environ.get("X_GT"): stamp(a, 4)
    a("s_cmp_eq_u32 s39, 1\ns_cbranch_scc1 L_k_rb")
    for X in range(2):
        O, T, L = OO[X], SA[X][0], PP[X]
        a(f"v_cndmask_b32 v{L}, v{O}, v{O+4}, vcc\nv_rcp_f32 v{L+1}, v{L}")
        a(f"v_cmp_nle_f32 s[30:31], v{L}, v{KA_}\ns_or_b64 s[28:29], s[28:29], s[30:31]\nv_cmp_nge_f32 s[30:31], v{L}, v{KA_+1}\ns_or_b64 s[28:29], s[28:29], s[30:31]")
        for i, r in enumerate((8, 9, 10, 11, 12, 13, 14, 15, 0, 1, 2, 3)): a(f"v_mul_f32 v{T+6+i}, v{O+r}, v{L+1}")
        for d in range(6): a(f"v_cvt_pk_bf16_f32 v{T+d}, v{T+6+2*d}, v{T+7+2*d}")
        hstore(a, f"buffer_store_dwordx2 v[{T}:{T+1}], v{OA+3*X}, s[8:11], s22 offen")
        hstore(a, f"buffer_store_dwordx2 v[{T+2}:{T+3}], v{OA+3*X+1}, s[8:11], s22 offen")
        a("s_mov_b32 exec_hi, 0")
        hstore(a, f"buffer_store_dwordx2 v[{T+4}:{T+5}], v{OA+3*X+2}, s[8:11], s22 offen")
        a("s_mov_b32 exec_hi, -1")
    a(f"s_cmp_eq_u32 s27, 1\ns_cbranch_scc1 L_k_pub")
    lbad = a.label("bad")
    a(f"s_cmp_lg_u64 s[28:29], 0\ns_cselect_b32 s3, 1, 0\nv_mov_b32 v{V1}, s3\nds_write_b32 v{V1+1}, v{V1}\ns_cbranch_scc1 {lbad}")
    handoff_publish(a, WS_FL0)
    a(f"s_mov_b32 s39, 1\n{lbad}:\ns_waitcnt lgkmcnt(0)")
    def vote(lend):
        a(f"s_barrier\nv_mov_b32 v44, {FLAG}\nds_read_b128 v[40:43], v44\ns_waitcnt lgkmcnt(0)")
        for i in range(1, 4): a(f"v_or_b32 v40, v40, v{40+i}")
        a(f"s_nop 0\nv_readfirstlane_b32 s3, v40\ns_cmp_eq_u32 s3, {XCMP}\ns_cbranch_scc1 {lend}\ns_mov_b32 s27, 1")
    vote("L_k_pa")
    reset_max()
    a("s_mov_b32 s24, 0")
    a("L_k_maxloop:")
    a("s_barrier\ns_barrier")
    for t in range(8):
        a(rKA(t, 1)); a(rKB(t, 7)); a("s_waitcnt lgkmcnt(0)")
        scores()
        a("s_nop 10")
        max_reduce()
    a("s_add_u32 s24, s24, 1\ns_cmp_lt_u32 s24, 8\ns_cbranch_scc1 L_k_maxloop")
    finish_max()
    main_init()
    a(f"s_barrier\nds_write_b64 v{CA}, v[{CA+2}:{CA+3}]\ns_waitcnt lgkmcnt(0)\ns_barrier")
    a(rKA(0, 1)); a(rKB(0, 7)); a("s_waitcnt lgkmcnt(0)")
    a("s_branch L_k_main")
    for x in slow: a(x)
    a("L_k_pub:")
    handoff_publish(a, WS_FL0)
    a("L_k_rb:\ns_barrier")
    a("L_k_pa:")
    phase_ab_compute(a, GA, GB, GC, GD)
    a("L_k_idle:")
    a("s_barrier\ns_barrier\ns_barrier")
    a("v_lshlrev_b32 v4, 3, v1")
    def touch(srdn, base, per_rb, per_nb, nbytes):
        a(f"s_mul_i32 s28, s12, {per_rb}\ns_mul_i32 s3, s13, {per_nb}\ns_add_u32 s28, s28, s3\ns_add_u32 s28, s28, {base:#x}")
        n = nbytes // 128
        while n > 0:
            m = min(n, 64)
            if m < 64: a(f"s_mov_b32 exec_lo, {(1 << min(m, 32)) - 1:#x}\ns_mov_b32 exec_hi, {(1 << max(m - 32, 0)) - 1:#x}")
            a(f"buffer_load_dword v8, v4, s[{srdn}:{srdn+3}], s28 offen")
            n -= m
            if n > 0: a("s_add_u32 s28, s28, 8192")
        a("s_mov_b64 exec, -1")
    lt1, lt2 = a.label("pt"), a.label("pt")
    a(f"s_cmp_eq_u32 s14, 5\ns_cbranch_scc1 {lt1}")
    touch(8, WS_O, 81920, 10240, 10240); touch(8, WS_X1, 81920, 10240, 10240); touch(8, WS_ST1, 12288, 1536, 1536); touch(8, WS_ST2, 12288, 1536, 1536)
    a(f"s_branch {lt2}\n{lt1}:")
    touch(8, WS_Y, 98304, 12288, 12288)
    srd(a, 40, 44, 2048 * 1280)
    touch(40, 0, 81920, 10240, 10240)
    a(f"{lt2}:\ns_waitcnt vmcnt(0)")
    vote("L_k_pa")
    a("s_mov_b32 s24, 21\nL_k_idleb:\ns_barrier\ns_sub_u32 s24, s24, 1\ns_cmp_lg_u32 s24, 0\ns_cbranch_scc1 L_k_idleb\ns_branch L_k_pa")
    a("L_k_helper:")
    a(f"s_setprio {os.environ.get('X_HPRIO', '2')}")
    a(f"s_lshl_b32 s47, s15, 10\ns_add_u32 s46, s47, {WS_KV:#x}\ns_mov_b32 s30, {FG_KV:#x}")
    a("v_lshlrev_b32 v4, 3, v1")
    wg_poll(a, CTL + 60, lambda: poll_lines(a, 30, 128))
    stamp(a, 2)
    THR = int(os.environ.get("X_THR", "9"))
    def dma(goff, loff):
        ld = a.label("d")
        for i in range(7):
            if i == 6: a(f"s_cmp_ge_u32 s15, 2\ns_cbranch_scc1 {ld}")
            if goff and i > THR: a(f"s_waitcnt vmcnt({THR})")
            a(f"s_add_u32 m0, s47, {loff + i*4096}\ns_add_u32 s48, s46, {goff + i*4096}\nbuffer_load_dwordx4 v1, s[8:11], s48 offen sc1 lds")
        a(f"{ld}:")
    a("L_k_hmain:")
    dma(0, 0)
    a("s_waitcnt vmcnt(0)\ns_barrier")
    if os.environ.get("X_K2T") == "1": a("s_branch L_k_end")
    a(f"v_mov_b32 v6, {FLAG+32}\nv_mov_b32 v7, 1")
    dma(KVCH, KVCH); dma(2*KVCH, 2*KVCH)
    a("s_waitcnt vmcnt(0)\ns_barrier")
    for g in (3, 4, 5): dma(g*KVCH, g*KVCH)
    a("s_waitcnt vmcnt(0)\ns_barrier")
    lns = a.label("noside")
    if os.environ.get("X_K2T") == "2": a("s_branch L_k_end")
    a(f"s_cmp_lg_u32 s27, 0\ns_cbranch_scc1 {lns}")
    a(f"v_lshlrev_b32 v4, 3, v1\ns_mov_b32 s30, {FG_MOD:#x}")
    wg_poll(a, CTL + 40, lambda: poll_lines(a, 30, 120))
    pack_weights(a)
    a(f"s_lshl_b32 s6, s2, 7\ns_add_u32 s6, s6, {FG_PACK:#x}")
    wg_flag(a, CTL + 44, 4, 6)
    a(f"{lns}:")
    lw = a.label("wdone")
    a(f"v_mov_b32 v6, {FLAG+32}\nv_mov_b32 v7, 1\n{lw}:\nds_read_b32 v8, v6\ns_waitcnt lgkmcnt(0)\nv_readfirstlane_b32 s3, v8\ns_cmp_ge_u32 s3, 4\ns_cbranch_scc1 {lw}x\ns_sleep 8\ns_branch {lw}\n{lw}x:")
    dma(6*KVCH, 0); dma(7*KVCH, KVCH)
    a("s_waitcnt vmcnt(0)\ns_mov_b64 exec, 1\nds_add_u32 v6, v7 offset:4\ns_mov_b64 exec, -1\ns_waitcnt lgkmcnt(0)")
    stamp(a, 4)
    a(f"s_cmp_eq_u32 s27, 1\ns_cbranch_scc1 L_k_ra")
    srd(a, 40, 34, 2048 * 4096)
    a("s_lshl_b32 s17, s12, 1\ns_lshr_b32 s3, s15, 1\ns_add_u32 s17, s17, s3\ns_lshl_b32 s16, s13, 4\ns_and_b32 s3, s15, 1\ns_lshl_b32 s3, s3, 3\ns_add_u32 s16, s16, s3")
    a("s_lshl_b32 s6, s17, 17\ns_lshl_b32 s7, s16, 5\ns_add_u32 s6, s6, s7\nv_lshlrev_b32 v4, 12, v2\nv_lshl_add_u32 v4, v3, 4, v4")
    for i in range(8): a(f"buffer_load_dwordx4 v[{8+4*i}:{11+4*i}], v4, s[40:43], s6 offen offset:{32*i} nt")
    a(f"s_lshl_b32 s6, s17, 7\ns_add_u32 s6, s6, s16\ns_lshl_b32 s6, s6, 10\ns_add_u32 s6, s6, {WS_WSP:#x}")
    xid_load(a, WS_FL1, 40)
    a("s_waitcnt vmcnt(0)")
    xid_decide(a, 40)
    for i in range(8):
        hstore(a, f"buffer_store_dwordx4 v[{8+4*i}:{11+4*i}], v1, s[8:11], s6 offen offset:{(i%4)*1024}")
        if i == 3: a("s_add_u32 s6, s6, 4096")
    stamp(a, 5)
    a(f"s_mov_b32 s30, {FG_PACK:#x}\nv_lshlrev_b32 v4, 3, v1")
    wg_poll(a, CTL + 48, lambda: poll_lines(a, 30, 256))
    a(f"s_lshl_b32 s3, s12, 8\ns_lshl_b32 s6, s13, 2\ns_add_u32 s6, s6, s15\ns_lshl_b32 s6, s6, 2\ns_add_u32 s3, s3, s6\ns_add_u32 s3, s3, {WS_FL3 + 6144 - 6144 + 0x2000:#x}\nv_mov_b32 v8, 0\nv_mov_b32 v9, s50\ns_mov_b64 exec, 1")
    hstore(a, "buffer_store_dword v9, v8, s[8:11], s3 offen")
    a("s_mov_b64 exec, -1")
    if os.environ.get("X_PFA", "2") == "2": prefetch(a, 8, WS_WIN, 1920 * 1024, 4, 15, 8, 4, 28)
    stamp(a, 6)
    a("L_k_ra:")
    a("s_mul_i32 s20, s15, 3072\ns_lshl_b32 s16, s12, 1\ns_lshr_b32 s3, s15, 1\ns_add_u32 s16, s16, s3")
    GA.lsetup(a, WS_O, 40, WS_WO, 18, 19, 21, AFL)
    GB.lsetup(a, WS_X1, 40, WS_WIN, 22, 23, 26, AFL)
    lw2 = a.label("w6")
    a(f"v_mov_b32 v6, {FLAG+32}\n{lw2}:\nds_read_b32 v11, v6\ns_waitcnt lgkmcnt(0)\nv_readfirstlane_b32 s3, v11\ns_cmp_ge_u32 s3, 8\ns_cbranch_scc1 {lw2}x\ns_sleep 8\ns_branch {lw2}\n{lw2}x:")
    a.vmq = []
    a(f"s_mul_i32 s6, s13, 320\ns_add_u32 s6, s6, {WS_MOD + 5120}")
    dma1(a, PAR6, 6, "par")
    a(f"s_add_u32 s6, s6, {12800 - 5120}")
    dma1(a, GB_LDS, 6, "par")
    a(f"s_mul_i32 s6, s13, 1536\ns_lshl_b32 s7, s15, 9\ns_add_u32 s6, s6, s7\ns_add_u32 s6, s6, {WS_UTP:#x}\nv_lshrrev_b32 v10, 1, v1")
    for i in range(10):
        a.vm(f"buffer_load_dwordx2 v[{12+2*i}:{13+2*i}], v10, s[8:11], s6 offen", "ut")
        a(f"s_add_u32 s6, s6, {1536*8}")
    for s in range(3): GA.issue_w(s)
    lu = a.label("nou")
    a.wait(vm=["ut"])
    a(f"s_cmp_eq_u32 s15, 3\ns_cbranch_scc1 {lu}")
    for i in range(1, 10): a(f"v_add_f32 v12, v12, v{12+2*i}\nv_add_f32 v13, v13, v{13+2*i}")
    a(f"s_lshl_b32 s7, s15, 9\ns_add_u32 s7, s7, {PAR6+1024}\nv_add_u32 v10, s7, v10\nds_write_b64 v10, v[12:13]\ns_waitcnt lgkmcnt(0)\n{lu}:")
    stamp(a, 7)
    a("s_cmp_eq_u32 s27, 1\ns_cbranch_scc1 L_k_wend")
    vote("L_k_la")
    a("s_waitcnt vmcnt(0)\ns_mov_b32 s24, 0")
    a("L_k_hmax:")
    a("s_barrier")
    dma(0, 0)
    a(f"s_add_u32 s46, s46, {KVCH}\ns_waitcnt vmcnt(0)\ns_barrier\ns_add_u32 s24, s24, 1\ns_cmp_lt_u32 s24, 8\ns_cbranch_scc1 L_k_hmax")
    a(f"s_add_u32 s46, s47, {WS_KV:#x}\ns_barrier\ns_branch L_k_hmain")
    a("L_k_wend:\ns_barrier")
    a("L_k_la:")
    GA.issue_w(3)
    handoff_wait(a, WS_FL0, 32)
    stamp(a, 8)
    for s in range(DEP6): GA.issue_a(s)
    for s in range(10): GA.lstep(s, 10, GB.issue_w)
    handoff_wait(a, WS_FL3 + 0x2000 - 32, 32)
    handoff_wait(a, WS_FL1, 48)
    for s in range(DEP6): GB.issue_a(s)
    GC.lsetup(a, WS_WSP, 128, WS_Z2T, 18, 19, 21, AFL, AFL)
    for s in range(20): GB.lstep(s, 20)
    a("s_barrier")
    for s in range(DEP6): GC.issue_a(s)
    GD.lsetup(a, WS_Y, 48, WS_WOUT, 22, 23, 26, AFL)
    a(f"s_lshl_b32 s30, s13, 12\ns_add_u32 s30, s30, {FG_Z2:#x}\nv_lshlrev_b32 v4, 7, v2")
    wg_poll(a, CTL + 52, lambda: poll_lines(a, 30, 32))
    stamp(a, 9)
    for s in range(DEP6): GC.issue_w(s)
    for s in range(2): GC.lstep(s, 32)
    a("s_mov_b32 s30, 4\nL_k_lloop:")
    for s in range(2, 8): GC.lstep(s, 32)
    a("s_sub_u32 s30, s30, 1\ns_cmp_lg_u32 s30, 0\ns_cbranch_scc1 L_k_lloop")
    a.vmq = [(t[0], t[1] + 18) if isinstance(t, tuple) else t for t in a.vmq]
    if RA_D:
        for s in range(26, 32): GC.lstep(s, 32, GD.issue_w)
    else:
        for s in range(26, 32): GC.lstep(s, 32)
        a("s_barrier")
        for s in range(DEP6): GD.issue_w(s)
    handoff_wait(a, WS_FL2, 48)
    for s in range(DEP6): GD.issue_a(s)
    for s in range(12): GD.lstep(s, 12)
    end(a)
    a("L_k_textend:")
    finish(a, 256, 640, FLAG + 320, 168)


def pack_weights(a):
    LO, HI, PC = 8, 24, 40
    lo_, ld = a.label("pko"), a.label("pkd")
    a(f"s_lshl_b32 s28, s2, 2\ns_add_u32 s28, s28, s15\nv_mul_u32_u24 v5, {4*3072}, v3\ns_cmp_ge_u32 s28, 480\ns_cbranch_scc1 {lo_}")
    srd(a, 40, 32, 640 * 3072)
    divmod_s(a, 16, 17, 28, 10, 3)
    divmod_s(a, 18, 19, 16, 6, 3)
    a("s_mul_i32 s6, s18, 96\ns_lshl_b32 s7, s19, 5\ns_add_u32 s6, s6, s7\ns_cmp_lt_u32 s19, 3\ns_cselect_b32 s7, 864, 0\ns_add_u32 s6, s6, s7\ns_sub_u32 s6, s6, 96")
    a(f"v_add_lshl_u32 v4, v2, s6, 1\nv_add_u32 v4, v4, v5\ns_mul_i32 s22, s17, {64*3072}")
    for q in range(4):
        loads8(a, 40, 4, LO + 4*q, HI + 4*q, 22, [16*q + e for e in E_PERM], 3072, 7)
    a(f"v_lshlrev_b32 v6, 4, v3\ns_lshl_b32 s7, s17, 8\ns_add_u32 s7, s7, {WS_MOD + 7680}")
    for q in range(4):
        for arr in range(2):
            for hf in range(2):
                P = PC + 16*q + 8*arr + 4*hf
                a(f"buffer_load_dwordx4 v[{P}:{P+3}], v6, s[8:11], s7 offen offset:{arr*2560 + 64*q + 32*hf} sc1")
    a("v_mov_b32 v6, 0\nv_mov_b32 v7, 0")
    a(f"s_mul_i32 s22, s18, 40\ns_lshl_b32 s7, s17, 2\ns_add_u32 s22, s22, s7\ns_mul_i32 s22, s22, 6\ns_add_u32 s22, s22, s19\ns_lshl_b32 s22, s22, 10\ns_add_u32 s22, s22, {WS_WIN:#x}\ns_waitcnt vmcnt(0)")
    for q in range(4):
        for d in range(4):
            l, h, P = LO + 4*q + d, HI + 4*q + d, PC + 16*q
            a(f"v_lshlrev_b32 v{l}, 16, v{l}\nv_lshlrev_b32 v{h}, 16, v{h}\nv_fmac_f32 v7, v{l}, v{P+2*d}\nv_fmac_f32 v7, v{h}, v{P+2*d+1}\nv_mul_f32 v{l}, v{l}, v{P+8+2*d}\nv_mul_f32 v{h}, v{h}, v{P+9+2*d}")
            a(f"v_cvt_pk_bf16_f32 v{l}, v{l}, v{h}\nv_lshlrev_b32 v{h}, 16, v{l}\nv_and_b32 v5, 0xffff0000, v{l}\nv_add_f32 v6, v6, v{h}\nv_add_f32 v6, v6, v5")
        a(f"buffer_store_dwordx4 v[{LO+4*q}:{LO+4*q+3}], v1, s[8:11], s22 offen sc1\ns_add_u32 s22, s22, 6144")
    a("v_mov_b32 v40, v6\nv_mov_b32 v41, v7\ns_nop 1\nv_permlane32_swap_b32 v6, v40\nv_permlane32_swap_b32 v7, v41\ns_nop 1\nv_add_f32 v6, v6, v40\nv_add_f32 v7, v7, v41")
    a(f"s_mul_i32 s22, s17, {1536*8}\ns_lshl_b32 s7, s16, 8\ns_add_u32 s22, s22, s7\ns_add_u32 s22, s22, {WS_UTP:#x}\nv_lshlrev_b32 v4, 3, v2\ns_mov_b32 exec_hi, 0")
    a(f"buffer_store_dwordx2 v[6:7], v4, s[8:11], s22 offen sc1\ns_mov_b32 exec_hi, -1\ns_branch {ld}")
    a(f"{lo_}:\ns_sub_u32 s28, s28, 480\ns_cmp_ge_u32 s28, 528\ns_cbranch_scc1 {ld}")
    a(f"s_mov_b32 s42, {768*1280}\ns_mov_b32 s31, {WS_WOUT:#x}\ns_mov_b32 s6, {(1<<20)//12+1}\ns_cmp_lt_u32 s28, 240\ns_cselect_b32 s40, s52, s54\ns_cselect_b32 s41, s53, s55\ns_mov_b32 s43, 0x20000\ns_cselect_b32 s30, 40, 48")
    a(f"s_cmov_b32 s42, {640*1280}\ns_cmov_b32 s31, {WS_WO:#x}\ns_cmov_b32 s6, {(1<<20)//10+1}\ns_cselect_b32 s7, 0, 240\ns_sub_u32 s28, s28, s7")
    a("s_mul_i32 s16, s28, s6\ns_lshr_b32 s16, s16, 20\ns_lshr_b32 s7, s30, 2\ns_mul_i32 s7, s7, s16\ns_sub_u32 s17, s28, s7")
    divmod_s(a, 18, 19, 16, 3, 3)
    a(f"s_mul_i32 s6, s18, 80\ns_lshl_b32 s7, s19, 5\ns_add_u32 s6, s6, s7\nv_add_lshl_u32 v4, v2, s6, 1\nv_mul_u32_u24 v5, {4*1280}, v3\nv_add_u32 v4, v4, v5\ns_mul_i32 s22, s17, {64*1280}")
    for q in range(4):
        loads8(a, 40, 4, LO + 4*q, HI + 4*q, 22, [16*q + e for e in E_PERM], 1280, 7)
    a("s_mul_i32 s22, s18, s30\ns_lshl_b32 s7, s17, 2\ns_add_u32 s22, s22, s7\ns_mul_i32 s22, s22, 3\ns_add_u32 s22, s22, s19\ns_lshl_b32 s22, s22, 10\ns_add_u32 s22, s22, s31\ns_waitcnt vmcnt(0)")
    for q in range(4):
        for d in range(4): a(f"v_lshl_or_b32 v{LO+4*q+d}, v{HI+4*q+d}, 16, v{LO+4*q+d}")
        a(f"buffer_store_dwordx4 v[{LO+4*q}:{LO+4*q+3}], v1, s[8:11], s22 offen sc1\ns_add_u32 s22, s22, 3072")
    a(f"{ld}:")

def emit(path):
    (n, lines, g, b, lds, nv, ao) = kernels[0]
    bad = 0
    errs = check_hazards(lines, n) + ([] if PROF else check_waits(lines, n))
    for e in errs:
        p = e.split("touched by")
        if "buffer_load_ushort" in p[0] and "buffer_load_ushort" in p[-1]: continue
        if "buffer_load_dword v" in p[0] and "buffer_load_dword v" in p[-1]: continue
        print("CHECK", e); bad += 1
    hdr = open("adaLN_cond__grouped_kv_mqa__mixer_gmlp__prompt.s.ref").read().split("; Override launch geometry")[0]
    out = [hdr + f"; @launch grid=({g},1,1) block=({b},1,1) lds={lds}", '.amdgcn_target "amdgcn-amd-amdhsa--gfx950"\n.text']
    out.append(f".globl {KNAME}\n.p2align 8\n.type {KNAME},@function\n{KNAME}:")
    t = Asm(); t.lines = lines
    out.append(t.text())
    out.append(f""".section .rodata,"a"
.p2align 6
.amdhsa_kernel {KNAME}
  .amdhsa_next_free_vgpr {nv}
  .amdhsa_next_free_sgpr {96 if PROF else 60}
  .amdhsa_accum_offset {ao}
  .amdhsa_group_segment_fixed_size 0
  .amdhsa_kernarg_size 120
  .amdhsa_user_sgpr_count 2
  .amdhsa_user_sgpr_kernarg_segment_ptr 1
  .amdhsa_system_sgpr_workgroup_id_x 1
.end_amdhsa_kernel""")
    open(path, "w").write("\n".join(out) + "\n")
    print("wrote", path, "checks failed:", bad)

if __name__ == "__main__":
    kmain()
    emit(sys.argv[1] if len(sys.argv) > 1 else "one.s")
```

```python
import math, struct, sys, os
from asmlib import *

def f32(x):
    return "0x%08x" % struct.unpack("<I", struct.pack("<f", x))[0]

WS_MOD  = 0x0
WS_MODT = 0x4000
WS_XH   = 0x100000
WS_ST0  = 0x8000
WS_FG   = 0x40000
FG_MOD, FG_PQ, FG_KV, FG_PACK, FG_Z2, FG_END = (WS_FG + 128*i for i in (0, 128, 256, 384, 640, 896))
WS_FL1  = 0x10000
WS_FL2  = 0x12000
WS_FL0  = 0x14000
WS_FL3  = 0x16000
WS_UT   = 0x1A000
WS_UTP  = 0x20000
WS_WQKV = 0x400000
WS_WO   = 0x500000
WS_WIN  = 0x600000
WS_WOUT = 0x800000
WS_Q    = 0xA00000
WS_KV   = 0xD00000
WS_O    = 0xE00000
WS_X1   = 0x1080000
WS_ST1  = 0x1300000
WS_ST2  = 0x1360000
WS_Z1   = 0x13C0000
WS_Z2T  = 0x16C0000
WS_Y    = 0x19C0000
WS_WSP  = 0x1D00000
WS_SIZE = 0x2500000
KVCH = 26624
OOB = 0x40000000
LOG2E = math.log2(math.e)
KA = dict(x=0, wq=8, wk=16, wv=24, wo=32, w_in=48, w_sp=56, b_sp=64, w_out=72, c=80, w_mod=88, out=96, dbg=104, ws=112)
UT = [[0, 1], [2, 5], [3, 4]]

PROF = os.environ.get("PROF", "0") == "1"
WS_PROF = 0x3000000
if PROF: WS_SIZE = 0x4000000
def stamp(a, i):
    if PROF: a(f"s_memtime s[{64+2*i}:{65+2*i}]")
def stamp_begin(a):
    if PROF:
        for i in range(12): a(f"s_mov_b64 s[{64+2*i}:{65+2*i}], 0")
        a("s_memrealtime s[88:89]")
        stamp(a, 0)
def stamp_end(a, kidx):
    if PROF:
        stamp(a, 11)
        a("s_memrealtime s[90:91]\ns_mov_b64 exec, 1\ns_waitcnt lgkmcnt(0)")
        a(f"s_lshl_b32 s3, s2, 4\ns_add_u32 s3, s3, s14\ns_lshl_b32 s3, s3, 6\ns_add_u32 s3, s3, {WS_PROF + kidx*0x100000:#x}\nv_mov_b32 v0, 0")
        for i in range(12): a(f"v_mov_b32 v{2+i}, s{64+2*i}")
        a("s_getreg_b32 s92, hwreg(HW_REG_XCC_ID)\ns_getreg_b32 s93, hwreg(HW_REG_HW_ID)\nv_mov_b32 v14, s88\nv_mov_b32 v15, s90\nv_mov_b32 v16, s92\nv_mov_b32 v17, s93")
        for i in range(4): a(f"buffer_store_dwordx4 v[{2+4*i}:{5+4*i}], v0, s[8:11], s3 offen offset:{16*i}")
        if os.environ.get("X_DBGOUT"):
            l = a.label("dbg")
            a(f"s_cmp_lg_u32 s2, 72\ns_cbranch_scc1 {l}\ns_cmp_lg_u32 s14, 0\ns_cbranch_scc1 {l}\ns_load_dwordx2 s[94:95], s[0:1], {KA['dbg']}\ns_waitcnt lgkmcnt(0)")
            for i in range(1, 12): a(f"v_subrev_u32 v{2+i}, s64, v{2+i}")
            a("v_sub_u32 v15, v15, v14")
            for i in range(1, 14): a(f"global_store_dword v0, v{2+i}, s[94:95] offset:{4*i}")
            a(f"{l}:")

def srd(a, d, p, nbytes):
    a(f"s_mov_b32 s{d}, s{p}\ns_mov_b32 s{d+1}, s{p+1}\ns_mov_b32 s{d+2}, {nbytes:#x}\ns_mov_b32 s{d+3}, 0x20000")

kernels = []
XCMP = "s3" if os.environ.get("X_NOBAR") or os.environ.get("X_NOLDS") else 0

class K(Asm):
    def __init__(self, name):
        super().__init__()
        self.name = name; self.vmq = []; self.lgq = []
    def label(self, base):
        self.uid += 1
        return f"L_{self.name}_{base}_{self.uid}"
    def vm(self, text, tag=None):
        self(text); self.vmq.append(tag)
    def lg(self, text, tag=None):
        self(text); self.lgq.append(tag)
    def _n(self, q, tags):
        idx = max((i for i, t in enumerate(q) if t in tags), default=None)
        return None if idx is None else len(q) - 1 - idx
    def wait(self, vm=(), lg=()):
        parts = []
        n = self._n(self.vmq, vm) if vm else None
        if n is not None:
            parts.append(f"vmcnt({min(n, 63)})"); self.vmq = self.vmq[len(self.vmq)-n:] if n else []
        n = self._n(self.lgq, lg) if lg else None
        if n is not None:
            n2 = min(n, 15)
            parts.append(f"lgkmcnt({n2})"); self.lgq = self.lgq[len(self.lgq)-n2:] if n2 else []
        if parts: self("s_waitcnt " + " ".join(parts))
    def wait_all_lg(self):
        self("s_waitcnt lgkmcnt(0)"); self.lgq = []

def end(a):
    a(f"L_{a.name}_end:")
    stamp_end(a, len(kernels))
    a(f"L_{a.name}_exit:\ns_endpgm")
def finish(a, grid, block, lds, nv):
    kernels.append((a.name, a.lines, grid, block, lds, nv, (nv + 3) // 4 * 4))

def bf16_round(a, v, t):
    a(f"v_cvt_pk_bf16_f32 v{t}, v{v}, v{v}\nv_and_b32 v{v}, 0xffff0000, v{t}")

E_NAT = list(range(8))
E_PERM = [(j & 3) + 8 * (j >> 2) for j in range(8)]
E_O5 = [20 * (j >> 1) + (j & 1) for j in range(8)]
def loads8(a, srdn, voff, lo, hi, ebase, e_list, rs, stmp, tag=None):
    for j in range(8):
        a(f"s_add_u32 s{stmp}, s{ebase}, {e_list[j]*rs}")
        a.vm(f"buffer_load_ushort v{(lo if j % 2 == 0 else hi) + j//2}, v{voff}, s[{srdn}:{srdn+3}], s{stmp} offen", tag)

def divmod_s(a, q, r, x, d, t):
    m = (1 << 20) // d + 1
    a(f"s_mul_i32 s{q}, s{x}, {m}\ns_lshr_b32 s{q}, s{q}, 20\ns_mul_i32 s{t}, s{q}, {d}\ns_sub_u32 s{r}, s{x}, s{t}")

def pack_frag_issue(a, f, srdn, rs, ncol, nks, otype, halves, lo, hi, voff, vt, S):
    q3, ft, t, nb, ks, eb = S, S+1, S+2, S+3, S+4, S+5
    divmod_s(a, q3, ft, f, 3, t)
    divmod_s(a, nb, ks, q3, nks, t)
    if halves:
        a(f"s_and_b32 s{t}, s{nb}, 1\ns_lshr_b32 s{nb}, s{nb}, 1\ns_mul_i32 s{nb}, s{nb}, {ncol}\ns_cmp_eq_u32 s{t}, 0\ns_cselect_b32 s{t}, 768, 0\ns_add_u32 s{nb}, s{nb}, s{t}")
    else:
        a(f"s_mul_i32 s{nb}, s{nb}, {ncol}")
    hi5 = 80 if ncol == 96 else OOB // 2
    a(f"s_cmp_eq_u32 s{ft}, 1\ns_cselect_b32 s{q3}, 32, 48\ns_cselect_b32 s{t}, {hi5:#x}, 64\ns_cmp_eq_u32 s{ft}, 0\ns_cselect_b32 s{q3}, 0, s{q3}\ns_cselect_b32 s{t}, 16, s{t}")
    a(f"s_add_u32 s{q3}, s{q3}, s{nb}\ns_add_u32 s{t}, s{t}, s{nb}")
    a(f"v_mov_b32 v{vt}, s{q3}\nv_mov_b32 v{vt+1}, s{t}\nv_cmp_gt_u32 vcc, 16, v2\nv_and_b32 v{voff}, 15, v2\ns_nop 0\nv_cndmask_b32 v{vt}, v{vt+1}, v{vt}, vcc\nv_add_lshl_u32 v{voff}, v{voff}, v{vt}, 1")
    if not otype:
        a(f"v_mul_u32_u24 v{vt}, {4*rs}, v3\nv_add_u32 v{voff}, v{voff}, v{vt}\ns_mul_i32 s{eb}, s{ks}, {16*rs}")
        loads8(a, srdn, voff, lo, hi, eb, E_PERM, rs, t, "pack")
    else:
        l5, ld = a.label("u4"), a.label("ud")
        divmod_s(a, q3, ft, ks, 5, t)
        a(f"s_mul_i32 s{q3}, s{q3}, 80\ns_cmp_eq_u32 s{ft}, 4\ns_cbranch_scc1 {l5}")
        a(f"s_mul_i32 s{ft}, s{ft}, 20\ns_add_u32 s{q3}, s{q3}, s{ft}\ns_mul_i32 s{eb}, s{q3}, {rs}\nv_mul_u32_u24 v{vt}, {4*rs}, v3\nv_add_u32 v{voff}, v{voff}, v{vt}")
        q0 = list(a.vmq)
        loads8(a, srdn, voff, lo, hi, eb, E_PERM, rs, t, "pack")
        a(f"s_branch {ld}\n{l5}:\ns_add_u32 s{q3}, s{q3}, 16\ns_mul_i32 s{eb}, s{q3}, {rs}\nv_mul_u32_u24 v{vt}, {2*rs}, v3\nv_add_u32 v{voff}, v{voff}, v{vt}")
        a.vmq = q0
        loads8(a, srdn, voff, lo, hi, eb, E_O5, rs, t, "pack")
        a(f"{ld}:")

def pack_frag_store(a, f, wsbase, lo, hi, st):
    for i in range(4): a(f"v_lshl_or_b32 v{lo+i}, v{hi+i}, 16, v{lo+i}")
    a(f"s_lshl_b32 s{st}, s{f}, 10\ns_add_u32 s{st}, s{st}, {wsbase:#x}")
    a.vm(f"buffer_store_dwordx4 v[{lo}:{lo+3}], v1, s[8:11], s{st} offen")

def l2_prefetch(a, base, nbytes, nwaves, vdst, vtmp, st):
    per_wg = nbytes // 32
    PS = int(os.environ.get("X_PFS", "64")); CH = 64 * PS
    n_instr = -(-per_wg // CH)
    per_wave = -(-n_instr // nwaves)
    a(f"s_lshr_b32 s{st}, s2, 3\ns_mul_i32 s{st}, s{st}, {per_wg}\ns_mul_i32 s{st+1}, s14, {per_wave*CH}\ns_add_u32 s{st}, s{st}, s{st+1}\ns_add_u32 s{st}, s{st}, {base:#x}\nv_lshlrev_b32 v{vtmp}, {int(math.log2(PS//16))}, v1")
    for i in range(per_wave):
        a.vm(f"buffer_load_dword v{vdst}, v{vtmp}, s[8:11], s{st} offen")
        if i < per_wave - 1: a(f"s_add_u32 s{st}, s{st}, {CH}")

CTL = 6 * KVCH
NONCE = 50
KNAME = "adaLN_cond__grouped_kv_mqa__mixer_gmlp__prompt_kernel"
STG = 20480
NS, DEP = 6, 4
EX = NS * STG
PAR = EX + 24576
LDS_G = PAR + 5120
ACC, WS0, AF, PR, VW = 8, 56, 104, 120, 158

def compute_addr(a, rb):
    a.rb = rb
    if rb == 0:
        a(f"s_mul_i32 s3, s15, {6144+2048}\nv_add_u32 v{VW}, s3, v1\ns_mul_i32 s3, s15, {6144-2048}\ns_add_u32 s3, s3, 2048\nv_add_u32 v{VW+2}, s3, v1")
        a(f"s_lshl_b32 s3, s15, 8\nv_xor_b32 v{VW+1}, s3, v1\ns_mul_i32 s3, s15, 6144\ns_add_u32 s3, s3, 1024\nv_add_u32 v{VW+1}, s3, v{VW+1}")
    else:
        a("v_bfe_u32 v4, v0, 2, 2\nv_and_b32 v5, 3, v0\nv_bfe_u32 v6, v0, 4, 1")
        a("v_lshl_add_u32 v4, v3, 2, v4" if rb == 192 else "v_lshl_add_u32 v4, v4, 1, v3")
        a(f"v_mul_u32_u24 v4, {rb}, v4\nv_lshl_add_u32 v4, v5, 3, v4\ns_mul_i32 s3, s15, 6144\nv_add_u32 v4, s3, v4")
        a(f"v_lshl_add_u32 v5, v6, 5, v4\ns_mul_i32 s3, s15, 96\nv_add_u32 v{VW}, s3, v5\ns_sub_u32 s3, 96, s3\nv_add_u32 v{VW+2}, s3, v5")
        if rb == 192:
            a(f"v_xor_b32 v6, s15, v6\nv_mul_u32_u24 v6, 96, v6\nv_add_u32 v6, 64, v6\nv_add_u32 v{VW+1}, v4, v6")
        else:
            a(f"v_add_u32 v{VW+1}, 64, v4")
    a(f"s_lshl_b32 s3, s14, 11\ns_add_u32 s3, s3, 12288\nv_add_u32 v{VW+3}, s3, v1")
    for i in range(4): a(f"v_add_u32 v{VW+4+i}, {3*STG}, v{VW+i}")

def read_ops(a, s, areg):
    slot = s % NS; hi, sl = (4, slot - 3) if slot >= 3 else (0, slot)
    ra, rw = [], []
    if areg is not None:
        for q in range(2):
            ra.append(lambda q=q: a.lg(f"ds_read_b128 v[{areg+4*q}:{areg+4*q+3}], v{VW+3+hi} offset:{sl*STG + q*1024}", ("a", s)))
    for q in range(2):
        for t in range(3):
            r = WS0 + 24*(s % 2) + 12*q + 4*t; o = sl*STG + q*3072
            if a.rb == 0:
                rw.append(lambda r=r, t=t, o=o: a.lg(f"ds_read_b128 v[{r}:{r+3}], v{VW+t+hi} offset:{o}", ("w", s)))
            else:
                def f(r=r, t=t, o=o):
                    a.lg(f"ds_read_b64_tr_b16 v[{r}:{r+1}], v{VW+t+hi} offset:{o}", ("w", s))
                    a.lg(f"ds_read_b64_tr_b16 v[{r+2}:{r+3}], v{VW+t+hi} offset:{o + 8*a.rb}", ("w", s))
                rw.append(f)
    return ra, rw

def mfma_ops(a, wset, areg, first):
    ops = []
    for q in range(2):
        for t in range(3):
            r = ACC + 16*t; w = WS0 + 24*wset + 12*q + 4*t; b = areg + 4*q
            c = "0" if (first and q == 0) else f"v[{r}:{r+15}]"
            ops.append(lambda r=r, w=w, b=b, c=c: a(f"v_mfma_f32_32x32x16_bf16 v[{r}:{r+15}], v[{w}:{w+3}], v[{b}:{b+3}], {c}"))
    return ops

def transform_ops(a, F, P, rr, nm, t=152):
    ops = []
    for d in range(4):
        x, y = t + 2*(d % 2), t + 2*(d % 2) + 1
        L = [f"v_lshlrev_b32 v{x}, 16, v{F+d}", f"v_and_b32 v{y}, 0xffff0000, v{F+d}",
             f"v_fma_f32 v{x}, v{x}, v{rr}, v{nm}", f"v_fma_f32 v{y}, v{y}, v{rr}, v{nm}",
             f"v_fma_f32 v{x}, v{x}, v{P+8+2*d}, v{P+2*d}", f"v_fma_f32 v{y}, v{y}, v{P+9+2*d}, v{P+1+2*d}", f"v_cvt_pk_bf16_f32 v{F+d}, v{x}, v{y}"]
        ops += [(lambda l=l: a(l)) for l in L]
    return ops

def merge(*lists):
    items = []
    for li, L in enumerate(lists):
        n = len(L)
        for i, op in enumerate(L): items.append(((i + 0.5 * (li > 0)) / n, li, i, op))
    items.sort(key=lambda x: (x[0], x[1], x[2]))
    return [x[3] for x in items]
def run(ops):
    for op in ops: op()

def param_base(a):
    a(f"s_mul_i32 s3, s15, 1280\ns_add_u32 s3, s3, {PAR}\nv_lshlrev_b32 v6, 4, v3\nv_add_u32 v6, s3, v6")
def param_ops(a, ks):
    ops = []
    for arr in range(2):
        P = PR + 16*(ks % 2) + 8*arr; off = arr*2560 + ks*64
        ops.append(lambda P=P, off=off: a.lg(f"ds_read_b128 v[{P}:{P+3}], v6 offset:{off}", ("p", ks)))
        ops.append(lambda P=P, off=off: a.lg(f"ds_read_b128 v[{P+4}:{P+7}], v6 offset:{off+32}", ("p", ks)))
    return ops

def exchange(a, R):
    a(f"s_mul_i32 s3, s14, 6144\ns_add_u32 s3, s3, {EX}\nv_add_u32 v4, s3, v1\ns_xor_b32 s3, s14, 2\ns_mul_i32 s3, s3, 6144\ns_add_u32 s3, s3, {EX}\nv_add_u32 v5, s3, v1\ns_nop 4")
    for i in range(6): a(f"ds_write_b128 v4, v[{ACC+24+4*i}:{ACC+27+4*i}] offset:{i*1024}")
    a.wait_all_lg()
    a("s_barrier")
    for j in range(3):
        for h in range(2):
            a(f"ds_read_b128 v[{R+8*j+4*h}:{R+8*j+4*h+3}], v5 offset:{((j+1)%3)*2048 + h*1024}")
    for j in range(3):
        a(f"s_waitcnt lgkmcnt({4-2*j})")
        for i in range(8): a(f"v_add_f32 v{ACC+8*j+i}, v{ACC+8*j+i}, v{R+8*j+i}")

def c_start(a, areg_of, xf=None):
    a("s_barrier")
    a.pre()
    ra, rw = read_ops(a, 0, areg_of(0))
    run(ra)
    if xf:
        n, rr, nm = xf
        run(param_ops(a, 0)); run(param_ops(a, 1)); run(rw)
        a.wait(lg=[("a", 0), ("p", 0)])
        run(transform_ops(a, areg_of(0), PR, rr, nm))
        a.wait(lg=[("p", 1)])
        run(merge(transform_ops(a, areg_of(0) + 4, PR + 16, rr, nm), param_ops(a, 2)))
    else:
        run(rw)

def c_iter(a, s, first, total, areg_of, xf=None, load_a=True):
    ra, rw = [], []
    if s + 1 < total:
        a("s_barrier")
        ra, rw = read_ops(a, s + 1, areg_of(s + 1) if load_a else None)
    mf = mfma_ops(a, s % 2, areg_of(s), first)
    if os.environ.get("X_NORD"): ra, rw = [], []
    if os.environ.get("X_NOMFMA"): mf = [lambda: a("s_nop 0")] * 6
    if os.environ.get("X_NOXF"): xf = None
    if xf and s + 1 < xf[0]:
        n, rr, nm = xf
        k0 = 2*(s+1)
        run(ra); run(param_ops(a, k0 + 1))
        a.wait(lg=[("w", s)])
        run(merge(mf[:2], rw[:2]))
        a.wait(lg=[("a", s+1), ("p", k0)])
        run(merge(transform_ops(a, areg_of(s+1), PR, rr, nm), mf[2:4], rw[2:4]))
        a.wait(lg=[("p", k0 + 1)])
        nxt = param_ops(a, k0 + 2) if s + 2 < n else []
        run(merge(transform_ops(a, areg_of(s+1) + 4, PR + 16, rr, nm), mf[4:], rw[4:] + nxt))
    else:
        a.wait(lg=[("w", s), ("a", s)])
        run(merge(mf, ra + rw))

def prefetch(a, srdn, base, nbytes, nw, widx, vdst, vtmp, st):
    per_wg = -(-nbytes // 32 // 128) * 128
    per_wave = -(-per_wg // (8192 * nw))
    a(f"s_lshr_b32 s{st}, s2, 3\ns_mul_i32 s{st}, s{st}, {per_wg}\ns_mul_i32 s{st+1}, s{widx}, {per_wave*8192}\ns_add_u32 s{st}, s{st}, s{st+1}\ns_add_u32 s{st}, s{st}, {base:#x}\nv_lshlrev_b32 v{vtmp}, 3, v1")
    for i in range(per_wave):
        a.vm(f"buffer_load_dword v{vdst}, v{vtmp}, s[{srdn}:{srdn+3}], s{st} offen")
        if i < per_wave - 1: a(f"s_add_u32 s{st}, s{st}, 8192")

SLOT, NSL, DEP6 = 20480, 6, 4
PAR6 = NSL * SLOT
class G6:
    def __init__(self, kpst, nacc, g0=0):
        self.kpst, self.nacc, self.g0 = kpst, nacc, g0
        self.fs = kpst * (1 + nacc) * 4
        self.ACC, self.FR = 8, 8 + 16 * nacc
    def addr(self, a):
        a(f"s_mul_i32 s3, s17, {self.kpst*1024}\ns_add_u32 s3, s3, 12288\nv_add_u32 v4, s3, v1\nv_add_u32 v5, {3*SLOT}, v4")
        a(f"s_lshl_b32 s3, s15, 10\nv_add_u32 v6, s3, v1\nv_add_u32 v7, {3*SLOT}, v6")
    def reads(self, a, s):
        slot = (self.g0 + s) % NSL; hi, sl = (1, slot - 3) if slot >= 3 else (0, slot)
        F = self.FR + (s % 2) * self.fs
        ops = []
        for q in range(self.kpst):
            r = F + q * (1 + self.nacc) * 4
            ops.append(lambda r=r, q=q: a.lg(f"ds_read_b128 v[{r}:{r+3}], v{4+hi} offset:{sl*SLOT + q*1024}", ("f", s, q)))
            for n in range(self.nacc):
                rw = r + 4 + 4*n
                ops.append(lambda rw=rw, q=q, n=n: a.lg(f"ds_read_b128 v[{rw}:{rw+3}], v{6+hi} offset:{sl*SLOT + (q*self.nacc + n)*3072}", ("f", s, q)))
        return ops
    def start(self, a):
        a("s_barrier")
        run(self.reads(a, 0))
    def iter(self, a, s, first, total):
        rd = []
        if s + 1 < total:
            a("s_barrier")
            rd = self.reads(a, s + 1)
        F = self.FR + (s % 2) * self.fs
        per = len(rd) // self.kpst if rd else 0
        for q in range(self.kpst):
            a.wait(lg=[("f", s, q)])
            r = F + q * (1 + self.nacc) * 4
            for n in range(self.nacc):
                d = self.ACC + 16*n
                c = "0" if (first and q == 0) else f"v[{d}:{d+15}]"
                a(f"v_mfma_f32_32x32x16_bf16 v[{d}:{d+15}], v[{r+4+4*n}:{r+7+4*n}], v[{r}:{r+3}], {c}")
            run(rd[q*per:(q+1)*per])
    def lsetup(self, a, act_base, nks, w_base, sa, sw, sl, aflags="", wflags=""):
        self.a, self.sa, self.sw, self.sl, self.af, self.wf = a, sa, sw, sl, aflags, wflags
        k = self.kpst
        a(f"s_mul_i32 s{sl}, s15, {k*512}\ns_add_u32 s{sl}, s{sl}, 12288")
        a(f"s_mul_i32 s{sa}, s16, {nks*1024}\ns_and_b32 s3, s15, 1\ns_mul_i32 s3, s3, {k*512}\ns_add_u32 s{sa}, s{sa}, s3\ns_add_u32 s{sa}, s{sa}, {act_base:#x}")
        a(f"s_mul_i32 s{sw}, s13, {nks*3072*self.nacc}\ns_add_u32 s{sw}, s{sw}, s20\ns_add_u32 s{sw}, s{sw}, {w_base:#x}")
    def issue_a(self, s):
        a = self.a; slot = (self.g0 + s) % NSL
        a(f"s_add_u32 m0, s{self.sl}, {slot*SLOT}\ns_nop 0")
        for q in range(self.kpst // 2): a.vm(f"buffer_load_dwordx4 v1, s[8:11], s{self.sa} offen offset:{q*1024} {self.af} lds", ("st", self.g0 + s))
        a(f"s_add_u32 s{self.sa}, s{self.sa}, {self.kpst*1024}")
    def issue_w(self, s):
        a = self.a; slot = (self.g0 + s) % NSL
        a(f"s_add_u32 m0, s20, {slot*SLOT}\ns_nop 0")
        for i in range(3): a.vm(f"buffer_load_dwordx4 v1, s[8:11], s{self.sw} offen offset:{i*1024} {self.wf} lds", ("st", self.g0 + s))
        a(f"s_add_u32 s{self.sw}, s{self.sw}, 12288")
    def issue(self, s):
        self.issue_a(s); self.issue_w(s)
    def lstep(self, s, total, nxt=None):
        a = self.a
        a.wait(vm=[("st", self.g0 + s)])
        a("s_barrier")
        if s + DEP6 < total: self.issue(s + DEP6)
        elif nxt is not None: nxt(s + DEP6 - total)

def dma1(a, lds_off, sreg, tag, imm=0):
    a(f"s_mov_b32 m0, {lds_off}\ns_nop 0")
    a.vm(f"buffer_load_dwordx4 v1, s[8:11], s{sreg} offen offset:{imm} sc1 lds", tag)
def xid_publish(a, base):
    l = a.label("xid")
    a(f"s_cmp_lg_u32 s14, 6\ns_cbranch_scc1 {l}\ns_lshl_b32 s3, s12, 8\ns_lshl_b32 s6, s13, 2\ns_add_u32 s3, s3, s6\ns_add_u32 s3, s3, {base:#x}\ns_getreg_b32 s7, hwreg(HW_REG_XCC_ID, 0, 4)\ns_add_u32 s7, s7, s50\nv_mov_b32 v8, 0\nv_mov_b32 v9, s7\ns_mov_b64 exec, 1\nbuffer_store_dword v9, v8, s[8:11], s3 offen sc1\ns_mov_b64 exec, -1\n{l}:")
def xid_load(a, base, v):
    a(f"s_lshl_b32 s3, s12, 8\ns_add_u32 s3, s3, {base:#x}\nv_and_b32 v{v}, 7, v0\nv_lshlrev_b32 v{v}, 2, v{v}")
    a.vm(f"buffer_load_dword v{v}, v{v}, s[8:11], s3 offen sc1", "epi")
def pretouch(a, v, items):
    a(f"v_lshlrev_b32 v{v}, 3, v1")
    for sreg, n in items:
        a(f"s_mov_b64 exec, {(1 << n) - 1:#x}")
        a.vm(f"buffer_load_dword v{v+1}, v{v}, s[8:11], s{sreg} offen sc1", "epi")
    a("s_mov_b64 exec, -1")
def xid_decide(a, v):
    a(f"s_getreg_b32 s36, hwreg(HW_REG_XCC_ID, 0, 4)\ns_add_u32 s36, s36, s50\nv_cmp_ne_u32 vcc, s36, v{v}\ns_nop 1\ns_cmp_eq_u64 vcc, 0\ns_cselect_b32 s37, {XFAST}, 0")
def hstore(a, text):
    l1, l2 = a.label("hs"), a.label("hd")
    a(f"s_cmp_eq_u32 s37, 1\ns_cbranch_scc1 {l1}\n{text} sc1\ns_branch {l2}\n{l1}:")
    a.vm(text)
    a(f"{l2}:")
AFL = os.environ.get("X_AFL", "sc1")
XFAST = int(os.environ.get("X_FAST", "1"))
def flag_addr(a, base):
    a(f"s_lshl_b32 s38, s12, 8\ns_mul_i32 s6, s13, 6\ns_add_u32 s6, s6, s14\ns_lshl_b32 s6, s6, 2\ns_add_u32 s38, s38, s6\ns_add_u32 s38, s38, {base+32:#x}")
def handoff_publish(a, base):
    a("v_mov_b32 v8, 0\nv_mov_b32 v9, s50\ns_mov_b64 exec, 1")
    a("s_waitcnt vmcnt(0)")
    hstore(a, "buffer_store_dword v9, v8, s[8:11], s38 offen")
    a("s_mov_b64 exec, -1")
    a.vmq = []
def handoff_wait(a, base, n=48):
    lp, lo = a.label("hp"), a.label("ho")
    a(f"s_lshl_b32 s3, s12, 8\ns_add_u32 s3, s3, {base+32:#x}\nv_lshrrev_b32 v8, 2, v1\nv_min_u32 v8, {(n-1)*4}, v8\ns_mov_b32 s29, 0x8000")
    a(f"{lp}:\nbuffer_load_dword v9, v8, s[8:11], s3 offen sc1\ns_waitcnt vmcnt(0)\nv_cmp_ne_u32 vcc, s50, v9\ns_sub_u32 s29, s29, 1\ns_cbranch_scc1 {lo}\ns_cbranch_vccnz {lp}\n{lo}:")
    a.vmq = []

def unit_off6(a, d, per_nb, base):
    a(f"s_lshl_b32 s{d}, s16, 3\ns_add_u32 s{d}, s{d}, s13\ns_mul_i32 s{d}, s{d}, {per_nb}\ns_lshl_b32 s6, s15, 1\ns_add_u32 s{d}, s{d}, s6\ns_lshl_b32 s{d}, s{d}, 10\ns_add_u32 s{d}, s{d}, {base:#x}")

def stats_addr(a, base, st):
    a(f"s_mul_i32 s7, s13, 3\ns_add_u32 s7, s7, s15\ns_mul_i32 s{st}, s16, 6144\ns_lshr_b32 s3, s7, 1\ns_lshl_b32 s3, s3, 9\ns_add_u32 s{st}, s{st}, s3\ns_and_b32 s3, s7, 1\ns_lshl_b32 s3, s3, 3\ns_add_u32 s{st}, s{st}, s3\ns_add_u32 s{st}, s{st}, {base:#x}")
def stats_store(a, V, st, flags=""):
    a(f"v_mov_b32 v{V+2}, v{V}\nv_mov_b32 v{V+3}, v{V+1}\ns_nop 1\nv_permlane32_swap_b32 v{V}, v{V+2}\nv_permlane32_swap_b32 v{V+1}, v{V+3}\ns_nop 1\nv_add_f32 v{V}, v{V}, v{V+2}\nv_add_f32 v{V+1}, v{V+1}, v{V+3}\nv_max_f32 v{V+1}, 0, v{V+1}")
    a("s_mov_b32 exec_hi, 0")
    hstore(a, f"buffer_store_dwordx2 v[{V}:{V+1}], v1, s[8:11], s{st} offen")
    a("s_mov_b32 exec_hi, -1")
def stats_load(a, D, st, tag, flags=""):
    for i in range(6): a.vm(f"buffer_load_dwordx4 v[{D+4*i}:{D+4*i+3}], v1, s[8:11], s{st + i//4} offen offset:{1024*(i%4)} {flags}", tag)
def stats_base(a, st, base):
    a(f"s_mul_i32 s{st}, s16, 6144\ns_add_u32 s{st}, s{st}, {base:#x}\ns_add_u32 s{st+1}, s{st}, 4096")
def stats_finish(a, D, n, rr, nm):
    for i in range(1, 12): a(f"v_add_f32 v{D}, v{D}, v{D+2*i}\nv_add_f32 v{D+1}, v{D+1}, v{D+2*i+1}")
    a(f"v_mov_b32 v{D+2}, v{D}\nv_mov_b32 v{D+3}, v{D+1}\ns_nop 1\nv_permlane32_swap_b32 v{D}, v{D+2}\nv_permlane32_swap_b32 v{D+1}, v{D+3}\ns_nop 1\nv_add_f32 v{D}, v{D}, v{D+2}\nv_add_f32 v{D+1}, v{D+1}, v{D+3}")
    a(f"v_mul_f32 v{D}, {f32(1/n)}, v{D}\nv_mul_f32 v{D+1}, {f32(1/n)}, v{D+1}\nv_fma_f32 v{D+1}, -v{D}, v{D}, v{D+1}\nv_max_f32 v{D+1}, 0, v{D+1}\nv_add_f32 v{D+1}, {f32(1e-5)}, v{D+1}\nv_rsq_f32 v{rr}, v{D+1}\ns_nop 0\nv_mul_f32 v{nm}, v{D}, v{rr}\nv_sub_f32 v{nm}, 0, v{nm}")

def proj_epilogue(a, g, final, G, XR, T, ST, OUT, oaddr):
    a.wait(vm=["epi"])
    a("s_waitcnt lgkmcnt(0)"); a.lgq = []
    if not final: a("s_nop 8")
    else: a("s_nop 8")
    R = g.ACC
    lskip = a.label("skip")
    for i in range(2):
        if i == 1: a(f"s_cmp_eq_u32 s15, 2\ns_cbranch_scc1 {lskip}")
        for d in range(4):
            x = XR + 4*i + d; r = R + 8*i + 2*d; gg = G + 8*i + 2*d; t = T + 2*(d % 2)
            a(f"v_lshlrev_b32 v{t}, 16, v{x}\nv_and_b32 v{t+1}, 0xffff0000, v{x}\nv_fmac_f32 v{t}, v{gg}, v{r}\nv_fmac_f32 v{t+1}, v{gg+1}, v{r+1}")
            if not final:
                a(f"v_add_f32 v{ST}, v{ST}, v{t}\nv_fmac_f32 v{ST+1}, v{t}, v{t}\nv_add_f32 v{ST}, v{ST}, v{t+1}\nv_fmac_f32 v{ST+1}, v{t+1}, v{t+1}")
            a(f"v_cvt_pk_bf16_f32 v{OUT+4*i+d}, v{t}, v{t+1}")
        o = OUT + 4*i
        if final:
            a(f"s_nop 1\nv_permlane32_swap_b32 v{o}, v{o+2}\nv_permlane32_swap_b32 v{o+1}, v{o+3}\nbuffer_store_dwordx4 v[{o}:{o+3}], v{oaddr}, s[24:27], s28 offen offset:{32*i}")
        else:
            hstore(a, f"buffer_store_dwordx4 v[{o}:{o+3}], v1, s[8:11], s22 offen offset:{1024*i}")
    a(f"{lskip}:")

GC1 = -2.0 * LOG2E * math.sqrt(2.0 / math.pi)
GC2 = GC1 * 0.044715
def gelu(a, regs, t0, c1):
    for i, r in enumerate(regs): a(f"v_mul_f32 v{t0+i}, v{r}, v{r}")
    for i, r in enumerate(regs): a(f"v_fma_f32 v{t0+i}, v{t0+i}, s28, v{c1}")
    for i, r in enumerate(regs): a(f"v_mul_f32 v{t0+i}, v{t0+i}, v{r}")
    for i, r in enumerate(regs): a(f"v_exp_f32 v{t0+i}, v{t0+i}")
    for i, r in enumerate(regs): a(f"v_add_f32 v{t0+i}, 1.0, v{t0+i}")
    for i, r in enumerate(regs): a(f"v_rcp_f32 v{t0+i}, v{t0+i}")
    for i, r in enumerate(regs): a(f"v_mul_f32 v{r}, v{r}, v{t0+i}")

ZROW = 208
def wg_poll(a, lds_word, body, vt=8):
    lp, lo, lw, ld = a.label("gp"), a.label("go"), a.label("gw"), a.label("gd")
    a(f"v_mov_b32 v{vt+4}, {lds_word}\ns_cmp_lg_u32 s15, 0\ns_cbranch_scc1 {lw}\ns_mov_b32 s29, 0x8000\n{lp}:")
    body()
    a(f"s_sub_u32 s29, s29, 1\ns_cbranch_scc1 {lo}\ns_cbranch_vccz {lo}\ns_sleep {os.environ.get('X_SLP', '2')}\ns_branch {lp}\n{lo}:\nv_mov_b32 v{vt+5}, 1\nds_write_b32 v{vt+4}, v{vt+5}\ns_waitcnt lgkmcnt(0)\ns_branch {ld}")
    a(f"{lw}:\nds_read_b32 v{vt+5}, v{vt+4}\ns_waitcnt lgkmcnt(0)\nv_readfirstlane_b32 s3, v{vt+5}\ns_cmp_eq_u32 s3, 1\ns_cbranch_scc1 {ld}\ns_sleep 1\ns_branch {lw}\n{ld}:\ns_waitcnt vmcnt(0)")
    a.vmq = []

def poll_lines(a, base_sreg, n, voff=4, vd=6):
    k = -(-n // 64)
    for i in range(k):
        if i: a(f"s_add_u32 s3, s{base_sreg}, {min(i*64, n-64)*128}")
        a(f"buffer_load_dword v{vd+i}, v{voff}, s[8:11], s{base_sreg if i == 0 else 3} offen sc1")
    a("s_waitcnt vmcnt(0)")
    for i in range(k): a(f"v_xor_b32 v{vd+i}, s50, v{vd+i}")
    for i in range(1, k): a(f"v_or_b32 v{vd}, v{vd}, v{vd+i}")
    a(f"v_cmp_ne_u32 vcc, 0, v{vd}")
def wg_flag(a, lds_word, count, addr_sreg):
    l = a.label("wf")
    a(f"v_mov_b32 v8, {lds_word}\nv_mov_b32 v9, 1\ns_mov_b64 exec, 1\ns_waitcnt vmcnt(0)\nds_add_rtn_u32 v9, v8, v9\ns_waitcnt lgkmcnt(0)\nv_readfirstlane_b32 s3, v9\ns_cmp_lg_u32 s3, {count-1}\ns_cbranch_scc1 {l}")
    a(f"v_mov_b32 v8, 0\nv_mov_b32 v9, s50\nbuffer_store_dword v9, v8, s[8:11], s{addr_sreg} offen sc1\n{l}:\ns_mov_b64 exec, -1")

WR, WSL, WNS = 81920, 12288, 5
MSCR = WR + 4 * WSL
P1PAR = WR + WNS * WSL
ST0L = P1PAR + 5120
QL = WR
def lds_wait(a, word, target, v=8):
    l = a.label("lw")
    a(f"v_mov_b32 v{v}, {word}\n{l}:\nds_read_b32 v{v+1}, v{v}\ns_waitcnt lgkmcnt(0)\nv_readfirstlane_b32 s3, v{v+1}\ns_cmp_lt_u32 s3, {target}\ns_cbranch_scc1 {l}")
def sync4(a, word):
    a(f"v_mov_b32 v8, {word}\nv_mov_b32 v9, 1\ns_mov_b64 exec, 1\ns_waitcnt lgkmcnt(0)\nds_add_u32 v8, v9\ns_mov_b64 exec, -1")
    lds_wait(a, word, 4)
NW0 = int(os.environ.get('X_NW0', '4'))
XROT = int(os.environ.get('X_XROT', '5'))
def get_nonce(a):
    lds_wait(a, CTL + 252, 1)
    a("s_mov_b32 s50, s3")

def p01(a, text_end):
    N = a.name
    a(f"s_cmp_ge_u32 s2, 256\ns_cbranch_scc1 L_{N}_exit")
    stamp_begin(a)
    a(f"s_load_dwordx2 s[4:5], s[0:1], {KA['ws']}\ns_load_dwordx2 s[44:45], s[0:1], {KA['out']}\ns_load_dwordx4 s[56:59], s[0:1], {KA['w_in']}\ns_load_dwordx2 s[52:53], s[0:1], {KA['wo']}\ns_load_dwordx2 s[54:55], s[0:1], {KA['w_out']}\ns_load_dwordx2 s[60:61], s[0:1], {KA['x']}\ns_load_dwordx2 s[62:63], s[0:1], {KA['b_sp']}")
    a("v_and_b32 v4, 63, v0\nv_lshrrev_b32 v5, 6, v0\nv_lshlrev_b32 v1, 4, v4\nv_readfirstlane_b32 s14, v5\nv_and_b32 v2, 31, v4\nv_lshrrev_b32 v3, 5, v4")
    a("s_and_b32 s12, s2, 7\ns_lshr_b32 s3, s2, 6\ns_lshl_b32 s3, s3, 3\ns_add_u32 s12, s12, s3\ns_bfe_u32 s13, s2, 0x30003\ns_mov_b32 s27, 0\ns_mov_b32 s37, 0")
    a(f"s_cmp_ge_u32 s14, 4\ns_cbranch_scc1 L_{N}_p0other")
    a(f"s_cmp_lt_u32 s13, 4\ns_cbranch_scc1 L_{N}_pq")
    a(f"s_load_dwordx4 s[16:19], s[0:1], {KA['c']}")
    a("s_sub_u32 s6, s13, 4\ns_lshr_b32 s3, s6, 1\ns_lshl_b32 s3, s3, 5\ns_add_u32 s3, s3, s12\ns_lshl_b32 s3, s3, 1\ns_and_b32 s6, s6, 1\ns_add_u32 s3, s3, s6")
    a("v_lshrrev_b32 v72, 2, v0\nv_and_b32 v73, 3, v0\nv_mul_u32_u24 v74, 7680, v72\nv_lshl_add_u32 v74, v73, 4, v74\nv_lshlrev_b32 v4, 1, v72")
    a(f"s_cmp_lt_u32 s3, 120\ns_cselect_b32 s7, {640*7680}, 0\ns_waitcnt lgkmcnt(0)")
    a("s_barrier")
    srd(a, 8, 4, WS_SIZE); srd(a, 20, 16, 1280)
    a("s_mov_b32 s40, s18\ns_mov_b32 s41, s19\ns_mov_b32 s42, s7\ns_mov_b32 s43, 0x20000\ns_lshl_b32 s6, s3, 6")
    for p in range(10): a(f"buffer_load_ushort v{10+p}, v4, s[20:23], 0 offen offset:{128*p}")
    for p in range(10):
        a(f"buffer_load_dwordx4 v[{20+4*p}:{23+4*p}], v74, s[40:43], s6 offen")
        if p < 9: a(f"s_add_u32 s6, s6, {64*7680}")
    a(f"v_mov_b32 v8, {CTL+88}\nv_mov_b32 v9, 1\ns_mov_b64 exec, 1\nds_add_u32 v8, v9\ns_mov_b64 exec, -1")
    for i in range(8): a(f"v_mov_b32 v{64+i}, 0")
    a("s_waitcnt vmcnt(10)")
    for p in range(10):
        v = 10 + p
        a(f"v_lshlrev_b32 v{v}, 16, v{v}\nv_mul_f32 v5, {f32(-LOG2E)}, v{v}\nv_exp_f32 v5, v5\ns_nop 0\nv_add_f32 v5, 1.0, v5\nv_rcp_f32 v5, v5\ns_nop 0\nv_mul_f32 v{v}, v{v}, v5")
        bf16_round(a, v, 5)
    for p in range(10):
        a(f"s_waitcnt vmcnt({9-p})")
        for i in range(4):
            d = 20 + 4*p + i
            a(f"v_lshlrev_b32 v5, 16, v{d}\nv_and_b32 v6, 0xffff0000, v{d}\nv_fmac_f32 v{64+2*i}, v{10+p}, v5\nv_fmac_f32 v{65+2*i}, v{10+p}, v6")
    a("v_lshlrev_b32 v5, 7, v72\nv_lshl_add_u32 v5, v73, 5, v5")
    a(f"v_add_u32 v5, {MSCR}, v5\nds_write_b128 v5, v[64:67]\nds_write_b128 v5, v[68:71] offset:16")
    a("v_and_b32 v6, 31, v0\nv_lshrrev_b32 v7, 5, v0\nv_lshlrev_b32 v6, 2, v6\nv_add_u32 v11, " + str(MSCR) + ", v6\nv_lshl_add_u32 v10, v7, 10, v11")
    a("s_mov_b32 s19, s3")
    sync4(a, CTL + 76)
    for i in range(8): a(f"ds_read_b32 v{20+i}, v10 offset:{128*i}")
    a("s_waitcnt lgkmcnt(0)")
    for i in range(1, 8): a(f"v_add_f32 v20, v20, v{20+i}")
    a("v_lshl_add_u32 v10, v7, 7, v11\nds_write_b32 v10, v20 offset:8192")
    sync4(a, CTL + 80)
    get_nonce(a)
    a(f"s_mov_b32 s3, s19\ns_lshl_b32 s38, s3, 7\ns_add_u32 s38, s38, {FG_MOD:#x}\ns_cmp_lg_u32 s14, 0\ns_cbranch_scc1 L_{N}_xf0")
    for i in range(8): a(f"ds_read_b32 v{20+i}, v11 offset:{8192+128*i}")
    a("s_waitcnt lgkmcnt(0)")
    for i in range(1, 8): a(f"v_add_f32 v20, v20, v{20+i}")
    bf16_round(a, 20, 5)
    a("v_add_f32 v21, 1.0, v20")
    bf16_round(a, 21, 5)
    a("s_sub_u32 s6, s3, 20\ns_cmp_lt_u32 s6, 20\ns_cselect_b32 s7, 1, 0\ns_sub_u32 s6, s3, 80\ns_cmp_lt_u32 s6, 20\ns_cselect_b32 s6, 1, s7\ns_cmp_eq_u32 s6, 0")
    l = a.label("noinc")
    a(f"s_cbranch_scc1 {l}\nv_mov_b32 v20, v21\n{l}:")
    a(f"s_lshl_b32 s6, s3, 7\ns_cmp_ge_u32 s3, 120\ns_cbranch_scc1 L_{N}_xf0\ns_mov_b32 exec_hi, 0")
    a(f"s_lshr_b32 s7, s50, 16\ns_and_b32 s18, s50, 0xffff\nv_mov_b32 v21, s7\nv_mov_b32 v22, s18\nv_and_b32 v23, 4, v6\nv_cmp_eq_u32 vcc, 0, v23\ns_add_u32 s7, s6, {WS_MODT:#x}\ns_nop 0\nv_cndmask_b32 v21, v21, v22, vcc\nv_or_b32 v21, v21, v20\nbuffer_store_dword v21, v6, s[8:11], s7 offen sc1")
    a(f"buffer_store_dword v20, v6, s[8:11], s6 offen offset:{WS_MOD} sc1\ns_mov_b32 exec_hi, -1")
    handoff_publish(a, 0)
    a(f"s_branch L_{N}_xf0")
    a(f"L_{N}_pq:")
    a(f"s_load_dwordx2 s[16:17], s[0:1], {KA['wq']}\ns_load_dwordx4 s[32:35], s[0:1], {KA['wk']}")
    a("s_lshl_b32 s3, s13, 5\ns_add_u32 s3, s3, s12\ns_and_b32 s19, s3, 7\ns_lshr_b32 s18, s3, 3\ns_lshl_b32 s38, s19, 4\ns_add_u32 s38, s38, s18\ns_lshl_b32 s18, s18, 2\ns_add_u32 s18, s18, s14")
    a(f"s_lshl_b32 s38, s38, 7\ns_add_u32 s38, s38, {FG_PQ:#x}\nv_and_b32 v4, 15, v2")
    a(f"v_lshrrev_b32 v5, 4, v2\nv_mul_u32_u24 v5, 20, v5\nv_add_u32 v5, v5, v4\ns_mul_i32 s6, s19, 80\nv_add_u32 v5, s6, v5\nv_lshlrev_b32 v5, 1, v5\nv_mul_u32_u24 v6, {8*1280}, v3\nv_add_u32 v10, v5, v6\nv_add_u32 v11, 80, v10")
    a("v_bfe_u32 v5, v4, 1, 1\nv_lshrrev_b32 v7, 3, v4\nv_lshl_add_u32 v5, v7, 1, v5\nv_mul_u32_u24 v5, 20, v5\nv_bfe_u32 v7, v4, 2, 1\nv_lshl_add_u32 v5, v7, 1, v5\nv_and_b32 v7, 1, v4\nv_add_u32 v5, v5, v7\nv_add_u32 v5, 16, v5\nv_add_u32 v5, s6, v5\nv_lshlrev_b32 v5, 1, v5\nv_add_u32 v12, v5, v6")
    a("v_lshrrev_b32 v5, 2, v4\nv_lshlrev_b32 v5, 1, v5\nv_add_u32 v5, v5, v7\nv_add_u32 v5, 16, v5\nv_and_b32 v8, 10, v4\nv_cmp_eq_u32 vcc, 0, v8")
    a(f"v_mov_b32 v8, {OOB//2:#x}\ns_nop 0\nv_cndmask_b32 v5, v8, v5, vcc\nv_add_u32 v14, 16, v4\nv_cmp_gt_u32 vcc, 4, v4\ns_nop 1\nv_cndmask_b32 v14, v8, v14, vcc\ns_cmp_eq_u32 s19, 3\ns_cselect_b64 vcc, -1, 0\nv_cndmask_b32 v5, v5, v14, vcc\ns_bitcmp1_b32 s19, 0\ns_cselect_b64 vcc, -1, 0\nv_cndmask_b32 v5, v4, v5, vcc\nv_lshlrev_b32 v5, 1, v5\nv_mul_u32_u24 v6, {8*40}, v3\nv_add_u32 v13, v5, v6")
    a("s_waitcnt lgkmcnt(0)\ns_barrier")
    srd(a, 8, 4, WS_SIZE); srd(a, 20, 16, 640 * 1280)
    lskip = a.label("pqs")
    a(f"s_cmp_ge_u32 s3, 80\ns_cbranch_scc1 {lskip}")
    a("s_cmp_ge_u32 s19, 2\ns_cselect_b32 s32, s34, s32\ns_cselect_b32 s33, s35, s33\ns_cmp_ge_u32 s19, 4\ns_cselect_b32 s7, 0, 25600")
    a("s_mov_b32 s40, s32\ns_mov_b32 s41, s33\ns_mov_b32 s42, s7\ns_mov_b32 s43, 0x20000")
    a(f"s_mul_i32 s28, s18, {16*1280}\ns_mul_i32 s29, s18, {16*40}")
    loads8(a, 20, 10, 20, 44, 28, E_NAT, 1280, 30)
    loads8(a, 20, 11, 24, 48, 28, E_NAT, 1280, 30)
    a("s_mov_b32 exec_lo, 0xffff\ns_mov_b32 exec_hi, 0xffff")
    loads8(a, 20, 12, 28, 52, 28, E_NAT, 1280, 30)
    a("s_mov_b32 exec_lo, 0xffff0000\ns_mov_b32 exec_hi, 0xffff0000")
    loads8(a, 40, 13, 28, 52, 29, E_NAT, 40, 30)
    a("s_mov_b64 exec, -1")
    a(f"s_mul_i32 s6, s19, 40\ns_add_u32 s6, s6, s18\ns_mul_i32 s6, s6, 3072\ns_add_u32 s6, s6, {WS_WQKV:#x}\ns_waitcnt vmcnt(0)")
    for i in range(12): a(f"v_lshl_or_b32 v{20+i}, v{44+i}, 16, v{20+i}")
    for ft in range(3): a(f"buffer_store_dwordx4 v[{20+4*ft}:{23+4*ft}], v1, s[8:11], s6 offen offset:{ft*1024} sc1")
    a(f"{lskip}:")
    get_nonce(a)
    wg_flag(a, CTL + 76, 4, 38)
    a(f"L_{N}_xf0:")
    stamp(a, 1)
    a(f"L_{N}_xf:")
    a.vmq = []; a.lgq = []
    def xaddr(dst, ks_lo_sreg=None, ks_lo=None):
        pass
    a("v_and_b32 v4, 15, v2\nv_mul_u32_u24 v5, 1280, v2\ns_lshl_b32 s3, s14, 3")
    for q in range(4):
        a(f"s_add_u32 s6, s3, {2*q}\nv_add_u32 v6, s6, v3\nv_xor_b32 v6, v6, v4\nv_lshl_add_u32 v{10+q}, v6, 4, v5")
    a(f"s_lshl_b32 s3, s14, 8\ns_add_u32 s3, s3, {P1PAR}\nv_lshlrev_b32 v14, 5, v3\nv_add_u32 v14, s3, v14\nv_lshlrev_b32 v15, 3, v2\nv_add_u32 v15, {ST0L}, v15")
    a("s_barrier")
    stamp(a, 2)
    a("ds_read_b64 v[16:17], v15\nds_read_b64 v[18:19], v15 offset:256")
    for q in range(4):
        for arr in range(2):
            for hf in range(2):
                P = 24 + 16*q + 8*arr + 4*hf
                a(f"ds_read_b128 v[{P}:{P+3}], v14 offset:{arr*2560 + 64*q + 16*hf}")
        for tt in range(2):
            F = 88 + 8*q + 4*tt
            a(f"ds_read_b128 v[{F}:{F+3}], v{10+q} offset:{40960*tt}")
    for q in range(4):
        a(f"s_waitcnt lgkmcnt({min(15, 6*(3-q) + 2*q)})")
        for tt in range(2):
            F = 88 + 8*q + 4*tt; P = 24 + 16*q
            for d in range(4):
                x, y = 20 + 2*(d % 2), 21 + 2*(d % 2)
                a(f"v_lshlrev_b32 v{x}, 16, v{F+d}\nv_and_b32 v{y}, 0xffff0000, v{F+d}\nv_fma_f32 v{x}, v{x}, v{16+2*tt}, v{17+2*tt}\nv_fma_f32 v{y}, v{y}, v{16+2*tt}, v{17+2*tt}")
                a(f"v_fma_f32 v{x}, v{x}, v{P+8+2*d}, v{P+2*d}\nv_fma_f32 v{y}, v{y}, v{P+9+2*d}, v{P+1+2*d}\nv_cvt_pk_bf16_f32 v{F+d}, v{x}, v{y}")
            a(f"ds_write_b128 v{10+q}, v[{F}:{F+3}] offset:{40960*tt}")
    a(f"s_cmp_ge_u32 s14, 6\ns_cbranch_scc1 L_{N}_p1load")
    a("s_cmp_ge_u32 s14, 3\ns_cselect_b32 s17, 1, 0\ns_mul_i32 s3, s17, 3\ns_sub_u32 s15, s14, s3\ns_lshl_b32 s16, s12, 1\ns_add_u32 s16, s16, s17")
    AV, WV, FR, AC = 100, 108, 24, 8
    a(f"s_mul_i32 s3, s17, 40960\nv_add_u32 v5, s3, v5")
    for j in range(8): a(f"v_add_u32 v6, {2*j}, v3\nv_xor_b32 v6, v6, v4\nv_lshl_add_u32 v{AV+j}, v6, 4, v5")
    a(f"s_lshl_b32 s3, s15, 10\ns_add_u32 s3, s3, {WR}\nv_add_u32 v{WV}, s3, v1\ns_waitcnt lgkmcnt(0)")
    def reads(s):
        ops = []
        for q in range(4):
            ks = 4*s + q; r = FR + 32*(s % 2) + 8*q
            ops.append(lambda r=r, ks=ks, q=q: a.lg(f"ds_read_b128 v[{r}:{r+3}], v{AV + ks % 8} offset:{256*(ks//8)}", ("f", s, q)))
            ops.append(lambda r=r, q=q: a.lg(f"ds_read_b128 v[{r+4}:{r+7}], v{WV} offset:{(s % WNS)*WSL + q*3072}", ("f", s, q)))
        return ops
    a("s_barrier")
    run(reads(0))
    for s in range(10):
        rd = []
        if s < 9:
            a("s_barrier")
            rd = reads(s + 1)
        for q in range(4):
            a.wait(lg=[("f", s, q)])
            r = FR + 32*(s % 2) + 8*q
            c = "0" if (s, q) == (0, 0) else f"v[{AC}:{AC+15}]"
            a(f"v_mfma_f32_32x32x16_bf16 v[{AC}:{AC+15}], v[{r+4}:{r+7}], v[{r}:{r+3}], {c}")
            run(rd[2*q:2*q+2])
    R, T = AC, 24
    QS = LOG2E / math.sqrt(20.0)
    a(f"s_mul_i32 s3, s17, 5\ns_lshl_b32 s6, s15, 1\ns_add_u32 s3, s3, s6\ns_lshl_b32 s3, s3, 10\ns_add_u32 s3, s3, {QL}\nv_add_u32 v7, s3, v1\ns_mov_b32 s7, {f32(QS)}\ns_nop 5")
    lq, lnk = a.label("q"), a.label("nokv")
    def qunit(i):
        for j in range(8): a(f"v_mul_f32 v{T+j}, s7, v{R+8*i+j}")
        for d in range(4): a(f"v_cvt_pk_bf16_f32 v{T+8+4*i+d}, v{T+2*d}, v{T+2*d+1}")
        a(f"ds_write_b128 v7, v[{T+8+4*i}:{T+11+4*i}] offset:{i*1024}")
    a(f"s_cmp_lg_u32 s15, 2\ns_cbranch_scc1 {lq}\ns_cmp_ge_u32 s13, 4\ns_cbranch_scc1 {lnk}")
    S = R + 8; U = T + 24
    a(f"s_and_b32 s6, s12, 7\ns_mul_i32 s19, s6, {KVCH}\ns_add_u32 s19, s19, {WS_KV:#x}\ns_lshr_b32 s18, s12, 3\ns_lshl_b32 s18, s18, 1\ns_add_u32 s18, s18, s17")
    l1, lv, l2, lk = a.label("k2"), a.label("v"), a.label("k2b"), a.label("kd")
    a(f"s_cmp_eq_u32 s13, 3\ns_cbranch_scc0 {l1}\nv_mov_b32 v{S+4}, 1.0\ns_mov_b32 exec_lo, 0\nv_mov_b32 v{S}, 1.0\ns_mov_b32 exec_lo, -1\n{l1}:")
    for d in range(4): a(f"v_cvt_pk_bf16_f32 v{U+d}, v{S+2*d}, v{S+2*d+1}")
    a(f"s_cmp_ge_u32 s13, 2\ns_cbranch_scc1 {lv}\ns_cmp_eq_u32 s13, 1\ns_cbranch_scc1 {l2}")
    a(f"s_lshl_b32 s18, s18, 10\ns_add_u32 s19, s19, s18\nbuffer_store_dwordx4 v[{U}:{U+3}], v1, s[8:11], s19 offen sc1\ns_branch {lk}")
    a(f"{l2}:\ns_lshl_b32 s18, s18, 8\ns_add_u32 s19, s19, s18\ns_add_u32 s19, s19, 24576\nv_lshrrev_b32 v4, 2, v1\nbuffer_store_dword v{U}, v4, s[8:11], s19 offen sc1\ns_branch {lk}")
    a(f"{lv}:")
    a(f"s_lshl_b32 s3, s14, 10\ns_add_u32 s3, s3, {WR + WSL}\nv_lshlrev_b32 v4, 5, v2\nv_lshl_add_u32 v4, v3, 3, v4\nv_add_u32 v4, s3, v4")
    a(f"ds_write_b64 v4, v[{U}:{U+1}]\nds_write_b64 v4, v[{U+2}:{U+3}] offset:16")
    a("v_lshrrev_b32 v4, 4, v1\nv_and_b32 v5, 15, v4\nv_lshrrev_b32 v4, 4, v4")
    a(f"v_and_b32 v6, 1, v4\nv_lshlrev_b32 v6, 4, v6\nv_lshl_add_u32 v6, v3, 2, v6\nv_lshrrev_b32 v{U+8}, 2, v5\nv_add_u32 v6, v6, v{U+8}\nv_lshlrev_b32 v6, 5, v6\nv_and_b32 v{U+8}, 3, v5\nv_lshl_add_u32 v6, v{U+8}, 3, v6\nv_add_u32 v6, s3, v6")
    a("s_waitcnt lgkmcnt(0)")
    a(f"ds_read_b64_tr_b16 v[{U+4}:{U+5}], v6\nds_read_b64_tr_b16 v[{U+6}:{U+7}], v6 offset:256")
    a("v_and_b32 v6, 1, v4\nv_lshlrev_b32 v6, 10, v6\nv_lshl_add_u32 v6, v3, 9, v6\nv_lshl_add_u32 v6, v5, 4, v6")
    a(f"s_lshl_b32 s18, s18, 11\ns_add_u32 s19, s19, s18\ns_add_u32 s19, s19, 8192\ns_cmp_eq_u32 s13, 2\ns_cselect_b32 s6, 256, 0\ns_add_u32 s19, s19, s6")
    a(f"s_waitcnt lgkmcnt(0)\nbuffer_store_dwordx4 v[{U+4}:{U+7}], v6, s[8:11], s19 offen sc1")
    a(f"{lk}:")
    qunit(0)
    a(f"s_waitcnt lgkmcnt(0)\ns_barrier\ns_and_b32 s6, s12, 7\ns_lshl_b32 s6, s6, 4\ns_lshr_b32 s3, s12, 3\ns_lshl_b32 s3, s3, 2\ns_add_u32 s6, s6, s3\ns_add_u32 s6, s6, s13\ns_lshl_b32 s6, s6, 7\ns_add_u32 s6, s6, {FG_KV:#x}")
    wg_flag(a, CTL + 64, 2, 6)
    a(f"s_branch L_{N}_qnext")
    a(f"{lq}:")
    qunit(1)
    a(f"{lnk}:")
    qunit(0)
    a("s_waitcnt lgkmcnt(0)\ns_barrier")
    a(f"L_{N}_qnext:")
    stamp(a, 3)
    a(f"s_cmp_ge_u32 s14, 4\ns_cbranch_scc1 L_{N}_idle\ns_branch L_{N}_att")
    a(f"L_{N}_p0other:")
    a(f"s_load_dwordx2 s[16:17], s[0:1], {KA['dbg']}")
    lnz, ln6, lnp, lnc = a.label("nz"), a.label("n6"), a.label("np"), a.label("nc")
    a(f"s_cmp_lg_u32 s14, 4\ns_cbranch_scc1 {lnz}\nv_lshrrev_b32 v8, 2, v1\nv_add_u32 v8, {CTL}, v8\nv_mov_b32 v9, 0\nds_write_b32 v8, v9 offset:0")
    a(f"s_lshr_b32 s3, s2, 3\ns_cmp_ge_u32 s3, 8\ns_cbranch_scc1 {lnz}\ns_getpc_b64 s[40:41]\n{lnc}:\ns_sub_u32 s40, s40, {lnc}-{KNAME}\ns_subb_u32 s41, s41, 0\ns_lshl_b32 s3, s3, 13\nv_lshlrev_b32 v8, 3, v1\nv_add_u32 v8, s3, v8\nv_min_u32 v8, {text_end}-{KNAME}-4, v8\nglobal_load_dword v20, v8, s[40:41]\n{lnz}:")
    a("s_waitcnt lgkmcnt(0)\ns_barrier")
    srd(a, 8, 4, WS_SIZE)
    ln5 = a.label("n5")
    a(f"s_cmp_lg_u32 s14, 5\ns_cbranch_scc1 {ln5}\ns_lshr_b32 s3, s2, 3\ns_mul_i32 s3, s3, {28*128}\ns_add_u32 s3, s3, {WS_FG:#x}\nv_lshlrev_b32 v8, 3, v1\ns_mov_b64 exec, {(1<<28)-1:#x}\nbuffer_load_dword v20, v8, s[8:11], s3 offen sc1\ns_mov_b64 exec, -1\n{ln5}:")
    a(f"s_cmp_lg_u32 s14, 6\ns_cbranch_scc1 {ln6}")
    srd(a, 20, 16, 256)
    a(f"v_mov_b32 v8, 0\ns_cmp_lg_u32 s2, 0\ns_cbranch_scc1 {lnp}\ns_memrealtime s[18:19]\ns_waitcnt lgkmcnt(0)\ns_lshl_b32 s18, s18, 5\ns_or_b32 s18, s18, 16\nv_mov_b32 v9, s18\ns_mov_b64 exec, 1\nbuffer_store_dword v9, v8, s[20:23], 0 offen sc1\ns_mov_b64 exec, -1")
    a(f"{lnp}:\ns_mov_b32 s29, 0x8000\n{lnp}l:\nbuffer_load_dword v9, v8, s[20:23], 0 offen sc1\ns_waitcnt vmcnt(0)\nv_readfirstlane_b32 s50, v9\ns_sub_u32 s29, s29, 1\ns_cbranch_scc1 {lnp}x\ns_cmp_eq_u32 s50, 0\ns_cbranch_scc1 {lnp}l\n{lnp}x:")
    xid_publish(a, WS_FL1)
    a(f"v_mov_b32 v8, {CTL+252}\nv_mov_b32 v9, s50\nds_write_b32 v8, v9\ns_waitcnt lgkmcnt(0)\n{ln6}:")
    lxd = a.label("xd")
    a(f"s_cmp_lt_u32 s14, 6\ns_cbranch_scc1 {lxd}\ns_sub_u32 s15, s14, 6")
    srd(a, 40, 60, 2048 * 1280)
    if os.environ.get("X_JF", "1") == "1":
        lj = a.label("jf")
        a(f"s_cmp_lt_u32 s13, 4\ns_cbranch_scc1 {lj}")
        lds_wait(a, CTL + 88, 4)
        a(f"{lj}:")
    a(f"v_lshrrev_b32 v10, 4, v1\ns_mul_i32 s22, s15, 20480\ns_lshl_b32 s6, s12, 2\ns_add_u32 s6, s6, s15\ns_mul_i32 s6, s6, 20480\ns_mul_i32 s23, s13, {XROT}\ns_lshr_b32 s23, s23, 1")
    for i in range(20):
        a(f"s_lshl_b32 s3, s23, 6\nv_add_u32 v11, s3, v10\ns_lshl_b32 s3, s23, 10\ns_add_u32 m0, s3, s22\nv_mul_u32_u24 v12, 52429, v11\nv_lshrrev_b32 v12, 22, v12\nv_mul_u32_u24 v13, 80, v12\nv_sub_u32 v13, v11, v13\nv_xor_b32 v13, v13, v12\nv_mul_u32_u24 v12, 1280, v12\nv_lshl_add_u32 v13, v13, 4, v12\nbuffer_load_dwordx4 v13, s[40:43], s6 offen lds\ns_add_u32 s23, s23, 1\ns_cmp_eq_u32 s23, 20\ns_cselect_b32 s23, 0, s23")
    a(f"{lxd}:")
    get_nonce(a)
    lw4, lp4 = a.label("w4"), a.label("p4")
    a(f"s_waitcnt vmcnt(0)\ns_cmp_eq_u32 s14, 5\ns_cbranch_scc1 L_{N}_xf\ns_cmp_lg_u32 s14, 4\ns_cbranch_scc1 {lw4}")
    a(f"s_lshr_b32 s7, s50, 16\ns_and_b32 s18, s50, 0xffff\ns_mov_b32 s30, {WS_MODT:#x}\ns_add_u32 s31, s30, 4096\ns_mov_b32 s29, 0x8000\nv_add_u32 v5, {P1PAR}, v1\n{lp4}:")
    for i in range(5): a(f"buffer_load_dwordx4 v[{24+4*i}:{27+4*i}], v1, s[8:11], s{30 + i//4} offen offset:{1024*(i%4)} sc1")
    a("s_waitcnt vmcnt(0)")
    for i in range(20): a(f"v_xor_b32 v{44+i}, s{18 if i % 2 == 0 else 7}, v{24+i}")
    for i in range(1, 19, 2): a(f"v_or3_b32 v44, v44, v{44+i}, v{45+i}")
    a(f"v_or_b32 v44, v44, v63\nv_and_b32 v44, 0xffff, v44\nv_cmp_ne_u32 vcc, 0, v44\ns_sub_u32 s29, s29, 1\ns_cbranch_scc1 {lp4}x\ns_cbranch_vccz {lp4}x\ns_sleep 2\ns_branch {lp4}\n{lp4}x:")
    for i in range(20): a(f"v_and_b32 v{24+i}, 0xffff0000, v{24+i}")
    for i in range(5): a(f"ds_write_b128 v5, v[{24+4*i}:{27+4*i}] offset:{1024*i}")
    a("s_waitcnt lgkmcnt(0)")
    stamp(a, 1)
    a(f"s_branch L_{N}_xf\n{lw4}:")
    a.vmq = []
    a(f"s_mul_i32 s20, s15, 3072\ns_add_u32 s20, s20, {WR}\ns_mul_i32 s19, s13, {40*3072}\ns_mul_i32 s3, s15, 3072\ns_add_u32 s19, s19, s3\ns_add_u32 s19, s19, {WS_WQKV:#x}")
    a(f"v_lshrrev_b32 v4, 4, v1\nv_min_u32 v4, 9, v4\nv_lshlrev_b32 v4, 7, v4\ns_lshl_b32 s30, s13, 11\ns_add_u32 s30, s30, {FG_PQ:#x}")
    def issue(s):
        a(f"s_add_u32 m0, s20, {(s % WNS)*WSL}\ns_nop 0")
        for i in range(3): a.vm(f"buffer_load_dwordx4 v1, s[8:11], s19 offen offset:{i*1024} sc1 lds", ("st", s))
        a("s_add_u32 s19, s19, 12288")
    a(f"v_lshrrev_b32 v14, 6, v1\nv_mul_u32_u24 v14, 1280, v14\nv_and_b32 v5, 48, v1\nv_add_u32 v14, v14, v5\ns_mul_i32 s3, s15, 20480\nv_add_u32 v14, s3, v14\nv_mov_b32 v6, 0\nv_mov_b32 v7, 0\nv_mov_b32 v20, 0x3f803f80\ns_waitcnt vmcnt(0)")
    for i in range(20): a(f"ds_read_b128 v[{24+4*i}:{27+4*i}], v14 offset:{64*i}")
    for i in range(20):
        a(f"s_waitcnt lgkmcnt({min(15, 19-i)})")
        for d in range(4):
            b = 24 + 4*i + d
            a(f"v_dot2c_f32_bf16 v6, v{b}, v20\nv_dot2c_f32_bf16 v7, v{b}, v{b}")
    a("s_nop 2")
    for dpp in ("quad_perm:[1,0,3,2]", "quad_perm:[2,3,0,1]"):
        a(f"s_nop 1\nv_add_f32_dpp v6, v6, v6 {dpp} row_mask:0xf bank_mask:0xf\nv_add_f32_dpp v7, v7, v7 {dpp} row_mask:0xf bank_mask:0xf")
    a(f"v_mul_f32 v6, {f32(1/640)}, v6\nv_mul_f32 v7, {f32(1/640)}, v7\nv_fma_f32 v7, -v6, v6, v7\nv_max_f32 v7, 0, v7\nv_add_f32 v7, {f32(1e-5)}, v7\nv_rsq_f32 v10, v7\ns_nop 0\nv_mul_f32 v6, v6, v10\nv_sub_f32 v11, 0, v6")
    a(f"v_lshrrev_b32 v14, 6, v1\nv_lshlrev_b32 v14, 3, v14\ns_lshl_b32 s3, s15, 7\ns_add_u32 s3, s3, {ST0L}\nv_add_u32 v14, s3, v14\nds_write_b64 v14, v[10:11]\ns_waitcnt lgkmcnt(0)")
    wg_poll(a, CTL + 84, lambda: poll_lines(a, 30, 10))
    for s in range(NW0): issue(s)
    stamp(a, 1)
    q0 = list(a.vmq)
    a(f"s_branch L_{N}_xf")
    a(f"L_{N}_p1load:")
    a.vmq = q0
    for s in range(NW0, 4): issue(s)
    a("s_waitcnt lgkmcnt(0)")
    for s in range(10):
        a.wait(vm=[("st", s)])
        a("s_barrier")
        if s >= 1 and s + 3 < 10: issue(s + 3)
    a(f"s_barrier\ns_branch L_{N}_helper")

RA_D = os.environ.get('X_RAD', '1') == '1'
PATCH = PAR6 + 4096
GB_LDS = PAR6 + 3072
X1K, Z1K = 140, 148
def phase_ab_compute(a, g, h, pc, pd):
    a("s_cmp_ge_u32 s14, 3\ns_cselect_b32 s17, 1, 0\ns_mul_i32 s3, s17, 3\ns_sub_u32 s15, s14, s3\ns_lshl_b32 s16, s12, 1\ns_add_u32 s16, s16, s17")
    a.vmq = []; a.lgq = []
    g.addr(a)
    G, XR, T, ST = 88, 104, 112, 124
    UTL = PAR6 + 1024
    unit_off6(a, 22, 5, 0)
    a(f"s_add_u32 s22, s22, {WS_X1:#x}\nv_mul_u32_u24 v132, 1280, v2\nv_lshl_add_u32 v132, v3, 3, v132\ns_mul_i32 s23, s16, {32*1280}\ns_mul_i32 s6, s13, 160\ns_add_u32 s23, s23, s6\ns_lshl_b32 s6, s15, 6\ns_add_u32 s23, s23, s6")
    srd(a, 24, 60, 2048 * 1280)
    for i in range(4): a.vm(f"buffer_load_dwordx2 v[{XR+2*i}:{XR+2*i+1}], v132, s[24:27], s23 offen offset:{16*i}", "epi")
    a(f"s_lshl_b32 s3, s15, 7\ns_add_u32 s3, s3, {PAR6}\nv_lshlrev_b32 v128, 4, v3\nv_add_u32 v128, s3, v128")
    stats_addr(a, WS_ST1, 29)
    flag_addr(a, WS_FL1)
    g.start(a)
    stamp(a, 5)
    a(f"s_add_u32 s30, s29, {WS_ST2 - WS_ST1}\nv_mov_b32 v130, -1\nv_mov_b32 v131, -1\ns_mov_b32 exec_hi, 0")
    a.vm("buffer_store_dwordx2 v[130:131], v1, s[8:11], s30 offen sc1")
    a("s_mov_b32 exec_hi, -1")
    for s in range(10):
        g.iter(a, s, s == 0, 10)
        if s == 4: xid_load(a, WS_FL1, 129)
        if s == 7:
            for i in range(4): a.lg(f"ds_read_b128 v[{G+4*i}:{G+4*i+3}], v128 offset:{32*i}")
        if s == 8:
            a.wait(vm=["epi"])
            xid_decide(a, 129)
            a(f"v_mov_b32 v{ST}, 0\nv_mov_b32 v{ST+1}, 0")
    proj_epilogue(a, g, False, G, XR, T, ST, X1K, None)
    stats_store(a, ST, 29, "sc1")
    handoff_publish(a, WS_FL1)
    SD, U, T, RR, NM, C1, ST = 88, 40, 72, 112, 113, 114, 116
    h.addr(a)
    stats_base(a, 22, WS_ST1); stats_base(a, 30, WS_ST2)
    a(f"s_add_u32 s29, s29, {WS_ST2 - WS_ST1}")
    a(f"s_lshl_b32 s3, s15, 8\ns_add_u32 s3, s3, {UTL}\nv_lshlrev_b32 v115, 5, v3\nv_add_u32 v115, s3, v115")
    a(f"s_mov_b32 s28, {f32(GC2)}\nv_mov_b32 v{C1}, {f32(GC1)}")
    h.start(a)
    stamp(a, 6)
    stats_load(a, SD, 22, "ln", AFL)
    for s in range(20):
        h.iter(a, s, s == 0, 20)
        if s == 8:
            a.wait(vm=["ln"])
            stats_finish(a, SD, 640, RR, NM)
    stamp(a, 7)
    def ut_reads(n):
        for u in range(2):
            for hf in range(2):
                for k in range(2):
                    r = U + 16*u + 8*hf + 4*k
                    a(f"ds_read_b128 v[{r}:{r+3}], v115 offset:{n*768 + u*128 + hf*64 + k*16}")
    def affine(n):
        A = h.ACC + 16*n
        for i in range(16): a(f"v_fma_f32 v{U+2*i+1}, v{U+2*i}, v{NM}, v{U+2*i+1}")
        for i in range(16): a(f"v_fma_f32 v{A+i}, v{A+i}, v{RR}, v{U+2*i+1}")
    Z2, Z1 = h.ACC, h.ACC + 16
    a("s_setprio 1")
    ut_reads(0)
    a("s_waitcnt lgkmcnt(0)\ns_nop 2")
    affine(0)
    ut_reads(1)
    gelu(a, list(range(Z2, Z2+16)), T, C1)
    a(f"v_mov_b32 v{ST}, 0\nv_mov_b32 v{ST+1}, 0")
    for i in range(16): a(f"v_add_f32 v{ST}, v{ST}, v{Z2+i}\nv_fmac_f32 v{ST+1}, v{Z2+i}, v{Z2+i}")
    stats_store(a, ST, 29, "sc1")
    a("s_setprio 0")
    a("s_waitcnt lgkmcnt(0)")
    affine(1)
    gelu(a, list(range(Z1, Z1+16)), T, C1)
    stats_load(a, SD, 30, "st2", "sc1")
    for i in range(8): a(f"v_cvt_pk_bf16_f32 v{Z1K+i}, v{Z1+2*i}, v{Z1+2*i+1}")
    a(f"s_mul_i32 s6, s17, {32*ZROW}\ns_lshl_b32 s7, s15, 6\ns_add_u32 s6, s6, s7\ns_add_u32 s6, s6, {PATCH}\nv_mul_u32_u24 v4, {ZROW}, v2\nv_lshl_add_u32 v4, v3, 3, v4\nv_add_u32 v4, s6, v4")
    a(f"v_bfe_u32 v5, v0, 2, 2\nv_lshl_add_u32 v5, v3, 3, v5\nv_mul_u32_u24 v5, {ZROW}, v5\nv_and_b32 v6, 3, v0\nv_lshl_add_u32 v5, v6, 3, v5\nv_bfe_u32 v6, v0, 4, 1\nv_lshl_add_u32 v5, v6, 5, v5\nv_add_u32 v5, s6, v5")
    a(f"s_lshl_b32 s6, s13, 7\ns_lshl_b32 s7, s16, 1\ns_add_u32 s6, s6, s7\ns_mul_i32 s6, s6, 3\ns_add_u32 s6, s6, s15\ns_lshl_b32 s6, s6, 10\ns_add_u32 s26, s6, {WS_Z2T:#x}")
    a.wait(vm=["st2"])
    a("s_mov_b32 s29, 0x4000")
    lp, lok = a.label("poll"), a.label("ok")
    a(f"{lp}:")
    a(f"v_or_b32 v{ST}, v{SD+1}, v{SD+3}")
    for i in range(2, 12): a(f"v_or_b32 v{ST}, v{ST}, v{SD+1+2*i}")
    a(f"v_cmp_gt_i32 vcc, 0, v{ST}\ns_sub_u32 s29, s29, 1\ns_cbranch_scc1 {lok}\ns_cbranch_vccz {lok}")
    stats_load(a, SD, 30, "st2", "sc1")
    a(f"s_waitcnt vmcnt(0)\ns_branch {lp}\n{lok}:")
    stats_finish(a, SD, 768, RR, NM)
    for i in range(16): a(f"v_fma_f32 v{Z2+i}, v{Z2+i}, v{RR}, v{NM}")
    for i in range(8): a(f"v_cvt_pk_bf16_f32 v{T+8+i}, v{Z2+2*i}, v{Z2+2*i+1}")
    for i in range(4): a(f"ds_write_b64 v4, v[{T+8+2*i}:{T+9+2*i}] offset:{16*i}")
    a("s_waitcnt lgkmcnt(0)")
    for p in range(2):
        a(f"ds_read_b64_tr_b16 v[{U+4*p}:{U+4*p+1}], v5 offset:{16*p*ZROW}\nds_read_b64_tr_b16 v[{U+4*p+2}:{U+4*p+3}], v5 offset:{(16*p+4)*ZROW}")
    a("s_waitcnt lgkmcnt(0)")
    for p in range(2): a(f"buffer_store_dwordx4 v[{U+4*p}:{U+4*p+3}], v1, s[8:11], s26 offen offset:{3072*p} sc1")
    a(f"s_lshl_b32 s6, s13, 5\ns_add_u32 s6, s6, s12\ns_lshl_b32 s6, s6, 7\ns_add_u32 s6, s6, {FG_Z2:#x}")
    wg_flag(a, CTL + 68, 6, 6)
    a("s_barrier")
    stamp(a, 8)
    a.vmq = []; a.lgq = []
    B, T, G = 96, 100, 112
    pc.addr(a)
    unit_off6(a, 29, 6, WS_Y)
    flag_addr(a, WS_FL2)
    a(f"v_lshlrev_b32 v97, 1, v2\ns_lshl_b32 s6, s16, 6")
    srd(a, 24, 62, 4096)
    a(f"buffer_load_ushort v{B}, v97, s[24:27], s6 offen")
    for i in range(16): a(f"v_mov_b32 v{pc.ACC+i}, 0")
    pc.start(a)
    stamp(a, 9)
    a("s_mov_b32 s30, 5\nL_k_cloop:")
    for s in range(6): pc.iter(a, s, False, 32)
    a("s_sub_u32 s30, s30, 1\ns_cmp_lg_u32 s30, 0\ns_cbranch_scc1 L_k_cloop")
    a.lgq = [(t[0], t[1] + 24, t[2]) if isinstance(t, tuple) else t for t in a.lgq]
    a(f"s_waitcnt vmcnt(0)\nv_lshlrev_b32 v{B}, 16, v{B}")
    for s in range(30, 32): pc.iter(a, s, False, 32)
    stamp(a, 10)
    R = pc.ACC
    a("s_nop 11")
    for i in range(2):
        for d in range(4):
            z = Z1K + 4*i + d; r = R + 8*i + 2*d; t = T + 2*(d % 2)
            a(f"v_add_f32 v{r}, v{r}, v{B}\nv_add_f32 v{r+1}, v{r+1}, v{B}\nv_lshlrev_b32 v{t}, 16, v{z}\nv_and_b32 v{t+1}, 0xffff0000, v{z}\nv_mul_f32 v{r}, v{r}, v{t}\nv_mul_f32 v{r+1}, v{r+1}, v{t+1}\nv_cvt_pk_bf16_f32 v{T+4+4*i+d}, v{r}, v{r+1}")
        hstore(a, f"buffer_store_dwordx4 v[{T+4+4*i}:{T+7+4*i}], v1, s[8:11], s29 offen offset:{1024*i}")
    handoff_publish(a, WS_FL2)
    if not RA_D: a("s_barrier")
    srd(a, 24, 44, 2048 * 1280)
    a(f"s_lshl_b32 s3, s15, 7\ns_add_u32 s3, s3, {GB_LDS}\nv_lshlrev_b32 v136, 4, v3\nv_add_u32 v136, s3, v136")
    a(f"v_mul_u32_u24 v137, 1280, v2\nv_lshl_add_u32 v137, v3, 4, v137\ns_mul_i32 s28, s16, {32*1280}\ns_mul_i32 s6, s13, 160\ns_add_u32 s28, s28, s6\ns_lshl_b32 s6, s15, 6\ns_add_u32 s28, s28, s6")
    pd.start(a)
    for s in range(12):
        pd.iter(a, s, s == 0, 12)
        if s == 9:
            for i in range(4): a.lg(f"ds_read_b128 v[{G+4*i}:{G+4*i+3}], v136 offset:{32*i}")
    proj_epilogue(a, pd, True, G, X1K, 100, None, 104, 137)
    a("s_branch L_k_end")

def kmain():
    K2T = os.environ.get("X_K2T"); SYNC = os.environ.get("X_SYNC", "bar")
    a = K("k"); GA = G6(4, 1, 3); GB = G6(2, 2, 13); GC = G6(4, 1, 33); GD = G6(4, 1, 65)
    p01(a, "L_k_textend")
    SA = [(8, 24), (40, 56)]; OO = [72, 88]; PP = [104, 112]; QQ1 = [120, 128]; QQ2 = [124, 132]
    KA_, KB_, V1, V2 = 136, 140, 144, 148
    VA, VB, VN, VNB, DUM, OA, CA = 4, 5, 6, 152, 153, 154, 160
    NB = 6
    FLAG = NB * KVCH
    a("L_k_att:")
    a.vmq = []; a.lgq = []
    a("v_lshrrev_b32 v7, 2, v1")
    a("s_lshr_b32 s15, s14, 1\ns_and_b32 s16, s14, 1\ns_lshl_b32 s16, s16, 1\ns_lshl_b32 s17, s12, 1\ns_add_u32 s17, s17, s15")
    a(f"s_mul_i32 s3, s15, 5120\ns_add_u32 s3, s3, {QL}\ns_lshl_b32 s6, s16, 2\ns_add_u32 s6, s6, s3\nv_add_u32 v9, s6, v1\ns_lshl_b32 s6, s16, 10\ns_add_u32 s3, s3, s6\nv_add_u32 v8, s3, v1")
    for X in range(2):
        a(f"ds_read_b128 v[{QQ1[X]}:{QQ1[X]+3}], v8 offset:{1024*X}\nds_read_b32 v{QQ2[X]}, v9 offset:{4096+4*X}")
    def qk1(X, S): return f"v_mfma_f32_32x32x16_bf16 v[{S}:{S+15}], v[{KB_}:{KB_+3}], v[{QQ2[X]}:{QQ2[X]+3}], 0"
    def qk2(X, S): return f"v_mfma_f32_32x32x16_bf16 v[{S}:{S+15}], v[{KA_}:{KA_+3}], v[{QQ1[X]}:{QQ1[X]+3}], v[{S}:{S+15}]"
    def pv(X, V, P): return f"v_mfma_f32_32x32x16_bf16 v[{OO[X]}:{OO[X]+15}], v[{V}:{V+3}], v[{P}:{P+3}], v[{OO[X]}:{OO[X]+15}]"
    def rKA(t, va): return f"ds_read_b128 v[{KA_}:{KA_+3}], v{va} offset:{t*1024}"
    def rKB(t, vb): return f"ds_read_b32 v{KB_}, v{vb} offset:{24576+t*256}"
    def rV(t, p, va): return f"ds_read_b128 v[{(V1, V2)[p]}:{(V1, V2)[p]+3}], v{va} offset:{8192+t*2048+p*1024}"
    def scores():
        for X in range(2): a(qk1(X, SA[X][0]))
        for X in range(2): a(qk2(X, SA[X][0]))
    def max_reduce():
        for X in range(2):
            for i in range(0, 16, 2): a(f"v_max3_f32 v{PP[X]}, v{SA[X][0]+i}, v{SA[X][0]+i+1}, v{PP[X]}")
    def finish_max():
        a("v_cmp_eq_u32 vcc, 0, v3")
        for X in range(2):
            M = PP[X]
            a(f"v_mov_b32 v{M+1}, v{M}\ns_nop 1\nv_permlane32_swap_b32 v{M}, v{M+1}\ns_nop 1\nv_max_f32 v{M}, v{M}, v{M+1}")
            a(f"v_and_b32 v{M+1}, 0xffff0000, v{M}\nv_sub_f32 v{M+2}, v{M}, v{M+1}\nv_and_b32 v{M+3}, 0xffff0000, v{M+2}\nv_sub_f32 v{M+2}, v{M+2}, v{M+3}")
            a(f"v_lshrrev_b32 v{M+1}, 16, v{M+1}\nv_or_b32 v{M+1}, v{M+1}, v{M+3}\nv_lshrrev_b32 v{M+2}, 16, v{M+2}")
            a(f"v_cndmask_b32 v{QQ2[X]+1}, 0, v{M+1}, vcc\nv_cndmask_b32 v{QQ2[X]+2}, 0, v{M+2}, vcc")
    def reset_max():
        for X in range(2): a(f"v_mov_b32 v{QQ2[X]+1}, 0\nv_mov_b32 v{QQ2[X]+2}, 0\nv_mov_b32 v{PP[X]}, 0xff800000")
    a(f"s_lshl_b32 s38, s12, 8\ns_lshl_b32 s6, s13, 2\ns_add_u32 s6, s6, s14\ns_lshl_b32 s6, s6, 2\ns_add_u32 s38, s38, s6\ns_add_u32 s38, s38, {WS_FL0+32:#x}\ns_mov_b32 s39, 0\ns_lshl_b32 s51, s14, 2\ns_add_u32 s51, s51, {FLAG}")
    reset_max()
    for r in (QQ2[0]+3, QQ2[1]+3, KB_+3): a(f"v_mov_b32 v{r}, 0")
    for r in (KB_+1, KB_+2): a(f"v_mov_b32 v{r}, 0xbf80bf80")
    def main_init():
        a(f"s_mov_b32 s24, 0\ns_mov_b32 s25, {KVCH}\nv_mov_b32 v{VNB}, {FLAG+68}\nv_mov_b32 v{VA}, v1\nv_mov_b32 v{VN}, v1\nv_mov_b32 v{VB}, v7")
        for X in range(2):
            for i in range(16): a(f"v_mov_b32 v{OO[X]+i}, 0")
            for i in range(4): a(f"v_mov_b32 v{SA[X][1]+12+i}, 0")
        for i in range(4): a(f"v_mov_b32 v{V2+i}, 0")
    main_init()
    a(f"s_mul_i32 s6, s13, 20\ns_mul_i32 s7, s16, 5\ns_add_u32 s6, s6, s7\ns_mul_i32 s22, s17, {40*1024}\ns_add_u32 s22, s22, {WS_O:#x}")
    for X in range(2):
        for i, g in enumerate((0, 2, 4)):
            a(f"v_add_u32 v8, s6, v3\nv_add_u32 v8, {5*X+g}, v8" if g < 4 else f"v_mov_b32 v8, s6\nv_add_u32 v8, {5*X+4}, v8")
            a(f"v_lshrrev_b32 v9, 2, v8\nv_lshlrev_b32 v9, 10, v9\nv_and_b32 v10, 1, v8\nv_lshl_add_u32 v9, v10, 9, v9\nv_bfe_u32 v10, v8, 1, 1\nv_lshl_add_u32 v9, v10, 3, v9\nv_lshl_add_u32 v{OA+3*X+i}, v2, 4, v9")
    a(f"v_mov_b32 v{CA}, {FLAG+32}\nv_mov_b32 v{CA+2}, 0\nv_mov_b32 v{CA+3}, 0\nv_mov_b32 v{CA+1}, 1")
    a("s_waitcnt vmcnt(0) lgkmcnt(0)\ns_barrier")
    a(rKA(0, 1)); a(rKB(0, 7)); a("s_waitcnt lgkmcnt(0)")
    scores()
    a("s_nop 10")
    max_reduce()
    finish_max()
    a("L_k_main:")
    for X in range(2):
        for i in range(2): a(f"v_mov_b32 v{PP[X]+4+i}, 0")
    scores()
    a(rKB(1, VB)); a(f"ds_read_b32 v{DUM}, v{VB}"); a(rKA(1, VA)); a(rV(0, 0, VA))
    a("s_nop 5")
    slow = []
    a("L_k_loop:")
    for t in range(8):
        kt, vt = (t + 2) % 8, (t + 1) % 8
        if PROF and os.environ.get("X_GT"):
            if t == 0: a("s_memtime s[80:81]")
            if t == 3: a("s_lshl_b32 m0, s24, 1\ns_nop 0\ns_movreld_b32 s56, s80")
        for gi in range(4):
            for X in range(2):
                S, Sp = (SA[X][0], SA[X][1]) if t % 2 == 0 else (SA[X][1], SA[X][0])
                P = PP[X]
                cv, mf, rd = [([(6, Sp+12), (7, Sp+14)], qk1(X, Sp), rKB(kt, VB)),
                              ([(0, S), (1, S+2)], pv(X, V2, P+4), rV(t, 1, VN)),
                              ([(2, S+4), (3, S+6)], qk2(X, Sp), rKA(kt, VA)),
                              ([(4, S+8), (5, S+10)], pv(X, V1, P), rV(vt, 0, VN))][gi]
                for d, r in cv: a(f"v_cvt_pk_bf16_f32 v{P+d}, v{r}, v{r+1}")
                if gi % 2 == 0 and X == 0: a("s_waitcnt lgkmcnt(2)")
                a(mf)
                if X == 1: a(rd)
                if X == 0 and (t, gi) == (5, 0):
                    ls, l2, l5 = a.label("bs"), a.label("g2"), a.label("g5")
                    a(f"s_cmp_eq_u32 s24, 5\ns_cselect_b32 s26, {-5*KVCH}, s25\ns_bitcmp1_b32 0x67, s24\ns_cbranch_scc0 {ls}\ns_bitcmp1_b32 0x44, s24\ns_cbranch_scc1 {l2}\ns_cmp_eq_u32 s24, 5\ns_cbranch_scc1 {l5}\ns_barrier\ns_branch {ls}")
                    a(f"{l2}:\ns_mov_b64 exec, 1\nds_add_u32 v{CA}, v{CA+1}\ns_mov_b64 exec, -1\ns_branch {ls}")
                    a(f"{l5}:\nds_read_b32 v{DUM}, v{CA} offset:4\ns_waitcnt lgkmcnt(0)\nv_readfirstlane_b32 s3, v{DUM}\ns_cmp_lt_u32 s3, 4\ns_cbranch_scc1 {l5}")
                    xid_load(a, WS_FL1, VNB)
                    a(f"{ls}:")
                if X == 0 and (t, gi) == (6, 0): a(f"v_add_u32 v{VB}, s26, v{VB}\nv_add_u32 v{VA}, s26, v{VA}")
                if X == 0 and (t, gi) == (7, 2): a(f"v_add_u32 v{VN}, s26, v{VN}")
                for i in range(4): a(f"v_exp_f32 v{S+4*gi+i}, v{S+4*gi+i}")
    a("s_add_u32 s24, s24, 1\ns_cmp_lt_u32 s24, 8\ns_cbranch_scc1 L_k_loop")
    for X in range(2):
        a(f"v_cvt_pk_bf16_f32 v{PP[X]+6}, v{SA[X][1]+12}, v{SA[X][1]+13}\nv_cvt_pk_bf16_f32 v{PP[X]+7}, v{SA[X][1]+14}, v{SA[X][1]+15}")
    a("s_waitcnt vmcnt(0)")
    xid_decide(a, VNB)
    a("s_waitcnt lgkmcnt(0)\nv_cmp_eq_u32 vcc, 0, v3")
    for X in range(2): a(pv(X, V2, PP[X]+4))
    a(f"v_mov_b32 v{KA_}, {f32(2.0**30)}\nv_mov_b32 v{KA_+1}, {f32(2.0**-30)}\ns_mov_b64 s[28:29], 0\nv_mov_b32 v{V1+1}, s51\ns_nop 7")
    if not os.environ.get("X_GT"): stamp(a, 4)
    a("s_cmp_eq_u32 s39, 1\ns_cbranch_scc1 L_k_rb")
    for X in range(2):
        O, T, L = OO[X], SA[X][0], PP[X]
        a(f"v_cndmask_b32 v{L}, v{O}, v{O+4}, vcc\nv_rcp_f32 v{L+1}, v{L}")
        a(f"v_cmp_nle_f32 s[30:31], v{L}, v{KA_}\ns_or_b64 s[28:29], s[28:29], s[30:31]\nv_cmp_nge_f32 s[30:31], v{L}, v{KA_+1}\ns_or_b64 s[28:29], s[28:29], s[30:31]")
        for i, r in enumerate((8, 9, 10, 11, 12, 13, 14, 15, 0, 1, 2, 3)): a(f"v_mul_f32 v{T+6+i}, v{O+r}, v{L+1}")
        for d in range(6): a(f"v_cvt_pk_bf16_f32 v{T+d}, v{T+6+2*d}, v{T+7+2*d}")
        hstore(a, f"buffer_store_dwordx2 v[{T}:{T+1}], v{OA+3*X}, s[8:11], s22 offen")
        hstore(a, f"buffer_store_dwordx2 v[{T+2}:{T+3}], v{OA+3*X+1}, s[8:11], s22 offen")
        a("s_mov_b32 exec_hi, 0")
        hstore(a, f"buffer_store_dwordx2 v[{T+4}:{T+5}], v{OA+3*X+2}, s[8:11], s22 offen")
        a("s_mov_b32 exec_hi, -1")
    a(f"s_cmp_eq_u32 s27, 1\ns_cbranch_scc1 L_k_pub")
    lbad = a.label("bad")
    a(f"s_cmp_lg_u64 s[28:29], 0\ns_cselect_b32 s3, 1, 0\nv_mov_b32 v{V1}, s3\nds_write_b32 v{V1+1}, v{V1}\ns_cbranch_scc1 {lbad}")
    handoff_publish(a, WS_FL0)
    a(f"s_mov_b32 s39, 1\n{lbad}:\ns_waitcnt lgkmcnt(0)")
    def vote(lend):
        a(f"s_barrier\nv_mov_b32 v44, {FLAG}\nds_read_b128 v[40:43], v44\ns_waitcnt lgkmcnt(0)")
        for i in range(1, 4): a(f"v_or_b32 v40, v40, v{40+i}")
        a(f"s_nop 0\nv_readfirstlane_b32 s3, v40\ns_cmp_eq_u32 s3, {XCMP}\ns_cbranch_scc1 {lend}\ns_mov_b32 s27, 1")
    vote("L_k_pa")
    reset_max()
    a("s_mov_b32 s24, 0")
    a("L_k_maxloop:")
    a("s_barrier\ns_barrier")
    for t in range(8):
        a(rKA(t, 1)); a(rKB(t, 7)); a("s_waitcnt lgkmcnt(0)")
        scores()
        a("s_nop 10")
        max_reduce()
    a("s_add_u32 s24, s24, 1\ns_cmp_lt_u32 s24, 8\ns_cbranch_scc1 L_k_maxloop")
    finish_max()
    main_init()
    a(f"s_barrier\nds_write_b64 v{CA}, v[{CA+2}:{CA+3}]\ns_waitcnt lgkmcnt(0)\ns_barrier")
    a(rKA(0, 1)); a(rKB(0, 7)); a("s_waitcnt lgkmcnt(0)")
    a("s_branch L_k_main")
    for x in slow: a(x)
    a("L_k_pub:")
    handoff_publish(a, WS_FL0)
    a("L_k_rb:\ns_barrier")
    a("L_k_pa:")
    phase_ab_compute(a, GA, GB, GC, GD)
    a("L_k_idle:")
    a("s_barrier\ns_barrier\ns_barrier")
    a("v_lshlrev_b32 v4, 3, v1")
    def touch(srdn, base, per_rb, per_nb, nbytes):
        a(f"s_mul_i32 s28, s12, {per_rb}\ns_mul_i32 s3, s13, {per_nb}\ns_add_u32 s28, s28, s3\ns_add_u32 s28, s28, {base:#x}")
        n = nbytes // 128
        while n > 0:
            m = min(n, 64)
            if m < 64: a(f"s_mov_b32 exec_lo, {(1 << min(m, 32)) - 1:#x}\ns_mov_b32 exec_hi, {(1 << max(m - 32, 0)) - 1:#x}")
            a(f"buffer_load_dword v8, v4, s[{srdn}:{srdn+3}], s28 offen")
            n -= m
            if n > 0: a("s_add_u32 s28, s28, 8192")
        a("s_mov_b64 exec, -1")
    lt1, lt2 = a.label("pt"), a.label("pt")
    a(f"s_cmp_eq_u32 s14, 5\ns_cbranch_scc1 {lt1}")
    touch(8, WS_O, 81920, 10240, 10240); touch(8, WS_X1, 81920, 10240, 10240); touch(8, WS_ST1, 12288, 1536, 1536); touch(8, WS_ST2, 12288, 1536, 1536)
    a(f"s_branch {lt2}\n{lt1}:")
    touch(8, WS_Y, 98304, 12288, 12288)
    srd(a, 40, 44, 2048 * 1280)
    touch(40, 0, 81920, 10240, 10240)
    a(f"{lt2}:\ns_waitcnt vmcnt(0)")
    vote("L_k_pa")
    a("s_mov_b32 s24, 21\nL_k_idleb:\ns_barrier\ns_sub_u32 s24, s24, 1\ns_cmp_lg_u32 s24, 0\ns_cbranch_scc1 L_k_idleb\ns_branch L_k_pa")
    a("L_k_helper:")
    a(f"s_setprio {os.environ.get('X_HPRIO', '2')}")
    a(f"s_lshl_b32 s47, s15, 10\ns_add_u32 s46, s47, {WS_KV:#x}\ns_mov_b32 s30, {FG_KV:#x}")
    a("s_and_b32 s49, s12, 7\ns_lshl_b32 s3, s49, 11\ns_add_u32 s30, s30, s3\nv_and_b32 v4, 15, v2\nv_lshlrev_b32 v4, 7, v4")
    wg_poll(a, CTL + 60, lambda: poll_lines(a, 30, 16))
    stamp(a, 2)
    THR = int(os.environ.get("X_THR", "9"))
    def dma(goff, loff):
        ld = a.label("d")
        a(f"s_add_u32 s3, s49, {goff // KVCH}\ns_and_b32 s3, s3, 7\ns_mul_i32 s3, s3, {KVCH}\ns_add_u32 s31, s46, s3")
        for i in range(7):
            if i == 6: a(f"s_cmp_ge_u32 s15, 2\ns_cbranch_scc1 {ld}")
            if goff and i > THR: a(f"s_waitcnt vmcnt({THR})")
            a(f"s_add_u32 m0, s47, {loff + i*4096}\ns_add_u32 s48, s31, {i*4096}\nbuffer_load_dwordx4 v1, s[8:11], s48 offen sc1 lds")
        a(f"{ld}:")
    a("L_k_hmain:")
    dma(0, 0)
    a("s_waitcnt vmcnt(0)\ns_barrier")
    if os.environ.get("X_K2T") == "1": a("s_branch L_k_end")
    a(f"v_mov_b32 v6, {FLAG+32}\nv_mov_b32 v7, 1")
    a(f"s_mov_b32 s30, {FG_KV:#x}\nv_lshlrev_b32 v4, 3, v1")
    wg_poll(a, CTL + 72, lambda: poll_lines(a, 30, 128))
    dma(KVCH, KVCH); dma(2*KVCH, 2*KVCH)
    a("s_waitcnt vmcnt(0)\ns_barrier")
    for g in (3, 4, 5): dma(g*KVCH, g*KVCH)
    a("s_waitcnt vmcnt(0)\ns_barrier")
    lns = a.label("noside")
    if os.environ.get("X_K2T") == "2": a("s_branch L_k_end")
    a(f"s_cmp_lg_u32 s27, 0\ns_cbranch_scc1 {lns}")
    a(f"v_lshlrev_b32 v4, 3, v1\ns_mov_b32 s30, {FG_MOD:#x}")
    wg_poll(a, CTL + 40, lambda: poll_lines(a, 30, 120))
    pack_weights(a)
    a(f"s_lshl_b32 s6, s2, 7\ns_add_u32 s6, s6, {FG_PACK:#x}")
    wg_flag(a, CTL + 44, 4, 6)
    a(f"{lns}:")
    lw = a.label("wdone")
    a(f"v_mov_b32 v6, {FLAG+32}\nv_mov_b32 v7, 1\n{lw}:\nds_read_b32 v8, v6\ns_waitcnt lgkmcnt(0)\nv_readfirstlane_b32 s3, v8\ns_cmp_ge_u32 s3, 4\ns_cbranch_scc1 {lw}x\ns_sleep 8\ns_branch {lw}\n{lw}x:")
    dma(6*KVCH, 0); dma(7*KVCH, KVCH)
    a("s_waitcnt vmcnt(0)\ns_mov_b64 exec, 1\nds_add_u32 v6, v7 offset:4\ns_mov_b64 exec, -1\ns_waitcnt lgkmcnt(0)")
    stamp(a, 4)
    a(f"s_cmp_eq_u32 s27, 1\ns_cbranch_scc1 L_k_ra")
    srd(a, 40, 58, 2048 * 4096)
    a("s_lshl_b32 s17, s12, 1\ns_lshr_b32 s3, s15, 1\ns_add_u32 s17, s17, s3\ns_lshl_b32 s16, s13, 4\ns_and_b32 s3, s15, 1\ns_lshl_b32 s3, s3, 3\ns_add_u32 s16, s16, s3")
    a("s_lshl_b32 s6, s17, 17\ns_lshl_b32 s7, s16, 5\ns_add_u32 s6, s6, s7\nv_lshlrev_b32 v4, 12, v2\nv_lshl_add_u32 v4, v3, 4, v4")
    for i in range(8): a(f"buffer_load_dwordx4 v[{8+4*i}:{11+4*i}], v4, s[40:43], s6 offen offset:{32*i} nt")
    a(f"s_lshl_b32 s6, s17, 7\ns_add_u32 s6, s6, s16\ns_lshl_b32 s6, s6, 10\ns_add_u32 s6, s6, {WS_WSP:#x}")
    xid_load(a, WS_FL1, 40)
    a("s_waitcnt vmcnt(0)")
    xid_decide(a, 40)
    for i in range(8):
        hstore(a, f"buffer_store_dwordx4 v[{8+4*i}:{11+4*i}], v1, s[8:11], s6 offen offset:{(i%4)*1024}")
        if i == 3: a("s_add_u32 s6, s6, 4096")
    stamp(a, 5)
    a(f"s_mov_b32 s30, {FG_PACK:#x}\nv_lshlrev_b32 v4, 3, v1")
    wg_poll(a, CTL + 48, lambda: poll_lines(a, 30, 256))
    a(f"s_lshl_b32 s3, s12, 8\ns_lshl_b32 s6, s13, 2\ns_add_u32 s6, s6, s15\ns_lshl_b32 s6, s6, 2\ns_add_u32 s3, s3, s6\ns_add_u32 s3, s3, {WS_FL3 + 6144 - 6144 + 0x2000:#x}\nv_mov_b32 v8, 0\nv_mov_b32 v9, s50\ns_mov_b64 exec, 1")
    hstore(a, "buffer_store_dword v9, v8, s[8:11], s3 offen")
    a("s_mov_b64 exec, -1")
    if os.environ.get("X_PFA", "2") == "2": prefetch(a, 8, WS_WIN, 1920 * 1024, 4, 15, 8, 4, 28)
    stamp(a, 6)
    a("L_k_ra:")
    a("s_mul_i32 s20, s15, 3072\ns_lshl_b32 s16, s12, 1\ns_lshr_b32 s3, s15, 1\ns_add_u32 s16, s16, s3")
    GA.lsetup(a, WS_O, 40, WS_WO, 18, 19, 21, AFL)
    GB.lsetup(a, WS_X1, 40, WS_WIN, 22, 23, 26, AFL)
    lw2 = a.label("w6")
    a(f"v_mov_b32 v6, {FLAG+32}\n{lw2}:\nds_read_b32 v11, v6\ns_waitcnt lgkmcnt(0)\nv_readfirstlane_b32 s3, v11\ns_cmp_ge_u32 s3, 8\ns_cbranch_scc1 {lw2}x\ns_sleep 8\ns_branch {lw2}\n{lw2}x:")
    a.vmq = []
    a(f"s_mul_i32 s6, s13, 320\ns_add_u32 s6, s6, {WS_MOD + 5120}")
    dma1(a, PAR6, 6, "par")
    a(f"s_add_u32 s6, s6, {12800 - 5120}")
    dma1(a, GB_LDS, 6, "par")
    a(f"s_mul_i32 s6, s13, 1536\ns_lshl_b32 s7, s15, 9\ns_add_u32 s6, s6, s7\ns_add_u32 s6, s6, {WS_UTP:#x}\nv_lshrrev_b32 v10, 1, v1")
    for i in range(10):
        a.vm(f"buffer_load_dwordx2 v[{12+2*i}:{13+2*i}], v10, s[8:11], s6 offen", "ut")
        a(f"s_add_u32 s6, s6, {1536*8}")
    for s in range(3): GA.issue_w(s)
    lu = a.label("nou")
    a.wait(vm=["ut"])
    a(f"s_cmp_eq_u32 s15, 3\ns_cbranch_scc1 {lu}")
    for i in range(1, 10): a(f"v_add_f32 v12, v12, v{12+2*i}\nv_add_f32 v13, v13, v{13+2*i}")
    a(f"s_lshl_b32 s7, s15, 9\ns_add_u32 s7, s7, {PAR6+1024}\nv_add_u32 v10, s7, v10\nds_write_b64 v10, v[12:13]\ns_waitcnt lgkmcnt(0)\n{lu}:")
    stamp(a, 7)
    a("s_cmp_eq_u32 s27, 1\ns_cbranch_scc1 L_k_wend")
    vote("L_k_la")
    a("s_waitcnt vmcnt(0)\ns_mov_b32 s24, 0")
    a("L_k_hmax:")
    a("s_barrier")
    dma(0, 0)
    a(f"s_add_u32 s49, s49, 1\ns_waitcnt vmcnt(0)\ns_barrier\ns_add_u32 s24, s24, 1\ns_cmp_lt_u32 s24, 8\ns_cbranch_scc1 L_k_hmax")
    a(f"s_barrier\ns_branch L_k_hmain")
    a("L_k_wend:\ns_barrier")
    a("L_k_la:")
    GA.issue_w(3)
    handoff_wait(a, WS_FL0, 32)
    stamp(a, 8)
    GA.issue_a(0)
    a.wait(vm=[("st", GA.g0)])
    a("s_barrier")
    for s in range(1, DEP6): GA.issue_a(s)
    GA.issue(DEP6)
    for s in range(1, 10): GA.lstep(s, 10, GB.issue_w)
    handoff_wait(a, WS_FL3 + 0x2000 - 32, 32)
    handoff_wait(a, WS_FL1, 48)
    GB.issue_a(0)
    a.wait(vm=[("st", GB.g0)])
    a("s_barrier")
    for s in range(1, DEP6): GB.issue_a(s)
    GB.issue(DEP6)
    GC.lsetup(a, WS_WSP, 128, WS_Z2T, 18, 19, 21, AFL, AFL)
    for s in range(1, 20): GB.lstep(s, 20)
    a("s_barrier")
    for s in range(DEP6): GC.issue_a(s)
    GD.lsetup(a, WS_Y, 48, WS_WOUT, 22, 23, 26, AFL)
    a(f"s_lshl_b32 s30, s13, 12\ns_add_u32 s30, s30, {FG_Z2:#x}\nv_lshlrev_b32 v4, 7, v2")
    wg_poll(a, CTL + 52, lambda: poll_lines(a, 30, 32))
    stamp(a, 9)
    GC.issue_w(0)
    a.wait(vm=[("st", GC.g0)])
    a("s_barrier")
    for s in range(1, DEP6): GC.issue_w(s)
    GC.issue(DEP6)
    GC.lstep(1, 32)
    a("s_mov_b32 s30, 4\nL_k_lloop:")
    for s in range(2, 8): GC.lstep(s, 32)
    a("s_sub_u32 s30, s30, 1\ns_cmp_lg_u32 s30, 0\ns_cbranch_scc1 L_k_lloop")
    a.vmq = [(t[0], t[1] + 18) if isinstance(t, tuple) else t for t in a.vmq]
    if RA_D:
        for s in range(26, 32): GC.lstep(s, 32, GD.issue_w)
    else:
        for s in range(26, 32): GC.lstep(s, 32)
        a("s_barrier")
        for s in range(DEP6): GD.issue_w(s)
    handoff_wait(a, WS_FL2, 48)
    GD.issue_a(0)
    a.wait(vm=[("st", GD.g0)])
    a("s_barrier")
    for s in range(1, DEP6): GD.issue_a(s)
    GD.issue(DEP6)
    for s in range(1, 12): GD.lstep(s, 12)
    end(a)
    a("L_k_textend:")
    finish(a, 256, 640, FLAG + 320, 168)


def pack_weights(a):
    LO, HI, PC = 8, 24, 40
    lo_, ld = a.label("pko"), a.label("pkd")
    a(f"s_lshl_b32 s28, s2, 2\ns_add_u32 s28, s28, s15\nv_mul_u32_u24 v5, {4*3072}, v3\ns_cmp_ge_u32 s28, 480\ns_cbranch_scc1 {lo_}")
    srd(a, 40, 56, 640 * 3072)
    divmod_s(a, 16, 17, 28, 10, 3)
    divmod_s(a, 18, 19, 16, 6, 3)
    a("s_mul_i32 s6, s18, 96\ns_lshl_b32 s7, s19, 5\ns_add_u32 s6, s6, s7\ns_cmp_lt_u32 s19, 3\ns_cselect_b32 s7, 864, 0\ns_add_u32 s6, s6, s7\ns_sub_u32 s6, s6, 96")
    a(f"v_add_lshl_u32 v4, v2, s6, 1\nv_add_u32 v4, v4, v5\ns_mul_i32 s22, s17, {64*3072}")
    for q in range(4):
        loads8(a, 40, 4, LO + 4*q, HI + 4*q, 22, [16*q + e for e in E_PERM], 3072, 7)
    a(f"v_lshlrev_b32 v6, 4, v3\ns_lshl_b32 s7, s17, 8\ns_add_u32 s7, s7, {WS_MOD + 7680}")
    for q in range(4):
        for arr in range(2):
            for hf in range(2):
                P = PC + 16*q + 8*arr + 4*hf
                a(f"buffer_load_dwordx4 v[{P}:{P+3}], v6, s[8:11], s7 offen offset:{arr*2560 + 64*q + 32*hf} sc1")
    a("v_mov_b32 v6, 0\nv_mov_b32 v7, 0")
    a(f"s_mul_i32 s22, s18, 40\ns_lshl_b32 s7, s17, 2\ns_add_u32 s22, s22, s7\ns_mul_i32 s22, s22, 6\ns_add_u32 s22, s22, s19\ns_lshl_b32 s22, s22, 10\ns_add_u32 s22, s22, {WS_WIN:#x}\ns_waitcnt vmcnt(0)")
    for q in range(4):
        for d in range(4):
            l, h, P = LO + 4*q + d, HI + 4*q + d, PC + 16*q
            a(f"v_lshlrev_b32 v{l}, 16, v{l}\nv_lshlrev_b32 v{h}, 16, v{h}\nv_fmac_f32 v7, v{l}, v{P+2*d}\nv_fmac_f32 v7, v{h}, v{P+2*d+1}\nv_mul_f32 v{l}, v{l}, v{P+8+2*d}\nv_mul_f32 v{h}, v{h}, v{P+9+2*d}")
            a(f"v_cvt_pk_bf16_f32 v{l}, v{l}, v{h}\nv_lshlrev_b32 v{h}, 16, v{l}\nv_and_b32 v5, 0xffff0000, v{l}\nv_add_f32 v6, v6, v{h}\nv_add_f32 v6, v6, v5")
        a(f"buffer_store_dwordx4 v[{LO+4*q}:{LO+4*q+3}], v1, s[8:11], s22 offen sc1\ns_add_u32 s22, s22, 6144")
    a("v_mov_b32 v40, v6\nv_mov_b32 v41, v7\ns_nop 1\nv_permlane32_swap_b32 v6, v40\nv_permlane32_swap_b32 v7, v41\ns_nop 1\nv_add_f32 v6, v6, v40\nv_add_f32 v7, v7, v41")
    a(f"s_mul_i32 s22, s17, {1536*8}\ns_lshl_b32 s7, s16, 8\ns_add_u32 s22, s22, s7\ns_add_u32 s22, s22, {WS_UTP:#x}\nv_lshlrev_b32 v4, 3, v2\ns_mov_b32 exec_hi, 0")
    a(f"buffer_store_dwordx2 v[6:7], v4, s[8:11], s22 offen sc1\ns_mov_b32 exec_hi, -1\ns_branch {ld}")
    a(f"{lo_}:\ns_sub_u32 s28, s28, 480\ns_cmp_ge_u32 s28, 528\ns_cbranch_scc1 {ld}")
    a(f"s_mov_b32 s42, {768*1280}\ns_mov_b32 s31, {WS_WOUT:#x}\ns_mov_b32 s6, {(1<<20)//12+1}\ns_cmp_lt_u32 s28, 240\ns_cselect_b32 s40, s52, s54\ns_cselect_b32 s41, s53, s55\ns_mov_b32 s43, 0x20000\ns_cselect_b32 s30, 40, 48")
    a(f"s_cmov_b32 s42, {640*1280}\ns_cmov_b32 s31, {WS_WO:#x}\ns_cmov_b32 s6, {(1<<20)//10+1}\ns_cselect_b32 s7, 0, 240\ns_sub_u32 s28, s28, s7")
    a("s_mul_i32 s16, s28, s6\ns_lshr_b32 s16, s16, 20\ns_lshr_b32 s7, s30, 2\ns_mul_i32 s7, s7, s16\ns_sub_u32 s17, s28, s7")
    divmod_s(a, 18, 19, 16, 3, 3)
    a(f"s_mul_i32 s6, s18, 80\ns_lshl_b32 s7, s19, 5\ns_add_u32 s6, s6, s7\nv_add_lshl_u32 v4, v2, s6, 1\nv_mul_u32_u24 v5, {4*1280}, v3\nv_add_u32 v4, v4, v5\ns_mul_i32 s22, s17, {64*1280}")
    for q in range(4):
        loads8(a, 40, 4, LO + 4*q, HI + 4*q, 22, [16*q + e for e in E_PERM], 1280, 7)
    a("s_mul_i32 s22, s18, s30\ns_lshl_b32 s7, s17, 2\ns_add_u32 s22, s22, s7\ns_mul_i32 s22, s22, 3\ns_add_u32 s22, s22, s19\ns_lshl_b32 s22, s22, 10\ns_add_u32 s22, s22, s31\ns_waitcnt vmcnt(0)")
    for q in range(4):
        for d in range(4): a(f"v_lshl_or_b32 v{LO+4*q+d}, v{HI+4*q+d}, 16, v{LO+4*q+d}")
        a(f"buffer_store_dwordx4 v[{LO+4*q}:{LO+4*q+3}], v1, s[8:11], s22 offen sc1\ns_add_u32 s22, s22, 3072")
    a(f"{ld}:")

def emit(path):
    (n, lines, g, b, lds, nv, ao) = kernels[0]
    bad = 0
    errs = check_hazards(lines, n) + ([] if PROF else check_waits(lines, n))
    for e in errs:
        p = e.split("touched by")
        if "buffer_load_ushort" in p[0] and "buffer_load_ushort" in p[-1]: continue
        if "buffer_load_dword v" in p[0] and "buffer_load_dword v" in p[-1]: continue
        print("CHECK", e); bad += 1
    hdr = open("adaLN_cond__grouped_kv_mqa__mixer_gmlp__prompt.s.ref").read().split("; Override launch geometry")[0]
    out = [hdr + f"; @launch grid=({g},1,1) block=({b},1,1) lds={lds}", '.amdgcn_target "amdgcn-amd-amdhsa--gfx950"\n.text']
    out.append(f".globl {KNAME}\n.p2align 8\n.type {KNAME},@function\n{KNAME}:")
    t = Asm(); t.lines = lines
    out.append(t.text())
    out.append(f""".section .rodata,"a"
.p2align 6
.amdhsa_kernel {KNAME}
  .amdhsa_next_free_vgpr {nv}
  .amdhsa_next_free_sgpr {100 if PROF else 64}
  .amdhsa_accum_offset {ao}
  .amdhsa_group_segment_fixed_size 0
  .amdhsa_kernarg_size 120
  .amdhsa_user_sgpr_count 2
  .amdhsa_user_sgpr_kernarg_segment_ptr 1
  .amdhsa_system_sgpr_workgroup_id_x 1
.end_amdhsa_kernel""")
    open(path, "w").write("\n".join(out) + "\n")
    print("wrote", path, "checks failed:", bad)

if __name__ == "__main__":
    kmain()
    emit(sys.argv[1] if len(sys.argv) > 1 else "one.s")
```
